```python
import torch

def _softmax(x, axis=-1):
    return torch.softmax(x, dim=axis)
def _gelu(x):
    return torch.nn.functional.gelu(x, approximate="tanh")
def _silu(x):
    return torch.nn.functional.silu(x)
def _sigmoid(x):
    return torch.sigmoid(x)
def _layernorm(x, axis=-1, eps=1e-5):
    m = x.mean(dim=axis, keepdim=True)
    v = x.var(dim=axis, keepdim=True, unbiased=False)
    return (x - m) / torch.sqrt(v + eps)
def _scatter_add(tgt, idx, src, axis=0):
    return tgt.clone().index_add_(axis, idx, src)
def _segment_sum(src, seg, n):
    out = torch.zeros((n,) + src.shape[1:], dtype=src.dtype)
    return out.index_add_(0, seg, src)
def _pad(x, pw):
    flat = tuple(v for pair in reversed(pw) for v in pair)
    return torch.nn.functional.pad(x, flat)

kernel_name = 'parallel_sum__ssm_conv_h3__mixer_token_mlp__prompt'

def setup_inputs():

    _w = (lambda a: (lambda t: t.to(torch.bfloat16) if t.is_floating_point() else t)(torch.as_tensor(a)))
    def _A_setup():
        B, S, D = 1, 2048, 640
        ks = 4
        return {
            "q": _w((lambda *s: torch.randn(*s, dtype=torch.bfloat16) * 0.05)(B, S, D)),
            "k": _w((lambda *s: torch.randn(*s, dtype=torch.bfloat16) * 0.2)(B, S, D)),
            "v": _w((lambda *s: torch.randn(*s, dtype=torch.bfloat16) * 0.2)(B, S, D)),
            "shift_k": _w((lambda *s: torch.randn(*s, dtype=torch.bfloat16) * 0.2)(D, ks) * 0.5),
            "ssm_k": _w((lambda *s: torch.randn(*s, dtype=torch.bfloat16) * 0.2)(D, S) * (1.0 / S ** 0.5)),
            "ssm_D": _w((lambda *s: torch.randn(*s, dtype=torch.bfloat16) * 0.2)(D)),
        }
    _A_in = _A_setup()

    def _B_setup():
        B, S, D, F = 1, 2048, 640, 1536
        return {
            "x": _w((lambda *s: torch.randn(*s, dtype=torch.bfloat16) * 0.05)(B, S, D)),
            "w1": _w((lambda *s: torch.randn(*s, dtype=torch.bfloat16) * 0.4)(S, F) * (S ** -0.5)),
            "b1": _w((lambda *s: torch.randn(*s, dtype=torch.bfloat16) * 3.2)(F) * 0.02),
            "w2": _w((lambda *s: torch.randn(*s, dtype=torch.bfloat16) * 0.1)(F, S) * (F ** -0.5)),
            "b2": _w((lambda *s: torch.randn(*s, dtype=torch.bfloat16) * 0.4)(S) * 0.02),
        }
    _B_in = _B_setup()

    return {
        "A_q": _A_in["q"],
        "A_k": _A_in["k"],
        "A_v": _A_in["v"],
        "A_shift_k": _A_in["shift_k"],
        "A_ssm_k": _A_in["ssm_k"],
        "A_ssm_D": _A_in["ssm_D"],
        "B_x": _B_in["x"],
        "B_w1": _B_in["w1"],
        "B_b1": _B_in["b1"],
        "B_w2": _B_in["w2"],
        "B_b2": _B_in["b2"],
    }

def reference(A_q, A_k, A_v, A_shift_k, A_ssm_k, A_ssm_D, B_x, B_w1, B_b1, B_w2, B_b2):
    def _A_ref(q, k, v, shift_k, ssm_k, ssm_D):
        B, S, D = q.shape
        ks = shift_k.shape[-1]
        k_pad = _pad(k, ((0, 0), (ks - 1, 0), (0, 0)))
        k_shift = torch.zeros_like(k)
        for t in range(ks):
            k_shift = k_shift + k_pad[:, t:t + S, :] * shift_k[:, ks - 1 - t][None, None, :]
        kv = k_shift * v
        L = 2 * S
        kv_pad = _pad(kv, ((0, 0), (0, S), (0, 0)))
        kf_pad = _pad(ssm_k, ((0, 0), (0, S)))
        kv_f = (lambda x, axes=(-2,-1): torch.fft.rfft2(x.float(), dim=axes))(kv_pad[:, None, :, :], axes=(1, 2))
        kf_f = (lambda x, axes=(-2,-1): torch.fft.rfft2(x.float(), dim=axes))(kf_pad[:, None, :], axes=(1, 2))
        kf_f = (lambda x, *d: x.permute(*d))(kf_f, 1, 2, 0)
        y_f = kv_f * kf_f[None, :, :, :]
        y = (lambda x, s, axes=(-2,-1): torch.fft.irfft2(x, s=s, dim=axes).to(torch.bfloat16))(y_f, (1, L), axes=(1, 2))[:, 0, :S, :]
        y = y + kv * ssm_D[None, None, :]
        return q * y

    def _B_ref(x, w1, b1, w2, b2):
        B, S, D = x.shape
        h = _layernorm(x, axis=-1)
        u = torch.einsum("bsd,sf->bdf", h, w1) + b1
        u = _gelu(u)
        y = torch.einsum("bdf,fs->bds", u, w2) + b2
        return (lambda x, *d: x.permute(*d))(y, 0, 2, 1)

    x = A_q
    xn = _layernorm(x, axis=-1)
    return x + _A_ref(xn, A_k, A_v, A_shift_k, A_ssm_k, A_ssm_D) + _B_ref(xn, B_w1, B_b1, B_w2, B_b2)
```

```python
class Asm:
    def __init__(self):
        self.lines = []
    def __call__(self, s, c=None):
        for part in s.split("\n"):
            part = part.strip()
            if part:
                self.lines.append("    " + part + (("    ; " + c) if c else ""))
    def label(self, l):
        self.lines.append(l + ":")
    def comment(self, c):
        self.lines.append("    ; " + c)
    def raw(self, s):
        self.lines.append(s)
    def text(self):
        return "\n".join(self.lines) + "\n"

def vr(a, n=1):
    return f"v{a}" if n == 1 else f"v[{a}:{a+n-1}]"
def ar(a, n=1):
    return f"a{a}" if n == 1 else f"a[{a}:{a+n-1}]"
def sr(a, n=1):
    return f"s{a}" if n == 1 else f"s[{a}:{a+n-1}]"

import struct
def f32(x):
    return "0x%08x" % struct.unpack("<I", struct.pack("<f", x))[0]

def kernel_begin(a, name):
    a.raw(".globl " + name)
    a.raw(".p2align 8")
    a.raw(f".type {name},@function")
    a.label(name)

def kernel_desc(name, vgpr, sgpr, accum=None):
    if accum is None:
        accum = (vgpr + 3) // 4 * 4
    return f""".p2align 6
.amdhsa_kernel {name}
  .amdhsa_next_free_vgpr {vgpr}
  .amdhsa_next_free_sgpr {sgpr}
  .amdhsa_accum_offset {accum}
  .amdhsa_group_segment_fixed_size 0
  .amdhsa_kernarg_size 112
  .amdhsa_user_sgpr_count 2
  .amdhsa_user_sgpr_kernarg_segment_ptr 1
  .amdhsa_system_sgpr_workgroup_id_x 1
  .amdhsa_float_denorm_mode_32 3
.end_amdhsa_kernel
"""

def srd(a, d, base_lo, nbytes, add=0):
    if add:
        a(f"s_add_u32 s{d}, s{base_lo}, {add}")
        a(f"s_addc_u32 s{d+1}, s{base_lo+1}, 0")
    else:
        a(f"s_mov_b32 s{d}, s{base_lo}")
        a(f"s_mov_b32 s{d+1}, s{base_lo+1}")
    a(f"s_mov_b32 s{d+2}, {nbytes}")
    a(f"s_mov_b32 s{d+3}, 0x00020000")
```

```python
from asmlib import *
from layout import *

K1_GRID = 416
K1_BLOCK = 512
K1_LDS = 8 * 1344
HROW = 1344

def dpp_reduce2(a, va, vb):
    steps = ["row_shr:1 row_mask:0xf bank_mask:0xf bound_ctrl:0",
             "row_shr:2 row_mask:0xf bank_mask:0xf bound_ctrl:0",
             "row_shr:4 row_mask:0xf bank_mask:0xf bound_ctrl:0",
             "row_shr:8 row_mask:0xf bank_mask:0xf bound_ctrl:0",
             "row_bcast:15 row_mask:0xa bank_mask:0xf",
             "row_bcast:31 row_mask:0xc bank_mask:0xf"]
    a("s_nop 1")
    for st in steps:
        a(f"v_add_f32_dpp v{va}, v{va}, v{va} {st}")
        a(f"v_add_f32_dpp v{vb}, v{vb}, v{vb} {st}")
        a("s_nop 0")

def stats(a, s_sum, s_sq, pivot_s, vm, vr_, t0, t1):
    inv = f32(1.0 / D)
    a(f"v_mov_b32 v{t0}, s{s_sum}")
    a(f"v_mov_b32 v{t1}, s{s_sq}")
    a(f"v_mul_f32 v{t0}, {inv}, v{t0}")
    a(f"v_mul_f32 v{t1}, {inv}, v{t1}")
    a(f"v_fma_f32 v{t1}, -v{t0}, v{t0}, v{t1}")
    a(f"v_max_f32 v{t1}, 0, v{t1}")
    if pivot_s is not None:
        a(f"v_add_f32 v{t0}, s{pivot_s}, v{t0}")
    a(f"v_cvt_pk_bf16_f32 v{t0}, v{t0}, v{t1}")
    a(f"v_lshlrev_b32 v{vm}, 16, v{t0}")
    a(f"v_and_b32 v{t1}, 0xffff0000, v{t0}")
    a(f"v_add_f32 v{t1}, {f32(1e-5)}, v{t1}")
    a(f"v_cvt_pk_bf16_f32 v{t1}, v{t1}, v{t1}")
    a(f"v_lshlrev_b32 v{t1}, 16, v{t1}")
    a(f"v_sqrt_f32 v{t1}, v{t1}")
    a("s_nop 0")
    a(f"v_cvt_pk_bf16_f32 v{t1}, v{t1}, v{t1}")
    a(f"v_lshlrev_b32 v{t1}, 16, v{t1}")
    a(f"v_rcp_f32 v{vr_}, v{t1}")
    a("s_nop 0")

def gen_k1(a):
    kernel_begin(a, "k1_kernel")
    a(f"s_cmp_ge_u32 s2, {K1_GRID}")
    a("s_cbranch_scc1 K1_END")
    a("s_load_dwordx4 s[4:7], s[0:1], 0", "x, k")
    a("s_load_dwordx4 s[8:11], s[0:1], 16", "v, shift_k")
    a(f"s_load_dwordx2 s[12:13], s[0:1], {ARG['ws']}")
    a("v_lshrrev_b32 v1, 6, v0")
    a("v_and_b32 v2, 63, v0", "lane")
    a("v_readfirstlane_b32 s3, v1", "wave")
    a("v_lshlrev_b32 v3, 2, v2", "lane*4")
    a("s_cmp_ge_u32 s2, 256")
    a("s_cbranch_scc1 K1_KV")
    a("s_lshl_b32 s14, s2, 3")
    a("s_add_u32 s14, s14, s3", "row")
    a("s_mul_i32 s15, s14, 1280")
    a(f"s_mul_i32 s24, s3, {HROW}")
    a("v_add_u32 v4, s24, v3", "lds write addr")
    a("s_waitcnt lgkmcnt(0)")
    srd(a, 16, 4, SD_BYTES)
    for i in range(5):
        a(f"buffer_load_dword v{10+i}, v3, s[16:19], s15 offen offset:{i*256}")
    srd(a, 28, 12, SD_BYTES, HBLK_OFF)
    srd(a, 32, 12, STAT_BYTES, STAT_OFF)
    a("v_lshrrev_b32 v5, 4, v2")
    a("v_lshlrev_b32 v5, 5, v5", "32*G")
    a("v_and_b32 v6, 3, v2")
    a("v_lshl_add_u32 v5, v6, 3, v5", "+8c")
    a("v_bfe_u32 v6, v2, 2, 2")
    a(f"v_mul_u32_u24 v6, {HROW}, v6")
    a("v_add_u32 v5, v5, v6")
    a("s_lshl_b32 s25, s3, 7")
    a("v_add_u32 v5, s25, v5", "tr addr")
    a("s_mul_i32 s26, s2, 10240")
    a("s_lshl_b32 s27, s3, 10")
    a("s_add_u32 s26, s26, s27")
    a("v_lshlrev_b32 v7, 4, v2")
    X = 20; A = 30
    for i in range(5):
        a(f"s_waitcnt vmcnt({4-i})")
        a(f"v_lshlrev_b32 v{X+2*i}, 16, v{10+i}")
        a(f"v_and_b32 v{X+2*i+1}, 0xffff0000, v{10+i}")
        if i == 0:
            a(f"v_readfirstlane_b32 s20, v{X}", "pivot")
    for i in range(5):
        a(f"v_pk_add_f32 v[{A+2*i}:{A+2*i+1}], v[{X+2*i}:{X+2*i+1}], s[20:21] op_sel_hi:[1,0] neg_lo:[0,1] neg_hi:[0,1]")
    a(f"v_pk_mul_f32 v[42:43], v[{A}:{A+1}], v[{A}:{A+1}]")
    a(f"v_pk_add_f32 v[40:41], v[{A}:{A+1}], v[{A+2}:{A+3}]")
    for i in range(1, 5):
        a(f"v_pk_fma_f32 v[42:43], v[{A+2*i}:{A+2*i+1}], v[{A+2*i}:{A+2*i+1}], v[42:43]")
        if i >= 2:
            a(f"v_pk_add_f32 v[40:41], v[40:41], v[{A+2*i}:{A+2*i+1}]")
    a("v_add_f32 v40, v40, v41")
    a("v_add_f32 v41, v42, v43")
    dpp_reduce2(a, 40, 41)
    a("v_readlane_b32 s22, v40, 63")
    a("v_readlane_b32 s23, v41, 63")
    a("s_nop 1")
    stats(a, 22, 23, 20, 44, 45, 46, 47)
    a("s_lshl_b32 s27, s14, 3")
    a("v_mov_b32 v8, s27")
    a("v_cmp_eq_u32 vcc, 0, v2")
    a("s_and_saveexec_b64 s[36:37], vcc")
    a("buffer_store_dwordx2 v[44:45], v8, s[32:35], 0 offen")
    a("s_mov_b64 exec, s[36:37]")
    a("v_mul_f32 v46, v44, v45", "m*r")
    a("v_mov_b32 v48, v45")
    for i in range(5):
        a(f"v_pk_fma_f32 v[{A+2*i}:{A+2*i+1}], v[{X+2*i}:{X+2*i+1}], v[48:49], v[46:47] op_sel_hi:[1,0,0] neg_lo:[0,0,1] neg_hi:[0,0,1]")
    for i in range(5):
        a(f"v_cvt_pk_bf16_f32 v{10+i}, v{A+2*i}, v{A+2*i+1}")
    for i in range(5):
        a(f"v_lshlrev_b32 v{X+2*i}, 16, v{10+i}")
        a(f"v_and_b32 v{X+2*i+1}, 0xffff0000, v{10+i}")
    a(f"v_pk_mul_f32 v[42:43], v[{X}:{X+1}], v[{X}:{X+1}]")
    a(f"v_pk_add_f32 v[40:41], v[{X}:{X+1}], v[{X+2}:{X+3}]")
    for i in range(1, 5):
        a(f"v_pk_fma_f32 v[42:43], v[{X+2*i}:{X+2*i+1}], v[{X+2*i}:{X+2*i+1}], v[42:43]")
        if i >= 2:
            a(f"v_pk_add_f32 v[40:41], v[40:41], v[{X+2*i}:{X+2*i+1}]")
    a("v_add_f32 v40, v40, v41")
    a("v_add_f32 v41, v42, v43")
    dpp_reduce2(a, 40, 41)
    a("v_readlane_b32 s22, v40, 63")
    a("v_readlane_b32 s23, v41, 63")
    a("s_nop 1")
    stats(a, 22, 23, None, 50, 48, 46, 47)
    a("v_mul_f32 v46, v50, v48")
    for i in range(5):
        a(f"v_pk_fma_f32 v[{A+2*i}:{A+2*i+1}], v[{X+2*i}:{X+2*i+1}], v[48:49], v[46:47] op_sel_hi:[1,0,0] neg_lo:[0,0,1] neg_hi:[0,0,1]")
    for i in range(5):
        a(f"v_cvt_pk_bf16_f32 v{10+i}, v{A+2*i}, v{A+2*i+1}")
        a(f"ds_write_b32 v4, v{10+i} offset:{i*256}")
    a("s_waitcnt lgkmcnt(0)")
    a("s_barrier")
    a("ds_read_b64_tr_b16 v[52:53], v5")
    a(f"ds_read_b64_tr_b16 v[54:55], v5 offset:{4*HROW}")
    a("s_cmp_ge_u32 s3, 2")
    a("s_cbranch_scc1 K1_LN_ONE")
    a("ds_read_b64_tr_b16 v[56:57], v5 offset:1024")
    a(f"ds_read_b64_tr_b16 v[58:59], v5 offset:{4*HROW+1024}")
    a("s_add_u32 s27, s26, 8192")
    a("s_waitcnt lgkmcnt(0)")
    a("buffer_store_dwordx4 v[56:59], v7, s[28:31], s27 offen")
    a.label("K1_LN_ONE")
    a("s_waitcnt lgkmcnt(0)")
    a("buffer_store_dwordx4 v[52:55], v7, s[28:31], s26 offen")
    a("s_endpgm")
    a.label("K1_KV")
    a("s_sub_u32 s14, s2, 256")
    a("s_lshl_b32 s14, s14, 3")
    a("s_add_u32 s14, s14, s3", "W in [0,1280)")
    a("s_mul_hi_u32 s15, s14, 0x33333334", "j = W/5")
    a("s_mul_i32 s20, s15, 5")
    a("s_sub_u32 s20, s14, s20", "cw = W%5")
    a("s_lshl_b32 s21, s20, 8", "cw*256 bytes")
    a("s_mul_i32 s22, s15, 10240", "j*8 rows*1280")
    a("s_add_u32 s23, s22, s21")
    a("v_add_u32 v4, s23, v3", "main rows 0..3")
    a("v_add_u32 v5, 5120, v4", "main rows 4..7")
    a("v_subrev_u32 v6, 3840, v4", "halo rows -3..-1")
    a("s_lshl_b32 s21, s20, 10")
    a("v_lshl_add_u32 v7, v2, 4, s21", "shift_k offset = c*16")
    a("s_lshl_b32 s21, s20, 11")
    a("s_add_u32 s21, s21, s22")
    a("v_lshl_add_u32 v8, v2, 5, s21", "store offset = (j*640+2c)*16")
    a("s_waitcnt lgkmcnt(0)")
    srd(a, 16, 6, SD_BYTES)
    srd(a, 24, 8, SD_BYTES)
    srd(a, 28, 10, D * 8)
    srd(a, 32, 12, SD_BYTES, KVB_OFF)
    KR = 10
    VR = 21
    WR = 32
    a(f"buffer_load_dwordx4 v[{WR}:{WR+3}], v7, s[28:31], 0 offen")
    for r in range(3):
        a(f"buffer_load_dword v{KR+r}, v6, s[16:19], 0 offen offset:{r*1280}")
    for r in range(8):
        a(f"buffer_load_dword v{KR+3+r}, v{4 + r//4}, s[16:19], 0 offen offset:{(r%4)*1280}")
    for r in range(8):
        a(f"buffer_load_dword v{VR+r}, v{4 + r//4}, s[24:27], 0 offen offset:{(r%4)*1280}")
    WP = 36
    a("s_waitcnt vmcnt(19)")
    for t in range(4):
        for ch in range(2):
            src = WR + 2 * ch + t // 2
            if t % 2 == 0:
                a(f"v_lshlrev_b32 v{WP+2*t+ch}, 16, v{src}")
            else:
                a(f"v_and_b32 v{WP+2*t+ch}, 0xffff0000, v{src}")
    KP = 44
    for r in range(11):
        a(f"s_waitcnt vmcnt({18-r})")
        a(f"v_lshlrev_b32 v{KP+2*r}, 16, v{KR+r}")
        a(f"v_and_b32 v{KP+2*r+1}, 0xffff0000, v{KR+r}")
    KS = 66
    for r in range(8):
        a(f"v_pk_mul_f32 v[{KS+2*r}:{KS+2*r+1}], v[{KP+2*r}:{KP+2*r+1}], v[{WP+6}:{WP+7}]")
    for t in (2, 1, 0):
        for r in range(8):
            i = r + 3 - t
            a(f"v_pk_fma_f32 v[{KS+2*r}:{KS+2*r+1}], v[{KP+2*i}:{KP+2*i+1}], v[{WP+2*t}:{WP+2*t+1}], v[{KS+2*r}:{KS+2*r+1}]")
    for r in range(8):
        a(f"s_waitcnt vmcnt({7-r})")
        a(f"v_lshlrev_b32 v{KP+2*r}, 16, v{VR+r}")
        a(f"v_and_b32 v{KP+2*r+1}, 0xffff0000, v{VR+r}")
    for r in range(8):
        a(f"v_pk_mul_f32 v[{KS+2*r}:{KS+2*r+1}], v[{KS+2*r}:{KS+2*r+1}], v[{KP+2*r}:{KP+2*r+1}]")
    for ch in range(2):
        for q in range(4):
            a(f"v_cvt_pk_bf16_f32 v{12+4*ch+q}, v{KS+2*(7-2*q)+ch}, v{KS+2*(6-2*q)+ch}")
    a("buffer_store_dwordx4 v[12:15], v8, s[32:35], 0 offen")
    a("buffer_store_dwordx4 v[16:19], v8, s[32:35], 0 offen offset:16")
    a.label("K1_END")
    a("s_endpgm")
    return kernel_desc("k1_kernel", 88, 48)
```

```python
from asmlib import *
from layout import *
import math

K2_GRID = 240
K2_BLOCK = 512
RING = 16384
CONV_BASE = 5 * RING
CV_K0 = 4608
CV_K1 = 8768
CONV_SZ = 12928
CNT_OFF = CONV_BASE + 3 * CONV_SZ
K2_LDS = CNT_OFF + 64

def gelu_pair_code(a, regs, tmp):
    c0 = -2.0 * math.sqrt(2.0 / math.pi) * math.log2(math.e)
    c1 = c0 * 0.044715
    for r, t in zip(regs, tmp):
        a(f"v_mul_f32 v{t}, v{r}, v{r}")
    for r, t in zip(regs, tmp):
        a(f"v_fma_f32 v{t}, v{t}, s60, v15")
    for r, t in zip(regs, tmp):
        a(f"v_mul_f32 v{t}, v{t}, v{r}")
    for r, t in zip(regs, tmp):
        a(f"v_exp_f32 v{t}, v{t}")
    for r, t in zip(regs, tmp):
        a(f"v_add_f32 v{t}, 1.0, v{t}")
    for r, t in zip(regs, tmp):
        a(f"v_rcp_f32 v{t}, v{t}")
    for r, t in zip(regs, tmp):
        a(f"v_mul_f32 v{r}, v{r}, v{t}")
    return c0, c1

def gen_k2(a):
    kernel_begin(a, "k2_kernel")
    a(f"s_cmp_ge_u32 s2, {K2_GRID}")
    a("s_cbranch_scc1 K2_END")
    a("s_load_dwordx4 s[4:7], s[0:1], 32", "ssm_k, ssm_D")
    a("s_load_dwordx4 s[8:11], s[0:1], 56", "w1, b1")
    a(f"s_load_dwordx2 s[12:13], s[0:1], {ARG['ws']}")
    a("v_lshrrev_b32 v1, 6, v0")
    a("v_and_b32 v2, 63, v0", "lane")
    a("v_readfirstlane_b32 s3, v1", "wave")
    a(f"v_mov_b32 v3, {CNT_OFF}")
    a("v_mov_b32 v4, 0")
    a("ds_write_b32 v3, v4", "zero the arrival counter (all waves write the same 0)")
    a("s_waitcnt lgkmcnt(0)")
    a("s_barrier")
    a("s_cmp_lt_u32 s3, 4")
    a("s_cbranch_scc1 K2_GEMM")
    a("s_cmp_eq_u32 s3, 7")
    a("s_cbranch_scc1 K2_GEMM")
    a("s_sub_u32 s14, s3, 4", "cw")
    a("s_mul_i32 s15, s2, 3")
    a("s_add_u32 s15, s15, s14", "ch (wg<160)")
    a("s_cmp_lt_u32 s2, 160")
    a("s_cbranch_scc1 K2_CV_GO")
    a("s_cmp_eq_u32 s14, 2")
    a("s_cbranch_scc1 K2_END")
    a("s_lshl_b32 s15, s2, 1")
    a("s_add_u32 s15, s15, 160")
    a("s_add_u32 s15, s15, s14", "ch = 480 + 2*(wg-160) + cw")
    a.label("K2_CV_GO")
    srd(a, 16, 4, SD_BYTES)
    srd(a, 20, 12, SD_BYTES, KVB_OFF)
    srd(a, 24, 12, SD_BYTES, YA_OFF)
    srd(a, 28, 6, D * 2)
    a(f"s_mul_i32 s32, s14, {CONV_SZ}")
    a(f"s_add_u32 s32, s32, {CONV_BASE}", "lds base")
    a("s_lshl_b32 s33, s15, 12", "ch*4096")
    a("s_lshl_b32 s34, s15, 4", "ch*16")
    a("v_lshl_add_u32 v3, v2, 4, s33", "K0 src")
    a("v_add_u32 v4, 2, v3", "K1 src")
    a("v_mul_u32_u24 v5, 10240, v2")
    a("v_add_u32 v5, s34, v5", "kv src")
    a("v_mov_b32 v6, s33")
    a("s_lshl_b32 s35, s15, 1")
    a("v_mov_b32 v7, s35")
    a(f"s_add_u32 m0, s32, {CV_K0+32}")
    a("buffer_load_ushort v8, v6, s[16:19], 0 offen", "kern[0]")
    for q in range(4):
        a(f"buffer_load_dwordx4 v3, s[16:19], 0 offen offset:{q*1024} lds")
    a(f"s_add_u32 m0, s32, {CV_K1+32}")
    a("buffer_load_ushort v9, v7, s[28:31], 0 offen", "ssm_D[ch]")
    for q in range(4):
        a(f"buffer_load_dwordx4 v4, s[16:19], 0 offen offset:{q*1024} lds")
    a("s_add_u32 m0, s32, 512")
    for q in range(1, 4):
        a(f"s_mov_b32 s{35+q}, {q*(655360-1024)}")
    a("buffer_load_dwordx4 v5, s[20:23], 0 offen lds")
    for q in range(1, 4):
        a(f"buffer_load_dwordx4 v5, s[20:23], s{35+q} offen offset:{q*1024} lds")
    a("v_lshlrev_b32 v10, 4, v2")
    a(f"v_add_u32 v11, {CV_K0-512}, v10")
    a(f"v_add_u32 v12, {CV_K1-544}, v10")
    a("v_cmp_lt_u32 vcc, 31, v2")
    a("s_nop 1")
    a("v_cndmask_b32 v10, v10, v11, vcc")
    a("v_cmp_lt_u32 vcc, 33, v2")
    a("s_nop 1")
    a("v_cndmask_b32 v10, v10, v12, vcc")
    a("v_cmp_lt_u32 vcc, 35, v2")
    a("s_nop 1")
    a("v_cndmask_b32 v10, v10, 0, vcc")
    a("v_add_u32 v10, s32, v10")
    ACC = 16; BUF = [(48, 80), (112, 144)]
    for i in range(32):
        a(f"v_mov_b32 v{ACC+i}, 0")
    a("v_and_b32 v11, 15, v2", "b / n")
    a("v_lshrrev_b32 v12, 4, v2", "g")
    a("v_lshl_add_u32 v13, v12, 3, v11", "8g+b")
    a("v_lshlrev_b32 v13, 1, v13")
    a("v_and_b32 v14, 1, v2")
    a(f"v_mul_u32_u24 v14, {CV_K1 - CV_K0 - 2}, v14")
    a("v_sub_u32 v13, v13, v14")
    a(f"v_add_u32 v13, {CV_K1}, v13")
    VA = 176
    a(f"v_add_u32 v{VA}, s32, v13")
    for p in range(1, 4):
        a(f"v_add_u32 v{VA+p}, {1024*p}, v{VA}")
    VB = 180
    a("v_lshlrev_b32 v13, 1, v11")
    a("v_sub_u32 v13, v13, v12", "2n-g")
    a("v_lshlrev_b32 v13, 4, v13")
    a("v_add_u32 v13, 528, v13")
    a(f"v_add_u32 v{VB}, s32, v13")
    VE = 181; VS = 182
    a("v_lshrrev_b32 v13, 1, v12")
    a("v_lshl_add_u32 v13, v11, 1, v13", "2n+(g>>1)")
    a("v_lshlrev_b32 v13, 4, v13")
    a("v_and_b32 v14, 1, v12")
    a("v_lshlrev_b32 v14, 3, v14")
    a("v_sub_u32 v13, v13, v14")
    a("v_add_u32 v13, 520, v13")
    a(f"v_add_u32 v{VE}, s32, v13")
    a("v_lshlrev_b32 v13, 5, v11")
    a(f"v_lshl_add_u32 v{VS}, v12, 3, v13", "(16n+4g)*2")
    a("v_mov_b32 v184, 0")
    a("v_mov_b32 v185, 0")
    a("v_mov_b32 v186, 0")
    a("s_waitcnt vmcnt(13)")
    a("v_lshlrev_b32 v8, 16, v8")
    a("v_cmp_eq_u32 vcc, 35, v2")
    a("s_nop 1")
    a("v_cndmask_b32 v187, 0, v8, vcc")
    a("ds_write_b128 v10, v[184:187]")
    a("s_waitcnt vmcnt(0) lgkmcnt(0)")
    a("v_lshlrev_b32 v9, 16, v9", "D")

    def frag_loads(buf, rr):
        A, B = BUF[buf]
        out = []
        for t in range(8):
            o = (t & 1) * 128 + rr * 16
            out.append(f"ds_read_b128 v[{B+4*t}:{B+4*t+3}], v{VB} offset:{512*t + 64*(1-rr)}")
            out.append(f"ds_read2_b32 v[{A+4*t}:{A+4*t+1}], v{VA + t//2} offset0:{o} offset1:{o+1}")
            out.append(f"ds_read2_b32 v[{A+4*t+2}:{A+4*t+3}], v{VA + t//2} offset0:{o+2} offset1:{o+3}")
        return out
    def mfmas(buf):
        A, B = BUF[buf]
        out = []
        for c in range(8):
            for t in range(c + 1):
                u = c - t
                out.append(f"v_mfma_f32_16x16x32_bf16 v[{ACC+4*c}:{ACC+4*c+3}], v[{A+4*t}:{A+4*t+3}], v[{B+4*u}:{B+4*u+3}], v[{ACC+4*c}:{ACC+4*c+3}]")
        return out
    a(f"v_subrev_u32 v{VB}, 64, v{VB}")
    for ins in frag_loads(0, 0):
        a(ins)
    a("s_mov_b32 s40, 0")
    a.label("K2_CV_LOOP")
    for half in range(2):
        a("s_waitcnt lgkmcnt(0)")
        if half == 0:
            lds = frag_loads(1, 1)
        else:
            for p in range(4):
                a(f"v_add_u32 v{VA+p}, 128, v{VA+p}")
            a(f"v_subrev_u32 v{VB}, 128, v{VB}")
            lds = frag_loads(0, 0)
        mm = mfmas(half)
        for i, m in enumerate(mm):
            a(m)
            if i < len(lds):
                a(lds[i])
    a("s_add_u32 s40, s40, 1")
    a("s_cmp_lt_u32 s40, 4")
    a("s_cbranch_scc1 K2_CV_LOOP")
    a("s_waitcnt lgkmcnt(0)")
    KVR = 48
    for c in range(8):
        a(f"ds_read_b64 v[{KVR+2*c}:{KVR+2*c+1}], v{VE} offset:{512*c}")
    a("s_nop 7")
    T = 80
    for c in range(8):
        a(f"s_waitcnt lgkmcnt({7-c})")
        d0, d1 = KVR + 2 * c, KVR + 2 * c + 1
        a(f"v_and_b32 v{T}, 0xffff0000, v{d1}")
        a(f"v_lshlrev_b32 v{T+1}, 16, v{d1}")
        a(f"v_and_b32 v{T+2}, 0xffff0000, v{d0}")
        a(f"v_lshlrev_b32 v{T+3}, 16, v{d0}")
        for i in range(4):
            a(f"v_fmac_f32 v{ACC+4*c+i}, v{T+i}, v9")
        a(f"v_cvt_pk_bf16_f32 v{d0}, v{ACC+4*c}, v{ACC+4*c+1}")
        a(f"v_cvt_pk_bf16_f32 v{d1}, v{ACC+4*c+2}, v{ACC+4*c+3}")
        a(f"buffer_store_dwordx2 v[{d0}:{d1}], v{VS}, s[24:27], s33 offen offset:{512*c}")
    a("s_endpgm")

    a.label("K2_GEMM")
    a("s_setprio 2")
    a("s_min_u32 s14, s3, 4", "rho")
    a("s_and_b32 s15, s2, 7", "xcd guess")
    a("s_lshr_b32 s16, s2, 3", "j")
    a("s_mul_hi_u32 s17, s16, 0x33333334", "j/5")
    a("s_mul_i32 s18, s17, 5")
    a("s_sub_u32 s18, s16, s18", "j%5")
    a("s_and_b32 s19, s15, 1")
    a("s_mul_i32 s19, s19, 5")
    a("s_add_u32 s18, s18, s19", "dt")
    a("s_lshr_b32 s19, s15, 1")
    a("s_mul_i32 s19, s19, 6")
    a("s_add_u32 s17, s17, s19", "ft")
    a("s_mul_i32 s19, s14, 12", "kstart")
    a("s_add_u32 s20, s19, 12")
    a("s_cmp_eq_u32 s14, 4")
    a("s_cselect_b32 s20, 64, s20", "kend")
    a("s_cselect_b32 s21, 4, 3", "iters")
    srd(a, 24, 8, 0)
    a("s_mul_i32 s26, s20, 98304")
    srd(a, 28, 12, 0, HBLK_OFF)
    a("s_mul_i32 s30, s20, 40960")
    srd(a, 32, 12, UBLK_BYTES, UBLK_OFF)
    srd(a, 36, 10, F * 2)
    a("s_lshl_b32 s40, s14, 14", "ring base")
    for q in range(1, 4):
        a(f"s_mov_b32 s{40+q}, {q*(8*3072-1024)}")
    a("s_mov_b32 s44, 20480")
    a("v_lshrrev_b32 v5, 3, v2")
    a("v_mul_u32_u24 v3, 3072, v5")
    a("v_bfe_u32 v5, v2, 4, 1")
    a("v_lshlrev_b32 v5, 2, v5")
    a("v_and_b32 v6, 7, v2")
    a("v_xor_b32 v5, v5, v6")
    a("v_lshl_add_u32 v3, v5, 4, v3")
    a("s_lshl_b32 s45, s17, 7")
    a("s_mul_i32 s46, s19, 98304")
    a("s_add_u32 s45, s45, s46")
    a("v_add_u32 v3, s45, v3")
    a("v_lshrrev_b32 v5, 5, v2")
    a("v_mul_u32_u24 v4, 10240, v5")
    a("v_and_b32 v5, 31, v2")
    a("v_lshl_add_u32 v4, v5, 4, v4")
    a("s_lshl_b32 s45, s18, 10")
    a("s_mul_i32 s46, s19, 40960")
    a("s_add_u32 s45, s45, s46")
    a("v_add_u32 v4, s45, v4")
    ACC = 16; H = 80; W = 144
    def dma(q):
        so = "0" if q == 0 else f"s{40+q}"
        return f"buffer_load_dwordx4 v3, s[24:27], {so} offen offset:{q*1024} lds"
    def hload(st, nt, kh):
        r = H + 16 * st + 4 * (2 * kh + nt)
        so = "0" if kh == 0 else "s44"
        return f"buffer_load_dwordx4 v[{r}:{r+3}], v4, s[28:31], {so} offen offset:{nt*512}"
    def adv():
        a("v_add_u32 v3, 98304, v3")
        a("v_add_u32 v4, 40960, v4")
    for st in range(4):
        a(f"s_add_u32 m0, s40, {st*4096}")
        a(hload(st, 0, 0))
        for q in range(4):
            a(dma(q))
        a(hload(st, 1, 0)); a(hload(st, 0, 1)); a(hload(st, 1, 1))
        adv()
    a("v_lshrrev_b32 v5, 5, v2")
    a("v_lshlrev_b32 v6, 10, v5")
    a("v_bfe_u32 v5, v2, 2, 2")
    a("v_lshl_add_u32 v6, v5, 7, v6")
    a("v_bfe_u32 v5, v2, 3, 1")
    a("v_lshl_add_u32 v6, v5, 6, v6")
    a("v_bfe_u32 v5, v2, 4, 1")
    a("v_lshl_add_u32 v6, v5, 5, v6")
    a("v_and_b32 v5, 3, v2")
    a("v_lshl_add_u32 v6, v5, 3, v6")
    a("v_add_u32 v6, s40, v6")
    a("v_xor_b32 v7, 64, v6")
    for i in range(64):
        a(f"v_mov_b32 v{ACC+i}, 0")
    def trreads(slot, buf):
        out = []
        for kh in range(2):
            for mt in range(2):
                for h in range(2):
                    r = W + 16 * buf + 4 * (2 * kh + mt) + 2 * h
                    out.append(f"ds_read_b64_tr_b16 v[{r}:{r+1}], v{6+mt} offset:{slot*4096 + kh*2048 + h*512}")
        return out
    a("s_waitcnt vmcnt(24)")
    for ins in trreads(0, 0):
        a(ins)
    a("s_mov_b32 s47, 0")
    a.label("K2_G_LOOP")
    for st in range(4):
        buf = st & 1
        a("s_waitcnt vmcnt(16) lgkmcnt(0)")
        for ins in trreads((st + 1) & 3, buf ^ 1):
            a(ins)
        a(f"s_add_u32 m0, s40, {st*4096}")
        q = 0
        for kh in range(2):
            for nt in range(2):
                for mt in range(2):
                    t = ACC + 16 * (2 * mt + nt)
                    wr = W + 16 * buf + 4 * (2 * kh + mt)
                    hr = H + 16 * st + 4 * (2 * kh + nt)
                    a(f"v_mfma_f32_32x32x16_bf16 v[{t}:{t+15}], v[{wr}:{wr+3}], v[{hr}:{hr+3}], v[{t}:{t+15}]")
                    if mt == 0:
                        a(dma(q)); q += 1
                    else:
                        a(hload(st, nt, kh))
        adv()
    a("s_add_u32 s47, s47, 1")
    a("s_cmp_lt_u32 s47, s21")
    a("s_cbranch_scc1 K2_G_LOOP")
    a("s_lshr_b32 s45, s14, 1")
    a("s_lshl_b32 s45, s45, 6")
    a("s_lshl_b32 s46, s17, 7")
    a("s_add_u32 s45, s45, s46")
    a("v_lshrrev_b32 v5, 5, v2")
    a("v_lshl_add_u32 v5, v5, 3, s45")
    a("s_waitcnt vmcnt(0) lgkmcnt(0)")
    BB = 176
    for q in range(4):
        a(f"buffer_load_dwordx2 v[{BB+2*q}:{BB+2*q+1}], v5, s[36:39], 0 offen offset:{16*q}")
    a("v_lshl_add_u32 v8, v2, 4, s40", "own ring + lane*16")
    a("s_nop 7")
    FIN = W
    for t in range(4):
        a(f"s_cmp_eq_u32 s14, {t}")
        a(f"s_cbranch_scc1 K2_X_OWN{t}")
        for q in range(4):
            r = ACC + 16 * t + 4 * q
            a(f"ds_write_b128 v8, v[{r}:{r+3}] offset:{t*4096 + q*1024}")
        a(f"s_branch K2_X_NEXT{t}")
        a.label(f"K2_X_OWN{t}")
        for i in range(16):
            a(f"v_mov_b32 v{FIN+i}, v{ACC+16*t+i}")
        a.label(f"K2_X_NEXT{t}")
    a(f"v_mov_b32 v9, {CNT_OFF}")
    a("v_mov_b32 v10, 1")
    a("s_waitcnt lgkmcnt(0)")
    a("s_mov_b64 exec, 1")
    a("ds_add_u32 v9, v10")
    a("s_mov_b64 exec, -1")
    a("s_cmp_eq_u32 s14, 4")
    a("s_cbranch_scc1 K2_END")
    a("s_lshl_b32 s45, s14, 12")
    a("v_lshl_add_u32 v8, v2, 4, s45")
    for o in range(1, 4):
        a(f"s_add_u32 s46, s14, {o}")
        a("s_and_b32 s46, s46, 3")
        a("s_lshl_b32 s46, s46, 14")
        a(f"v_add_u32 v{10+o}, s46, v8")
    a(f"v_add_u32 v14, {4*RING}, v8")
    c0 = -2.0 * math.sqrt(2.0 / math.pi) * math.log2(math.e)
    a(f"v_mov_b32 v15, {f32(c0)}")
    a(f"s_mov_b32 s60, {f32(c0*0.044715)}")
    a.label("K2_X_SPIN")
    a("ds_read_b32 v10, v9")
    a("s_waitcnt lgkmcnt(0)")
    a("v_readfirstlane_b32 s46, v10")
    a("s_cmp_lt_u32 s46, 5")
    a("s_cbranch_scc1 K2_X_SPIN")
    for o in range(4):
        for q in range(4):
            r = H + 16 * o + 4 * q
            a(f"ds_read_b128 v[{r}:{r+3}], v{11+o} offset:{q*1024}")
    for o in range(4):
        a(f"s_waitcnt lgkmcnt({12-4*o})")
        for i in range(0, 16, 2):
            a(f"v_pk_add_f32 v[{FIN+i}:{FIN+i+1}], v[{FIN+i}:{FIN+i+1}], v[{H+16*o+i}:{H+16*o+i+1}]")
    T = H
    for i in range(0, 16, 2):
        a(f"v_cvt_pk_bf16_f32 v{T+i//2}, v{FIN+i}, v{FIN+i+1}")
    a("s_waitcnt vmcnt(0)")
    for i in range(0, 16, 2):
        a(f"v_lshlrev_b32 v{FIN+i}, 16, v{T+i//2}")
        a(f"v_and_b32 v{FIN+i+1}, 0xffff0000, v{T+i//2}")
        a(f"v_lshlrev_b32 v{T+16+i}, 16, v{BB+i//2}")
        a(f"v_and_b32 v{T+16+i+1}, 0xffff0000, v{BB+i//2}")
    for i in range(0, 16, 2):
        a(f"v_pk_add_f32 v[{FIN+i}:{FIN+i+1}], v[{FIN+i}:{FIN+i+1}], v[{T+16+i}:{T+16+i+1}]")
    for i in range(0, 16, 2):
        a(f"v_cvt_pk_bf16_f32 v{T+i//2}, v{FIN+i}, v{FIN+i+1}")
    for i in range(0, 16, 2):
        a(f"v_lshlrev_b32 v{FIN+i}, 16, v{T+i//2}")
        a(f"v_and_b32 v{FIN+i+1}, 0xffff0000, v{T+i//2}")
    gelu_pair_code(a, [FIN + i for i in range(16)], [T + i for i in range(16)])
    P = T + 16
    for i in range(0, 16, 2):
        a(f"v_cvt_pk_bf16_f32 v{P+i//2}, v{FIN+i}, v{FIN+i+1}")
    a("s_lshr_b32 s45, s14, 1")
    a("s_lshl_b32 s45, s45, 2")
    a("s_lshl_b32 s46, s17, 3")
    a("s_add_u32 s45, s45, s46")
    a("s_mul_i32 s45, s45, 10240")
    a("s_lshl_b32 s46, s18, 10")
    a("s_add_u32 s45, s45, s46")
    a("s_and_b32 s46, s14, 1")
    a("s_lshl_b32 s46, s46, 9")
    a("s_add_u32 s45, s45, s46")
    a("v_lshrrev_b32 v5, 5, v2")
    a("v_mul_u32_u24 v5, 10240, v5")
    a("v_and_b32 v6, 31, v2")
    a("v_lshl_add_u32 v5, v6, 4, v5")
    a("s_add_u32 s46, s45, 20480")
    for qp in range(2):
        r = P + 4 * qp
        a(f"v_permlane32_swap_b32 v{r}, v{r+2}")
        a(f"v_permlane32_swap_b32 v{r+1}, v{r+3}")
        a(f"buffer_store_dwordx4 v[{r}:{r+3}], v5, s[32:35], s{45+qp} offen")
    a.label("K2_END")
    a("s_endpgm")
    return kernel_desc("k2_kernel", 192, 72)
```

```python
from asmlib import *
from layout import *

K3_GRID = 256
K3_BLOCK = 256
DEPTH = 4
RING3 = max(DEPTH * 4096, 4 * 5120)
RING3 = (RING3 + 4095) // 4096 * 4096
YA_LDS = 4 * RING3
K3_LDS = YA_LDS + 12 * 1024

def round_pairs(a, regs, tmp):
    for i in range(0, len(regs), 2):
        a(f"v_cvt_pk_bf16_f32 v{tmp[i//2]}, v{regs[i]}, v{regs[i+1]}")
    for i in range(0, len(regs), 2):
        a(f"v_lshlrev_b32 v{regs[i]}, 16, v{tmp[i//2]}")
        a(f"v_and_b32 v{regs[i+1]}, 0xffff0000, v{tmp[i//2]}")

def gen_k3(a):
    NST = 12
    kernel_begin(a, "k3_kernel")
    a(f"s_cmp_ge_u32 s2, {K3_GRID}")
    a("s_cbranch_scc1 K3_END")
    a("s_load_dwordx2 s[4:5], s[0:1], 0", "x")
    a("s_load_dwordx4 s[8:11], s[0:1], 72", "w2, b2")
    a("s_load_dwordx2 s[6:7], s[0:1], 88", "out")
    a(f"s_load_dwordx2 s[12:13], s[0:1], {ARG['ws']}")
    a("v_lshrrev_b32 v1, 6, v0")
    a("v_and_b32 v2, 63, v0", "lane")
    a("v_readfirstlane_b32 s3, v1", "wave")
    a("s_and_b32 s15, s2, 7")
    a("s_lshr_b32 s16, s2, 3", "j")
    a("s_and_b32 s17, s15, 1")
    a("s_lshl_b32 s17, s17, 2")
    a("s_and_b32 s18, s16, 3")
    a("s_add_u32 s17, s17, s18", "dt")
    a("s_lshr_b32 s18, s15, 1")
    a("s_lshl_b32 s18, s18, 3")
    a("s_lshr_b32 s19, s16, 2")
    a("s_add_u32 s18, s18, s19", "st")
    a(f"s_mul_i32 s19, s3, {NST}", "kstart")
    a(f"s_add_u32 s20, s19, {NST}", "kend")
    a(f"s_mul_i32 s40, s3, {RING3}", "ring base")
    for q in range(1, 4):
        a(f"s_mov_b32 s{40+q}, {q*(8*4096-1024)}")
    a("v_lshrrev_b32 v5, 3, v2")
    a("v_lshlrev_b32 v3, 12, v5")
    a("v_bfe_u32 v5, v2, 4, 1")
    a("v_lshlrev_b32 v5, 1, v5")
    a("v_and_b32 v6, 7, v2")
    a("v_xor_b32 v5, v5, v6")
    a("v_lshl_add_u32 v3, v5, 4, v3")
    a("s_lshl_b32 s45, s18, 7")
    a("s_lshl_b32 s46, s19, 17")
    a("s_add_u32 s45, s45, s46")
    a("v_add_u32 v3, s45, v3")
    a("v_xor_b32 v4, 64, v3")
    a("v_lshrrev_b32 v6, 4, v2", "g")
    a("v_mul_u32_u24 v5, 10240, v6")
    a("v_and_b32 v7, 15, v2", "i/n")
    a("v_lshl_add_u32 v5, v7, 4, v5")
    a("s_mul_i32 s45, s17, 1280")
    a("s_mul_i32 s46, s19, 40960")
    a("s_add_u32 s45, s45, s46")
    a("v_add_u32 v5, s45, v5")
    a("v_lshrrev_b32 v8, 3, v2")
    a("v_lshlrev_b32 v8, 12, v8")
    a("v_and_b32 v9, 7, v2")
    a("v_lshl_add_u32 v8, v9, 4, v8")
    a("s_mul_i32 s45, s17, 80")
    a("s_lshl_b32 s46, s3, 3")
    a("s_add_u32 s45, s45, s46")
    a("s_lshl_b32 s45, s45, 12")
    a("s_lshl_b32 s46, s18, 7")
    a("s_add_u32 s45, s45, s46")
    a("v_add_u32 v8, s45, v8")
    a("s_lshl_b32 s45, s18, 6")
    a("s_lshl_b32 s46, s3, 4")
    a("s_add_u32 s45, s45, s46")
    a("v_add_u32 v11, s45, v7", "s")
    a("v_mul_u32_u24 v9, 1280, v11")
    a("v_lshl_add_u32 v9, v6, 3, v9")
    a("s_mul_i32 s45, s17, 160")
    a("v_add_u32 v9, s45, v9")
    a("v_lshlrev_b32 v10, 3, v11")
    a("v_lshlrev_b32 v11, 1, v11")
    a("s_waitcnt lgkmcnt(0)")
    srd(a, 24, 8, 0)
    a("s_lshl_b32 s26, s20, 17", "w2 limit")
    srd(a, 28, 12, 0, UBLK_OFF)
    a("s_mul_i32 s30, s20, 40960", "ublk limit")
    ACC = 32; W = ACC + 80; U = W + 32
    XR = U + 20 * DEPTH; ST = XR + 10; B2 = ST + 2
    def dma(q):
        so = "0" if q == 0 else f"s{40+q}"
        return f"buffer_load_dwordx4 v{3 + (q & 1)}, s[24:27], {so} offen offset:{q*1024} lds"
    def uload(st, m):
        r = U + 20 * st + 4 * m
        return f"buffer_load_dwordx4 v[{r}:{r+3}], v5, s[28:31], 0 offen offset:{m*256}"
    def adv():
        a("v_add_u32 v3, 0x20000, v3")
        a("v_add_u32 v4, 0x20000, v4")
        a("v_add_u32 v5, 40960, v5")
    for st in range(DEPTH):
        a(f"s_add_u32 m0, s40, {st*4096}")
        a(uload(st, 0))
        for q in range(4):
            a(dma(q))
        for m in range(1, 5):
            a(uload(st, m))
        adv()
    a("v_lshlrev_b32 v12, 10, v6")
    a("v_bfe_u32 v16, v2, 2, 2")
    a("v_lshl_add_u32 v12, v16, 7, v12")
    a("v_bfe_u32 v16, v2, 3, 2", "bits 3,4 of lane = sw")
    a("v_lshl_add_u32 v12, v16, 5, v12")
    a("v_and_b32 v16, 3, v2")
    a("v_lshl_add_u32 v12, v16, 3, v12")
    a("v_add_u32 v12, s40, v12")
    for j in range(1, 4):
        a(f"v_xor_b32 v{12+j}, {32*j}, v12")
    for i in range(80):
        a(f"v_mov_b32 v{ACC+i}, 0")
    srd(a, 32, 12, SD_BYTES, YA_OFF)
    srd(a, 36, 4, SD_BYTES)
    srd(a, 48, 12, STAT_BYTES, STAT_OFF)
    srd(a, 52, 10, S * 2)
    srd(a, 56, 6, SD_BYTES)
    def trreads(slot, buf):
        out = []
        for j in range(4):
            for h in range(2):
                r = W + 16 * buf + 4 * j + 2 * h
                out.append(f"ds_read_b64_tr_b16 v[{r}:{r+1}], v{12+j} offset:{slot*4096 + h*512}")
        return out
    a(f"s_waitcnt vmcnt({9*(DEPTH-1)})")
    for ins in trreads(0, 0):
        a(ins)
    a("s_mov_b32 s47, 0")
    a.label("K3_LOOP")
    for st in range(DEPTH):
        buf = st & 1
        a(f"s_waitcnt vmcnt({9*(DEPTH-2)}) lgkmcnt(0)")
        for ins in trreads((st + 1) % DEPTH, buf ^ 1):
            a(ins)
        a(f"s_add_u32 m0, s40, {st*4096}")
        for m in range(5):
            for j in range(4):
                t = ACC + 4 * (5 * j + m)
                wr = W + 16 * buf + 4 * j
                ur = U + 20 * st + 4 * m
                a(f"v_mfma_f32_16x16x32_bf16 v[{t}:{t+3}], v[{ur}:{ur+3}], v[{wr}:{wr+3}], v[{t}:{t+3}]")
                if j == 1 and m < 4:
                    a(dma(m))
            a(uload(st, m))
        adv()
    a("s_add_u32 s47, s47, 1")
    a(f"s_cmp_lt_u32 s47, {NST // DEPTH}")
    a("s_cbranch_scc1 K3_LOOP")
    a("s_waitcnt vmcnt(0) lgkmcnt(0)")
    a("s_lshl_b32 s45, s3, 10")
    a(f"s_add_u32 m0, s45, {YA_LDS}")
    a(f"s_mov_b32 s45, {32*4096}")
    a(f"s_mov_b32 s46, {64*4096}")
    a("buffer_load_dwordx4 v8, s[32:35], 0 offen lds")
    a("s_add_u32 m0, m0, 4096")
    a(f"buffer_load_dwordx2 v[{ST}:{ST+1}], v10, s[48:51], 0 offen")
    a("buffer_load_dwordx4 v8, s[32:35], s45 offen lds")
    a("s_add_u32 m0, m0, 4096")
    a(f"buffer_load_ushort v{B2}, v11, s[52:55], 0 offen")
    a("buffer_load_dwordx4 v8, s[32:35], s46 offen lds")
    for m in range(5):
        a(f"buffer_load_dwordx2 v[{XR+2*m}:{XR+2*m+1}], v9, s[36:39], 0 offen offset:{32*m}")
    a("v_lshl_add_u32 v16, v2, 4, s40", "own ring + lane*16")
    FIN = W
    for j in range(4):
        a(f"s_cmp_eq_u32 s3, {j}")
        a(f"s_cbranch_scc1 K3_X_OWN{j}")
        for m in range(5):
            r = ACC + 4 * (5 * j + m)
            a(f"ds_write_b128 v16, v[{r}:{r+3}] offset:{j*5120 + m*1024}")
        a(f"s_branch K3_X_NEXT{j}")
        a.label(f"K3_X_OWN{j}")
        for i in range(20):
            a(f"v_mov_b32 v{FIN+i}, v{ACC+20*j+i}")
        a.label(f"K3_X_NEXT{j}")
    a("s_mul_i32 s45, s3, 5120")
    a("v_lshl_add_u32 v16, v2, 4, s45")
    for o in range(1, 4):
        a(f"s_add_u32 s46, s3, {o}")
        a("s_and_b32 s46, s46, 3")
        a(f"s_mul_i32 s46, s46, {RING3}")
        a(f"v_add_u32 v{16+o}, s46, v16")
    a("v_lshrrev_b32 v20, 2, v2")
    a("v_lshlrev_b32 v20, 7, v20")
    a("v_and_b32 v21, 3, v2")
    a("v_lshl_add_u32 v20, v21, 3, v20")
    a("s_lshl_b32 s45, s3, 5")
    a(f"s_add_u32 s45, s45, {YA_LDS}")
    a("v_add_u32 v20, s45, v20")
    a("s_waitcnt vmcnt(0) lgkmcnt(0)")
    a("s_barrier")
    PT = ACC
    for o in range(3):
        for m in range(5):
            r = PT + 20 * o + 4 * m
            a(f"ds_read_b128 v[{r}:{r+3}], v{17+o} offset:{m*1024}")
    YR = U
    XF = U + 10; XN = XF + 20; T = XN + 20
    for m in range(5):
        for h in range(2):
            a(f"v_lshlrev_b32 v{XF+4*m+2*h}, 16, v{XR+2*m+h}")
            a(f"v_and_b32 v{XF+4*m+2*h+1}, 0xffff0000, v{XR+2*m+h}")
    a(f"v_mul_f32 v22, v{ST}, v{ST+1}", "m*r")
    a(f"v_mov_b32 v24, v{ST+1}")
    a(f"v_lshlrev_b32 v26, 16, v{B2}")
    for i in range(0, 20, 2):
        a(f"v_pk_fma_f32 v[{XN+i}:{XN+i+1}], v[{XF+i}:{XF+i+1}], v[24:25], v[22:23] op_sel_hi:[1,0,0] neg_lo:[0,0,1] neg_hi:[0,0,1]")
    round_pairs(a, [XN + i for i in range(20)], [T + i for i in range(10)])
    for o in range(3):
        a(f"s_waitcnt lgkmcnt({10-5*o})")
        for i in range(0, 20, 2):
            a(f"v_pk_add_f32 v[{FIN+i}:{FIN+i+1}], v[{FIN+i}:{FIN+i+1}], v[{PT+20*o+i}:{PT+20*o+i+1}]")
    for m in range(5):
        a(f"ds_read_b64_tr_b16 v[{YR+2*m}:{YR+2*m+1}], v20 offset:{m*2048}")
    round_pairs(a, [FIN + i for i in range(20)], [T + i for i in range(10)])
    for i in range(0, 20, 2):
        a(f"v_pk_add_f32 v[{FIN+i}:{FIN+i+1}], v[{FIN+i}:{FIN+i+1}], v[26:27] op_sel_hi:[1,0]")
    round_pairs(a, [FIN + i for i in range(20)], [T + i for i in range(10)])
    a("s_waitcnt lgkmcnt(0)")
    YF = ACC
    for i in range(10):
        a(f"v_lshlrev_b32 v{YF+2*i}, 16, v{YR+i}")
        a(f"v_and_b32 v{YF+2*i+1}, 0xffff0000, v{YR+i}")
    for i in range(0, 20, 2):
        a(f"v_pk_mul_f32 v[{XN+i}:{XN+i+1}], v[{XN+i}:{XN+i+1}], v[{YF+i}:{YF+i+1}]")
    round_pairs(a, [XN + i for i in range(20)], [T + i for i in range(10)])
    for i in range(0, 20, 2):
        a(f"v_pk_add_f32 v[{XN+i}:{XN+i+1}], v[{XN+i}:{XN+i+1}], v[{XF+i}:{XF+i+1}]")
    round_pairs(a, [XN + i for i in range(20)], [T + i for i in range(10)])
    for i in range(0, 20, 2):
        a(f"v_pk_add_f32 v[{XN+i}:{XN+i+1}], v[{XN+i}:{XN+i+1}], v[{FIN+i}:{FIN+i+1}]")
    for i in range(0, 20, 2):
        a(f"v_cvt_pk_bf16_f32 v{T+i//2}, v{XN+i}, v{XN+i+1}")
    for m in range(5):
        a(f"buffer_store_dwordx2 v[{T+2*m}:{T+2*m+1}], v9, s[56:59], 0 offen offset:{32*m}")
    a.label("K3_END")
    a("s_endpgm")
    nv = B2 + 1
    return kernel_desc("k3_kernel", (nv + 7) // 8 * 8, 72)
```

```python
S, D, F = 2048, 640, 1536
ARG = dict(x=0, k=8, v=16, shk=24, ssmk=32, ssmD=40, bx=48, w1=56, b1=64, w2=72, b2=80, out=88, dbg=96, ws=104)
SD_BYTES = S * D * 2
HBLK_OFF = 0
KVB_OFF = HBLK_OFF + SD_BYTES
YA_OFF = KVB_OFF + SD_BYTES
UBLK_OFF = YA_OFF + SD_BYTES
UBLK_BYTES = F * D * 2
STAT_OFF = UBLK_OFF + UBLK_BYTES
STAT_BYTES = S * 8
WS_USED = STAT_OFF + STAT_BYTES
```

```python
import sys
sys.path.insert(0, "gen")
from asmlib import *
from layout import *
import k1, k2, k3

NAME = "parallel_sum__ssm_conv_h3__mixer_token_mlp__prompt"
def build():
    ref = open(f"cdna_kernels/{NAME}.s.ref").read().splitlines()
    head = []
    for l in ref:
        if l.startswith("; Override") : break
        head.append(l)
    a = Asm()
    for l in head: a.raw(l)
    a.raw(f"; @launch kernel=k1_kernel grid=({k1.K1_GRID},1,1) block=({k1.K1_BLOCK},1,1) lds={k1.K1_LDS}")
    a.raw(f"; @launch kernel=k2_kernel grid=({k2.K2_GRID},1,1) block=({k2.K2_BLOCK},1,1) lds={k2.K2_LDS}")
    a.raw(f"; @launch kernel=k3_kernel grid=({k3.K3_GRID},1,1) block=({k3.K3_BLOCK},1,1) lds={k3.K3_LDS}")
    a.raw('.amdgcn_target "amdgcn-amd-amdhsa--gfx950"')
    a.raw(".text")
    descs = [k1.gen_k1(a), k2.gen_k2(a), k3.gen_k3(a)]
    a.raw('.section .rodata,"a"')
    for d in descs: a.raw(d)
    return a.text()
if __name__ == "__main__":
    out = sys.argv[1] if len(sys.argv) > 1 else f"cdna_kernels/{NAME}.s"
    open(out, "w").write(build())
    print("wrote", out)
```

```python
import os
class Asm:
    def __init__(self):
        self.lines = []
    def __call__(self, s, c=None):
        for part in s.split("\n"):
            part = part.strip()
            if part:
                self.lines.append("    " + part + (("    ; " + c) if c else ""))
    def label(self, l):
        self.lines.append(l + ":")
    def comment(self, c):
        self.lines.append("    ; " + c)
    def raw(self, s):
        self.lines.append(s)
    def text(self):
        return "\n".join(self.lines) + "\n"

def vr(a, n=1):
    return f"v{a}" if n == 1 else f"v[{a}:{a+n-1}]"
def ar(a, n=1):
    return f"a{a}" if n == 1 else f"a[{a}:{a+n-1}]"
def sr(a, n=1):
    return f"s{a}" if n == 1 else f"s[{a}:{a+n-1}]"

import struct
def f32(x):
    return "0x%08x" % struct.unpack("<I", struct.pack("<f", x))[0]

def kernel_begin(a, name):
    a.raw(".globl " + name)
    a.raw(".p2align 8")
    a.raw(f".type {name},@function")
    a.label(name)

def kernel_desc(name, vgpr, sgpr, accum=None):
    if accum is None:
        accum = (vgpr + 3) // 4 * 4
    if os.environ.get("STAMP", "0") == "1":
        sgpr = 102
    return f""".p2align 6
.amdhsa_kernel {name}
  .amdhsa_next_free_vgpr {vgpr}
  .amdhsa_next_free_sgpr {sgpr}
  .amdhsa_accum_offset {accum}
  .amdhsa_group_segment_fixed_size 0
  .amdhsa_kernarg_size 112
  .amdhsa_user_sgpr_count 2
  .amdhsa_user_sgpr_kernarg_segment_ptr 1
  .amdhsa_system_sgpr_workgroup_id_x 1
  .amdhsa_float_denorm_mode_32 3
.end_amdhsa_kernel
"""

def srd(a, d, base_lo, nbytes, add=0):
    if add:
        a(f"s_add_u32 s{d}, s{base_lo}, {add}")
        a(f"s_addc_u32 s{d+1}, s{base_lo+1}, 0")
    else:
        a(f"s_mov_b32 s{d}, s{base_lo}")
        a(f"s_mov_b32 s{d+1}, s{base_lo+1}")
    a(f"s_mov_b32 s{d+2}, {nbytes}")
    a(f"s_mov_b32 s{d+3}, 0x00020000")


import os
STAMP = os.environ.get("STAMP", "0") == "1"
DBG_OFF = 16 << 20
def stamp(a, i):
    if STAMP:
        a(f"s_memrealtime s[{64+4*i}:{65+4*i}]")
        a(f"s_memtime s[{66+4*i}:{67+4*i}]")
def stamp_flush(a, n, kidx, ws_lo, wave_s, nwaves):
    if not STAMP:
        return
    a("s_waitcnt lgkmcnt(0)")
    a(f"s_add_u32 s96, s{ws_lo}, {DBG_OFF + kidx*(1<<20)}")
    a(f"s_addc_u32 s97, s{ws_lo+1}, 0")
    a("s_mov_b32 s98, 0x100000")
    a("s_mov_b32 s99, 0x00020000")
    a(f"s_mul_i32 s100, s2, {nwaves}")
    a(f"s_add_u32 s100, s100, s{wave_s}")
    a("s_lshl_b32 s100, s100, 6")
    a("v_mov_b32 v1, s100")
    a("s_mov_b64 exec, 1")
    for i in range(n):
        a(f"v_mov_b32 v0, s{64+4*i}")
        a(f"buffer_store_dword v0, v1, s[96:99], 0 offen offset:{8*i}")
        a(f"v_mov_b32 v0, s{66+4*i}")
        a(f"buffer_store_dword v0, v1, s[96:99], 0 offen offset:{8*i+4}")
    a("s_getreg_b32 s100, hwreg(HW_REG_HW_ID)")
    a("v_mov_b32 v0, s100")
    a("buffer_store_dword v0, v1, s[96:99], 0 offen offset:56")
    a("s_getreg_b32 s100, hwreg(HW_REG_XCC_ID)")
    a("v_mov_b32 v0, s100")
    a("buffer_store_dword v0, v1, s[96:99], 0 offen offset:60")
```

```python
from asmlib import *
from layout import *

K1_GRID = 416
K1_BLOCK = 512
K1_LDS = 16384
HROW = 1344
NT = os.environ.get("NT", "nt")
NTP = os.environ.get("NTP", "nt")
NT_X = os.environ.get("NT_X", NT)
PF_W1 = os.environ.get("PF_W1", "1") == "1"
PF_SK = os.environ.get("PF_SK", "1") == "1"

def dpp_reduce2(a, va, vb):
    steps = ["row_shr:1 row_mask:0xf bank_mask:0xf bound_ctrl:0",
             "row_shr:2 row_mask:0xf bank_mask:0xf bound_ctrl:0",
             "row_shr:4 row_mask:0xf bank_mask:0xf bound_ctrl:0",
             "row_shr:8 row_mask:0xf bank_mask:0xf bound_ctrl:0",
             "row_bcast:15 row_mask:0xa bank_mask:0xf",
             "row_bcast:31 row_mask:0xc bank_mask:0xf"]
    a("s_nop 1")
    for st in steps:
        a(f"v_add_f32_dpp v{va}, v{va}, v{va} {st}")
        a(f"v_add_f32_dpp v{vb}, v{vb}, v{vb} {st}")
        a("s_nop 0")

def stats(a, s_sum, s_sq, pivot_s, vm, vr_, t0, t1):
    inv = f32(1.0 / D)
    a(f"v_mov_b32 v{t0}, s{s_sum}")
    a(f"v_mov_b32 v{t1}, s{s_sq}")
    a(f"v_mul_f32 v{t0}, {inv}, v{t0}")
    a(f"v_mul_f32 v{t1}, {inv}, v{t1}")
    a(f"v_fma_f32 v{t1}, -v{t0}, v{t0}, v{t1}")
    a(f"v_max_f32 v{t1}, 0, v{t1}")
    if pivot_s is not None:
        a(f"v_add_f32 v{t0}, s{pivot_s}, v{t0}")
    a(f"v_cvt_pk_bf16_f32 v{t0}, v{t0}, v{t1}")
    a(f"v_lshlrev_b32 v{vm}, 16, v{t0}")
    a(f"v_and_b32 v{t1}, 0xffff0000, v{t0}")
    a(f"v_add_f32 v{t1}, {f32(1e-5)}, v{t1}")
    a(f"v_cvt_pk_bf16_f32 v{t1}, v{t1}, v{t1}")
    a(f"v_lshlrev_b32 v{t1}, 16, v{t1}")
    a(f"v_sqrt_f32 v{t1}, v{t1}")
    a("s_nop 0")
    a(f"v_cvt_pk_bf16_f32 v{t1}, v{t1}, v{t1}")
    a(f"v_lshlrev_b32 v{t1}, 16, v{t1}")
    a(f"v_rcp_f32 v{vr_}, v{t1}")
    a("s_nop 0")

def gen_k1(a):
    kernel_begin(a, "k1_kernel")
    a(f"s_cmp_ge_u32 s2, {K1_GRID}")
    a("s_cbranch_scc1 K1_END")
    stamp(a, 0)
    a("s_load_dwordx4 s[4:7], s[0:1], 0", "x, k")
    a("s_load_dwordx4 s[8:11], s[0:1], 16", "v, shift_k")
    a(f"s_load_dwordx2 s[12:13], s[0:1], {ARG['ws']}")
    a(f"s_load_dwordx2 s[38:39], s[0:1], {ARG['w1']}")
    a(f"s_load_dwordx2 s[44:45], s[0:1], {ARG['ssmk']}")
    a("v_lshrrev_b32 v1, 6, v0")
    a("v_and_b32 v2, 63, v0", "lane")
    a("v_readfirstlane_b32 s3, v1", "wave")
    a("v_lshlrev_b32 v3, 2, v2", "lane*4")
    a("s_cmp_ge_u32 s2, 256")
    a("s_cbranch_scc1 K1_KV")
    a("s_lshl_b32 s14, s2, 3")
    a("s_add_u32 s14, s14, s3", "row")
    a("s_mul_i32 s15, s14, 1280")
    a(f"s_mul_i32 s24, s3, {HROW}")
    a("v_add_u32 v4, s24, v3", "lds write addr")
    if PF_W1:
        a("v_mul_u32_u24 v60, 43, v2")
        a("v_lshrrev_b32 v60, 8, v60", "lane/6")
        a("v_mul_u32_u24 v61, 6, v60")
        a("v_sub_u32 v61, v2, v61", "lane%6")
        a("v_mul_u32_u24 v60, 3072, v60")
        a("v_lshl_add_u32 v60, v61, 7, v60")
        a("s_lshr_b32 s46, s2, 3")
        a("s_lshl_b32 s46, s46, 3")
        a("s_add_u32 s46, s46, s3")
        a("s_mul_i32 s46, s46, 24576")
        a("s_bfe_u32 s47, s2, 0x20001")
        a("s_mul_i32 s47, s47, 768")
        a("s_add_u32 s46, s46, s47")
        a("v_add_u32 v60, s46, v60")
        a("v_cmp_lt_u32 vcc, 47, v2")
        a("s_nop 1")
        a("v_cndmask_b32 v60, v60, -1, vcc", "lanes>=48 out of range")
    a("s_waitcnt lgkmcnt(0)")
    stamp(a, 1)
    srd(a, 16, 4, SD_BYTES)
    for i in range(5):
        a(f"buffer_load_dword v{10+i}, v3, s[16:19], s15 offen offset:{i*256} {NT_X}")
    if PF_W1:
        srd(a, 40, 38, S * F * 2)
    srd(a, 28, 12, SD_BYTES, HBLK_OFF)
    srd(a, 32, 12, STAT_BYTES, STAT_OFF)
    a("v_lshrrev_b32 v5, 4, v2")
    a("v_lshlrev_b32 v5, 5, v5", "32*G")
    a("v_and_b32 v6, 3, v2")
    a("v_lshl_add_u32 v5, v6, 3, v5", "+8c")
    a("v_bfe_u32 v6, v2, 2, 2")
    a(f"v_mul_u32_u24 v6, {HROW}, v6")
    a("v_add_u32 v5, v5, v6")
    a("s_lshl_b32 s25, s3, 7")
    a("v_add_u32 v5, s25, v5", "tr addr")
    a("s_mul_i32 s26, s2, 10240")
    a("s_lshl_b32 s27, s3, 10")
    a("s_add_u32 s26, s26, s27")
    a("v_lshlrev_b32 v7, 4, v2")
    X = 20; A = 30
    for i in range(5):
        a(f"s_waitcnt vmcnt({4-i})")
        a(f"v_lshlrev_b32 v{X+2*i}, 16, v{10+i}")
        a(f"v_and_b32 v{X+2*i+1}, 0xffff0000, v{10+i}")
        if i == 0:
            a(f"v_readfirstlane_b32 s20, v{X}", "pivot")
    stamp(a, 2)
    if PF_W1:
        a(f"buffer_load_dword v61, v60, s[40:43], 0 offen {NTP}")
    for i in range(5):
        a(f"v_pk_add_f32 v[{A+2*i}:{A+2*i+1}], v[{X+2*i}:{X+2*i+1}], s[20:21] op_sel_hi:[1,0] neg_lo:[0,1] neg_hi:[0,1]")
    a(f"v_pk_mul_f32 v[42:43], v[{A}:{A+1}], v[{A}:{A+1}]")
    a(f"v_pk_add_f32 v[40:41], v[{A}:{A+1}], v[{A+2}:{A+3}]")
    for i in range(1, 5):
        a(f"v_pk_fma_f32 v[42:43], v[{A+2*i}:{A+2*i+1}], v[{A+2*i}:{A+2*i+1}], v[42:43]")
        if i >= 2:
            a(f"v_pk_add_f32 v[40:41], v[40:41], v[{A+2*i}:{A+2*i+1}]")
    a("v_add_f32 v40, v40, v41")
    a("v_add_f32 v41, v42, v43")
    dpp_reduce2(a, 40, 41)
    a("v_readlane_b32 s22, v40, 63")
    a("v_readlane_b32 s23, v41, 63")
    a("s_nop 1")
    stats(a, 22, 23, 20, 44, 45, 46, 47)
    a("s_lshl_b32 s27, s14, 3")
    a("v_mov_b32 v8, s27")
    a("v_cmp_eq_u32 vcc, 0, v2")
    a("s_and_saveexec_b64 s[36:37], vcc")
    a("buffer_store_dwordx2 v[44:45], v8, s[32:35], 0 offen")
    a("s_mov_b64 exec, s[36:37]")
    a("v_mul_f32 v46, v44, v45", "m*r")
    a("v_mov_b32 v48, v45")
    for i in range(5):
        a(f"v_pk_fma_f32 v[{A+2*i}:{A+2*i+1}], v[{X+2*i}:{X+2*i+1}], v[48:49], v[46:47] op_sel_hi:[1,0,0] neg_lo:[0,0,1] neg_hi:[0,0,1]")
    for i in range(5):
        a(f"v_cvt_pk_bf16_f32 v{10+i}, v{A+2*i}, v{A+2*i+1}")
    for i in range(5):
        a(f"v_lshlrev_b32 v{X+2*i}, 16, v{10+i}")
        a(f"v_and_b32 v{X+2*i+1}, 0xffff0000, v{10+i}")
    a(f"v_pk_mul_f32 v[42:43], v[{X}:{X+1}], v[{X}:{X+1}]")
    a(f"v_pk_add_f32 v[40:41], v[{X}:{X+1}], v[{X+2}:{X+3}]")
    for i in range(1, 5):
        a(f"v_pk_fma_f32 v[42:43], v[{X+2*i}:{X+2*i+1}], v[{X+2*i}:{X+2*i+1}], v[42:43]")
        if i >= 2:
            a(f"v_pk_add_f32 v[40:41], v[40:41], v[{X+2*i}:{X+2*i+1}]")
    a("v_add_f32 v40, v40, v41")
    a("v_add_f32 v41, v42, v43")
    dpp_reduce2(a, 40, 41)
    a("v_readlane_b32 s22, v40, 63")
    a("v_readlane_b32 s23, v41, 63")
    a("s_nop 1")
    stats(a, 22, 23, None, 50, 48, 46, 47)
    a("v_mul_f32 v46, v50, v48")
    for i in range(5):
        a(f"v_pk_fma_f32 v[{A+2*i}:{A+2*i+1}], v[{X+2*i}:{X+2*i+1}], v[48:49], v[46:47] op_sel_hi:[1,0,0] neg_lo:[0,0,1] neg_hi:[0,0,1]")
    for i in range(5):
        a(f"v_cvt_pk_bf16_f32 v{10+i}, v{A+2*i}, v{A+2*i+1}")
        a(f"ds_write_b32 v4, v{10+i} offset:{i*256}")
    a("s_waitcnt lgkmcnt(0)")
    stamp(a, 3)
    a("s_barrier")
    a("ds_read_b64_tr_b16 v[52:53], v5")
    a(f"ds_read_b64_tr_b16 v[54:55], v5 offset:{4*HROW}")
    a("s_cmp_ge_u32 s3, 2")
    a("s_cbranch_scc1 K1_LN_ONE")
    a("ds_read_b64_tr_b16 v[56:57], v5 offset:1024")
    a(f"ds_read_b64_tr_b16 v[58:59], v5 offset:{4*HROW+1024}")
    a("s_add_u32 s27, s26, 8192")
    a("s_waitcnt lgkmcnt(0)")
    a("buffer_store_dwordx4 v[56:59], v7, s[28:31], s27 offen")
    a.label("K1_LN_ONE")
    a("s_waitcnt lgkmcnt(0)")
    a("buffer_store_dwordx4 v[52:55], v7, s[28:31], s26 offen")
    stamp(a, 4)
    if STAMP: a("s_waitcnt vmcnt(0)")
    stamp(a, 5)
    stamp_flush(a, 6, 0, 12, 3, 8)
    a("s_endpgm")
    a.label("K1_KV")
    a("s_sub_u32 s14, s2, 256", "t in [0,160)")
    a("s_mul_hi_u32 s37, s14, 0x33333334", "T = t/5")
    a("s_mul_i32 s20, s37, 5")
    a("s_sub_u32 s20, s14, s20", "cw = t%5")
    a("s_lshl_b32 s15, s37, 3")
    a("s_add_u32 s15, s15, s3", "j = 8T + wave")
    a("s_lshl_b32 s21, s20, 8", "cw*256 bytes")
    a("s_mul_i32 s22, s15, 10240", "j*8 rows*1280")
    a("s_add_u32 s23, s22, s21")
    a("v_add_u32 v4, s23, v3", "main rows 0..3")
    a("v_add_u32 v5, 5120, v4", "main rows 4..7")
    a("v_subrev_u32 v6, 3840, v4", "halo rows -3..-1")
    a("s_lshl_b32 s21, s20, 10")
    a("v_lshl_add_u32 v7, v2, 4, s21", "shift_k offset = c*16")
    a("v_and_b32 v8, 7, v2")
    a("v_xor_b32 v8, s3, v8")
    a("v_lshlrev_b32 v8, 4, v8")
    a("v_lshl_add_u32 v8, v2, 8, v8")
    a("v_lshrrev_b32 v84, 3, v2")
    a("v_lshrrev_b32 v85, 4, v2", "(ch>>1)&3")
    a("v_and_b32 v86, 7, v2")
    a("v_xor_b32 v85, v85, v86")
    a("v_lshlrev_b32 v85, 4, v85")
    a("v_lshl_add_u32 v85, v84, 7, v85")
    a("s_lshl_b32 s21, s3, 11")
    a("v_add_u32 v85, s21, v85", "read addr ch<8 of 16")
    a("v_xor_b32 v87, 64, v85", "ch+8: swizzle bit 2 flips")
    a("v_lshlrev_b32 v84, 12, v84")
    a("v_lshl_add_u32 v84, v86, 4, v84")
    a("s_lshl_b32 s21, s20, 19")
    a("s_lshl_b32 s22, s3, 16")
    a("s_add_u32 s21, s21, s22")
    a("s_lshl_b32 s22, s37, 7")
    a("s_add_u32 s21, s21, s22")
    a("v_add_u32 v84, s21, v84")
    a("s_mov_b32 s23, 32768")
    a("s_waitcnt lgkmcnt(0)")
    stamp(a, 1)
    srd(a, 16, 6, SD_BYTES)
    srd(a, 24, 8, SD_BYTES)
    srd(a, 28, 10, D * 8)
    srd(a, 32, 12, SD_BYTES, KVB_OFF)
    KR = 10
    VR = 21
    WR = 32
    a(f"buffer_load_dwordx4 v[{WR}:{WR+3}], v7, s[28:31], 0 offen")
    for r in range(3):
        a(f"buffer_load_dword v{KR+r}, v6, s[16:19], 0 offen offset:{r*1280} {NT}")
    for r in range(8):
        a(f"buffer_load_dword v{KR+3+r}, v{4 + r//4}, s[16:19], 0 offen offset:{(r%4)*1280} {NT}")
    for r in range(8):
        a(f"buffer_load_dword v{VR+r}, v{4 + r//4}, s[24:27], 0 offen offset:{(r%4)*1280} {NT}")
    if PF_SK:
        srd(a, 40, 44, SD_BYTES)
        a("s_sub_u32 s46, s2, 256")
        a("s_mul_i32 s47, s46, 12288")
        a("s_lshl_b32 s36, s3, 13")
        a("s_add_u32 s47, s47, s36")
        a("s_lshl_b32 s36, s46, 13")
        a(f"s_add_u32 s36, s36, {480*4096}")
        a("s_cmp_eq_u32 s3, 2")
        a("s_cselect_b32 s47, s36, s47")
        a("s_cmp_gt_u32 s3, 2")
        a("s_cselect_b32 s47, 0x40000000, s47")
        a("s_cmp_eq_u32 s3, 1")
        a("s_cselect_b32 s36, 31, 63")
        a("v_lshl_add_u32 v82, v2, 7, s47")
        a("v_cmp_lt_u32 vcc, s36, v2")
        a("s_nop 1")
        a("v_cndmask_b32 v82, v82, -1, vcc")
        a(f"buffer_load_dword v83, v82, s[40:43], 0 offen {NTP}")
    EX = 1 if PF_SK else 0
    WP = 36
    a(f"s_waitcnt vmcnt({19+EX})")
    for t in range(4):
        for ch in range(2):
            src = WR + 2 * ch + t // 2
            if t % 2 == 0:
                a(f"v_lshlrev_b32 v{WP+2*t+ch}, 16, v{src}")
            else:
                a(f"v_and_b32 v{WP+2*t+ch}, 0xffff0000, v{src}")
    KP = 44
    for r in range(11):
        a(f"s_waitcnt vmcnt({18-r+EX})")
        a(f"v_lshlrev_b32 v{KP+2*r}, 16, v{KR+r}")
        a(f"v_and_b32 v{KP+2*r+1}, 0xffff0000, v{KR+r}")
    KS = 66
    stamp(a, 2)
    for r in range(8):
        a(f"v_pk_mul_f32 v[{KS+2*r}:{KS+2*r+1}], v[{KP+2*r}:{KP+2*r+1}], v[{WP+6}:{WP+7}]")
    for t in (2, 1, 0):
        for r in range(8):
            i = r + 3 - t
            a(f"v_pk_fma_f32 v[{KS+2*r}:{KS+2*r+1}], v[{KP+2*i}:{KP+2*i+1}], v[{WP+2*t}:{WP+2*t+1}], v[{KS+2*r}:{KS+2*r+1}]")
    for r in range(8):
        a(f"s_waitcnt vmcnt({7-r+EX})")
        a(f"v_lshlrev_b32 v{KP+2*r}, 16, v{VR+r}")
        a(f"v_and_b32 v{KP+2*r+1}, 0xffff0000, v{VR+r}")
    for r in range(8):
        a(f"v_pk_mul_f32 v[{KS+2*r}:{KS+2*r+1}], v[{KS+2*r}:{KS+2*r+1}], v[{KP+2*r}:{KP+2*r+1}]")
    for ch in range(2):
        for q in range(4):
            a(f"v_cvt_pk_bf16_f32 v{12+4*ch+q}, v{KS+2*(7-2*q)+ch}, v{KS+2*(6-2*q)+ch}")
    a("ds_write_b128 v8, v[12:15]")
    a("ds_write_b128 v8, v[16:19] offset:128")
    a("s_waitcnt lgkmcnt(0)")
    a("s_barrier")
    a("ds_read_b128 v[12:15], v85")
    a("ds_read_b128 v[16:19], v87 offset:1024")
    a("s_waitcnt lgkmcnt(1)")
    a("buffer_store_dwordx4 v[12:15], v84, s[32:35], 0 offen")
    a("s_waitcnt lgkmcnt(0)")
    a("buffer_store_dwordx4 v[16:19], v84, s[32:35], s23 offen")
    stamp(a, 3)
    stamp(a, 4)
    if STAMP: a("s_waitcnt vmcnt(0)")
    stamp(a, 5)
    stamp_flush(a, 6, 0, 12, 3, 8)
    a.label("K1_END")
    a("s_endpgm")
    return kernel_desc("k1_kernel", 88, 56)
```

```python
from asmlib import *
from layout import *
import math

K2_GRID = 240
K2_BLOCK = 448
RING = 16384
CONV_BASE = 4 * RING
NT = os.environ.get("NT", "nt")
NTW = os.environ.get("NTW", "")
NTP = os.environ.get("NTP", "nt")
PF_W2 = os.environ.get("PF_W2", "1") == "1"
ROT = os.environ.get("ROT", "1") == "1"
KSPLIT = int(os.environ.get("KSPLIT", "12"))
CV_K0 = 4608
CV_K1 = 8768
CONV_SZ = 12928
CNT_OFF = CONV_BASE + 3 * CONV_SZ
K2_LDS = CNT_OFF + 64

def gelu_pair_code(a, regs, tmp):
    c0 = -2.0 * math.sqrt(2.0 / math.pi) * math.log2(math.e)
    c1 = c0 * 0.044715
    for r, t in zip(regs, tmp):
        a(f"v_mul_f32 v{t}, v{r}, v{r}")
    for r, t in zip(regs, tmp):
        a(f"v_fma_f32 v{t}, v{t}, s60, v15")
    for r, t in zip(regs, tmp):
        a(f"v_mul_f32 v{t}, v{t}, v{r}")
    for r, t in zip(regs, tmp):
        a(f"v_exp_f32 v{t}, v{t}")
    for r, t in zip(regs, tmp):
        a(f"v_add_f32 v{t}, 1.0, v{t}")
    for r, t in zip(regs, tmp):
        a(f"v_rcp_f32 v{t}, v{t}")
    for r, t in zip(regs, tmp):
        a(f"v_mul_f32 v{r}, v{r}, v{t}")
    return c0, c1

def gen_k2(a):
    kernel_begin(a, "k2_kernel")
    a(f"s_cmp_ge_u32 s2, {K2_GRID}")
    a("s_cbranch_scc1 K2_END")
    stamp(a, 0)
    a("s_load_dwordx4 s[4:7], s[0:1], 32", "ssm_k, ssm_D")
    a("s_load_dwordx4 s[8:11], s[0:1], 56", "w1, b1")
    a(f"s_load_dwordx2 s[12:13], s[0:1], {ARG['ws']}")
    a(f"s_load_dwordx2 s[48:49], s[0:1], {ARG['w2']}")
    a("v_lshrrev_b32 v1, 6, v0")
    a("v_and_b32 v2, 63, v0", "lane")
    a("v_readfirstlane_b32 s3, v1", "wave")
    a(f"v_mov_b32 v3, {CNT_OFF}")
    a("v_mov_b32 v4, 0")
    a("ds_write_b32 v3, v4", "zero the arrival counter (all waves write the same 0)")
    a("s_lshr_b32 s50, s2, 3")
    a("s_mul_i32 s50, s50, 7")
    a("s_add_u32 s50, s50, s3")
    a("s_lshl_b32 s50, s50, 15", "*8 rows*4096")
    a("s_bfe_u32 s51, s2, 0x20001")
    a("s_lshl_b32 s51, s51, 10")
    a("s_add_u32 s50, s50, s51")
    a("v_lshrrev_b32 v188, 3, v2")
    a("v_lshlrev_b32 v188, 12, v188")
    a("v_and_b32 v189, 7, v2")
    a("v_lshl_add_u32 v188, v189, 7, v188")
    a("v_add_u32 v188, s50, v188")
    a("s_waitcnt lgkmcnt(0)")
    srd(a, 52, 48, S * F * 2)
    a("s_barrier")
    stamp(a, 1)
    a("s_cmp_lt_u32 s3, 4")
    a("s_cbranch_scc1 K2_GEMM")
    a("s_setprio 3")
    a("s_sub_u32 s14, s3, 4", "cw")
    a("s_mul_i32 s15, s2, 3")
    a("s_add_u32 s15, s15, s14", "ch (wg<160)")
    a("s_cmp_lt_u32 s2, 160")
    a("s_cbranch_scc1 K2_CV_GO")
    a("s_cmp_eq_u32 s14, 2")
    a("s_cbranch_scc1 K2_CV_NONE")
    a("s_lshl_b32 s15, s2, 1")
    a("s_add_u32 s15, s15, 160")
    a("s_add_u32 s15, s15, s14", "ch = 480 + 2*(wg-160) + cw")
    a.label("K2_CV_GO")
    srd(a, 16, 4, SD_BYTES)
    srd(a, 20, 12, SD_BYTES, KVB_OFF)
    srd(a, 24, 12, SD_BYTES, YA_OFF)
    srd(a, 28, 6, D * 2)
    a(f"s_mul_i32 s32, s14, {CONV_SZ}")
    a(f"s_add_u32 s32, s32, {CONV_BASE}", "lds base")
    a("s_lshl_b32 s33, s15, 12", "ch*4096")
    a("s_lshl_b32 s34, s15, 4", "ch*16")
    a("v_lshl_add_u32 v3, v2, 4, s33", "K0 src")
    a("v_add_u32 v4, 2, v3", "K1 src")
    a("v_mov_b32 v6, s33")
    a("s_lshl_b32 s35, s15, 1")
    a("v_mov_b32 v7, s35")
    a(f"s_add_u32 m0, s32, {CV_K0+32}")
    a("buffer_load_ushort v8, v6, s[16:19], 0 offen", "kern[0]")
    for q in range(4):
        a(f"buffer_load_dwordx4 v3, s[16:19], 0 offen offset:{q*1024} {NT} lds")
    a(f"s_add_u32 m0, s32, {CV_K1+32}")
    a("buffer_load_ushort v9, v7, s[28:31], 0 offen", "ssm_D[ch]")
    for q in range(4):
        a(f"buffer_load_dwordx4 v4, s[16:19], 0 offen offset:{q*1024} {NT} lds")
    a("s_add_u32 m0, s32, 512")
    a("s_nop 0")
    for q in range(4):
        a(f"buffer_load_dwordx4 v3, s[20:23], 0 offen offset:{q*1024} lds")
    a("s_setprio 0")
    a("v_lshlrev_b32 v10, 4, v2")
    a(f"v_add_u32 v11, {CV_K0-512}, v10")
    a(f"v_add_u32 v12, {CV_K1-544}, v10")
    a("v_cmp_lt_u32 vcc, 31, v2")
    a("s_nop 1")
    a("v_cndmask_b32 v10, v10, v11, vcc")
    a("v_cmp_lt_u32 vcc, 33, v2")
    a("s_nop 1")
    a("v_cndmask_b32 v10, v10, v12, vcc")
    a("v_cmp_lt_u32 vcc, 35, v2")
    a("s_nop 1")
    a("v_cndmask_b32 v10, v10, 0, vcc")
    a("v_add_u32 v10, s32, v10")
    ACC = 16; BUF = [(48, 80), (112, 144)]
    for i in range(32):
        a(f"v_mov_b32 v{ACC+i}, 0")
    a("v_and_b32 v11, 15, v2", "b / n")
    a("v_lshrrev_b32 v12, 4, v2", "g")
    a("v_lshl_add_u32 v13, v12, 3, v11", "8g+b")
    a("v_lshlrev_b32 v13, 1, v13")
    a("v_and_b32 v14, 1, v2")
    a(f"v_mul_u32_u24 v14, {CV_K1 - CV_K0 - 2}, v14")
    a("v_sub_u32 v13, v13, v14")
    a(f"v_add_u32 v13, {CV_K1}, v13")
    VA = 176
    a(f"v_add_u32 v{VA}, s32, v13")
    for p in range(1, 4):
        a(f"v_add_u32 v{VA+p}, {1024*p}, v{VA}")
    VB = 180
    a("v_lshlrev_b32 v13, 1, v11")
    a("v_sub_u32 v13, v13, v12", "2n-g")
    a("v_lshlrev_b32 v13, 4, v13")
    a("v_add_u32 v13, 528, v13")
    a(f"v_add_u32 v{VB}, s32, v13")
    VE = 181; VS = 182
    a("v_lshrrev_b32 v13, 1, v12")
    a("v_lshl_add_u32 v13, v11, 1, v13", "2n+(g>>1)")
    a("v_lshlrev_b32 v13, 4, v13")
    a("v_and_b32 v14, 1, v12")
    a("v_lshlrev_b32 v14, 3, v14")
    a("v_sub_u32 v13, v13, v14")
    a("v_add_u32 v13, 520, v13")
    a(f"v_add_u32 v{VE}, s32, v13")
    a("v_lshlrev_b32 v13, 5, v11")
    a(f"v_lshl_add_u32 v{VS}, v12, 3, v13", "(16n+4g)*2")
    a("v_mov_b32 v184, 0")
    a("v_mov_b32 v185, 0")
    a("v_mov_b32 v186, 0")
    a("s_waitcnt vmcnt(13)")
    a("v_lshlrev_b32 v8, 16, v8")
    a("v_cmp_eq_u32 vcc, 35, v2")
    a("s_nop 1")
    a("v_cndmask_b32 v187, 0, v8, vcc")
    a("ds_write_b128 v10, v[184:187]")
    a("s_waitcnt vmcnt(0) lgkmcnt(0)")
    a("v_lshlrev_b32 v9, 16, v9", "D")
    stamp(a, 2)

    def frag_loads(buf, rr):
        A, B = BUF[buf]
        out = []
        for t in range(8):
            o = (t & 1) * 128 + rr * 16
            out.append(f"ds_read_b128 v[{B+4*t}:{B+4*t+3}], v{VB} offset:{512*t + 64*(1-rr)}")
            out.append(f"ds_read2_b32 v[{A+4*t}:{A+4*t+1}], v{VA + t//2} offset0:{o} offset1:{o+1}")
            out.append(f"ds_read2_b32 v[{A+4*t+2}:{A+4*t+3}], v{VA + t//2} offset0:{o+2} offset1:{o+3}")
        return out
    def mfmas(buf):
        A, B = BUF[buf]
        out = []
        for c in range(8):
            for t in range(c + 1):
                u = c - t
                out.append(f"v_mfma_f32_16x16x32_bf16 v[{ACC+4*c}:{ACC+4*c+3}], v[{A+4*t}:{A+4*t+3}], v[{B+4*u}:{B+4*u+3}], v[{ACC+4*c}:{ACC+4*c+3}]")
        return out
    a(f"v_subrev_u32 v{VB}, 64, v{VB}")
    for ins in frag_loads(0, 0):
        a(ins)
    a("s_mov_b32 s40, 0")
    a.label("K2_CV_LOOP")
    if PF_W2:
        a("s_cmp_lg_u32 s40, 3")
        a("s_cbranch_scc1 K2_CV_NOPF")
        a(f"buffer_load_dword v189, v188, s[52:55], 0 offen {NTP}")
        a.label("K2_CV_NOPF")
    for half in range(2):
        a("s_waitcnt lgkmcnt(0)")
        if half == 0:
            lds = frag_loads(1, 1)
        else:
            for p in range(4):
                a(f"v_add_u32 v{VA+p}, 128, v{VA+p}")
            a(f"v_subrev_u32 v{VB}, 128, v{VB}")
            lds = frag_loads(0, 0)
        mm = mfmas(half)
        for i, m in enumerate(mm):
            a(m)
            if i < len(lds):
                a(lds[i])
    a("s_add_u32 s40, s40, 1")
    a("s_cmp_lt_u32 s40, 4")
    a("s_cbranch_scc1 K2_CV_LOOP")
    stamp(a, 3)
    a("s_waitcnt lgkmcnt(0)")
    KVR = 48
    for c in range(8):
        a(f"ds_read_b64 v[{KVR+2*c}:{KVR+2*c+1}], v{VE} offset:{512*c}")
    a("s_nop 7")
    T = 80
    for c in range(8):
        a(f"s_waitcnt lgkmcnt({7-c})")
        d0, d1 = KVR + 2 * c, KVR + 2 * c + 1
        a(f"v_and_b32 v{T}, 0xffff0000, v{d1}")
        a(f"v_lshlrev_b32 v{T+1}, 16, v{d1}")
        a(f"v_and_b32 v{T+2}, 0xffff0000, v{d0}")
        a(f"v_lshlrev_b32 v{T+3}, 16, v{d0}")
        for i in range(4):
            a(f"v_fmac_f32 v{ACC+4*c+i}, v{T+i}, v9")
        a(f"v_cvt_pk_bf16_f32 v{d0}, v{ACC+4*c}, v{ACC+4*c+1}")
        a(f"v_cvt_pk_bf16_f32 v{d1}, v{ACC+4*c+2}, v{ACC+4*c+3}")
        a(f"buffer_store_dwordx2 v[{d0}:{d1}], v{VS}, s[24:27], s33 offen offset:{512*c}")
    stamp(a, 4)
    if STAMP: a("s_waitcnt vmcnt(0)")
    stamp(a, 5)
    stamp_flush(a, 6, 1, 12, 3, 7)
    a("s_endpgm")
    a.label("K2_CV_NONE")
    if PF_W2:
        a(f"buffer_load_dword v189, v188, s[52:55], 0 offen {NTP}")
    a("s_endpgm")

    a.label("K2_GEMM")
    a("s_setprio 2")
    a("s_mov_b32 s14, s3", "rho")
    a("s_and_b32 s15, s2, 7", "xcd guess")
    a("s_lshr_b32 s16, s2, 3", "j")
    a("s_mul_hi_u32 s17, s16, 0x33333334", "j/5")
    a("s_mul_i32 s18, s17, 5")
    a("s_sub_u32 s18, s16, s18", "j%5")
    a("s_add_u32 s22, s17, s18")
    a("s_sub_u32 s23, s22, 6")
    a("s_cmp_ge_u32 s22, 6")
    a("s_cselect_b32 s22, s23, s22", "rotation index 0..5")
    a("s_and_b32 s19, s15, 1")
    a("s_mul_i32 s19, s19, 5")
    a("s_add_u32 s18, s18, s19", "dt")
    a("s_lshr_b32 s19, s15, 1")
    a("s_mul_i32 s19, s19, 6")
    a("s_add_u32 s17, s17, s19", "ft")
    a(f"s_mul_i32 s19, s14, {KSPLIT}", "kstart")
    a("s_cmp_eq_u32 s14, 3")
    a(f"s_cselect_b32 s20, {64-3*KSPLIT}, {KSPLIT}", "n steps")
    a("s_lshr_b32 s21, s20, 2")
    a("s_sub_u32 s21, s21, 1", "full iterations")
    a("s_mul_i32 s22, s22, s20")
    a("s_mul_i32 s22, s22, 43")
    a("s_lshr_b32 s22, s22, 8", "rot")
    if not ROT:
        a("s_mov_b32 s22, 0")
    a("s_mul_i32 s41, s19, 98304", "W start")
    a("s_mul_i32 s42, s19, 40960", "H start")
    a("s_add_u32 s23, s19, s20")
    a("s_mul_i32 s43, s23, 98304", "W end")
    a("s_add_u32 s23, s19, s22")
    a("s_mul_i32 s44, s23, 98304", "W cur")
    a("s_mul_i32 s56, s23, 40960", "H cur")
    srd(a, 24, 8, S * F * 2)
    srd(a, 28, 12, SD_BYTES, HBLK_OFF)
    a("s_lshl_b32 s40, s14, 14", "ring base")
    VW = 184
    a("v_lshrrev_b32 v5, 3, v2")
    a("v_mul_u32_u24 v3, 3072, v5")
    a("v_bfe_u32 v5, v2, 4, 1")
    a("v_lshlrev_b32 v5, 2, v5")
    a("v_and_b32 v6, 7, v2")
    a("v_xor_b32 v5, v5, v6")
    a("v_lshl_add_u32 v3, v5, 4, v3")
    a("s_lshl_b32 s45, s17, 7")
    a(f"v_add_u32 v{VW}, s45, v3")
    for q in range(1, 4):
        a(f"v_add_u32 v{VW+q}, {q*(24576-1024)}, v{VW}")
    a("v_lshrrev_b32 v5, 5, v2")
    a("v_mul_u32_u24 v3, 10240, v5")
    a("v_and_b32 v5, 31, v2")
    a("v_lshl_add_u32 v3, v5, 4, v3")
    a("s_lshl_b32 s45, s18, 10")
    a("v_add_u32 v3, s45, v3")
    a("v_add_u32 v4, 20480, v3")
    ACC = 16; H = 80; W = 144
    def dma(q):
        return f"buffer_load_dwordx4 v{VW+q}, s[24:27], s44 offen offset:{q*1024} {NTW} lds"
    def hload(st, nt, kh):
        r = H + 16 * st + 4 * (2 * kh + nt)
        return f"buffer_load_dwordx4 v[{r}:{r+3}], v{3+kh}, s[28:31], s56 offen offset:{nt*512}"
    def adv():
        a("s_add_u32 s44, s44, 98304")
        a("s_add_u32 s56, s56, 40960")
        a("s_cmp_eq_u32 s44, s43")
        a("s_cselect_b32 s44, s41, s44")
        a("s_cselect_b32 s56, s42, s56")
    for st in range(4):
        a(f"s_add_u32 m0, s40, {st*4096}")
        a(hload(st, 0, 0))
        for q in range(4):
            a(dma(q))
        a(hload(st, 1, 0)); a(hload(st, 0, 1)); a(hload(st, 1, 1))
        adv()
    srd(a, 32, 12, UBLK_BYTES, UBLK_OFF)
    srd(a, 36, 10, F * 2)
    a("v_lshrrev_b32 v5, 5, v2")
    a("v_lshlrev_b32 v6, 10, v5")
    a("v_bfe_u32 v5, v2, 2, 2")
    a("v_lshl_add_u32 v6, v5, 7, v6")
    a("v_bfe_u32 v5, v2, 3, 1")
    a("v_lshl_add_u32 v6, v5, 6, v6")
    a("v_bfe_u32 v5, v2, 4, 1")
    a("v_lshl_add_u32 v6, v5, 5, v6")
    a("v_and_b32 v5, 3, v2")
    a("v_lshl_add_u32 v6, v5, 3, v6")
    a("v_add_u32 v6, s40, v6")
    a("v_xor_b32 v7, 64, v6")
    a("s_lshr_b32 s45, s14, 1")
    a("s_lshl_b32 s45, s45, 6")
    a("s_lshl_b32 s46, s17, 7")
    a("s_add_u32 s45, s45, s46")
    a("v_lshrrev_b32 v5, 5, v2")
    a("v_lshl_add_u32 v5, v5, 3, s45")
    for i in range(64):
        a(f"v_mov_b32 v{ACC+i}, 0")
    def trreads(slot, buf):
        out = []
        for kh in range(2):
            for mt in range(2):
                for h in range(2):
                    r = W + 16 * buf + 4 * (2 * kh + mt) + 2 * h
                    out.append(f"ds_read_b64_tr_b16 v[{r}:{r+1}], v{6+mt} offset:{slot*4096 + kh*2048 + h*512}")
        return out
    a("s_waitcnt vmcnt(24)")
    stamp(a, 2)
    for ins in trreads(0, 0):
        a(ins)
    BB = 176
    def iteration(last):
        extra = 0
        if last:
            for q in range(4):
                a(f"buffer_load_dwordx2 v[{BB+2*q}:{BB+2*q+1}], v5, s[36:39], 0 offen offset:{16*q}")
            extra = 4
            if PF_W2:
                a(f"buffer_load_dword v189, v188, s[52:55], 0 offen {NTP}")
                extra = 5
        for st in range(4):
            buf = st & 1
            if not last:
                a("s_waitcnt vmcnt(16) lgkmcnt(0)")
            elif st < 3:
                a(f"s_waitcnt vmcnt({16 - 8*st + extra}) lgkmcnt(0)")
            else:
                a("s_waitcnt lgkmcnt(0)")
            if not (last and st == 3):
                for ins in trreads((st + 1) & 3, buf ^ 1):
                    a(ins)
            if not last:
                a(f"s_add_u32 m0, s40, {st*4096}")
            q = 0
            for kh in range(2):
                for nt in range(2):
                    for mt in range(2):
                        t = ACC + 16 * (2 * mt + nt)
                        wr = W + 16 * buf + 4 * (2 * kh + mt)
                        hr = H + 16 * st + 4 * (2 * kh + nt)
                        a(f"v_mfma_f32_32x32x16_bf16 v[{t}:{t+15}], v[{wr}:{wr+3}], v[{hr}:{hr+3}], v[{t}:{t+15}]")
                        if not last:
                            if mt == 0:
                                a(dma(q)); q += 1
                            else:
                                a(hload(st, nt, kh))
            if not last:
                adv()
    a("s_mov_b32 s47, 0")
    a.label("K2_G_LOOP")
    iteration(False)
    a("s_add_u32 s47, s47, 1")
    a("s_cmp_lt_u32 s47, s21")
    a("s_cbranch_scc1 K2_G_LOOP")
    iteration(True)
    stamp(a, 3)
    a("s_nop 7")
    a("v_lshl_add_u32 v8, v2, 4, s40", "own ring + lane*16")
    a("s_nop 7")
    FIN = W
    for t in range(4):
        a(f"s_cmp_eq_u32 s14, {t}")
        a(f"s_cbranch_scc1 K2_X_OWN{t}")
        for q in range(4):
            r = ACC + 16 * t + 4 * q
            a(f"ds_write_b128 v8, v[{r}:{r+3}] offset:{t*4096 + q*1024}")
        a(f"s_branch K2_X_NEXT{t}")
        a.label(f"K2_X_OWN{t}")
        for i in range(16):
            a(f"v_mov_b32 v{FIN+i}, v{ACC+16*t+i}")
        a.label(f"K2_X_NEXT{t}")
    a(f"v_mov_b32 v9, {CNT_OFF}")
    a("v_mov_b32 v10, 1")
    a("s_waitcnt lgkmcnt(0)")
    a("s_mov_b64 exec, 1")
    a("ds_add_u32 v9, v10")
    a("s_mov_b64 exec, -1")
    a("s_lshl_b32 s45, s14, 12")
    a("v_lshl_add_u32 v8, v2, 4, s45")
    for o in range(1, 4):
        a(f"s_add_u32 s46, s14, {o}")
        a("s_and_b32 s46, s46, 3")
        a("s_lshl_b32 s46, s46, 14")
        a(f"v_add_u32 v{10+o}, s46, v8")
    c0 = -2.0 * math.sqrt(2.0 / math.pi) * math.log2(math.e)
    a(f"v_mov_b32 v15, {f32(c0)}")
    a(f"s_mov_b32 s60, {f32(c0*0.044715)}")
    a.label("K2_X_SPIN")
    a("ds_read_b32 v10, v9")
    a("s_waitcnt lgkmcnt(0)")
    a("v_readfirstlane_b32 s46, v10")
    a("s_cmp_lt_u32 s46, 4")
    a("s_cbranch_scc1 K2_X_SPIN")
    stamp(a, 4)
    if STAMP: a("s_waitcnt lgkmcnt(0)")
    for o in range(3):
        for q in range(4):
            r = H + 16 * o + 4 * q
            a(f"ds_read_b128 v[{r}:{r+3}], v{11+o} offset:{q*1024}")
    for o in range(3):
        a(f"s_waitcnt lgkmcnt({8-4*o})")
        for i in range(0, 16, 2):
            a(f"v_pk_add_f32 v[{FIN+i}:{FIN+i+1}], v[{FIN+i}:{FIN+i+1}], v[{H+16*o+i}:{H+16*o+i+1}]")
    T = H
    for i in range(0, 16, 2):
        a(f"v_cvt_pk_bf16_f32 v{T+i//2}, v{FIN+i}, v{FIN+i+1}")
    a(f"s_waitcnt vmcnt({1 if PF_W2 else 0})")
    for i in range(0, 16, 2):
        a(f"v_lshlrev_b32 v{FIN+i}, 16, v{T+i//2}")
        a(f"v_and_b32 v{FIN+i+1}, 0xffff0000, v{T+i//2}")
        a(f"v_lshlrev_b32 v{T+16+i}, 16, v{BB+i//2}")
        a(f"v_and_b32 v{T+16+i+1}, 0xffff0000, v{BB+i//2}")
    for i in range(0, 16, 2):
        a(f"v_pk_add_f32 v[{FIN+i}:{FIN+i+1}], v[{FIN+i}:{FIN+i+1}], v[{T+16+i}:{T+16+i+1}]")
    for i in range(0, 16, 2):
        a(f"v_cvt_pk_bf16_f32 v{T+i//2}, v{FIN+i}, v{FIN+i+1}")
    for i in range(0, 16, 2):
        a(f"v_lshlrev_b32 v{FIN+i}, 16, v{T+i//2}")
        a(f"v_and_b32 v{FIN+i+1}, 0xffff0000, v{T+i//2}")
    gelu_pair_code(a, [FIN + i for i in range(16)], [T + i for i in range(16)])
    P = T + 16
    for i in range(0, 16, 2):
        a(f"v_cvt_pk_bf16_f32 v{P+i//2}, v{FIN+i}, v{FIN+i+1}")
    a("s_lshr_b32 s45, s14, 1")
    a("s_lshl_b32 s45, s45, 2")
    a("s_lshl_b32 s46, s17, 3")
    a("s_add_u32 s45, s45, s46")
    a("s_mul_i32 s45, s45, 10240")
    a("s_lshl_b32 s46, s18, 10")
    a("s_add_u32 s45, s45, s46")
    a("s_and_b32 s46, s14, 1")
    a("s_lshl_b32 s46, s46, 9")
    a("s_add_u32 s45, s45, s46")
    a("v_lshrrev_b32 v5, 5, v2")
    a("v_mul_u32_u24 v5, 10240, v5")
    a("v_and_b32 v6, 31, v2")
    a("v_lshl_add_u32 v5, v6, 4, v5")
    a("s_add_u32 s46, s45, 20480")
    for qp in range(2):
        r = P + 4 * qp
        a(f"v_permlane32_swap_b32 v{r}, v{r+2}")
        a(f"v_permlane32_swap_b32 v{r+1}, v{r+3}")
        a(f"buffer_store_dwordx4 v[{r}:{r+3}], v5, s[32:35], s{45+qp} offen")
    a.label("K2_FIN")
    if STAMP: a("s_waitcnt vmcnt(0)")
    stamp(a, 5)
    stamp_flush(a, 6, 1, 12, 3, 7)
    a.label("K2_END")
    a("s_endpgm")
    return kernel_desc("k2_kernel", 192, 72)
```

```python
from asmlib import *
from layout import *

K3_GRID = 256
K3_BLOCK = 256
DEPTH = int(os.environ.get("DEPTH3", "4"))
NT = os.environ.get("NT", "nt")
NTW = os.environ.get("NTW", "")
ROT = os.environ.get("ROT", "1") == "1"
RING3 = max(DEPTH * 4096, 4 * 5120)
RING3 = (RING3 + 4095) // 4096 * 4096
YA_LDS = 4 * RING3
K3_LDS = YA_LDS + 12 * 1024

def round_pairs(a, regs, tmp):
    for i in range(0, len(regs), 2):
        a(f"v_cvt_pk_bf16_f32 v{tmp[i//2]}, v{regs[i]}, v{regs[i+1]}")
    for i in range(0, len(regs), 2):
        a(f"v_lshlrev_b32 v{regs[i]}, 16, v{tmp[i//2]}")
        a(f"v_and_b32 v{regs[i+1]}, 0xffff0000, v{tmp[i//2]}")

def gen_k3(a):
    NST = 12
    kernel_begin(a, "k3_kernel")
    a(f"s_cmp_ge_u32 s2, {K3_GRID}")
    a("s_cbranch_scc1 K3_END")
    stamp(a, 0)
    a("s_load_dwordx2 s[4:5], s[0:1], 0", "x")
    a("s_load_dwordx4 s[8:11], s[0:1], 72", "w2, b2")
    a("s_load_dwordx2 s[6:7], s[0:1], 88", "out")
    a(f"s_load_dwordx2 s[12:13], s[0:1], {ARG['ws']}")
    a("v_lshrrev_b32 v1, 6, v0")
    a("v_and_b32 v2, 63, v0", "lane")
    a("v_readfirstlane_b32 s3, v1", "wave")
    a("s_and_b32 s15, s2, 7")
    a("s_lshr_b32 s16, s2, 3", "j")
    a("s_and_b32 s17, s15, 1")
    a("s_lshl_b32 s17, s17, 2")
    a("s_and_b32 s18, s16, 3")
    a("s_add_u32 s17, s17, s18", "dt")
    a("s_lshr_b32 s18, s15, 1")
    a("s_lshl_b32 s18, s18, 3")
    a("s_lshr_b32 s19, s16, 2")
    a("s_add_u32 s18, s18, s19", "st")
    a(f"s_mul_i32 s19, s3, {NST}", "kstart")
    a("s_lshr_b32 s20, s16, 2")
    a("s_mul_i32 s20, s20, 3")
    a("s_lshr_b32 s20, s20, 1")
    a("s_and_b32 s21, s16, 3")
    a("s_mul_i32 s21, s21, 3")
    a("s_add_u32 s20, s20, s21")
    a(f"s_sub_u32 s21, s20, {NST}")
    a(f"s_cmp_ge_u32 s20, {NST}")
    a("s_cselect_b32 s20, s21, s20", "rot")
    if not ROT:
        a("s_mov_b32 s20, 0")
    a("s_lshl_b32 s41, s19, 17", "W start")
    a("s_mul_i32 s42, s19, 40960", "U start")
    a(f"s_add_u32 s43, s41, {NST << 17}", "W end")
    a("s_add_u32 s21, s19, s20")
    a("s_lshl_b32 s44, s21, 17", "W cur")
    a("s_mul_i32 s60, s21, 40960", "U cur")
    a(f"s_mul_i32 s40, s3, {RING3}", "ring base")
    VW = 28
    a("v_lshrrev_b32 v5, 3, v2")
    a("v_lshlrev_b32 v3, 12, v5")
    a("v_bfe_u32 v5, v2, 4, 1")
    a("v_lshlrev_b32 v5, 1, v5")
    a("v_and_b32 v6, 7, v2")
    a("v_xor_b32 v5, v5, v6")
    a("v_lshl_add_u32 v3, v5, 4, v3")
    a("s_lshl_b32 s45, s18, 7")
    a(f"v_add_u32 v{VW}, s45, v3")
    a(f"v_xor_b32 v4, 64, v{VW}")
    a(f"v_add_u32 v{VW+1}, {1*(32768-1024)}, v4")
    a(f"v_add_u32 v{VW+2}, {2*(32768-1024)}, v{VW}")
    a(f"v_add_u32 v{VW+3}, {3*(32768-1024)}, v4")
    a("v_lshrrev_b32 v6, 4, v2", "g")
    a("v_mul_u32_u24 v5, 10240, v6")
    a("v_and_b32 v7, 15, v2", "i/n")
    a("v_lshl_add_u32 v5, v7, 4, v5")
    a("s_mul_i32 s45, s17, 1280")
    a("v_add_u32 v5, s45, v5")
    a("v_lshrrev_b32 v8, 3, v2")
    a("v_lshlrev_b32 v8, 12, v8")
    a("v_and_b32 v9, 7, v2")
    a("v_lshl_add_u32 v8, v9, 4, v8")
    a("s_mul_i32 s45, s17, 80")
    a("s_lshl_b32 s46, s3, 3")
    a("s_add_u32 s45, s45, s46")
    a("s_lshl_b32 s45, s45, 12")
    a("s_lshl_b32 s46, s18, 7")
    a("s_add_u32 s45, s45, s46")
    a("v_add_u32 v8, s45, v8")
    a("s_lshl_b32 s45, s18, 6")
    a("s_lshl_b32 s46, s3, 4")
    a("s_add_u32 s45, s45, s46")
    a("v_add_u32 v11, s45, v7", "s")
    a("v_mul_u32_u24 v9, 1280, v11")
    a("v_lshl_add_u32 v9, v6, 3, v9")
    a("s_mul_i32 s45, s17, 160")
    a("v_add_u32 v9, s45, v9")
    a("v_lshlrev_b32 v10, 3, v11")
    a("v_lshlrev_b32 v11, 1, v11")
    a("s_waitcnt lgkmcnt(0)")
    stamp(a, 1)
    srd(a, 24, 8, S * F * 2)
    srd(a, 28, 12, UBLK_BYTES, UBLK_OFF)
    ACC = 32; W = ACC + 80; U = W + 32
    XR = U + 20 * DEPTH; ST = XR + 10; B2 = ST + 2
    NOU = os.environ.get("NOU"); NOW = os.environ.get("NOW"); NOTR = os.environ.get("NOTR"); NOEPI = os.environ.get("NOEPI")
    PS = 9 - (5 if NOU else 0) - (4 if NOW else 0)
    def dma(q):
        if NOW: return "s_nop 0"
        if os.environ.get("WVGPR"):
            return f"buffer_load_dwordx4 v[{W+4*q}:{W+4*q+3}], v{VW+q}, s[24:27], s44 offen offset:{q*1024}"
        return f"buffer_load_dwordx4 v{VW+q}, s[24:27], s44 offen offset:{q*1024} {NTW} lds"
    def uload(st, m):
        if NOU: return "s_nop 0"
        r = U + 20 * st + 4 * m
        return f"buffer_load_dwordx4 v[{r}:{r+3}], v5, s[28:31], s60 offen offset:{m*256}"
    def adv():
        a("s_add_u32 s44, s44, 0x20000")
        a("s_add_u32 s60, s60, 40960")
        a("s_cmp_eq_u32 s44, s43")
        a("s_cselect_b32 s44, s41, s44")
        a("s_cselect_b32 s60, s42, s60")
    for st in range(DEPTH):
        a(f"s_add_u32 m0, s40, {st*4096}")
        a(uload(st, 0))
        for q in range(4):
            a(dma(q))
        for m in range(1, 5):
            a(uload(st, m))
        adv()
    a("v_lshlrev_b32 v12, 10, v6")
    a("v_bfe_u32 v16, v2, 2, 2")
    a("v_lshl_add_u32 v12, v16, 7, v12")
    a("v_bfe_u32 v16, v2, 3, 2", "bits 3,4 of lane = sw")
    a("v_lshl_add_u32 v12, v16, 5, v12")
    a("v_and_b32 v16, 3, v2")
    a("v_lshl_add_u32 v12, v16, 3, v12")
    a("v_add_u32 v12, s40, v12")
    for j in range(1, 4):
        a(f"v_xor_b32 v{12+j}, {32*j}, v12")
    for i in range(80):
        a(f"v_mov_b32 v{ACC+i}, 0")
    srd(a, 32, 12, SD_BYTES, YA_OFF)
    srd(a, 36, 4, SD_BYTES)
    srd(a, 48, 12, STAT_BYTES, STAT_OFF)
    srd(a, 52, 10, S * 2)
    srd(a, 56, 6, SD_BYTES)
    def trreads(slot, buf):
        out = []
        if NOTR: return out
        for j in range(4):
            for h in range(2):
                r = W + 16 * buf + 4 * j + 2 * h
                out.append(f"ds_read_b64_tr_b16 v[{r}:{r+1}], v{12+j} offset:{slot*4096 + h*512}")
        return out
    a(f"s_waitcnt vmcnt({PS*(DEPTH-1)})")
    stamp(a, 2)
    for ins in trreads(0, 0):
        a(ins)
    def epi_loads():
        a("s_lshl_b32 s45, s3, 10")
        a(f"s_add_u32 m0, s45, {YA_LDS}")
        a(f"s_mov_b32 s45, {32*4096}")
        a(f"s_mov_b32 s46, {64*4096}")
        a("buffer_load_dwordx4 v8, s[32:35], 0 offen lds")
        a("s_add_u32 m0, m0, 4096")
        a(f"buffer_load_dwordx2 v[{ST}:{ST+1}], v10, s[48:51], 0 offen")
        a("buffer_load_dwordx4 v8, s[32:35], s45 offen lds")
        a("s_add_u32 m0, m0, 4096")
        a(f"buffer_load_ushort v{B2}, v11, s[52:55], 0 offen")
        a("buffer_load_dwordx4 v8, s[32:35], s46 offen lds")
        for m in range(5):
            a(f"buffer_load_dwordx2 v[{XR+2*m}:{XR+2*m+1}], v9, s[36:39], 0 offen offset:{32*m} {NT}")
        return 10
    def iteration(last):
        extra = epi_loads() if (last and not NOEPI) else 0
        for st in range(DEPTH):
            buf = st & 1
            if not last:
                a(f"s_waitcnt vmcnt({PS*(DEPTH-2)}) lgkmcnt(0)")
            elif st < DEPTH - 1:
                a(f"s_waitcnt vmcnt({PS*(DEPTH-2-st) + extra}) lgkmcnt(0)")
            else:
                a("s_waitcnt lgkmcnt(0)")
            if not (last and st == DEPTH - 1):
                for ins in trreads((st + 1) % DEPTH, buf ^ 1):
                    a(ins)
            if not last:
                a(f"s_add_u32 m0, s40, {st*4096}")
            for m in range(5):
                for j in range(4):
                    t = ACC + 4 * (5 * j + m)
                    wr = W + 16 * buf + 4 * j
                    ur = U + 20 * st + 4 * m
                    if not os.environ.get("NOMFMA"):
                        a(f"v_mfma_f32_16x16x32_bf16 v[{t}:{t+3}], v[{ur}:{ur+3}], v[{wr}:{wr+3}], v[{t}:{t+3}]")
                    elif j == 0: a("s_nop 0")
                    if j == 1 and m < 4 and not last:
                        a(dma(m))
                if not last:
                    a(uload(st, m))
            if not last:
                adv()
    a("s_mov_b32 s47, 0")
    a.label("K3_LOOP")
    iteration(False)
    a("s_add_u32 s47, s47, 1")
    a(f"s_cmp_lt_u32 s47, {NST // DEPTH - 1}")
    a("s_cbranch_scc1 K3_LOOP")
    iteration(True)
    stamp(a, 3)
    a("s_nop 7")
    a("v_lshl_add_u32 v16, v2, 4, s40", "own ring + lane*16")
    FIN = W
    for j in range(4):
        a(f"s_cmp_eq_u32 s3, {j}")
        a(f"s_cbranch_scc1 K3_X_OWN{j}")
        for m in range(5):
            r = ACC + 4 * (5 * j + m)
            a(f"ds_write_b128 v16, v[{r}:{r+3}] offset:{j*5120 + m*1024}")
        a(f"s_branch K3_X_NEXT{j}")
        a.label(f"K3_X_OWN{j}")
        for i in range(20):
            a(f"v_mov_b32 v{FIN+i}, v{ACC+20*j+i}")
        a.label(f"K3_X_NEXT{j}")
    a("s_mul_i32 s45, s3, 5120")
    a("v_lshl_add_u32 v16, v2, 4, s45")
    for o in range(1, 4):
        a(f"s_add_u32 s46, s3, {o}")
        a("s_and_b32 s46, s46, 3")
        a(f"s_mul_i32 s46, s46, {RING3}")
        a(f"v_add_u32 v{16+o}, s46, v16")
    a("v_lshrrev_b32 v20, 2, v2")
    a("v_lshlrev_b32 v20, 7, v20")
    a("v_and_b32 v21, 3, v2")
    a("v_lshl_add_u32 v20, v21, 3, v20")
    a("s_lshl_b32 s45, s3, 5")
    a(f"s_add_u32 s45, s45, {YA_LDS}")
    a("v_add_u32 v20, s45, v20")
    a("s_waitcnt vmcnt(0) lgkmcnt(0)")
    a("s_barrier")
    stamp(a, 4)
    if STAMP: a("s_waitcnt lgkmcnt(0)")
    PT = ACC
    for o in range(3):
        for m in range(5):
            r = PT + 20 * o + 4 * m
            a(f"ds_read_b128 v[{r}:{r+3}], v{17+o} offset:{m*1024}")
    YR = U
    XF = U + 10; XN = XF + 20; T = XN + 20
    for m in range(5):
        for h in range(2):
            a(f"v_lshlrev_b32 v{XF+4*m+2*h}, 16, v{XR+2*m+h}")
            a(f"v_and_b32 v{XF+4*m+2*h+1}, 0xffff0000, v{XR+2*m+h}")
    a(f"v_mul_f32 v22, v{ST}, v{ST+1}", "m*r")
    a(f"v_mov_b32 v24, v{ST+1}")
    a(f"v_lshlrev_b32 v26, 16, v{B2}")
    for i in range(0, 20, 2):
        a(f"v_pk_fma_f32 v[{XN+i}:{XN+i+1}], v[{XF+i}:{XF+i+1}], v[24:25], v[22:23] op_sel_hi:[1,0,0] neg_lo:[0,0,1] neg_hi:[0,0,1]")
    round_pairs(a, [XN + i for i in range(20)], [T + i for i in range(10)])
    for o in range(3):
        a(f"s_waitcnt lgkmcnt({10-5*o})")
        for i in range(0, 20, 2):
            a(f"v_pk_add_f32 v[{FIN+i}:{FIN+i+1}], v[{FIN+i}:{FIN+i+1}], v[{PT+20*o+i}:{PT+20*o+i+1}]")
    for m in range(5):
        a(f"ds_read_b64_tr_b16 v[{YR+2*m}:{YR+2*m+1}], v20 offset:{m*2048}")
    round_pairs(a, [FIN + i for i in range(20)], [T + i for i in range(10)])
    for i in range(0, 20, 2):
        a(f"v_pk_add_f32 v[{FIN+i}:{FIN+i+1}], v[{FIN+i}:{FIN+i+1}], v[26:27] op_sel_hi:[1,0]")
    round_pairs(a, [FIN + i for i in range(20)], [T + i for i in range(10)])
    a("s_waitcnt lgkmcnt(0)")
    YF = ACC
    for i in range(10):
        a(f"v_lshlrev_b32 v{YF+2*i}, 16, v{YR+i}")
        a(f"v_and_b32 v{YF+2*i+1}, 0xffff0000, v{YR+i}")
    for i in range(0, 20, 2):
        a(f"v_pk_mul_f32 v[{XN+i}:{XN+i+1}], v[{XN+i}:{XN+i+1}], v[{YF+i}:{YF+i+1}]")
    round_pairs(a, [XN + i for i in range(20)], [T + i for i in range(10)])
    for i in range(0, 20, 2):
        a(f"v_pk_add_f32 v[{XN+i}:{XN+i+1}], v[{XN+i}:{XN+i+1}], v[{XF+i}:{XF+i+1}]")
    round_pairs(a, [XN + i for i in range(20)], [T + i for i in range(10)])
    for i in range(0, 20, 2):
        a(f"v_pk_add_f32 v[{XN+i}:{XN+i+1}], v[{XN+i}:{XN+i+1}], v[{FIN+i}:{FIN+i+1}]")
    for i in range(0, 20, 2):
        a(f"v_cvt_pk_bf16_f32 v{T+i//2}, v{XN+i}, v{XN+i+1}")
    for m in range(5):
        a(f"buffer_store_dwordx2 v[{T+2*m}:{T+2*m+1}], v9, s[56:59], 0 offen offset:{32*m}")
    if STAMP: a("s_waitcnt vmcnt(0)")
    stamp(a, 5)
    stamp_flush(a, 6, 2, 12, 3, 4)
    a.label("K3_END")
    a("s_endpgm")
    nv = B2 + 1
    return kernel_desc("k3_kernel", (nv + 7) // 8 * 8, 72)
```

```python
import sys
sys.path.insert(0, "gen")
from asmlib import *
from layout import *
import k1, k2, k3

NAME = "parallel_sum__ssm_conv_h3__mixer_token_mlp__prompt"
def build():
    ref = open(f"cdna_kernels/{NAME}.s.ref").read().splitlines()
    head = []
    for l in ref:
        if l.startswith("; Override") : break
        head.append(l)
    a = Asm()
    for l in head: a.raw(l)
    a.raw(f"; @launch kernel=k1_kernel grid=({k1.K1_GRID},1,1) block=({k1.K1_BLOCK},1,1) lds={k1.K1_LDS}")
    a.raw(f"; @launch kernel=k2_kernel grid=({k2.K2_GRID},1,1) block=({k2.K2_BLOCK},1,1) lds={k2.K2_LDS}")
    a.raw(f"; @launch kernel=k3_kernel grid=({k3.K3_GRID},1,1) block=({k3.K3_BLOCK},1,1) lds={k3.K3_LDS}")
    if os.environ.get("REP3"):
        a.raw(f"; @launch kernel=k3_kernel grid=({k3.K3_GRID},1,1) block=({k3.K3_BLOCK},1,1) lds={k3.K3_LDS}")
    if os.environ.get("REP2"):
        a.raw(f"; @launch kernel=k2_kernel grid=({k2.K2_GRID},1,1) block=({k2.K2_BLOCK},1,1) lds={k2.K2_LDS}")
        a.raw(f"; @launch kernel=k2_kernel grid=({k2.K2_GRID},1,1) block=({k2.K2_BLOCK},1,1) lds={k2.K2_LDS}")
    a.raw('.amdgcn_target "amdgcn-amd-amdhsa--gfx950"')
    a.raw(".text")
    descs = [k1.gen_k1(a), k2.gen_k2(a), k3.gen_k3(a)]
    a.raw('.section .rodata,"a"')
    for d in descs: a.raw(d)
    return a.text()
if __name__ == "__main__":
    out = sys.argv[1] if len(sys.argv) > 1 else f"cdna_kernels/{NAME}.s"
    open(out, "w").write(build())
    print("wrote", out)
```

```python
S, D, F = 2048, 640, 1536
ARG = dict(x=0, k=8, v=16, shk=24, ssmk=32, ssmD=40, bx=48, w1=56, b1=64, w2=72, b2=80, out=88, dbg=96, ws=104)
SD_BYTES = S * D * 2
HBLK_OFF = 0
KVB_OFF = HBLK_OFF + SD_BYTES
YA_OFF = KVB_OFF + SD_BYTES
UBLK_OFF = YA_OFF + SD_BYTES
UBLK_BYTES = F * D * 2
STAT_OFF = UBLK_OFF + UBLK_BYTES
STAT_BYTES = S * 8
WS_USED = STAT_OFF + STAT_BYTES
FLAG_OFF = (STAT_OFF + STAT_BYTES + 4095) // 4096 * 4096
EPOCH_OFF = FLAG_OFF
FH_OFF = FLAG_OFF + 4096
FKV_OFF = FH_OFF + 65536
FU_OFF = FKV_OFF + 65536
FY_OFF = FU_OFF + 65536
WS_USED = FY_OFF + 65536
```

```python
import os, math
from asmlib import *
from layout import *

NAME = "parallel_sum__ssm_conv_h3__mixer_token_mlp__prompt"
GRID, BLOCK, LDS_BYTES = 256, 512, 163840
NT = os.environ.get("NT", "")
BIG = 0x40000000
SPIN_MAX = 20000
E = lambda k, d: int(os.environ.get(k, d))

S_X, S_K, S_V, S_SHK, S_SSMK, S_SSMD, S_W1, S_B1, S_W2, S_B2, S_OUT, S_WS = [32 + 4 * i for i in range(12)]
def R(b): return f"s[{b}:{b+3}]"
sEP, sDT, sFT, sDT2, sST, sRING, sPOS, sWOFF, sHOFF, sKB = range(80, 90)
sT0, sT1, sT2, sT3, sCH, sCVB, sG1BIG, sKVBIG, sC1, sSPIN, sROT, sT4 = range(90, 102)
sROT2, sKB2 = sCH, sCVB

FS = E("FS", 4)
NSLOT = 7
NR1 = E("NR1", 7)
NR2 = 5
RINGB = NSLOT * 4096
AUX = 4 * RINGB
LNX = AUX
HROW = 1344
KVX = LNX + 8 * HROW
CV_K0, CV_K1, CONV_SZ = 4608, 8768, 12928
PT_LDS = AUX + 3 * CONV_SZ
CNT = PT_LDS + 4 * 2560
assert KVX + 16384 <= PT_LDS and CNT + 64 <= LDS_BYTES and KVX % 128 == 0

class VM:
    def __init__(self, a): self.a = a; self.q = []
    def op(self, ins, tag): self.a(ins); self.q.append(tag)
    def count(self, tag):
        idx = [i for i, t in enumerate(self.q) if t == tag]
        return len(self.q) - 1 - idx[-1] if idx else None
    def wait(self, tag, extra=""):
        n = self.count(tag)
        if n is None:
            if extra: self.a(f"s_waitcnt {extra}")
            return
        self.a(f"s_waitcnt vmcnt({min(n, 63)}) {extra}")
        self.q = self.q[len(self.q) - n:] if n else []
    def reset(self): self.q = []

TIMER = "s_memtime" if os.environ.get("CYC") else "s_memrealtime"
def pstamp(a, i):
    if STAMP: a(f"{TIMER} s[{4+2*i}:{5+2*i}]")
def pk(r): return f"v[{r}:{r+1}]"

def gen():
    a = Asm()
    vm = VM(a)
    def emit(items):
        for it in items:
            if isinstance(it, list): emit(it)
            elif isinstance(it, tuple): vm.op(it[0], it[1])
            else: a(it)
    def flag_store(soff, tmp=2):
        a(f"v_mov_b32 v{tmp}, s{sEP}")
        a(f"v_mov_b32 v{tmp+1}, s{soff}")
        a("s_mov_b64 exec, 1")
        vm.op(f"buffer_store_dword v{tmp}, v{tmp+1}, {R(S_WS)}, 0 offen sc1", "flag")
        a("s_mov_b64 exec, -1")
    def spin(label, pairs, first_tag=None, sleep=0):
        def check():
            a(f"v_cmp_ne_u32 vcc, s{sEP}, v{pairs[0][1]}")
            for _, d in pairs[1:]:
                a(f"v_cmp_ne_u32 s[28:29], s{sEP}, v{d}")
                a("s_or_b64 vcc, vcc, s[28:29]")
        if first_tag:
            vm.wait(first_tag)
            check()
            a(f"s_cbranch_vccz {label}_OK")
        a(f"s_mov_b32 s{sSPIN}, 0")
        a.label(label)
        if sleep: a(f"s_sleep {sleep}", "poll back-off")
        for ad, d in pairs:
            a(f"buffer_load_dword v{d}, v{ad}, {R(S_WS)}, 0 offen sc1")
        a(f"s_add_u32 s{sSPIN}, s{sSPIN}, 1")
        a("s_waitcnt vmcnt(0)")
        check()
        a(f"s_cmp_gt_u32 s{sSPIN}, {SPIN_MAX}")
        a(f"s_cbranch_scc1 {label}_OK")
        a(f"s_cbranch_vccnz {label}")
        a.label(label + "_OK")
        if not first_tag: vm.reset()
    def lds_arrive(idx, t=2):
        a(f"v_mov_b32 v{t}, {CNT + 4*idx}")
        a(f"v_mov_b32 v{t+1}, 1")
        a("s_waitcnt lgkmcnt(0)")
        a("s_mov_b64 exec, 1")
        a(f"ds_add_u32 v{t}, v{t+1}")
        a("s_mov_b64 exec, -1")
    def lds_wait(label, idx, n=4, t=2, sleep=0):
        a(f"v_mov_b32 v{t}, {CNT + 4*idx}")
        a(f"s_mov_b32 s{sSPIN}, 0")
        a.label(label)
        if sleep: a(f"s_sleep {sleep}", "poll back-off")
        a(f"ds_read_b32 v{t+1}, v{t}")
        a(f"s_add_u32 s{sSPIN}, s{sSPIN}, 1")
        a(f"s_cmp_gt_u32 s{sSPIN}, {1 << 21}")
        a("s_waitcnt lgkmcnt(0)")
        a(f"v_cmp_gt_u32 vcc, {n}, v{t+1}")
        a(f"s_cbranch_scc1 {label}_OK")
        a(f"s_cbranch_vccnz {label}")
        a.label(label + "_OK")
    def sbar(label, idx, t=2):
        lds_arrive(idx, t); lds_wait(label, idx, 4, t)
    def read_epoch(vdata):
        vm.wait("ep")
        a(f"v_readfirstlane_b32 s{sEP}, v{vdata}")
        a("s_nop 3")
        a(f"s_mul_i32 s{sEP}, s{sEP}, 1664525")
        a(f"s_add_u32 s{sEP}, s{sEP}, 1013904223")
    def finish_stamps():
        if not STAMP: return
        a("s_waitcnt vmcnt(0)")
        a(f"{TIMER} s[28:29]")
        a("s_waitcnt lgkmcnt(0)")
        a("s_load_dwordx2 s[30:31], s[0:1], 104")
        a("s_waitcnt lgkmcnt(0)")
        srd(a, S_X, 30, 1 << 20, 16 << 20)
        a(f"s_lshl_b32 s{sT0}, s2, 9")
        a("v_lshrrev_b32 v1, 6, v0")
        a(f"v_lshl_add_u32 v1, v1, 6, s{sT0}")
        a("s_mov_b64 exec, 1")
        for i in range(13):
            a(f"v_mov_b32 v2, s{4+2*i}")
            a(f"buffer_store_dword v2, v1, {R(S_X)}, 0 offen offset:{4*i}")

    kernel_begin(a, NAME + "_kernel")
    a(f"s_cmp_ge_u32 s2, {GRID}")
    a("s_cbranch_scc1 PK_END")
    a("s_load_dwordx8 s[4:11], s[0:1], 0", "x k v shift_k")
    a("s_load_dwordx2 s[26:27], s[0:1], 104", "ws")
    a("s_load_dwordx8 s[16:23], s[0:1], 56", "w1 b1 w2 b2")
    a("s_load_dwordx4 s[12:15], s[0:1], 32", "ssm_k ssm_D")
    a("s_load_dwordx2 s[24:25], s[0:1], 88", "out")
    if STAMP: a(f"{TIMER} s[30:31]")
    a("v_lshrrev_b32 v2, 6, v0")
    a("v_and_b32 v1, 63, v0", "lane")
    a(f"v_readfirstlane_b32 s{sT4}, v2", "wave 0..7")
    a("v_lshlrev_b32 v3, 2, v1", "lane*4")
    a(f"v_and_b32 v4, 60, v3")
    a(f"v_add_u32 v4, {CNT}, v4")
    a("v_mov_b32 v5, 0")
    a("ds_write_b32 v4, v5", "zero the 16 lds counters")
    a(f"s_and_b32 s3, s{sT4}, 3", "w within the role")
    a(f"s_and_b32 s{sT0}, s2, 7", "x")
    a(f"s_lshr_b32 s{sT1}, s2, 3", "j")
    a(f"s_and_b32 s{sT2}, s{sT0}, 1")
    a(f"s_lshl_b32 s{sDT2}, s{sT2}, 2")
    a(f"s_and_b32 s{sT3}, s{sT1}, 3")
    a(f"s_add_u32 s{sDT2}, s{sDT2}, s{sT3}", "dt2")
    a(f"s_lshr_b32 s{sT0}, s{sT0}, 1")
    a(f"s_lshl_b32 s{sST}, s{sT0}, 3")
    a(f"s_lshr_b32 s{sT3}, s{sT1}, 2")
    a(f"s_add_u32 s{sST}, s{sST}, s{sT3}", "st")
    a(f"v_mov_b32 v8, {EPOCH_OFF}")
    a(f"s_cmp_ge_u32 s{sT4}, 4")
    a("s_cbranch_scc1 PK_H")

    a("s_setprio 1")
    a(f"s_mul_hi_u32 s{sFT}, s{sT1}, 0x33333334", "j/5")
    a(f"s_mul_i32 s{sT3}, s{sFT}, 5")
    a(f"s_sub_u32 s{sDT}, s{sT1}, s{sT3}", "j%5")
    a(f"s_mul_i32 s{sROT}, s{sDT}, 13")
    a(f"s_lshr_b32 s{sROT}, s{sROT}, 2", "rot = 3.25*dt_local")
    if not E("ROT", 1): a(f"s_mov_b32 s{sROT}, 0")
    a(f"s_mul_i32 s{sT3}, s{sT2}, 5")
    a(f"s_add_u32 s{sDT}, s{sDT}, s{sT3}", "dt")
    a(f"s_mul_i32 s{sT3}, s{sT0}, 6")
    a(f"s_add_u32 s{sFT}, s{sFT}, s{sT3}", "ft")
    a(f"s_cmp_ge_u32 s{sT1}, 30")
    a(f"s_cselect_b32 s{sG1BIG}, {BIG}, 0")
    a(f"s_mul_i32 s{sRING}, s3, {RINGB}")
    a(f"s_lshl_b32 s{sKB}, s3, 4")
    a(f"s_mov_b32 s{sPOS}, s{sROT}")
    a("v_lshrrev_b32 v2, 3, v1")
    a("v_mul_u32_u24 v4, 3072, v2")
    a("v_bfe_u32 v2, v1, 4, 1")
    a("v_lshlrev_b32 v2, 2, v2")
    a("v_and_b32 v3, 7, v1")
    a("v_xor_b32 v2, v2, v3")
    a("v_lshl_add_u32 v4, v2, 4, v4")
    a(f"s_lshl_b32 s{sT1}, s{sFT}, 7")
    a(f"s_add_u32 s{sT1}, s{sT1}, s{sG1BIG}")
    a(f"v_add_u32 v4, s{sT1}, v4")
    for q in range(1, 4):
        a(f"v_add_u32 v{4+q}, {q*(24576-1024)}, v4")
    a("s_waitcnt lgkmcnt(0)")
    srd(a, S_W1, 16, S * F * 2)
    a("s_barrier", "lds counters zeroed")
    def w1_stage(i):
        items = [f"s_add_u32 s{sWOFF}, s{sKB}, s{sPOS}", f"s_mul_i32 s{sWOFF}, s{sWOFF}, 98304",
                 f"s_add_u32 m0, s{sRING}, {(i % NSLOT)*4096}", f"s_add_u32 s{sPOS}, s{sPOS}, 1", f"s_and_b32 s{sPOS}, s{sPOS}, 15"]
        for q in range(4):
            items.append((f"buffer_load_dwordx4 v{4+q}, {R(S_W1)}, s{sWOFF} offen offset:{q*1024} lds", f"w1_{i}"))
        return items
    def w1_tr(i):
        out = []
        for kh in range(2):
            for mt in range(2):
                for h in range(2):
                    r = 16 * (i % NR1) + 4 * (2 * kh + mt) + 2 * h
                    out.append(f"ds_read_b64_tr_b16 a[{r}:{r+1}], v{10+mt} offset:{(i % NSLOT)*4096 + kh*2048 + h*512}")
        return out
    WD = E("WD", 2)
    for i in range(WD): emit(w1_stage(i))
    srd(a, S_WS, 26, WS_USED)
    vm.op(f"buffer_load_dword v9, v8, {R(S_WS)}, 0 offen sc1", "ep")
    srd(a, S_B1, 18, F * 2)
    srd(a, S_W2, 20, S * F * 2)
    srd(a, S_B2, 22, S * 2)
    srd(a, S_OUT, 24, SD_BYTES)
    if STAMP:
        a("s_mov_b32 s4, s30"); a("s_mov_b32 s5, s31")
    pstamp(a, 1)
    a("v_lshrrev_b32 v2, 5, v1")
    a("v_lshlrev_b32 v10, 10, v2")
    a("v_mul_u32_u24 v12, 10240, v2")
    a("v_bfe_u32 v2, v1, 2, 2")
    a("v_lshl_add_u32 v10, v2, 7, v10")
    a("v_bfe_u32 v2, v1, 3, 1")
    a("v_lshl_add_u32 v10, v2, 6, v10")
    a("v_bfe_u32 v2, v1, 4, 1")
    a("v_lshl_add_u32 v10, v2, 5, v10")
    a("v_and_b32 v2, 3, v1")
    a("v_lshl_add_u32 v10, v2, 3, v10")
    a(f"v_add_u32 v10, s{sRING}, v10")
    a("v_xor_b32 v11, 64, v10")
    a("v_and_b32 v2, 31, v1")
    a("v_lshl_add_u32 v12, v2, 4, v12")
    a(f"s_lshl_b32 s{sT0}, s{sDT}, 10")
    a(f"s_add_u32 s{sT0}, s{sT0}, s{sG1BIG}")
    if HBLK_OFF: a(f"s_add_u32 s{sT0}, s{sT0}, {HBLK_OFF}")
    a(f"v_add_u32 v12, s{sT0}, v12")
    a("v_add_u32 v13, 20480, v12")
    a(f"s_and_b32 s{sT0}, s{sDT}, 3")
    a(f"s_lshl_b32 s{sT0}, s{sT0}, {8+FS}")
    a(f"s_add_u32 s{sT0}, s{sT0}, {FH_OFF}")
    a(f"v_lshl_add_u32 v14, v0, {FS}, s{sT0}")
    a(f"s_and_b32 s{sROT2}, s{sDT2}, 3")
    a(f"s_mul_i32 s{sROT2}, s{sROT2}, 3")
    a(f"s_mul_i32 s{sKB2}, s3, 12")
    c0 = -2.0 * math.sqrt(2.0 / math.pi) * math.log2(math.e)
    a(f"s_mov_b32 s{sC1}, {f32(c0*0.044715)}")
    NPRE = NR1 + NSLOT
    for i in range(NPRE - WD + 1):
        vm.wait(f"w1_{i}")
        if i < NR1: emit(w1_tr(i))
        nx = i + WD
        if nx < NPRE:
            if nx >= NSLOT:
                later = sum(1 for k in range(nx - NSLOT + 1, i + 1) if k < NR1)
                a(f"s_waitcnt lgkmcnt({8 if later else 0})")
            emit(w1_stage(nx))
        if i == WD:
            read_epoch(9); lds_arrive(6)
    if E("W1ONLY", 0):
        a("s_waitcnt vmcnt(0)")
        for i in range(2, 12): pstamp(a, i)
        finish_stamps()
        a("s_endpgm")
    vm.op(f"buffer_load_dword v15, v14, {R(S_WS)}, 0 offen sc1", "hpoll")
    a(f"s_lshr_b32 s{sT0}, s2, 3")
    a(f"s_mul_hi_u32 s{sT0}, s{sT0}, 0x33333334", "ft_local")
    a(f"s_mul_i32 s{sT0}, s{sT0}, 11")
    a("v_lshrrev_b32 v2, 3, v1")
    a(f"v_add_u32 v2, s{sT0}, v2")
    a("v_add_u32 v3, 5, v2")
    a("v_min_u32 v2, 63, v2")
    a("v_min_u32 v3, 63, v3")
    a("v_mul_u32_u24 v8, 10240, v2")
    a("v_mul_u32_u24 v9, 10240, v3")
    a("v_and_b32 v2, 7, v1")
    a(f"s_mul_i32 s{sT0}, s3, {64*10240}")
    a(f"s_lshl_b32 s{sT1}, s{sDT}, 10")
    a(f"s_add_u32 s{sT0}, s{sT0}, s{sT1}")
    a(f"s_add_u32 s{sT0}, s{sT0}, s{sG1BIG}")
    if HBLK_OFF: a(f"s_add_u32 s{sT0}, s{sT0}, {HBLK_OFF}")
    a(f"v_lshl_add_u32 v2, v2, 7, s{sT0}")
    a("v_add_u32 v8, v8, v2")
    a("v_add_u32 v9, v9, v2")
    pstamp(a, 2)
    spin("PK_SPIN_H", [(14, 15)], "hpoll" if vm.count("hpoll") is not None else "x")
    pstamp(a, 3)
    a("s_setprio 2")
    ACC = 64
    HB = [("v", 16), ("v", 32), ("v", 48)] + [("a", 16 * k) for k in range(NR1, 8)]
    HD = len(HB)
    HB = HB[-((16 - 0) % HD or HD):] + HB[:-((16 - 0) % HD or HD)] if False else HB
    def hreg(i, kh, nt):
        f, b = HB[(i + HSH) % HD]
        r = b + 4 * (2 * kh + nt)
        return f"{f}[{r}:{r+3}]"
    HSH = (1 - 13) % HD
    sHP = sKVBIG
    a(f"s_mov_b32 s{sHP}, s{sROT}")
    def h_adv():
        return [f"s_add_u32 s{sHOFF}, s{sKB}, s{sHP}", f"s_mul_i32 s{sHOFF}, s{sHOFF}, 40960",
                f"s_add_u32 s{sHP}, s{sHP}, 1", f"s_and_b32 s{sHP}, s{sHP}, 15"]
    def hload(i, nt, kh):
        return (f"buffer_load_dwordx4 {hreg(i, kh, nt)}, v{12+kh}, {R(S_WS)}, s{sHOFF} offen offset:{nt*512} {os.environ.get('HFLAG', 'sc1')}", f"h{i}_{kh}{nt}")
    for i in range(HD):
        emit(h_adv())
        for kh in range(2):
            for nt in range(2): emit([hload(i, nt, kh)])
        if i == 0 and E("TOUCH", 0):
            vm.op(f"buffer_load_dword v15, v8, {R(S_WS)}, 0 offen sc1", "touch")
            vm.op(f"buffer_load_dword v14, v9, {R(S_WS)}, 0 offen sc1", "touch")
    a("s_waitcnt lgkmcnt(0)")
    def pos2(i):
        return [f"s_add_u32 s{sT0}, s{sROT2}, {i}", f"s_sub_u32 s{sT1}, s{sT0}, 12", f"s_min_u32 s{sT0}, s{sT0}, s{sT1}",
                f"s_add_u32 s{sT0}, s{sT0}, s{sKB2}"]
    def w2_slot(i): return i % NSLOT
    def w2_dma(i):
        items = pos2(i) + [f"s_add_u32 m0, s{sRING}, {w2_slot(i)*4096}", f"s_lshl_b32 s{sWOFF}, s{sT0}, 17"]
        for q in range(4):
            items.append((f"buffer_load_dwordx4 v{4+q}, {R(S_W2)}, s{sWOFF} offen offset:{q*1024} lds", f"w2_{i}"))
        return items
    BB = 16
    for i in range(16):
        nx = i + HD
        if nx < 16: emit(h_adv())
        side = []
        st_tr = NR1 - 1 + i
        if i >= 1 and st_tr < 16:
            vm.wait(f"w1_{st_tr}")
            side = w1_tr(st_tr)
        st_ld = NPRE + i - 3
        if i >= 3 and st_ld < 16:
            a("s_waitcnt lgkmcnt(8)")
            emit(w1_stage(st_ld))
        elif i >= NR1 and i != 13:
            a("s_waitcnt lgkmcnt(8)" if NR1 - 1 + i - 1 < 16 else "s_waitcnt lgkmcnt(0)")
        if i == 12:
            side = ["v_lshrrev_b32 v2, 3, v1", "v_lshlrev_b32 v4, 12, v2", "v_bfe_u32 v2, v1, 4, 1", "v_lshlrev_b32 v2, 1, v2",
                    "v_and_b32 v3, 7, v1", "v_xor_b32 v2, v2, v3", "v_lshl_add_u32 v4, v2, 4, v4", f"s_lshl_b32 s{sT0}, s{sST}, 7",
                    f"v_add_u32 v4, s{sT0}, v4", "v_xor_b32 v2, 64, v4", f"v_add_u32 v5, {1*(32768-1024)}, v2",
                    f"v_add_u32 v6, {2*(32768-1024)}, v4", f"v_add_u32 v7, {3*(32768-1024)}, v2",
                    f"s_lshr_b32 s{sT0}, s3, 1", f"s_lshl_b32 s{sT0}, s{sT0}, 6", f"s_lshl_b32 s{sT1}, s{sFT}, 7",
                    f"s_add_u32 s{sT0}, s{sT0}, s{sT1}", "v_lshrrev_b32 v8, 5, v1", f"v_lshl_add_u32 v8, v8, 3, s{sT0}"]
        if i == 13:
            lds_arrive(10)
            side = [w2_dma(0)]
        if i == 14:
            side = [[(f"buffer_load_dwordx2 v[{32+2*q}:{33+2*q}], v8, {R(S_B1)}, 0 offen offset:{16*q}", "b1") for q in range(4)], w2_dma(1)]
        if i == 15:
            side = [f"s_add_u32 s{sT2}, s{sRING}, {4*4096}", f"v_lshl_add_u32 v9, v1, 4, s{sT2}"]
            for o in range(1, 4):
                side += [f"s_add_u32 s{sT2}, s3, {o}", f"s_and_b32 s{sT2}, s{sT2}, 3",
                         [f"s_cmp_gt_u32 s3, s{sT2}", f"s_subb_u32 s{sT3}, s3, -4"],
                         f"s_lshl_b32 s{sT3}, s{sT3}, 12", f"s_mul_i32 s{sT2}, s{sT2}, {RINGB}", f"s_add_u32 s{sT2}, s{sT2}, s{sT3}",
                         f"v_lshl_add_u32 v{9+o}, v1, 4, s{sT2}"]
        k = 0; si = 0
        for kh in range(2):
            for nt in range(2):
                vm.wait(f"h{i}_{kh}{nt}")
                for mt in range(2):
                    t = ACC + 16 * (2 * mt + nt)
                    wr = 16 * (i % NR1) + 4 * (2 * kh + mt)
                    c = "0" if (i == 0 and kh == 0) else f"v[{t}:{t+15}]"
                    if not E("NOMF1", 0): a(f"v_mfma_f32_32x32x16_bf16 v[{t}:{t+15}], a[{wr}:{wr+3}], {hreg(i, kh, nt)}, {c}")
                    k += 1
                    while si < (len(side) * k + 7) // 8:
                        emit([side[si]]); si += 1
                if nx < 16: emit([hload(nx, nt, kh)])
    pstamp(a, 4)
    FIN = 48
    vm.wait("b1")
    for i in range(0, 16, 2):
        a(f"v_lshlrev_b32 v{FIN+i}, 16, v{32+i//2}")
        a(f"v_and_b32 v{FIN+i+1}, 0xffff0000, v{32+i//2}")
    for w in range(4):
        if w < 3:
            a(f"s_cmp_lg_u32 s3, {w}")
            a(f"s_cbranch_scc1 PK_X_{w+1}")
        for p, t in enumerate([t for t in range(4) if t != w]):
            for q in range(4):
                r = ACC + 16 * t + 4 * q
                a(f"ds_write_b128 v9, v[{r}:{r+3}] offset:{p*4096 + q*1024}")
        for i in range(0, 16, 2):
            a(f"v_pk_add_f32 {pk(FIN+i)}, {pk(FIN+i)}, {pk(ACC+16*w+i)}")
        if w < 3:
            a("s_branch PK_X_DONE")
            a.label(f"PK_X_{w+1}")
    a.label("PK_X_DONE")
    lds_arrive(4)
    emit(w2_dma(2))
    a(f"s_lshr_b32 s{sT0}, s3, 1")
    a(f"s_lshl_b32 s{sT0}, s{sT0}, 2")
    a(f"s_lshl_b32 s{sT1}, s{sFT}, 3")
    a(f"s_add_u32 s{sT0}, s{sT0}, s{sT1}")
    a(f"s_mul_i32 s{sT0}, s{sT0}, 10240")
    a(f"s_and_b32 s{sT1}, s3, 1")
    a(f"s_lshl_b32 s{sT1}, s{sT1}, 9")
    a(f"s_add_u32 s{sT0}, s{sT0}, s{sT1}")
    a(f"s_add_u32 s{sT0}, s{sT0}, {UBLK_OFF - HBLK_OFF - 20480}")
    a(f"v_add_u32 v14, s{sT0}, v13", "v13 = HBLK + big + dt*1024 + lane part + 20480")
    a("v_add_u32 v15, 20480, v14")
    a(f"v_mov_b32 v13, {f32(c0)}")
    a("s_mov_b32 s28, 1.0")
    a("s_mov_b32 s29, 1.0")
    lds_wait("PK_XW1", 4)
    PT = 64
    for o in range(3):
        for q in range(4):
            r = PT + 16 * o + 4 * q
            a(f"ds_read_b128 v[{r}:{r+3}], v{10+o} offset:{q*1024}")
    for o in range(3):
        a(f"s_waitcnt lgkmcnt({8-4*o})")
        for i in range(0, 16, 2):
            a(f"v_pk_add_f32 {pk(FIN+i)}, {pk(FIN+i)}, {pk(PT+16*o+i)}")
    lds_arrive(5)
    T = 64
    for i in range(0, 16, 2): a(f"v_pk_mul_f32 {pk(T+i)}, {pk(FIN+i)}, {pk(FIN+i)}")
    for i in range(16): a(f"v_fma_f32 v{T+i}, v{T+i}, s{sC1}, v13")
    for i in range(0, 16, 2): a(f"v_pk_mul_f32 {pk(T+i)}, {pk(T+i)}, {pk(FIN+i)}")
    for i in range(16): a(f"v_exp_f32 v{T+i}, v{T+i}")
    for i in range(0, 16, 2): a(f"v_pk_add_f32 {pk(T+i)}, {pk(T+i)}, s[28:29]")
    for i in range(16): a(f"v_rcp_f32 v{T+i}, v{T+i}")
    for i in range(0, 16, 2): a(f"v_pk_mul_f32 {pk(FIN+i)}, {pk(FIN+i)}, {pk(T+i)}")
    P = T + 16
    for i in range(0, 16, 2): a(f"v_cvt_pk_bf16_f32 v{P+i//2}, v{FIN+i}, v{FIN+i+1}")
    a("s_nop 1")
    for qp in range(2):
        r = P + 4 * qp
        a(f"v_permlane32_swap_b32 v{r}, v{r+2}")
        a(f"v_permlane32_swap_b32 v{r+1}, v{r+3}")
        vm.op(f"buffer_store_dwordx4 v[{r}:{r+3}], v{14+qp}, {R(S_WS)}, 0 offen sc1", "ust")
    pstamp(a, 5)
    lds_arrive(8)
    a(f"s_lshl_b32 s{sT0}, s{sDT}, 1")
    a(f"s_and_b32 s{sT1}, s3, 1")
    a(f"s_add_u32 s{sT0}, s{sT0}, s{sT1}")
    a(f"s_mul_i32 s{sT0}, s{sT0}, 48")
    a(f"s_lshl_b32 s{sT1}, s{sFT}, 1")
    a(f"s_add_u32 s{sT0}, s{sT0}, s{sT1}")
    a(f"s_lshr_b32 s{sT1}, s3, 1")
    a(f"s_add_u32 s{sT0}, s{sT0}, s{sT1}")
    a(f"s_lshl_b32 s{sT0}, s{sT0}, {FS}")
    a(f"s_add_u32 s{sT0}, s{sT0}, {FU_OFF}")
    a(f"s_add_u32 s{sT4}, s{sT0}, s{sG1BIG}")
    TR2 = 100
    a("v_lshrrev_b32 v106, 4, v1", "g")
    a("v_and_b32 v107, 15, v1", "n")
    a(f"v_lshlrev_b32 v{TR2}, 10, v106")
    a("v_bfe_u32 v2, v1, 2, 2")
    a(f"v_lshl_add_u32 v{TR2}, v2, 7, v{TR2}")
    a("v_bfe_u32 v2, v1, 3, 2")
    a(f"v_lshl_add_u32 v{TR2}, v2, 5, v{TR2}")
    a("v_and_b32 v2, 3, v1")
    a(f"v_lshl_add_u32 v{TR2}, v2, 3, v{TR2}")
    a(f"v_add_u32 v{TR2}, s{sRING}, v{TR2}")
    for j in range(1, 4): a(f"v_xor_b32 v{TR2+j}, {32*j}, v{TR2}")
    a("v_min_u32 v2, 35, v1")
    a("v_mul_u32_u24 v3, 43, v2")
    a("v_lshrrev_b32 v3, 9, v3")
    a("v_mul_u32_u24 v104, 36, v3")
    a("v_add_u32 v104, v104, v2")
    a(f"s_mul_i32 s{sT3}, s{sDT2}, 80", "d0")
    a(f"s_lshr_b32 s{sT0}, s{sT3}, 5")
    a(f"s_mul_i32 s{sT0}, s{sT0}, 48")
    a(f"s_add_u32 s{sT0}, s{sT0}, s{sKB2}")
    a(f"s_lshl_b32 s{sT0}, s{sT0}, {FS}")
    a(f"s_add_u32 s{sT0}, s{sT0}, {FU_OFF}")
    a(f"v_lshl_add_u32 v104, v104, {FS}, s{sT0}")
    a("v_mul_u32_u24 v105, 10240, v106")
    a("v_lshl_add_u32 v105, v107, 4, v105")
    a(f"s_lshl_b32 s{sT0}, s{sT3}, 4")
    a(f"s_add_u32 s{sT0}, s{sT0}, {UBLK_OFF}")
    a(f"v_add_u32 v105, s{sT0}, v105")
    def w2_tr(i, tr):
        out = []
        for j in range(4):
            for h in range(2):
                r = 16 * (i % NR2) + 4 * j + 2 * h
                out.append(f"ds_read_b64_tr_b16 a[{r}:{r+1}], v{tr+j} offset:{w2_slot(i)*4096 + h*512}")
        return out
    vm.wait("w2_2")
    for k in range(3): emit(w2_tr(k, TR2))
    vm.wait("ust")
    flag_store(sT4)
    pstamp(a, 6)
    emit(w2_dma(3))
    lds_wait("PK_XW2", 5)
    emit(w2_dma(4))
    for i in range(3, 12):
        nx = i + 2
        if nx < 12:
            if nx >= 10: a("s_waitcnt lgkmcnt(0)")
            emit(w2_dma(nx))
        vm.wait(f"w2_{i}")
        if i < NR2: emit(w2_tr(i, TR2))
        if i == E("UPOLL_AT", 10):
            vm.op(f"buffer_load_dword v108, v104, {R(S_WS)}, 0 offen sc1", "upoll")
    for j in range(4): a(f"v_mov_b32 v{4+j}, v{TR2+j}")
    a("v_mul_u32_u24 v109, 26, v1")
    a("v_lshrrev_b32 v109, 8, v109", "L/10")
    a("v_mul_u32_u24 v110, 10, v109")
    a("v_sub_u32 v110, v1, v110", "L%10")
    a("v_min_u32 v109, 5, v109")
    a("v_mul_u32_u24 v109, 10240, v109")
    a("v_lshl_add_u32 v109, v110, 7, v109")
    a(f"s_and_b32 s{sT0}, s{sST}, 7")
    a(f"s_mul_i32 s{sT0}, s{sT0}, 6")
    a(f"s_mul_i32 s{sT1}, s3, 48")
    a(f"s_add_u32 s{sT0}, s{sT0}, s{sT1}")
    a(f"s_mul_i32 s{sT0}, s{sT0}, 10240")
    a(f"s_mul_i32 s{sT1}, s{sDT2}, 1280")
    a(f"s_add_u32 s{sT0}, s{sT0}, s{sT1}")
    a(f"s_add_u32 s{sT0}, s{sT0}, {UBLK_OFF}")
    a(f"v_add_u32 v109, s{sT0}, v109")
    a("v_mov_b32 v3, v105")
    pstamp(a, 7)
    spin("PK_SPIN_U", [(104, 108)], "upoll" if vm.count("upoll") is not None else "x")
    pstamp(a, 8)
    ACC2 = 48
    UB = [("a", 100), ("v", 8), ("v", 28), ("a", 80)]; UD = 4
    def ureg(i, m):
        f, b = UB[i % UD]
        return f"{f}[{b+4*m}:{b+4*m+3}]"
    def u_adv(i): return pos2(i) + [f"s_mul_i32 s{sHOFF}, s{sT0}, 40960"]
    def uload(i, m):
        return (f"buffer_load_dwordx4 {ureg(i, m)}, v3, {R(S_WS)}, s{sHOFF} offen offset:{m*256} sc1", f"u{i}_{m}")
    for i in range(UD):
        emit(u_adv(i))
        for m in range(5): emit([uload(i, m)])
        if i == 0 and E("TOUCH", 0):
            vm.op(f"buffer_load_dword a127, v109, {R(S_WS)}, 0 offen sc1", "touch")
    a("s_waitcnt lgkmcnt(0)")
    for i in range(12):
        nx = i + UD
        if nx < 12: emit(u_adv(nx))
        side = w2_tr(NR2 - 1 + i, 4) if (i >= 1 and NR2 - 1 + i < 12) else []
        if NR2 <= i <= 8: a("s_waitcnt lgkmcnt(8)")
        if i == E("YGO", 9): lds_arrive(9)
        if i == 11:
            side = ["v_lshrrev_b32 v8, 4, v1", "v_and_b32 v9, 15, v1",
                    f"s_lshl_b32 s{sT0}, s{sST}, 6", f"s_lshl_b32 s{sT1}, s3, 4", f"s_add_u32 s{sT0}, s{sT0}, s{sT1}",
                    f"v_add_u32 v9, s{sT0}, v9", "v_mul_u32_u24 v10, 1280, v9", "v_lshl_add_u32 v10, v8, 3, v10",
                    f"s_mul_i32 s{sT0}, s{sDT2}, 160", f"v_add_u32 v10, s{sT0}, v10", "v_lshlrev_b32 v9, 1, v9",
                    (f"buffer_load_ushort v16, v9, {R(S_B2)}, 0 offen", "b2"),
                    f"v_lshl_add_u32 v11, v1, 4, s{sRING}",
                    f"s_mul_i32 s{sT0}, s3, 2560", f"s_add_u32 s{sT0}, s{sT0}, {PT_LDS}", f"v_lshl_add_u32 v15, v1, 3, s{sT0}"]
            for o in range(1, 4):
                side += [f"s_add_u32 s{sT2}, s3, {o}", f"s_and_b32 s{sT2}, s{sT2}, 3",
                         [f"s_cmp_gt_u32 s3, s{sT2}", f"s_subb_u32 s{sT3}, s3, 0"],
                         f"s_mul_i32 s{sT3}, s{sT3}, 5120", f"s_mul_i32 s{sT2}, s{sT2}, {RINGB}", f"s_add_u32 s{sT2}, s{sT2}, s{sT3}",
                         f"v_lshl_add_u32 v{11+o}, v1, 4, s{sT2}"]
        k = 0; si = 0
        for m in range(5):
            vm.wait(f"u{i}_{m}")
            for j in range(4):
                t = ACC2 + 4 * (5 * j + m)
                wr = 16 * (i % NR2) + 4 * j
                c = "0" if i == 0 else f"v[{t}:{t+3}]"
                a(f"v_mfma_f32_16x16x32_bf16 v[{t}:{t+3}], {ureg(i, m)}, a[{wr}:{wr+3}], {c}")
                k += 1
                while si < (len(side) * k + 19) // 20:
                    emit([side[si]]); si += 1
            if nx < 12: emit([uload(nx, m)])
    pstamp(a, 9)
    FIN2 = 28
    vm.wait("b2")
    a("v_lshlrev_b32 v17, 16, v16")
    a("v_lshlrev_b32 v16, 16, v16")
    a("s_nop 5")
    for w in range(4):
        if w < 3:
            a(f"s_cmp_lg_u32 s3, {w}")
            a(f"s_cbranch_scc1 PK_Y_{w+1}")
        for p, j in enumerate([j for j in range(4) if j != w]):
            for m in range(5):
                r = ACC2 + 4 * (5 * j + m)
                a(f"ds_write_b128 v11, v[{r}:{r+3}] offset:{p*5120 + m*1024}")
        for i in range(0, 20, 2):
            a(f"v_pk_add_f32 {pk(FIN2+i)}, {pk(ACC2+20*w+i)}, v[16:17]")
        if w < 3:
            a("s_branch PK_Y_DONE")
            a.label(f"PK_Y_{w+1}")
    a.label("PK_Y_DONE")
    a("s_waitcnt lgkmcnt(0)")
    a("s_barrier", "partials of all G waves + P tiles of the H waves")
    pstamp(a, 10)
    PT2 = 48; PR = 18; PF = 108
    for m in range(5):
        a(f"ds_read_b64 v[{PR+2*m}:{PR+2*m+1}], v15 offset:{m*512}")
    for o in range(3):
        for m in range(5):
            r = PT2 + 20 * o + 4 * m
            a(f"ds_read_b128 v[{r}:{r+3}], v{12+o} offset:{m*1024}")
    for o in range(3):
        a(f"s_waitcnt lgkmcnt({10-5*o})")
        for i in range(0, 20, 2):
            a(f"v_pk_add_f32 {pk(FIN2+i)}, {pk(FIN2+i)}, {pk(PT2+20*o+i)}")
    T2 = 48
    for i in range(0, 20, 2): a(f"v_cvt_pk_bf16_f32 v{T2+i//2}, v{FIN2+i}, v{FIN2+i+1}")
    a("s_waitcnt lgkmcnt(0)")
    for m in range(5):
        for h in range(2):
            i = 4 * m + 2 * h
            a(f"v_lshlrev_b32 v{FIN2+i}, 16, v{T2+i//2}")
            a(f"v_and_b32 v{FIN2+i+1}, 0xffff0000, v{T2+i//2}")
            a(f"v_lshlrev_b32 v{PF+i}, 16, v{PR+i//2}")
            a(f"v_and_b32 v{PF+i+1}, 0xffff0000, v{PR+i//2}")
            a(f"v_pk_add_f32 {pk(FIN2+i)}, {pk(FIN2+i)}, {pk(PF+i)}")
            a(f"v_cvt_pk_bf16_f32 v{60+i//2}, v{FIN2+i}, v{FIN2+i+1}")
        a(f"buffer_store_dwordx2 v[{60+2*m}:{61+2*m}], v10, {R(S_OUT)}, 0 offen offset:{32*m} {os.environ.get('OUTF', '')}")
    a(f"s_or_b32 s{sT0}, s2, s3")
    a(f"s_cmp_lg_u32 s{sT0}, 0")
    a("s_cbranch_scc1 PK_NOEP")
    a(f"s_mov_b32 s{sT0}, {EPOCH_OFF}")
    flag_store(sT0)
    a.label("PK_NOEP")
    pstamp(a, 11)
    finish_stamps()
    a("s_endpgm")

    a.label("PK_H")
    vm.reset()
    a("s_setprio 3")
    a(f"s_lshl_b32 s{sT0}, s2, 2")
    a(f"s_add_u32 s{sT0}, s{sT0}, s3")
    a(f"s_mul_i32 s{sT4}, s{sT0}, 2560", "x soffset")
    a("s_cmp_ge_u32 s2, 160")
    a(f"s_cselect_b32 s{sKVBIG}, {BIG}, 0")
    if E("NOKV", 0): a(f"s_mov_b32 s{sKVBIG}, {BIG}")
    sTT, sCW = sDT, sFT
    a(f"s_mul_hi_u32 s{sTT}, s2, 0x33333334", "T")
    a(f"s_mul_i32 s{sCW}, s{sTT}, 5")
    a(f"s_sub_u32 s{sCW}, s2, s{sCW}", "cw")
    a(f"s_lshl_b32 s{sT0}, s{sTT}, 2")
    a(f"s_add_u32 s{sT0}, s{sT0}, s3")
    a(f"s_mul_i32 s{sT0}, s{sT0}, 20480")
    a(f"s_lshl_b32 s{sT1}, s{sCW}, 8")
    a(f"s_add_u32 s{sT0}, s{sT0}, s{sT1}")
    a(f"s_add_u32 s{sT0}, s{sT0}, s{sKVBIG}")
    VKV = 10
    a(f"v_add_u32 v{VKV+1}, s{sT0}, v3")
    a(f"v_subrev_u32 v{VKV}, 3840, v{VKV+1}")
    for i in range(1, 4): a(f"v_add_u32 v{VKV+1+i}, {5120*i}, v{VKV+1}")
    a(f"s_lshl_b32 s{sT1}, s{sCW}, 10")
    a(f"v_lshl_add_u32 v15, v1, 4, s{sT1}")
    a("s_waitcnt lgkmcnt(0)")
    srd(a, S_X, 4, SD_BYTES)
    XRAW = 16
    for r in range(2):
        for i in range(5):
            vm.op(f"buffer_load_dword v{XRAW+5*r+i}, v3, {R(S_X)}, s{sT4} offen offset:{r*1280+i*256} {NT}", f"x{r}{i}")
    a("s_barrier", "lds counters zeroed")
    if E("W1ONLY", 0):
        if STAMP:
            a("s_mov_b32 s4, s30"); a("s_mov_b32 s5, s31")
        for i in range(1, 12): pstamp(a, i)
        finish_stamps()
        a("s_endpgm")
    srd(a, S_WS, 26, WS_USED)
    vm.op(f"buffer_load_dword v9, v8, {R(S_WS)}, 0 offen sc1", "ep")
    srd(a, S_K, 6, SD_BYTES)
    srd(a, S_V, 8, SD_BYTES)
    srd(a, S_SHK, 10, D * 8)
    srd(a, S_SSMK, 12, SD_BYTES)
    srd(a, S_SSMD, 14, D * 2)
    if STAMP:
        a("s_mov_b32 s4, s30"); a("s_mov_b32 s5, s31")
    def kv_loads():
        vm.op(f"buffer_load_dwordx4 a[36:39], v15, {R(S_SHK)}, 0 offen", "shk")
        for r in range(3):
            vm.op(f"buffer_load_dword a{r}, v{VKV}, {R(S_K)}, 0 offen offset:{r*1280} {NT}", "k")
        for r in range(16):
            vm.op(f"buffer_load_dword a{3+r}, v{VKV+1+r//4}, {R(S_K)}, 0 offen offset:{(r%4)*1280} {NT}", "k")
        for r in range(16):
            vm.op(f"buffer_load_dword a{19+r}, v{VKV+1+r//4}, {R(S_V)}, 0 offen offset:{(r%4)*1280} {NT}", "v")
    KV_EARLY = E("KV_EARLY", 0)
    if KV_EARLY: kv_loads()
    a("s_getpc_b64 s[30:31]")
    a.label("PK_PC")
    a(f"s_sub_u32 s30, s30, PK_PC-{NAME}_kernel")
    a("s_subb_u32 s31, s31, 0")
    a("v_and_b32 v8, 7, v0")
    a(f"s_andn2_b32 s{sT0}, s2, 7")
    a(f"v_add_lshl_u32 v8, v8, s{sT0}, 7")
    a(f"v_min_u32 v8, PK_END-{NAME}_kernel, v8")
    vm.op("global_load_dword v127, v8, s[30:31]", "code")
    pstamp(a, 1)
    a(f"s_mul_i32 s{sT0}, s3, {2*HROW}")
    a(f"s_add_u32 s{sT0}, s{sT0}, {LNX}")
    a(f"v_add_u32 v4, s{sT0}, v3")
    a("v_lshrrev_b32 v5, 4, v1")
    a("v_lshlrev_b32 v5, 5, v5")
    a("v_and_b32 v2, 3, v1")
    a("v_lshl_add_u32 v5, v2, 3, v5")
    a("v_bfe_u32 v2, v1, 2, 2")
    a(f"v_mul_u32_u24 v2, {HROW}, v2")
    a("v_add_u32 v5, v5, v2")
    a(f"s_lshl_b32 s{sT0}, s3, 7")
    a(f"s_add_u32 s{sT0}, s{sT0}, {LNX}")
    a(f"v_add_u32 v5, s{sT0}, v5")
    a(f"s_mul_i32 s{sT0}, s2, 10240")
    a(f"s_lshl_b32 s{sT1}, s3, 10")
    a(f"s_add_u32 s{sT0}, s{sT0}, s{sT1}")
    if HBLK_OFF: a(f"s_add_u32 s{sT0}, s{sT0}, {HBLK_OFF}")
    a(f"v_lshl_add_u32 v6, v1, 4, s{sT0}")
    a("v_add_u32 v7, 4096, v6")
    a("s_cmp_ge_u32 s3, 2")
    a(f"s_cselect_b32 s{sT1}, {BIG}, 8192")
    a(f"v_add_u32 v8, s{sT1}, v6")
    a(f"s_lshl_b32 s{sT0}, s2, 2")
    a(f"s_add_u32 s{sT0}, s{sT0}, s3")
    a(f"s_lshl_b32 s{sT0}, s{sT0}, 4")
    a(f"s_add_u32 s{sT0}, s{sT0}, {STAT_OFF}")
    a(f"v_mov_b32 v90, s{sT0}")
    a(f"s_lshl_b32 s{sT0}, s3, 8")
    a(f"s_add_u32 s{sT0}, s{sT0}, s2")
    a(f"s_lshl_b32 s{sT0}, s{sT0}, {FS}")
    a(f"s_add_u32 s{sRING}, s{sT0}, {FH_OFF}", "h flag offset")
    X = [26, 36]; A = [46, 56]; SUM = [66, 70]; TMP = [74, 82]
    PIV = [28, 30]; SS = [(sT0, sT1), (sT2, sT3)]
    for r in range(2):
        for i in range(5):
            vm.wait(f"x{r}{i}")
            a(f"v_lshlrev_b32 v{X[r]+2*i}, 16, v{XRAW+5*r+i}")
            a(f"v_and_b32 v{X[r]+2*i+1}, 0xffff0000, v{XRAW+5*r+i}")
            if i == 0: a(f"v_readfirstlane_b32 s{PIV[r]}, v{X[r]}")
            if i == 2: a(f"s_mov_b32 s{PIV[r]+1}, s{PIV[r]}")
    pstamp(a, 2)
    def zip2(f):
        out = []
        for p, q in zip(f(0), f(1)): out += [p, q]
        return out
    def sums(src):
        def f(r):
            Sr = SUM[r]; B = src[r]
            l = [f"v_pk_mul_f32 {pk(Sr+2)}, {pk(B)}, {pk(B)}", f"v_pk_add_f32 {pk(Sr)}, {pk(B)}, {pk(B+2)}"]
            for i in range(1, 5):
                l.append(f"v_pk_fma_f32 {pk(Sr+2)}, {pk(B+2*i)}, {pk(B+2*i)}, {pk(Sr+2)}")
                if i >= 2: l.append(f"v_pk_add_f32 {pk(Sr)}, {pk(Sr)}, {pk(B+2*i)}")
            l += [f"v_add_f32 v{Sr}, v{Sr}, v{Sr+1}", f"v_add_f32 v{Sr+1}, v{Sr+2}, v{Sr+3}"]
            return l
        l = zip2(f)
        steps = ["row_shr:1 row_mask:0xf bank_mask:0xf bound_ctrl:0", "row_shr:2 row_mask:0xf bank_mask:0xf bound_ctrl:0",
                 "row_shr:4 row_mask:0xf bank_mask:0xf bound_ctrl:0", "row_shr:8 row_mask:0xf bank_mask:0xf bound_ctrl:0",
                 "row_bcast:15 row_mask:0xa bank_mask:0xf", "row_bcast:31 row_mask:0xc bank_mask:0xf"]
        regs = [SUM[0], SUM[1], SUM[0] + 1, SUM[1] + 1]
        for st in steps:
            for v in regs: l.append(f"v_add_f32_dpp v{v}, v{v}, v{v} {st}")
        l += [f"v_readlane_b32 s{SS[0][0]}, v{SUM[0]}, 63", f"v_readlane_b32 s{SS[1][0]}, v{SUM[1]}, 63",
              f"v_readlane_b32 s{SS[0][1]}, v{SUM[0]+1}, 63", f"v_readlane_b32 s{SS[1][1]}, v{SUM[1]+1}, 63"]
        return l
    def statsl(piv):
        inv = f32(1.0 / D)
        def f(r):
            t0, t1 = TMP[r] + 6, TMP[r] + 7; m = TMP[r]; rr = TMP[r] + 1
            l = [f"v_mul_f32 v{t0}, s{SS[r][0]}, v91", f"v_mul_f32 v{t1}, s{SS[r][1]}, v91",
                 f"v_fma_f32 v{t1}, -v{t0}, v{t0}, v{t1}", f"v_max_f32 v{t1}, 0, v{t1}"]
            if piv: l.append(f"v_add_f32 v{t0}, s{PIV[r]}, v{t0}")
            l += [f"v_cvt_pk_bf16_f32 v{t0}, v{t0}, v{t1}", f"v_lshlrev_b32 v{m}, 16, v{t0}",
                  f"v_and_b32 v{t1}, 0xffff0000, v{t0}", f"v_add_f32 v{t1}, {f32(1e-5)}, v{t1}",
                  f"v_cvt_pk_bf16_f32 v{t1}, v{t1}, v{t1}", f"v_lshlrev_b32 v{t1}, 16, v{t1}",
                  f"v_sqrt_f32 v{t1}, v{t1}", f"v_cvt_pk_bf16_f32 v{t1}, v{t1}, v{t1}",
                  f"v_lshlrev_b32 v{t1}, 16, v{t1}", f"v_rcp_f32 v{rr}, v{t1}",
                  f"v_mul_f32 v{TMP[r]+4}, v{m}, v{rr}", f"v_mov_b32 v{TMP[r]+2}, v{rr}",
                  f"v_mul_f32 v{TMP[r]+5}, v{m}, v{rr}", f"v_mov_b32 v{TMP[r]+3}, v{rr}"]
            return l
        return zip2(f)
    def norm(dst, src):
        return zip2(lambda r: [f"v_pk_fma_f32 {pk(dst[r]+2*i)}, {pk(src[r]+2*i)}, {pk(TMP[r]+2)}, {pk(TMP[r]+4)} neg_lo:[0,0,1] neg_hi:[0,0,1]" for i in range(5)])
    a(f"v_mov_b32 v91, {f32(1.0/D)}")
    emit(zip2(lambda r: [f"v_pk_add_f32 {pk(A[r]+2*i)}, {pk(X[r]+2*i)}, s[{PIV[r]}:{PIV[r]+1}] neg_lo:[0,1] neg_hi:[0,1]" for i in range(5)]))
    emit(sums(A)); emit(statsl(True))
    emit(["s_mov_b64 exec, 1",
          (f"buffer_store_dwordx2 {pk(TMP[0])}, v90, {R(S_WS)}, 0 offen sc1", "hst"),
          (f"buffer_store_dwordx2 {pk(TMP[1])}, v90, {R(S_WS)}, 0 offen offset:8 sc1", "hst"),
          "s_mov_b64 exec, -1"])
    emit(norm(A, X))
    emit(zip2(lambda r: [f"v_cvt_pk_bf16_f32 v{XRAW+5*r+i}, v{A[r]+2*i}, v{A[r]+2*i+1}" for i in range(5)]))
    emit(zip2(lambda r: sum([[f"v_lshlrev_b32 v{X[r]+2*i}, 16, v{XRAW+5*r+i}", f"v_and_b32 v{X[r]+2*i+1}, 0xffff0000, v{XRAW+5*r+i}"] for i in range(5)], [])))
    emit(sums(X)); emit(statsl(False)); emit(norm(A, X))
    emit(zip2(lambda r: sum([[f"v_cvt_pk_bf16_f32 v{XRAW+5*r+i}, v{A[r]+2*i}, v{A[r]+2*i+1}", f"ds_write_b32 v4, v{XRAW+5*r+i} offset:{r*HROW+i*256}"] for i in range(5)], [])))
    read_epoch(9)
    sbar("PK_HB1", 1)
    HT = 26
    for t in range(3):
        a(f"ds_read_b64_tr_b16 v[{HT+4*t}:{HT+4*t+1}], v5 offset:{512*t}")
        a(f"ds_read_b64_tr_b16 v[{HT+4*t+2}:{HT+4*t+3}], v5 offset:{512*t+4*HROW}")
    for t in range(3):
        a(f"s_waitcnt lgkmcnt({4-2*t})")
        vm.op(f"buffer_store_dwordx4 v[{HT+4*t}:{HT+4*t+3}], v{6+t}, {R(S_WS)}, 0 offen sc1", "hst")
    pstamp(a, 3)
    a("v_and_b32 v2, 7, v1")
    a(f"s_lshl_b32 s{sT0}, s3, 1")
    a(f"v_xor_b32 v4, s{sT0}, v2")
    a("v_lshlrev_b32 v4, 4, v4")
    a("v_lshl_add_u32 v4, v1, 8, v4")
    a(f"v_add_u32 v4, {KVX}, v4")
    a("v_xor_b32 v5, 16, v4")
    a("v_lshrrev_b32 v8, 3, v1")
    a("v_lshrrev_b32 v6, 4, v1")
    a("v_xor_b32 v6, v6, v2")
    a("v_lshlrev_b32 v6, 4, v6")
    a("v_lshl_add_u32 v6, v8, 7, v6")
    a(f"s_lshl_b32 s{sT0}, s3, 12")
    a(f"s_add_u32 s{sT0}, s{sT0}, {KVX}")
    a(f"v_add_u32 v6, s{sT0}, v6")
    a("v_xor_b32 v7, 64, v6")
    a("v_lshlrev_b32 v8, 12, v8")
    a("v_lshl_add_u32 v8, v2, 4, v8")
    a(f"s_lshl_b32 s{sT0}, s{sCW}, 19")
    a(f"s_lshl_b32 s{sT1}, s3, 17")
    a(f"s_add_u32 s{sT0}, s{sT0}, s{sT1}")
    a(f"s_lshl_b32 s{sT1}, s{sTT}, 7")
    a(f"s_add_u32 s{sT0}, s{sT0}, s{sT1}")
    a(f"s_add_u32 s{sT0}, s{sT0}, {KVB_OFF}")
    a(f"s_add_u32 s{sT0}, s{sT0}, s{sKVBIG}")
    a(f"v_add_u32 v8, s{sT0}, v8")
    lds_wait("PK_EPW", 6)
    vm.wait("hst")
    flag_store(sRING)
    pstamp(a, 4)
    if not KV_EARLY: kv_loads()
    a("s_setprio 0")
    a(f"s_lshl_b32 s{sT0}, s{sCW}, 2")
    a(f"s_add_u32 s{sT0}, s{sT0}, s3")
    a(f"s_lshl_b32 s{sT0}, s{sT0}, 5")
    a(f"s_add_u32 s{sT0}, s{sT0}, s{sTT}")
    a(f"s_lshl_b32 s{sT0}, s{sT0}, {FS}")
    a(f"s_add_u32 s{sT0}, s{sT0}, {FKV_OFF}")
    a(f"s_add_u32 s{sRING}, s{sT0}, s{sKVBIG}", "kv flag offset")
    WP, KP, KS, KO = 16, 24, 62, 94
    vm.wait("k")
    for i in range(4): a(f"v_accvgpr_read_b32 v{110+i}, a{36+i}")
    for r in range(19): a(f"v_accvgpr_read_b32 v{KP+2*r+1}, a{r}")
    for t in range(4):
        for ch in range(2):
            src = 110 + 2 * ch + t // 2
            a(f"v_lshlrev_b32 v{WP+2*t+ch}, 16, v{src}" if t % 2 == 0 else f"v_and_b32 v{WP+2*t+ch}, 0xffff0000, v{src}")
    for r in range(19):
        a(f"v_lshlrev_b32 v{KP+2*r}, 16, v{KP+2*r+1}")
        a(f"v_and_b32 v{KP+2*r+1}, 0xffff0000, v{KP+2*r+1}")
    for r in range(16): a(f"v_pk_mul_f32 {pk(KS+2*r)}, {pk(KP+2*r)}, {pk(WP+6)}")
    for t in (2, 1, 0):
        for r in range(16):
            a(f"v_pk_fma_f32 {pk(KS+2*r)}, {pk(KP+2*(r+3-t))}, {pk(WP+2*t)}, {pk(KS+2*r)}")
    vm.wait("v")
    for r in range(16): a(f"v_accvgpr_read_b32 v{KP+2*r+1}, a{19+r}")
    for r in range(16):
        a(f"v_lshlrev_b32 v{KP+2*r}, 16, v{KP+2*r+1}")
        a(f"v_and_b32 v{KP+2*r+1}, 0xffff0000, v{KP+2*r+1}")
    for r in range(16): a(f"v_pk_mul_f32 {pk(KS+2*r)}, {pk(KS+2*r)}, {pk(KP+2*r)}")
    for c2 in range(2):
        for ch in range(2):
            for q in range(4):
                a(f"v_cvt_pk_bf16_f32 v{KO+8*c2+4*ch+q}, v{KS+2*(8*c2+7-2*q)+ch}, v{KS+2*(8*c2+6-2*q)+ch}")
            a(f"ds_write_b128 v{4+c2}, v[{KO+8*c2+4*ch}:{KO+8*c2+4*ch+3}] offset:{128*ch}")
    sbar("PK_HB2", 2)
    for i in range(4):
        a(f"ds_read_b128 v[{KO+4*i}:{KO+4*i+3}], v{6+(i&1)} offset:{1024*i}")
    a("s_setprio 3")
    for i in range(4):
        a(f"s_mov_b32 s{sT0}, {32768*i}")
        a(f"s_waitcnt lgkmcnt({3-i})")
        vm.op(f"buffer_store_dwordx4 v[{KO+4*i}:{KO+4*i+3}], v8, {R(S_WS)}, s{sT0} offen sc1", "kvst")
    lds_arrive(3)
    pstamp(a, 5)
    a("v_lshrrev_b32 v14, 4, v1", "g")
    a("v_and_b32 v15, 15, v1", "n")
    a(f"s_lshl_b32 s{sCH}, s2, 1")
    a(f"s_mul_i32 s{sT0}, s2, 3")
    a(f"s_sub_u32 s{sT0}, s{sT0}, 128")
    a("s_cmp_ge_u32 s2, 128")
    a(f"s_cselect_b32 s{sCH}, s{sT0}, s{sCH}")
    a(f"s_cselect_b32 s{sT0}, 3, 2")
    a(f"s_add_u32 s{sCH}, s{sCH}, s3")
    a(f"s_cmp_lt_u32 s3, s{sT0}")
    a(f"s_cselect_b32 s{sCH}, s{sCH}, {1 << 16}", "ch (65536 = none)")
    a(f"s_mul_i32 s{sCVB}, s3, {CONV_SZ}")
    a(f"s_add_u32 s{sCVB}, s{sCVB}, {AUX}")
    a(f"s_lshr_b32 s{sT0}, s{sCH}, 5")
    a(f"s_lshl_b32 s{sT0}, s{sT0}, {5+FS}")
    a(f"s_add_u32 s{sT0}, s{sT0}, {FKV_OFF}")
    a("v_and_b32 v29, 31, v1")
    a(f"v_lshl_add_u32 v29, v29, {FS}, s{sT0}", "kv poll address")
    a(f"s_lshl_b32 s{sT0}, s{sCH}, 12")
    a(f"v_lshl_add_u32 v31, v1, 4, s{sT0}")
    a("v_add_u32 v32, 2, v31")
    a(f"v_add_u32 v33, {KVB_OFF}, v31")
    a(f"v_mov_b32 v34, s{sT0}")
    a(f"s_lshl_b32 s{sT1}, s{sCH}, 1")
    a(f"v_mov_b32 v36, s{sT1}")
    VA, VB, VE, VS = 38, 42, 43, 44
    a("v_lshlrev_b32 v2, 5, v15")
    a(f"v_lshl_add_u32 v{VS}, v14, 3, v2")
    a(f"s_add_u32 s{sT0}, s{sT0}, {YA_OFF}")
    a(f"v_add_u32 v{VS}, s{sT0}, v{VS}")
    a("v_lshlrev_b32 v45, 4, v1")
    a(f"v_add_u32 v46, s{sCVB}, v45")
    a(f"v_add_u32 v2, {CV_K0-512}, v45")
    a(f"v_add_u32 v3, {CV_K1-544}, v45")
    a("v_cmp_lt_u32 vcc, 31, v1")
    a(f"v_lshl_add_u32 v{VA}, v14, 3, v15")
    a(f"v_lshlrev_b32 v{VA}, 1, v{VA}")
    a("v_cndmask_b32 v45, v45, v2, vcc")
    a("v_cmp_lt_u32 vcc, 33, v1")
    a("v_and_b32 v2, 1, v1")
    a(f"v_mul_u32_u24 v2, {CV_K1 - CV_K0 - 2}, v2")
    a("v_cndmask_b32 v45, v45, v3, vcc")
    a("v_cmp_lt_u32 vcc, 35, v1")
    a(f"v_sub_u32 v{VA}, v{VA}, v2")
    a(f"v_add_u32 v{VA}, {CV_K1}, v{VA}")
    a("v_cndmask_b32 v45, v45, 0, vcc")
    a(f"v_add_u32 v45, s{sCVB}, v45")
    a(f"v_add_u32 v{VA}, s{sCVB}, v{VA}")
    for p in range(1, 4): a(f"v_add_u32 v{VA+p}, {1024*p}, v{VA}")
    a("v_lshlrev_b32 v2, 1, v15")
    a("v_sub_u32 v2, v2, v14")
    a("v_lshlrev_b32 v2, 4, v2")
    a(f"v_add_u32 v2, {528-448}, v2")
    a(f"v_add_u32 v{VB}, s{sCVB}, v2")
    a("v_lshrrev_b32 v2, 1, v14")
    a("v_lshl_add_u32 v2, v15, 1, v2")
    a("v_lshlrev_b32 v2, 4, v2")
    a("v_and_b32 v3, 1, v14")
    a("v_lshlrev_b32 v3, 3, v3")
    a("v_sub_u32 v2, v2, v3")
    a("v_add_u32 v2, 520, v2")
    a(f"v_add_u32 v{VE}, s{sCVB}, v2")
    vm.wait("kvst")
    flag_store(sRING)
    a(f"s_cmp_ge_u32 s{sCH}, 640")
    a("s_cbranch_scc1 PK_NOCONV")
    lds_wait("PK_HB3", 3)
    if E("KERN_LATE", 0):
        a("s_setprio 0")
        lds_wait("PK_KW0", 10, n=4, sleep=4)
        a("s_setprio 3")
    vm.reset()
    a(f"s_add_u32 m0, s{sCVB}, {CV_K0+32}")
    a(f"buffer_load_ushort v35, v34, {R(S_SSMK)}, 0 offen")
    for q in range(4): a(f"buffer_load_dwordx4 v31, {R(S_SSMK)}, 0 offen offset:{q*1024} lds")
    a(f"s_add_u32 m0, s{sCVB}, {CV_K1+32}")
    a(f"buffer_load_ushort v37, v36, {R(S_SSMD)}, 0 offen")
    for q in range(4): a(f"buffer_load_dwordx4 v32, {R(S_SSMK)}, 0 offen offset:{q*1024} lds")
    a("s_setprio 0")
    lds_wait("PK_KW", 10, n=4, sleep=4)
    a("s_setprio 3")
    if not E("NOKV", 0): spin("PK_SPIN_KV", [(29, 30)], sleep=E("KVPOLL_SLEEP", 0))
    KVR = 48
    for q in range(4):
        vm.op(f"buffer_load_dwordx4 v[{KVR+4*q}:{KVR+4*q+3}], v33, {R(S_WS)}, 0 offen offset:{q*1024} sc1", "cfill")
    a("s_setprio 0")
    a("v_mov_b32 v96, 0"); a("v_mov_b32 v97, 0"); a("v_mov_b32 v98, 0")
    a("v_cmp_eq_u32 vcc, 35, v1")
    a("v_lshlrev_b32 v35, 16, v35")
    a("v_lshlrev_b32 v37, 16, v37", "D")
    a("v_cndmask_b32 v99, 0, v35, vcc")
    a("ds_write_b128 v45, v[96:99]")
    vm.wait("cfill")
    for q in range(4):
        a(f"ds_write_b128 v46, v[{KVR+4*q}:{KVR+4*q+3}] offset:{512+1024*q}")
    a("s_waitcnt lgkmcnt(0)")
    CACC = 64; BUF = [(0, 32), (64, 96)]
    def frag_loads(buf, rr):
        A_, B_ = BUF[buf]
        out = []
        for t in range(8):
            o = (t & 1) * 128 + rr * 16
            out.append(f"ds_read_b128 a[{B_+4*t}:{B_+4*t+3}], v{VB} offset:{512*t + 64*(1-rr)}")
            out.append(f"ds_read2_b32 a[{A_+4*t}:{A_+4*t+1}], v{VA + t//2} offset0:{o} offset1:{o+1}")
            out.append(f"ds_read2_b32 a[{A_+4*t+2}:{A_+4*t+3}], v{VA + t//2} offset0:{o+2} offset1:{o+3}")
        return out
    for i in range(32): a(f"v_mov_b32 v{CACC+i}, 0")
    a(f"v_add_u32 v{VB}, {448-64}, v{VB}", "64 below the r-even address")
    emit(frag_loads(0, 0))
    pstamp(a, 6)
    lds_wait("PK_CW", 8, n=E("CONV_WAIT_N", 4), sleep=2)
    a(f"s_setprio {E('CONV_PRIO', 3)}")
    pstamp(a, 7)
    a(f"s_mov_b32 s{sT0}, 0")
    a.label("PK_CV_LOOP")
    for half in range(2):
        a("s_waitcnt lgkmcnt(0)")
        if half == 0: side = frag_loads(1, 1)
        else:
            for p in range(4): a(f"v_add_u32 v{VA+p}, 128, v{VA+p}")
            a(f"v_subrev_u32 v{VB}, 128, v{VB}")
            side = frag_loads(0, 0)
        A_, B_ = BUF[half]
        i = 0
        for c in range(8):
            for t in range(c + 1):
                u = c - t
                a(f"v_mfma_f32_16x16x32_bf16 v[{CACC+4*c}:{CACC+4*c+3}], a[{A_+4*t}:{A_+4*t+3}], a[{B_+4*u}:{B_+4*u+3}], v[{CACC+4*c}:{CACC+4*c+3}]")
                if i < len(side): a(side[i])
                i += 1
    a(f"s_add_u32 s{sT0}, s{sT0}, 1")
    a(f"s_cmp_lt_u32 s{sT0}, 4")
    a("s_cbranch_scc1 PK_CV_LOOP")
    a("s_setprio 3")
    for c in range(8): a(f"ds_read_b64 v[{100+2*c}:{101+2*c}], v{VE} offset:{512*c}")
    a("s_waitcnt lgkmcnt(0)")
    TT = 116
    for c in range(8):
        d0, d1 = 100 + 2 * c, 101 + 2 * c
        emit([f"v_and_b32 v{TT}, 0xffff0000, v{d1}", f"v_lshlrev_b32 v{TT+1}, 16, v{d1}",
              f"v_and_b32 v{TT+2}, 0xffff0000, v{d0}", f"v_lshlrev_b32 v{TT+3}, 16, v{d0}"])
        for i in range(4): a(f"v_fmac_f32 v{CACC+4*c+i}, v{TT+i}, v37")
        a(f"v_cvt_pk_bf16_f32 v{d0}, v{CACC+4*c}, v{CACC+4*c+1}")
        a(f"v_cvt_pk_bf16_f32 v{d1}, v{CACC+4*c+2}, v{CACC+4*c+3}")
        a(f"buffer_store_dwordx2 v[{d0}:{d1}], v{VS}, {R(S_WS)}, 0 offen offset:{512*c} sc1")
    pstamp(a, 8)
    a(f"s_lshl_b32 s{sT0}, s{sCH}, {FS}")
    a(f"s_add_u32 s{sT0}, s{sT0}, {FY_OFF}")
    a("s_waitcnt vmcnt(0)")
    flag_store(sT0)
    a("s_branch PK_PCOMP")
    a.label("PK_NOCONV")
    a("s_setprio 0")
    lds_wait("PK_NCW", 8, n=4, sleep=16)
    a("s_setprio 3")
    a.label("PK_PCOMP")
    vm.reset()
    a(f"s_mul_i32 s{sT3}, s{sDT2}, 80", "d0")
    a(f"s_lshl_b32 s{sT0}, s{sST}, 6")
    a(f"s_lshl_b32 s{sT1}, s3, 4")
    a(f"s_add_u32 s{sT0}, s{sT0}, s{sT1}")
    a(f"v_add_u32 v4, s{sT0}, v15", "s")
    a("v_mul_u32_u24 v5, 1280, v4")
    a("v_lshl_add_u32 v5, v14, 3, v5")
    a(f"s_lshl_b32 s{sT0}, s{sT3}, 1")
    a(f"v_add_u32 v5, s{sT0}, v5", "x offset")
    XR = 16
    for m in range(5):
        a(f"buffer_load_dwordx2 v[{XR+2*m}:{XR+2*m+1}], v5, {R(S_X)}, 0 offen offset:{32*m}")
    a("v_lshlrev_b32 v6, 3, v4")
    a(f"v_add_u32 v6, {STAT_OFF}, v6")
    a(f"s_lshl_b32 s{sT0}, s{sT3}, {FS}")
    a(f"s_add_u32 s{sT0}, s{sT0}, {FY_OFF}")
    a(f"v_lshl_add_u32 v7, v1, {FS}, s{sT0}")
    a(f"v_add_u32 v8, {64 << FS}, v7")
    a("v_bfe_u32 v2, v4, 1, 2")
    a("v_lshlrev_b32 v2, 8, v2")
    a("v_lshrrev_b32 v3, 3, v4")
    a("v_add_u32 v2, v2, v3")
    a("v_cmp_lt_u32 vcc, 15, v1")
    a(f"v_lshlrev_b32 v2, {FS}, v2")
    a(f"v_add_u32 v2, {FH_OFF}, v2")
    a("v_cndmask_b32 v8, v8, v2, vcc")
    a("v_lshrrev_b32 v9, 1, v1")
    a("v_lshlrev_b32 v9, 12, v9")
    a("v_and_b32 v2, 1, v1")
    a("v_lshl_add_u32 v9, v2, 4, v9")
    a(f"s_lshl_b32 s{sT0}, s{sT3}, 12")
    a(f"s_lshl_b32 s{sT1}, s{sST}, 7")
    a(f"s_add_u32 s{sT0}, s{sT0}, s{sT1}")
    a(f"s_lshl_b32 s{sT1}, s3, 5")
    a(f"s_add_u32 s{sT0}, s{sT0}, s{sT1}")
    a(f"s_add_u32 s{sT0}, s{sT0}, {YA_OFF}")
    a(f"v_add_u32 v9, s{sT0}, v9")
    a("v_cmp_lt_u32 vcc, 31, v1")
    a("v_add_u32 v10, 0x20000, v9")
    a("v_add_u32 v11, 0x40000, v9")
    a(f"v_mov_b32 v2, {BIG}")
    a("v_cndmask_b32 v11, v11, v2, vcc")
    a(f"s_mul_i32 s{sT0}, s3, 2560")
    a(f"s_add_u32 s{sT0}, s{sT0}, {PT_LDS}")
    a(f"v_lshl_add_u32 v12, v1, 4, s{sT0}")
    a(f"v_lshl_add_u32 v13, v1, 3, s{sT0}")
    a("s_setprio 0")
    lds_wait("PK_YW", 9, n=4, sleep=4)
    a("s_setprio 3")
    spin("PK_SPIN_Y", [(7, 26), (8, 27)], sleep=E("YPOLL_SLEEP", 0))
    pstamp(a, 9)
    YL, ST_, XF, XN, T2, YR, YF = 28, 40, 44, 64, 84, 94, 104
    for t in range(3):
        vm.op(f"buffer_load_dwordx4 v[{YL+4*t}:{YL+4*t+3}], v{9+t}, {R(S_WS)}, 0 offen sc1", "ya")
    vm.op(f"buffer_load_dwordx2 v[{ST_}:{ST_+1}], v6, {R(S_WS)}, 0 offen sc1", "st")
    for i in range(10):
        a(f"v_lshlrev_b32 v{XF+2*i}, 16, v{XR+i}")
        a(f"v_and_b32 v{XF+2*i+1}, 0xffff0000, v{XR+i}")
    vm.wait("ya")
    a(f"ds_write_b128 v12, v[{YL}:{YL+3}]")
    a(f"ds_write_b128 v12, v[{YL+4}:{YL+7}] offset:1024")
    a("s_mov_b32 exec_hi, 0")
    a(f"ds_write_b128 v12, v[{YL+8}:{YL+11}] offset:2048")
    a("s_mov_b64 exec, -1")
    vm.wait("st", "lgkmcnt(0)")
    for m in range(5):
        a(f"ds_read_b64_tr_b16 v[{YR+2*m}:{YR+2*m+1}], v13 offset:{m*512}")
    a(f"v_mul_f32 v42, v{ST_}, v{ST_+1}")
    a(f"v_mul_f32 v43, v{ST_}, v{ST_+1}")
    a(f"v_mov_b32 v{ST_}, v{ST_+1}")
    for i in range(0, 20, 2):
        a(f"v_pk_fma_f32 {pk(XN+i)}, {pk(XF+i)}, {pk(ST_)}, v[42:43] neg_lo:[0,0,1] neg_hi:[0,0,1]")
    for i in range(0, 20, 2): a(f"v_cvt_pk_bf16_f32 v{T2+i//2}, v{XN+i}, v{XN+i+1}")
    for i in range(0, 20, 2):
        a(f"v_lshlrev_b32 v{XN+i}, 16, v{T2+i//2}")
        a(f"v_and_b32 v{XN+i+1}, 0xffff0000, v{T2+i//2}")
    a("s_waitcnt lgkmcnt(0)")
    for i in range(10):
        a(f"v_lshlrev_b32 v{YF+2*i}, 16, v{YR+i}")
        a(f"v_and_b32 v{YF+2*i+1}, 0xffff0000, v{YR+i}")
    for i in range(0, 20, 2): a(f"v_pk_fma_f32 {pk(XN+i)}, {pk(XN+i)}, {pk(YF+i)}, {pk(XF+i)}")
    for m in range(5):
        a(f"v_cvt_pk_bf16_f32 v{T2+2*m}, v{XN+4*m}, v{XN+4*m+1}")
        a(f"v_cvt_pk_bf16_f32 v{T2+2*m+1}, v{XN+4*m+2}, v{XN+4*m+3}")
        a(f"ds_write_b64 v13, v[{T2+2*m}:{T2+2*m+1}] offset:{m*512}")
    pstamp(a, 10)
    a("s_waitcnt lgkmcnt(0)")
    a("s_barrier")
    pstamp(a, 11)
    finish_stamps()
    a.label("PK_END")
    a("s_endpgm")
    return a

def build():
    ref = open(f"cdna_kernels/{NAME}.s.ref").read().splitlines()
    head = []
    for l in ref:
        if l.startswith("; Override"): break
        head.append(l)
    body = gen()
    out = "\n".join(head) + "\n"
    out += f"; @launch grid=({GRID},1,1) block=({BLOCK},1,1) lds={LDS_BYTES}\n"
    out += '.amdgcn_target "amdgcn-amd-amdhsa--gfx950"\n.text\n'
    out += body.text()
    out += '.section .rodata,"a"\n' + kernel_desc(NAME + "_kernel", 256, 102, 128)
    return out
if __name__ == "__main__":
    import sys
    out = sys.argv[1] if len(sys.argv) > 1 else f"cdna_kernels/{NAME}.s"
    open(out, "w").write(build())
    print("wrote", out)
```

```python
import os, math
from asmlib import *
from layout import *

NAME = "parallel_sum__ssm_conv_h3__mixer_token_mlp__prompt"
GRID, BLOCK, LDS_BYTES = 256, 512, 163840
NT = os.environ.get("NT", "")
BIG = 0x40000000
SPIN_MAX = 20000
E = lambda k, d: int(os.environ.get(k, d))

S_X, S_K, S_V, S_SHK, S_SSMK, S_SSMD, S_W1, S_B1, S_W2, S_B2, S_OUT, S_WS = [32 + 4 * i for i in range(12)]
def R(b): return f"s[{b}:{b+3}]"
sEP, sDT, sFT, sDT2, sST, sRING, sPOS, sWOFF, sHOFF, sKB = range(80, 90)
sT0, sT1, sT2, sT3, sCH, sCVB, sG1BIG, sKVBIG, sC1, sSPIN, sROT, sT4 = range(90, 102)
sROT2, sKB2 = sCH, sCVB

FS = E("FS", 4)
NSLOT = 7
NR1 = E("NR1", 7)
NR2 = 5
RINGB = NSLOT * 4096
AUX = 4 * RINGB
LNX = AUX
HROW = 1344
KVX = LNX + 8 * HROW
CV_K0, CV_K1, CONV_SZ = 4608, 8768, 12928
PT_LDS = AUX + 3 * CONV_SZ
CNT = PT_LDS + 4 * 2560
assert KVX + 16384 <= PT_LDS and CNT + 64 <= LDS_BYTES and KVX % 128 == 0

class VM:
    def __init__(self, a): self.a = a; self.q = []
    def op(self, ins, tag): self.a(ins); self.q.append(tag)
    def count(self, tag):
        idx = [i for i, t in enumerate(self.q) if t == tag]
        return len(self.q) - 1 - idx[-1] if idx else None
    def wait(self, tag, extra=""):
        n = self.count(tag)
        if n is None:
            if extra: self.a(f"s_waitcnt {extra}")
            return
        self.a(f"s_waitcnt vmcnt({min(n, 63)}) {extra}")
        self.q = self.q[len(self.q) - n:] if n else []
    def reset(self): self.q = []

TIMER = "s_memtime" if os.environ.get("CYC") else "s_memrealtime"
MUTE = [False]
def pstamp(a, i, force=False):
    if STAMP and (force or not MUTE[0]): a(f"{TIMER} s[{4+2*i}:{5+2*i}]")
def pk(r): return f"v[{r}:{r+1}]"

def gen():
    a = Asm()
    vm = VM(a)
    def emit(items):
        for it in items:
            if isinstance(it, list): emit(it)
            elif isinstance(it, tuple): vm.op(it[0], it[1])
            else: a(it)
    def flag_store(soff, tmp=2):
        a(f"v_mov_b32 v{tmp}, s{sEP}")
        a(f"v_mov_b32 v{tmp+1}, s{soff}")
        a("s_mov_b64 exec, 1")
        vm.op(f"buffer_store_dword v{tmp}, v{tmp+1}, {R(S_WS)}, 0 offen sc1", "flag")
        a("s_mov_b64 exec, -1")
    def spin(label, pairs, first_tag=None, sleep=0):
        def check():
            a(f"v_cmp_ne_u32 vcc, s{sEP}, v{pairs[0][1]}")
            for _, d in pairs[1:]:
                a(f"v_cmp_ne_u32 s[28:29], s{sEP}, v{d}")
                a("s_or_b64 vcc, vcc, s[28:29]")
        if first_tag:
            vm.wait(first_tag)
            check()
            a(f"s_cbranch_vccz {label}_OK")
        a(f"s_mov_b32 s{sSPIN}, 0")
        a.label(label)
        if sleep: a(f"s_sleep {sleep}", "poll back-off")
        for ad, d in pairs:
            a(f"buffer_load_dword v{d}, v{ad}, {R(S_WS)}, 0 offen sc1")
        a(f"s_add_u32 s{sSPIN}, s{sSPIN}, 1")
        a("s_waitcnt vmcnt(0)")
        check()
        a(f"s_cmp_gt_u32 s{sSPIN}, {SPIN_MAX}")
        a(f"s_cbranch_scc1 {label}_OK")
        a(f"s_cbranch_vccnz {label}")
        a.label(label + "_OK")
        if not first_tag: vm.reset()
    def lds_arrive(idx, t=2):
        a(f"v_mov_b32 v{t}, {CNT + 4*idx}")
        a(f"v_mov_b32 v{t+1}, 1")
        a("s_waitcnt lgkmcnt(0)")
        a("s_mov_b64 exec, 1")
        a(f"ds_add_u32 v{t}, v{t+1}")
        a("s_mov_b64 exec, -1")
    def lds_wait(label, idx, n=4, t=2, sleep=0):
        a(f"v_mov_b32 v{t}, {CNT + 4*idx}")
        a(f"s_mov_b32 s{sSPIN}, 0")
        a.label(label)
        if sleep: a(f"s_sleep {sleep}", "poll back-off")
        a(f"ds_read_b32 v{t+1}, v{t}")
        a(f"s_add_u32 s{sSPIN}, s{sSPIN}, 1")
        a(f"s_cmp_gt_u32 s{sSPIN}, {1 << 21}")
        a("s_waitcnt lgkmcnt(0)")
        a(f"v_cmp_gt_u32 vcc, {n}, v{t+1}")
        a(f"s_cbranch_scc1 {label}_OK")
        a(f"s_cbranch_vccnz {label}")
        a.label(label + "_OK")
    def sbar(label, idx, t=2):
        lds_arrive(idx, t); lds_wait(label, idx, 4, t)
    def read_epoch(vdata):
        vm.wait("ep")
        a(f"v_readfirstlane_b32 s{sEP}, v{vdata}")
        a("s_nop 3")
        a(f"s_mul_i32 s{sEP}, s{sEP}, 1664525")
        a(f"s_add_u32 s{sEP}, s{sEP}, 1013904223")
    def finish_stamps():
        if not STAMP: return
        a("s_waitcnt vmcnt(0)")
        a(f"{TIMER} s[28:29]")
        a("s_waitcnt lgkmcnt(0)")
        a("s_load_dwordx2 s[30:31], s[0:1], 104")
        a("s_waitcnt lgkmcnt(0)")
        srd(a, S_X, 30, 1 << 20, 16 << 20)
        a(f"s_lshl_b32 s{sT0}, s2, 9")
        a("v_lshrrev_b32 v1, 6, v0")
        a(f"v_lshl_add_u32 v1, v1, 6, s{sT0}")
        a("s_mov_b64 exec, 1")
        for i in range(13):
            a(f"v_mov_b32 v2, s{4+2*i}")
            a(f"buffer_store_dword v2, v1, {R(S_X)}, 0 offen offset:{4*i}")

    kernel_begin(a, NAME + "_kernel")
    a(f"s_cmp_ge_u32 s2, {GRID}")
    a("s_cbranch_scc1 PK_END")
    a("s_load_dwordx8 s[4:11], s[0:1], 0", "x k v shift_k")
    a("s_load_dwordx2 s[26:27], s[0:1], 104", "ws")
    a("s_load_dwordx8 s[16:23], s[0:1], 56", "w1 b1 w2 b2")
    a("s_load_dwordx4 s[12:15], s[0:1], 32", "ssm_k ssm_D")
    a("s_load_dwordx2 s[24:25], s[0:1], 88", "out")
    if STAMP: a(f"{TIMER} s[30:31]")
    a("v_lshrrev_b32 v2, 6, v0")
    a("v_and_b32 v1, 63, v0", "lane")
    a(f"v_readfirstlane_b32 s{sT4}, v2", "wave 0..7")
    a("v_lshlrev_b32 v3, 2, v1", "lane*4")
    a(f"v_and_b32 v4, 60, v3")
    a(f"v_add_u32 v4, {CNT}, v4")
    a("v_mov_b32 v5, 0")
    a("ds_write_b32 v4, v5", "zero the 16 lds counters")
    a(f"s_and_b32 s3, s{sT4}, 3", "w within the role")
    a(f"s_and_b32 s{sT0}, s2, 7", "x")
    a(f"s_lshr_b32 s{sT1}, s2, 3", "j")
    a(f"s_and_b32 s{sT2}, s{sT0}, 1")
    a(f"s_lshl_b32 s{sDT2}, s{sT2}, 2")
    a(f"s_and_b32 s{sT3}, s{sT1}, 3")
    a(f"s_add_u32 s{sDT2}, s{sDT2}, s{sT3}", "dt2")
    a(f"s_lshr_b32 s{sT0}, s{sT0}, 1")
    a(f"s_lshl_b32 s{sST}, s{sT0}, 3")
    a(f"s_lshr_b32 s{sT3}, s{sT1}, 2")
    a(f"s_add_u32 s{sST}, s{sST}, s{sT3}", "st")
    a(f"v_mov_b32 v8, {EPOCH_OFF}")
    a(f"s_cmp_lt_u32 s{sT4}, 4")
    a("s_cbranch_scc1 PK_G")
    a("s_setprio 3")
    a(f"s_lshl_b32 s{sT0}, s2, 2")
    a(f"s_add_u32 s{sT0}, s{sT0}, s3")
    a(f"s_mul_i32 s{sT4}, s{sT0}, 2560", "x soffset")
    a("s_waitcnt lgkmcnt(0)")
    srd(a, S_X, 4, SD_BYTES)
    for r in range(2):
        for i in range(5):
            a(f"buffer_load_dword v{16+5*r+i}, v3, {R(S_X)}, s{sT4} offen offset:{r*1280+i*256} {NT}")
    a("s_barrier", "lds counters zeroed")
    a("s_branch PK_H")
    a.label("PK_G")
    a("s_getpc_b64 s[28:29]")
    a.label("PK_PC")
    a(f"s_sub_u32 s28, s28, PK_PC-{NAME}_kernel")
    a("s_subb_u32 s29, s29, 0")
    a("v_and_b32 v9, 7, v0")
    a(f"s_andn2_b32 s{sT3}, s2, 7")
    a(f"v_add_lshl_u32 v9, v9, s{sT3}, 7")
    a(f"v_min_u32 v9, PK_END-{NAME}_kernel, v9")
    a("global_load_dword v127, v9, s[28:29]")

    a("s_setprio 1")
    a(f"s_mul_hi_u32 s{sFT}, s{sT1}, 0x33333334", "j/5")
    a(f"s_mul_i32 s{sT3}, s{sFT}, 5")
    a(f"s_sub_u32 s{sDT}, s{sT1}, s{sT3}", "j%5")
    a(f"s_mul_i32 s{sROT}, s{sDT}, 13")
    a(f"s_lshr_b32 s{sROT}, s{sROT}, 2", "rot = 3.25*dt_local")
    if not E("ROT", 1): a(f"s_mov_b32 s{sROT}, 0")
    if E("ROT", 1) == 2:
        a(f"s_add_u32 s{sROT}, s{sDT}, s{sFT}")
        a(f"s_sub_u32 s{sT3}, s{sROT}, 6")
        a(f"s_min_u32 s{sROT}, s{sROT}, s{sT3}")
        a(f"s_mul_i32 s{sROT}, s{sROT}, 11")
        a(f"s_lshr_b32 s{sROT}, s{sROT}, 2", "2.75 * index")
    a(f"s_mul_i32 s{sT3}, s{sT2}, 5")
    a(f"s_add_u32 s{sDT}, s{sDT}, s{sT3}", "dt")
    a(f"s_mul_i32 s{sT3}, s{sT0}, 6")
    a(f"s_add_u32 s{sFT}, s{sFT}, s{sT3}", "ft")
    a(f"s_cmp_ge_u32 s{sT1}, 30")
    a(f"s_cselect_b32 s{sG1BIG}, {BIG}, 0")
    a(f"s_mul_i32 s{sRING}, s3, {RINGB}")
    a(f"s_lshl_b32 s{sKB}, s3, 4")
    a(f"s_mov_b32 s{sPOS}, s{sROT}")
    a("v_lshrrev_b32 v2, 3, v1")
    a("v_mul_u32_u24 v4, 3072, v2")
    a("v_bfe_u32 v2, v1, 4, 1")
    a("v_lshlrev_b32 v2, 2, v2")
    a("v_and_b32 v3, 7, v1")
    a("v_xor_b32 v2, v2, v3")
    a("v_lshl_add_u32 v4, v2, 4, v4")
    a(f"s_lshl_b32 s{sT1}, s{sFT}, 7")
    a(f"s_add_u32 s{sT1}, s{sT1}, s{sG1BIG}")
    a(f"v_add_u32 v4, s{sT1}, v4")
    for q in range(1, 4):
        a(f"v_add_u32 v{4+q}, {q*(24576-1024)}, v4")
    a("s_waitcnt lgkmcnt(0)")
    srd(a, S_W1, 16, S * F * 2)
    a("s_barrier", "lds counters zeroed")
    def w1_stage(i):
        items = [f"s_add_u32 s{sWOFF}, s{sKB}, s{sPOS}", f"s_mul_i32 s{sWOFF}, s{sWOFF}, 98304",
                 f"s_add_u32 m0, s{sRING}, {(i % NSLOT)*4096}", f"s_add_u32 s{sPOS}, s{sPOS}, 1", f"s_and_b32 s{sPOS}, s{sPOS}, 15"]
        for q in range(4):
            items.append((f"buffer_load_dwordx4 v{4+q}, {R(S_W1)}, s{sWOFF} offen offset:{q*1024} lds", f"w1_{i}"))
        return items
    def w1_tr(i):
        out = []
        for kh in range(2):
            for mt in range(2):
                for h in range(2):
                    r = 16 * (i % NR1) + 4 * (2 * kh + mt) + 2 * h
                    out.append(f"ds_read_b64_tr_b16 a[{r}:{r+1}], v{10+mt} offset:{(i % NSLOT)*4096 + kh*2048 + h*512}")
        return out
    WD = E("WD", 2)
    for i in range(WD): emit(w1_stage(i))
    srd(a, S_WS, 26, WS_USED)
    vm.op(f"buffer_load_dword v9, v8, {R(S_WS)}, 0 offen sc1", "ep")
    srd(a, S_W2, 20, S * F * 2)
    srd(a, S_B2, 22, S * 2)
    srd(a, S_OUT, 24, SD_BYTES)
    if STAMP:
        a("s_mov_b32 s4, s30"); a("s_mov_b32 s5, s31")
    pstamp(a, 1)
    a("v_lshrrev_b32 v2, 5, v1")
    a("v_lshlrev_b32 v10, 10, v2")
    a("v_mul_u32_u24 v12, 10240, v2")
    a("v_bfe_u32 v2, v1, 2, 2")
    a("v_lshl_add_u32 v10, v2, 7, v10")
    a("v_bfe_u32 v2, v1, 3, 1")
    a("v_lshl_add_u32 v10, v2, 6, v10")
    a("v_bfe_u32 v2, v1, 4, 1")
    a("v_lshl_add_u32 v10, v2, 5, v10")
    a("v_and_b32 v2, 3, v1")
    a("v_lshl_add_u32 v10, v2, 3, v10")
    a(f"v_add_u32 v10, s{sRING}, v10")
    a("v_xor_b32 v11, 64, v10")
    a("v_and_b32 v2, 31, v1")
    a("v_lshl_add_u32 v12, v2, 4, v12")
    a(f"s_lshl_b32 s{sT0}, s{sDT}, 10")
    a(f"s_add_u32 s{sT0}, s{sT0}, s{sG1BIG}")
    if HBLK_OFF: a(f"s_add_u32 s{sT0}, s{sT0}, {HBLK_OFF}")
    a(f"v_add_u32 v12, s{sT0}, v12")
    a("v_add_u32 v13, 20480, v12")
    a(f"s_and_b32 s{sT0}, s{sDT}, 3")
    a(f"s_lshl_b32 s{sT0}, s{sT0}, {8+FS}")
    a(f"s_add_u32 s{sT0}, s{sT0}, {FH_OFF}")
    a(f"v_lshl_add_u32 v14, v0, {FS}, s{sT0}")
    a(f"s_and_b32 s{sROT2}, s{sDT2}, 3")
    a(f"s_mul_i32 s{sROT2}, s{sROT2}, 3")
    if E("ROT2", 1) == 2:
        a(f"s_and_b32 s{sT0}, s{sST}, 7")
        a(f"s_mul_i32 s{sT0}, s{sT0}, 3")
        a(f"s_lshr_b32 s{sT0}, s{sT0}, 1")
        a(f"s_add_u32 s{sROT2}, s{sROT2}, s{sT0}")
        a(f"s_sub_u32 s{sT0}, s{sROT2}, 12")
        a(f"s_min_u32 s{sROT2}, s{sROT2}, s{sT0}")
    a(f"s_mul_i32 s{sKB2}, s3, 12")
    c0 = -2.0 * math.sqrt(2.0 / math.pi) * math.log2(math.e)
    a(f"s_mov_b32 s{sC1}, {f32(c0*0.044715)}")
    NPRE = NR1 + NSLOT
    for i in range(NPRE - WD + 1):
        vm.wait(f"w1_{i}")
        if i < NR1: emit(w1_tr(i))
        nx = i + WD
        if nx < NPRE:
            if nx >= NSLOT:
                later = sum(1 for k in range(nx - NSLOT + 1, i + 1) if k < NR1)
                a(f"s_waitcnt lgkmcnt({8 if later else 0})")
            emit(w1_stage(nx))
        if i == WD:
            read_epoch(9); lds_arrive(6)
    if E("W1ONLY", 0):
        a("s_waitcnt vmcnt(0)")
        for i in range(2, 12): pstamp(a, i)
        finish_stamps()
        a("s_endpgm")
    vm.op(f"buffer_load_dword v15, v14, {R(S_WS)}, 0 offen sc1", "hpoll")
    a(f"s_lshr_b32 s{sT0}, s2, 3")
    a(f"s_mul_hi_u32 s{sT0}, s{sT0}, 0x33333334", "ft_local")
    a(f"s_mul_i32 s{sT0}, s{sT0}, 11")
    a("v_lshrrev_b32 v2, 3, v1")
    a(f"v_add_u32 v2, s{sT0}, v2")
    a("v_add_u32 v3, 5, v2")
    a("v_min_u32 v2, 63, v2")
    a("v_min_u32 v3, 63, v3")
    a("v_mul_u32_u24 v8, 10240, v2")
    a("v_mul_u32_u24 v9, 10240, v3")
    a("v_and_b32 v2, 7, v1")
    a(f"s_mul_i32 s{sT0}, s3, {64*10240}")
    a(f"s_lshl_b32 s{sT1}, s{sDT}, 10")
    a(f"s_add_u32 s{sT0}, s{sT0}, s{sT1}")
    a(f"s_add_u32 s{sT0}, s{sT0}, s{sG1BIG}")
    if HBLK_OFF: a(f"s_add_u32 s{sT0}, s{sT0}, {HBLK_OFF}")
    a(f"v_lshl_add_u32 v2, v2, 7, s{sT0}")
    a("v_add_u32 v8, v8, v2")
    a("v_add_u32 v9, v9, v2")
    lds_wait("PK_B1W", 1)
    pstamp(a, 2)
    spin("PK_SPIN_H", [(14, 15)], "hpoll" if vm.count("hpoll") is not None else "x")
    if E("GBAR1", 0): sbar("PK_GB1", 13)
    pstamp(a, 3)
    a("s_setprio 2")
    ACC = 64
    HB = [("v", 16), ("v", 32), ("v", 48)] + [("a", 16 * k) for k in range(NR1, 8)]
    HD = len(HB)
    HB = HB[-((16 - 0) % HD or HD):] + HB[:-((16 - 0) % HD or HD)] if False else HB
    def hreg(i, kh, nt):
        f, b = HB[(i + HSH) % HD]
        r = b + 4 * (2 * kh + nt)
        return f"{f}[{r}:{r+3}]"
    HSH = (1 - 13) % HD
    sHP = sKVBIG
    a(f"s_mov_b32 s{sHP}, s{sROT}")
    def h_adv():
        return [f"s_add_u32 s{sHOFF}, s{sKB}, s{sHP}", f"s_mul_i32 s{sHOFF}, s{sHOFF}, 40960",
                f"s_add_u32 s{sHP}, s{sHP}, 1", f"s_and_b32 s{sHP}, s{sHP}, 15"]
    def hload(i, nt, kh):
        return (f"buffer_load_dwordx4 {hreg(i, kh, nt)}, v{12+kh}, {R(S_WS)}, s{sHOFF} offen offset:{nt*512} {os.environ.get('HFLAG', 'sc1')}", f"h{i}_{kh}{nt}")
    HPRE = E("HPRE", HD)
    for i in range(HPRE):
        emit(h_adv())
        for kh in range(2):
            for nt in range(2): emit([hload(i, nt, kh)])
        if i == 0 and E("TOUCH", 0):
            vm.op(f"buffer_load_dword v15, v8, {R(S_WS)}, 0 offen sc1", "touch")
            vm.op(f"buffer_load_dword v14, v9, {R(S_WS)}, 0 offen sc1", "touch")
    a("s_waitcnt lgkmcnt(0)")
    def pos2(i):
        return [f"s_add_u32 s{sT0}, s{sROT2}, {i}", f"s_sub_u32 s{sT1}, s{sT0}, 12", f"s_min_u32 s{sT0}, s{sT0}, s{sT1}",
                f"s_add_u32 s{sT0}, s{sT0}, s{sKB2}"]
    def w2_slot(i): return i % NSLOT
    def w2_dma(i):
        items = pos2(i) + [f"s_add_u32 m0, s{sRING}, {w2_slot(i)*4096}", f"s_lshl_b32 s{sWOFF}, s{sT0}, 17"]
        for q in range(4):
            items.append((f"buffer_load_dwordx4 v{4+q}, {R(S_W2)}, s{sWOFF} offen offset:{q*1024} lds", f"w2_{i}"))
        return items
    BB = 16
    for i in range(16):
        nx = i + HPRE
        if E("G1STEPS", 0):
            MUTE[0] = True
            if i in (1, 3, 5, 7, 9, 11, 13): pstamp(a, 4 + i // 2, True)
        if nx < 16: emit(h_adv())
        side = []
        st_tr = NR1 - 1 + i
        if i >= 1 and st_tr < 16:
            vm.wait(f"w1_{st_tr}")
            side = w1_tr(st_tr)
        st_ld = NPRE + i - 3
        if i >= 3 and st_ld < 16:
            a("s_waitcnt lgkmcnt(8)")
            emit(w1_stage(st_ld))
        elif i >= NR1 and i != 13:
            a("s_waitcnt lgkmcnt(8)" if NR1 - 1 + i - 1 < 16 else "s_waitcnt lgkmcnt(0)")
        if E("KV_LATE", 0) and i == E("KV_LATE", 0):
            a(f"v_mov_b32 v2, {CNT + 48}")
            a("s_mov_b64 exec, 1")
            a("ds_add_u32 v2, v2")
            a("s_mov_b64 exec, -1")
        if i == 12:
            side = ["v_lshrrev_b32 v2, 3, v1", "v_lshlrev_b32 v4, 12, v2", "v_bfe_u32 v2, v1, 4, 1", "v_lshlrev_b32 v2, 1, v2",
                    "v_and_b32 v3, 7, v1", "v_xor_b32 v2, v2, v3", "v_lshl_add_u32 v4, v2, 4, v4", f"s_lshl_b32 s{sT0}, s{sST}, 7",
                    f"v_add_u32 v4, s{sT0}, v4", "v_xor_b32 v2, 64, v4", f"v_add_u32 v5, {1*(32768-1024)}, v2",
                    f"v_add_u32 v6, {2*(32768-1024)}, v4", f"v_add_u32 v7, {3*(32768-1024)}, v2",
                    ]
        if i == 13:
            lds_arrive(10)
            side = [f"s_add_u32 s{sT2}, s{sRING}, {3*4096}", f"v_lshl_add_u32 v9, v1, 4, s{sT2}",
                    f"s_lshl_b32 s{sT2}, s3, 12", f"s_add_u32 s{sT2}, s{sT2}, {3*4096}", f"v_lshl_add_u32 v10, v1, 4, s{sT2}",
                    f"v_add_u32 v11, {2*RINGB}, v10",
                    f"s_lshr_b32 s{sT0}, s3, 1", f"s_lshl_b32 s{sT0}, s{sT0}, 6", f"s_add_u32 s{sT0}, s{sT0}, {PT_LDS}",
                    "v_lshrrev_b32 v8, 5, v1", f"v_lshl_add_u32 v8, v8, 3, s{sT0}",
                    f"s_lshr_b32 s{sT0}, s3, 1", f"s_lshl_b32 s{sT0}, s{sT0}, 2", f"s_lshl_b32 s{sT1}, s{sFT}, 3",
                    f"s_add_u32 s{sT0}, s{sT0}, s{sT1}", f"s_mul_i32 s{sT0}, s{sT0}, 10240", f"s_and_b32 s{sT1}, s3, 1",
                    f"s_lshl_b32 s{sT1}, s{sT1}, 9", f"s_add_u32 s{sT0}, s{sT0}, s{sT1}",
                    f"s_add_u32 s{sT0}, s{sT0}, {UBLK_OFF - HBLK_OFF - 20480}", f"v_add_u32 v14, s{sT0}, v13", "v_add_u32 v15, 20480, v14",
                    f"v_mov_b32 v13, {f32(c0)}", "s_mov_b32 s28, 1.0", "s_mov_b32 s29, 1.0"]
        if i == 14:
            side = [f"ds_read_b64 v[{32+2*q}:{33+2*q}], v8 offset:{16*q}" for q in range(4)]
        if i == 15:
            for kh in range(2):
                for nt in range(2): vm.wait(f"h{i}_{kh}{nt}")
            def mf(t_):
                mt, nt = t_ >> 1, t_ & 1
                t = ACC + 16 * t_
                for kh in range(2):
                    wr = 16 * (i % NR1) + 4 * (2 * kh + mt)
                    a(f"v_mfma_f32_32x32x16_bf16 v[{t}:{t+15}], a[{wr}:{wr+3}], {hreg(i, kh, nt)}, v[{t}:{t+15}]")
            def wr_(t_):
                for q in range(4):
                    r = ACC + 16 * t_ + 4 * q
                    a(f"ds_write_b128 v9, v[{r}:{r+3}] offset:{t_*4096 + q*1024}")
            FIN = 48
            mf(0); mf(1)
            a("s_waitcnt lgkmcnt(0)")
            for q in range(0, 10, 2):
                a(f"v_lshlrev_b32 v{FIN+q}, 16, v{32+q//2}")
                a(f"v_and_b32 v{FIN+q+1}, 0xffff0000, v{32+q//2}")
            wr_(0); mf(2); wr_(1); mf(3)
            for q in range(10, 16, 2):
                a(f"v_lshlrev_b32 v{FIN+q}, 16, v{32+q//2}")
                a(f"v_and_b32 v{FIN+q+1}, 0xffff0000, v{32+q//2}")
            wr_(2)
            a("s_nop 1")
            wr_(3)
            continue
        k = 0; si = 0
        for kh in range(2):
            for nt in range(2):
                vm.wait(f"h{i}_{kh}{nt}")
                for mt in range(2):
                    t = ACC + 16 * (2 * mt + nt)
                    wr = 16 * (i % NR1) + 4 * (2 * kh + mt)
                    c = "0" if (i == 0 and kh == 0) else f"v[{t}:{t+15}]"
                    if not E("NOMF1", 0): a(f"v_mfma_f32_32x32x16_bf16 v[{t}:{t+15}], a[{wr}:{wr+3}], {hreg(i, kh, nt)}, {c}")
                    k += 1
                    while si < (len(side) * k + 7) // 8:
                        emit([side[si]]); si += 1
                if nx < 16: emit([hload(nx, nt, kh)])
    pstamp(a, 4)
    if E("G1STEPS", 0): pstamp(a, 11, True)
    lds_arrive(4)
    emit(w2_dma(0)); emit(w2_dma(1))
    lds_wait("PK_XW1", 4)
    PT = 64
    for o in range(4):
        for q in range(4):
            r = PT + 16 * o + 4 * q
            a(f"ds_read_b128 v[{r}:{r+3}], v{10+o//2} offset:{(o&1)*RINGB + q*1024}")
    for o in range(4):
        a(f"s_waitcnt lgkmcnt({12-4*o})")
        for i in range(0, 16, 2):
            a(f"v_pk_add_f32 {pk(FIN+i)}, {pk(FIN+i)}, {pk(PT+16*o+i)}")
    lds_arrive(5)
    T = 64
    for i in range(0, 16, 2): a(f"v_pk_mul_f32 {pk(T+i)}, {pk(FIN+i)}, {pk(FIN+i)}")
    for i in range(16): a(f"v_fma_f32 v{T+i}, v{T+i}, s{sC1}, v13")
    for i in range(0, 16, 2): a(f"v_pk_mul_f32 {pk(T+i)}, {pk(T+i)}, {pk(FIN+i)}")
    for i in range(16): a(f"v_exp_f32 v{T+i}, v{T+i}")
    if E("W2MID", 0): emit(w2_dma(2))
    for i in range(0, 16, 2): a(f"v_pk_add_f32 {pk(T+i)}, {pk(T+i)}, s[28:29]")
    for i in range(16): a(f"v_rcp_f32 v{T+i}, v{T+i}")
    for i in range(0, 16, 2): a(f"v_pk_mul_f32 {pk(FIN+i)}, {pk(FIN+i)}, {pk(T+i)}")
    P = T + 16
    for i in range(0, 16, 2): a(f"v_cvt_pk_bf16_f32 v{P+i//2}, v{FIN+i}, v{FIN+i+1}")
    a("s_nop 1")
    for qp in range(2):
        r = P + 4 * qp
        a(f"v_permlane32_swap_b32 v{r}, v{r+2}")
        a(f"v_permlane32_swap_b32 v{r+1}, v{r+3}")
        vm.op(f"buffer_store_dwordx4 v[{r}:{r+3}], v{14+qp}, {R(S_WS)}, 0 offen sc1", "ust")
    pstamp(a, 5)
    lds_arrive(8)
    a(f"s_lshl_b32 s{sT0}, s{sDT}, 1")
    a(f"s_and_b32 s{sT1}, s3, 1")
    a(f"s_add_u32 s{sT0}, s{sT0}, s{sT1}")
    a(f"s_mul_i32 s{sT0}, s{sT0}, 48")
    a(f"s_lshl_b32 s{sT1}, s{sFT}, 1")
    a(f"s_add_u32 s{sT0}, s{sT0}, s{sT1}")
    a(f"s_lshr_b32 s{sT1}, s3, 1")
    a(f"s_add_u32 s{sT0}, s{sT0}, s{sT1}")
    a(f"s_lshl_b32 s{sT0}, s{sT0}, {FS}")
    a(f"s_add_u32 s{sT0}, s{sT0}, {FU_OFF}")
    a(f"s_add_u32 s{sT4}, s{sT0}, s{sG1BIG}")
    TR2 = 100
    a("v_lshrrev_b32 v106, 4, v1", "g")
    a("v_and_b32 v107, 15, v1", "n")
    a(f"v_lshlrev_b32 v{TR2}, 10, v106")
    a("v_bfe_u32 v2, v1, 2, 2")
    a(f"v_lshl_add_u32 v{TR2}, v2, 7, v{TR2}")
    a("v_bfe_u32 v2, v1, 3, 2")
    a(f"v_lshl_add_u32 v{TR2}, v2, 5, v{TR2}")
    a("v_and_b32 v2, 3, v1")
    a(f"v_lshl_add_u32 v{TR2}, v2, 3, v{TR2}")
    a(f"v_add_u32 v{TR2}, s{sRING}, v{TR2}")
    for j in range(1, 4): a(f"v_xor_b32 v{TR2+j}, {32*j}, v{TR2}")
    a("v_min_u32 v2, 35, v1")
    a("v_mul_u32_u24 v3, 43, v2")
    a("v_lshrrev_b32 v3, 9, v3")
    a("v_mul_u32_u24 v104, 36, v3")
    a("v_add_u32 v104, v104, v2")
    a(f"s_mul_i32 s{sT3}, s{sDT2}, 80", "d0")
    a(f"s_lshr_b32 s{sT0}, s{sT3}, 5")
    a(f"s_mul_i32 s{sT0}, s{sT0}, 48")
    a(f"s_add_u32 s{sT0}, s{sT0}, s{sKB2}")
    a(f"s_lshl_b32 s{sT0}, s{sT0}, {FS}")
    a(f"s_add_u32 s{sT0}, s{sT0}, {FU_OFF}")
    a(f"v_lshl_add_u32 v104, v104, {FS}, s{sT0}")
    a("v_mul_u32_u24 v105, 10240, v106")
    a("v_lshl_add_u32 v105, v107, 4, v105")
    a(f"s_lshl_b32 s{sT0}, s{sT3}, 4")
    a(f"s_add_u32 s{sT0}, s{sT0}, {UBLK_OFF}")
    a(f"v_add_u32 v105, s{sT0}, v105")
    def w2_tr(i, tr):
        out = []
        for j in range(4):
            for h in range(2):
                r = 16 * (i % NR2) + 4 * j + 2 * h
                out.append(f"ds_read_b64_tr_b16 a[{r}:{r+1}], v{tr+j} offset:{w2_slot(i)*4096 + h*512}")
        return out
    vm.wait("w2_1")
    for k in range(2): emit(w2_tr(k, TR2))
    lds_wait("PK_XW2", 5)
    vm.wait("ust")
    flag_store(sT4)
    pstamp(a, 6)
    if not E("W2MID", 0): emit(w2_dma(2))
    emit(w2_dma(3)); emit(w2_dma(4))
    vm.wait("w2_2")
    emit(w2_tr(2, TR2))
    for i in range(3, 12):
        nx = i + 2
        if nx < 12:
            if nx >= 9: a("s_waitcnt lgkmcnt(0)")
            emit(w2_dma(nx))
        vm.wait(f"w2_{i}")
        if i < NR2: emit(w2_tr(i, TR2))
        if i == E("UPOLL_AT", 10):
            vm.op(f"buffer_load_dword v108, v104, {R(S_WS)}, 0 offen sc1", "upoll")
    for j in range(4): a(f"v_mov_b32 v{4+j}, v{TR2+j}")
    a("v_mul_u32_u24 v109, 26, v1")
    a("v_lshrrev_b32 v109, 8, v109", "L/10")
    a("v_mul_u32_u24 v110, 10, v109")
    a("v_sub_u32 v110, v1, v110", "L%10")
    a("v_min_u32 v109, 5, v109")
    a("v_mul_u32_u24 v109, 10240, v109")
    a("v_lshl_add_u32 v109, v110, 7, v109")
    a(f"s_and_b32 s{sT0}, s{sST}, 7")
    a(f"s_mul_i32 s{sT0}, s{sT0}, 6")
    a(f"s_mul_i32 s{sT1}, s3, 48")
    a(f"s_add_u32 s{sT0}, s{sT0}, s{sT1}")
    a(f"s_mul_i32 s{sT0}, s{sT0}, 10240")
    a(f"s_mul_i32 s{sT1}, s{sDT2}, 1280")
    a(f"s_add_u32 s{sT0}, s{sT0}, s{sT1}")
    a(f"s_add_u32 s{sT0}, s{sT0}, {UBLK_OFF}")
    a(f"v_add_u32 v109, s{sT0}, v109")
    a("v_mov_b32 v3, v105")
    pstamp(a, 7)
    spin("PK_SPIN_U", [(104, 108)], "upoll" if vm.count("upoll") is not None else "x")
    if E("GBAR2", 0): sbar("PK_GB2", 14, t=110)
    pstamp(a, 8)
    if E("G2STEPS", 0): pstamp(a, 1, True)
    ACC2 = 48
    UB = [("a", 100), ("v", 8), ("v", 28), ("a", 80)]; UD = 4
    def ureg(i, m):
        f, b = UB[i % UD]
        return f"{f}[{b+4*m}:{b+4*m+3}]"
    def u_adv(i): return pos2(i) + [f"s_mul_i32 s{sHOFF}, s{sT0}, 40960"]
    def uload(i, m):
        return (f"buffer_load_dwordx4 {ureg(i, m)}, v3, {R(S_WS)}, s{sHOFF} offen offset:{m*256} sc1", f"u{i}_{m}")
    UPRE = E("UPRE", UD)
    for i in range(UPRE):
        emit(u_adv(i))
        for m in range(5): emit([uload(i, m)])
        if i == 0 and E("TOUCH", 0):
            vm.op(f"buffer_load_dword a127, v109, {R(S_WS)}, 0 offen sc1", "touch")
    a("s_waitcnt lgkmcnt(0)")
    for i in range(12):
        nx = i + UPRE
        if E("G2STEPS", 0):
            MUTE[0] = True
            if i in (0, 1, 3, 5, 7, 9, 11): pstamp(a, 2 + (i + 1) // 2, True)
        if nx < 12: emit(u_adv(nx))
        side = w2_tr(NR2 - 1 + i, 4) if (i >= 1 and NR2 - 1 + i < 12) else []
        if NR2 <= i <= 8: a("s_waitcnt lgkmcnt(8)")
        if i == 9: a("s_waitcnt lgkmcnt(0)")
        if i == E("YGO", 7):
            a(f"v_mov_b32 v2, {CNT + 36}")
            a("s_mov_b64 exec, 1")
            a("ds_add_u32 v2, v2", "counter 9 += its own address")
            a("s_mov_b64 exec, -1")
        if i == 10:
            side = ["v_lshrrev_b32 v8, 4, v1", "v_and_b32 v9, 15, v1",
                    f"s_lshl_b32 s{sT0}, s{sST}, 6", f"s_lshl_b32 s{sT1}, s3, 4", f"s_add_u32 s{sT0}, s{sT0}, s{sT1}",
                    f"v_add_u32 v9, s{sT0}, v9", "v_mul_u32_u24 v10, 1280, v9", "v_lshl_add_u32 v10, v8, 3, v10",
                    f"s_mul_i32 s{sT0}, s{sDT2}, 160", f"v_add_u32 v10, s{sT0}, v10", "v_lshlrev_b32 v9, 1, v9",
                    (f"buffer_load_ushort v16, v9, {R(S_B2)}, 0 offen", "b2"),
                    f"v_lshl_add_u32 v11, v1, 4, s{sRING}",
                    f"s_mul_i32 s{sT0}, s3, 2560", f"s_add_u32 s{sT0}, s{sT0}, {PT_LDS}", f"v_lshl_add_u32 v15, v1, 3, s{sT0}",
                    f"s_mul_i32 s{sT0}, s3, 5120", f"v_lshl_add_u32 v12, v1, 4, s{sT0}", f"v_add_u32 v13, {2*RINGB}, v12"]
        if i == 11:
            for m in range(5): vm.wait(f"u{i}_{m}")
            for j in range(6):
                for m in range(5):
                    if j < 4:
                        t = ACC2 + 4 * (5 * j + m); wr = 16 * (i % NR2) + 4 * j
                        a(f"v_mfma_f32_16x16x32_bf16 v[{t}:{t+3}], {ureg(i, m)}, a[{wr}:{wr+3}], v[{t}:{t+3}]")
                    if j >= 2:
                        r = ACC2 + 4 * (5 * (j - 2) + m)
                        a(f"ds_write_b128 v11, v[{r}:{r+3}] offset:{(j-2)*5120 + m*1024}")
            continue
        k = 0; si = 0
        for m in range(5):
            vm.wait(f"u{i}_{m}")
            for j in range(4):
                t = ACC2 + 4 * (5 * j + m)
                wr = 16 * (i % NR2) + 4 * j
                c = "0" if i == 0 else f"v[{t}:{t+3}]"
                a(f"v_mfma_f32_16x16x32_bf16 v[{t}:{t+3}], {ureg(i, m)}, a[{wr}:{wr+3}], {c}")
                k += 1
                while si < (len(side) * k + 19) // 20:
                    emit([side[si]]); si += 1
            if nx < 12: emit([uload(nx, m)])
    pstamp(a, 9, True)
    MUTE[0] = False
    FIN2 = 28
    lds_arrive(11)
    vm.wait("b2")
    a("v_lshlrev_b32 v17, 16, v16")
    a("v_lshlrev_b32 v16, 16, v16")
    lds_wait("PK_GB3", 11)
    PT2 = 48; PR = 18; PF = 108
    for half in range(2):
        for o in range(2 * half, 2 * half + 2):
            for m in range(5):
                r = PT2 + 20 * o + 4 * m
                a(f"ds_read_b128 v[{r}:{r+3}], v{12+o//2} offset:{(o&1)*RINGB + m*1024}")
    for o in range(4):
        a(f"s_waitcnt lgkmcnt({min(10, 15-5*o)})")
        for i in range(0, 20, 2):
            src = "v[16:17]" if o == 0 else pk(FIN2 + i)
            a(f"v_pk_add_f32 {pk(FIN2+i)}, {src}, {pk(PT2+20*o+i)}")
    T2 = 48
    for i in range(0, 20, 2): a(f"v_cvt_pk_bf16_f32 v{T2+i//2}, v{FIN2+i}, v{FIN2+i+1}")
    for i in range(0, 20, 2):
        a(f"v_lshlrev_b32 v{FIN2+i}, 16, v{T2+i//2}")
        a(f"v_and_b32 v{FIN2+i+1}, 0xffff0000, v{T2+i//2}")
    a("s_barrier", "P tiles of the H waves")
    pstamp(a, 10)
    for m in range(5):
        a(f"ds_read_b64 v[{PR+2*m}:{PR+2*m+1}], v15 offset:{m*512}")
    a("s_waitcnt lgkmcnt(0)")
    for m in range(5):
        for h in range(2):
            i = 4 * m + 2 * h
            a(f"v_lshlrev_b32 v{PF+i}, 16, v{PR+i//2}")
            a(f"v_and_b32 v{PF+i+1}, 0xffff0000, v{PR+i//2}")
            a(f"v_pk_add_f32 {pk(FIN2+i)}, {pk(FIN2+i)}, {pk(PF+i)}")
            a(f"v_cvt_pk_bf16_f32 v{60+i//2}, v{FIN2+i}, v{FIN2+i+1}")
        a(f"buffer_store_dwordx2 v[{60+2*m}:{61+2*m}], v10, {R(S_OUT)}, 0 offen offset:{32*m} {os.environ.get('OUTF', '')}")
    a(f"s_or_b32 s{sT0}, s2, s3")
    a(f"s_cmp_lg_u32 s{sT0}, 0")
    a("s_cbranch_scc1 PK_NOEP")
    a(f"s_mov_b32 s{sT0}, {EPOCH_OFF}")
    flag_store(sT0)
    a.label("PK_NOEP")
    pstamp(a, 11)
    finish_stamps()
    a("s_endpgm")

    a.label("PK_H")
    MUTE[0] = False
    vm.reset()
    for r in range(2):
        for i in range(5): vm.q.append(f"x{r}{i}")
    a("s_cmp_ge_u32 s2, 160")
    a(f"s_cselect_b32 s{sKVBIG}, {BIG}, 0")
    if E("NOKV", 0): a(f"s_mov_b32 s{sKVBIG}, {BIG}")
    sTT, sCW = sDT, sFT
    a(f"s_mul_hi_u32 s{sTT}, s2, 0x33333334", "T")
    a(f"s_mul_i32 s{sCW}, s{sTT}, 5")
    a(f"s_sub_u32 s{sCW}, s2, s{sCW}", "cw")
    a(f"s_lshl_b32 s{sT0}, s{sTT}, 2")
    a(f"s_add_u32 s{sT0}, s{sT0}, s3")
    a(f"s_mul_i32 s{sT0}, s{sT0}, 20480")
    a(f"s_lshl_b32 s{sT1}, s{sCW}, 8")
    a(f"s_add_u32 s{sT0}, s{sT0}, s{sT1}")
    a(f"s_add_u32 s{sT0}, s{sT0}, s{sKVBIG}")
    VKV = 10
    a(f"v_add_u32 v{VKV+1}, s{sT0}, v3")
    a(f"v_subrev_u32 v{VKV}, 3840, v{VKV+1}")
    for i in range(1, 4): a(f"v_add_u32 v{VKV+1+i}, {5120*i}, v{VKV+1}")
    a(f"s_lshl_b32 s{sT1}, s{sCW}, 10")
    a(f"v_lshl_add_u32 v15, v1, 4, s{sT1}")
    XRAW = 16
    if E("W1ONLY", 0):
        if STAMP:
            a("s_mov_b32 s4, s30"); a("s_mov_b32 s5, s31")
        for i in range(1, 12): pstamp(a, i)
        finish_stamps()
        a("s_endpgm")
    srd(a, S_WS, 26, WS_USED)
    vm.op(f"buffer_load_dword v9, v8, {R(S_WS)}, 0 offen sc1", "ep")
    srd(a, S_K, 6, SD_BYTES)
    srd(a, S_V, 8, SD_BYTES)
    srd(a, S_SHK, 10, D * 8)
    srd(a, S_SSMK, 12, SD_BYTES)
    srd(a, S_SSMD, 14, D * 2)
    if STAMP:
        a("s_mov_b32 s4, s30"); a("s_mov_b32 s5, s31")
    def kv_loads():
        vm.op(f"buffer_load_dwordx4 a[36:39], v15, {R(S_SHK)}, 0 offen", "shk")
        for r in range(3):
            vm.op(f"buffer_load_dword a{r}, v{VKV}, {R(S_K)}, 0 offen offset:{r*1280} {NT}", "k")
        for r in range(16):
            vm.op(f"buffer_load_dword a{3+r}, v{VKV+1+r//4}, {R(S_K)}, 0 offen offset:{(r%4)*1280} {NT}", "k")
        for r in range(16):
            vm.op(f"buffer_load_dword a{19+r}, v{VKV+1+r//4}, {R(S_V)}, 0 offen offset:{(r%4)*1280} {NT}", "v")
    KV_EARLY = E("KV_EARLY", 0)
    if KV_EARLY: kv_loads()
    srd(a, S_B1, 18, F * 2)
    a(f"s_lshr_b32 s{sT0}, s2, 3")
    a(f"s_mul_hi_u32 s{sT0}, s{sT0}, 0x33333334")
    a(f"s_bfe_u32 s{sT1}, s2, 0x20001")
    a(f"s_mul_i32 s{sT1}, s{sT1}, 6")
    a(f"s_add_u32 s{sT0}, s{sT0}, s{sT1}")
    a(f"s_lshl_b32 s{sT0}, s{sT0}, 7")
    a("v_and_b32 v125, 124, v3")
    vm.op(f"buffer_load_dword v126, v125, {R(S_B1)}, s{sT0} offen", "b1")
    a(f"v_add_u32 v125, {PT_LDS}, v125")
    pstamp(a, 1)
    a(f"s_mul_i32 s{sT0}, s3, {2*HROW}")
    a(f"s_add_u32 s{sT0}, s{sT0}, {LNX}")
    a(f"v_add_u32 v4, s{sT0}, v3")
    a("v_lshrrev_b32 v5, 4, v1")
    a("v_lshlrev_b32 v5, 5, v5")
    a("v_and_b32 v2, 3, v1")
    a("v_lshl_add_u32 v5, v2, 3, v5")
    a("v_bfe_u32 v2, v1, 2, 2")
    a(f"v_mul_u32_u24 v2, {HROW}, v2")
    a("v_add_u32 v5, v5, v2")
    a(f"s_lshl_b32 s{sT0}, s3, 7")
    a(f"s_add_u32 s{sT0}, s{sT0}, {LNX}")
    a(f"v_add_u32 v5, s{sT0}, v5")
    a(f"s_mul_i32 s{sT0}, s2, 10240")
    a(f"s_lshl_b32 s{sT1}, s3, 10")
    a(f"s_add_u32 s{sT0}, s{sT0}, s{sT1}")
    if HBLK_OFF: a(f"s_add_u32 s{sT0}, s{sT0}, {HBLK_OFF}")
    a(f"v_lshl_add_u32 v6, v1, 4, s{sT0}")
    a("v_add_u32 v7, 4096, v6")
    a("s_cmp_ge_u32 s3, 2")
    a(f"s_cselect_b32 s{sT1}, {BIG}, 8192")
    a(f"v_add_u32 v8, s{sT1}, v6")
    a(f"s_lshl_b32 s{sT0}, s2, 2")
    a(f"s_add_u32 s{sT0}, s{sT0}, s3")
    a(f"s_lshl_b32 s{sT0}, s{sT0}, 4")
    a(f"s_add_u32 s{sT0}, s{sT0}, {STAT_OFF}")
    a(f"v_mov_b32 v90, s{sT0}")
    a(f"s_lshl_b32 s{sT0}, s3, 8")
    a(f"s_add_u32 s{sT0}, s{sT0}, s2")
    a(f"s_lshl_b32 s{sT0}, s{sT0}, {FS}")
    a(f"s_add_u32 s{sRING}, s{sT0}, {FH_OFF}", "h flag offset")
    X = [26, 36]; A = [46, 56]; SUM = [66, 70]; TMP = [74, 82]
    PIV = [28, 30]; SS = [(sT0, sT1), (sT2, sT3)]
    for r in range(2):
        for i in range(5):
            vm.wait(f"x{r}{i}")
            a(f"v_lshlrev_b32 v{X[r]+2*i}, 16, v{XRAW+5*r+i}")
            a(f"v_and_b32 v{X[r]+2*i+1}, 0xffff0000, v{XRAW+5*r+i}")
            if i == 0: a(f"v_readfirstlane_b32 s{PIV[r]}, v{X[r]}")
            if i == 2: a(f"s_mov_b32 s{PIV[r]+1}, s{PIV[r]}")
    pstamp(a, 2)
    def zip2(f):
        out = []
        for p, q in zip(f(0), f(1)): out += [p, q]
        return out
    def sums(src):
        def f(r):
            Sr = SUM[r]; B = src[r]
            l = [f"v_pk_mul_f32 {pk(Sr+2)}, {pk(B)}, {pk(B)}", f"v_pk_add_f32 {pk(Sr)}, {pk(B)}, {pk(B+2)}"]
            for i in range(1, 5):
                l.append(f"v_pk_fma_f32 {pk(Sr+2)}, {pk(B+2*i)}, {pk(B+2*i)}, {pk(Sr+2)}")
                if i >= 2: l.append(f"v_pk_add_f32 {pk(Sr)}, {pk(Sr)}, {pk(B+2*i)}")
            l += [f"v_add_f32 v{Sr}, v{Sr}, v{Sr+1}", f"v_add_f32 v{Sr+1}, v{Sr+2}, v{Sr+3}"]
            return l
        l = zip2(f)
        steps = ["row_shr:1 row_mask:0xf bank_mask:0xf bound_ctrl:0", "row_shr:2 row_mask:0xf bank_mask:0xf bound_ctrl:0",
                 "row_shr:4 row_mask:0xf bank_mask:0xf bound_ctrl:0", "row_shr:8 row_mask:0xf bank_mask:0xf bound_ctrl:0",
                 "row_bcast:15 row_mask:0xa bank_mask:0xf", "row_bcast:31 row_mask:0xc bank_mask:0xf"]
        regs = [SUM[0], SUM[1], SUM[0] + 1, SUM[1] + 1]
        for st in steps:
            for v in regs: l.append(f"v_add_f32_dpp v{v}, v{v}, v{v} {st}")
        l += [f"v_readlane_b32 s{SS[0][0]}, v{SUM[0]}, 63", f"v_readlane_b32 s{SS[1][0]}, v{SUM[1]}, 63",
              f"v_readlane_b32 s{SS[0][1]}, v{SUM[0]+1}, 63", f"v_readlane_b32 s{SS[1][1]}, v{SUM[1]+1}, 63"]
        return l
    def statsl(piv):
        inv = f32(1.0 / D)
        def f(r):
            t0, t1 = TMP[r] + 6, TMP[r] + 7; m = TMP[r]; rr = TMP[r] + 1
            l = [f"v_mul_f32 v{t0}, s{SS[r][0]}, v91", f"v_mul_f32 v{t1}, s{SS[r][1]}, v91",
                 f"v_fma_f32 v{t1}, -v{t0}, v{t0}, v{t1}", f"v_max_f32 v{t1}, 0, v{t1}"]
            if piv: l.append(f"v_add_f32 v{t0}, s{PIV[r]}, v{t0}")
            l += [f"v_cvt_pk_bf16_f32 v{t0}, v{t0}, v{t1}", f"v_lshlrev_b32 v{m}, 16, v{t0}",
                  f"v_and_b32 v{t1}, 0xffff0000, v{t0}", f"v_add_f32 v{t1}, {f32(1e-5)}, v{t1}",
                  f"v_cvt_pk_bf16_f32 v{t1}, v{t1}, v{t1}", f"v_lshlrev_b32 v{t1}, 16, v{t1}",
                  f"v_sqrt_f32 v{t1}, v{t1}", f"v_cvt_pk_bf16_f32 v{t1}, v{t1}, v{t1}",
                  f"v_lshlrev_b32 v{t1}, 16, v{t1}", f"v_rcp_f32 v{rr}, v{t1}",
                  f"v_mul_f32 v{TMP[r]+4}, v{m}, v{rr}", f"v_mov_b32 v{TMP[r]+2}, v{rr}",
                  f"v_mul_f32 v{TMP[r]+5}, v{m}, v{rr}", f"v_mov_b32 v{TMP[r]+3}, v{rr}"]
            return l
        return zip2(f)
    def norm(dst, src):
        return zip2(lambda r: [f"v_pk_fma_f32 {pk(dst[r]+2*i)}, {pk(src[r]+2*i)}, {pk(TMP[r]+2)}, {pk(TMP[r]+4)} neg_lo:[0,0,1] neg_hi:[0,0,1]" for i in range(5)])
    a(f"v_mov_b32 v91, {f32(1.0/D)}")
    emit(zip2(lambda r: [f"v_pk_add_f32 {pk(A[r]+2*i)}, {pk(X[r]+2*i)}, s[{PIV[r]}:{PIV[r]+1}] neg_lo:[0,1] neg_hi:[0,1]" for i in range(5)]))
    emit(sums(A)); emit(statsl(True))
    emit(["s_mov_b64 exec, 1",
          (f"buffer_store_dwordx2 {pk(TMP[0])}, v90, {R(S_WS)}, 0 offen sc1", "hst"),
          (f"buffer_store_dwordx2 {pk(TMP[1])}, v90, {R(S_WS)}, 0 offen offset:8 sc1", "hst"),
          "s_mov_b64 exec, -1"])
    emit(norm(A, X))
    emit(zip2(lambda r: [f"v_cvt_pk_bf16_f32 v{XRAW+5*r+i}, v{A[r]+2*i}, v{A[r]+2*i+1}" for i in range(5)]))
    emit(zip2(lambda r: sum([[f"v_lshlrev_b32 v{X[r]+2*i}, 16, v{XRAW+5*r+i}", f"v_and_b32 v{X[r]+2*i+1}, 0xffff0000, v{XRAW+5*r+i}"] for i in range(5)], [])))
    emit(sums(X)); emit(statsl(False)); emit(norm(A, X))
    emit(zip2(lambda r: sum([[f"v_cvt_pk_bf16_f32 v{XRAW+5*r+i}, v{A[r]+2*i}, v{A[r]+2*i+1}", f"ds_write_b32 v4, v{XRAW+5*r+i} offset:{r*HROW+i*256}"] for i in range(5)], [])))
    vm.wait("b1")
    a("ds_write_b32 v125, v126")
    read_epoch(9)
    sbar("PK_HB1", 1)
    HT = 26
    for t in range(3):
        a(f"ds_read_b64_tr_b16 v[{HT+4*t}:{HT+4*t+1}], v5 offset:{512*t}")
        a(f"ds_read_b64_tr_b16 v[{HT+4*t+2}:{HT+4*t+3}], v5 offset:{512*t+4*HROW}")
    for t in range(3):
        a(f"s_waitcnt lgkmcnt({4-2*t})")
        vm.op(f"buffer_store_dwordx4 v[{HT+4*t}:{HT+4*t+3}], v{6+t}, {R(S_WS)}, 0 offen sc1", "hst")
    pstamp(a, 3)
    a("v_and_b32 v2, 7, v1")
    a(f"s_lshl_b32 s{sT0}, s3, 1")
    a(f"v_xor_b32 v4, s{sT0}, v2")
    a("v_lshlrev_b32 v4, 4, v4")
    a("v_lshl_add_u32 v4, v1, 8, v4")
    a(f"v_add_u32 v4, {KVX}, v4")
    a("v_xor_b32 v5, 16, v4")
    a("v_lshrrev_b32 v8, 3, v1")
    a("v_lshrrev_b32 v6, 4, v1")
    a("v_xor_b32 v6, v6, v2")
    a("v_lshlrev_b32 v6, 4, v6")
    a("v_lshl_add_u32 v6, v8, 7, v6")
    a(f"s_lshl_b32 s{sT0}, s3, 12")
    a(f"s_add_u32 s{sT0}, s{sT0}, {KVX}")
    a(f"v_add_u32 v6, s{sT0}, v6")
    a("v_xor_b32 v7, 64, v6")
    a("v_lshlrev_b32 v8, 12, v8")
    a("v_lshl_add_u32 v8, v2, 4, v8")
    a(f"s_lshl_b32 s{sT0}, s{sCW}, 19")
    a(f"s_lshl_b32 s{sT1}, s3, 17")
    a(f"s_add_u32 s{sT0}, s{sT0}, s{sT1}")
    a(f"s_lshl_b32 s{sT1}, s{sTT}, 7")
    a(f"s_add_u32 s{sT0}, s{sT0}, s{sT1}")
    a(f"s_add_u32 s{sT0}, s{sT0}, {KVB_OFF}")
    a(f"s_add_u32 s{sT0}, s{sT0}, s{sKVBIG}")
    a(f"v_add_u32 v8, s{sT0}, v8")
    lds_wait("PK_EPW", 6)
    vm.wait("hst")
    flag_store(sRING)
    pstamp(a, 4)
    if E("KV_LATE", 0):
        a("s_setprio 0")
        lds_wait("PK_KVL", 12, n=4 * (CNT + 48), sleep=4)
        a("s_setprio 3")
    if not KV_EARLY: kv_loads()
    a("s_setprio 0")
    a(f"s_lshl_b32 s{sT0}, s{sCW}, 2")
    a(f"s_add_u32 s{sT0}, s{sT0}, s3")
    a(f"s_lshl_b32 s{sT0}, s{sT0}, 5")
    a(f"s_add_u32 s{sT0}, s{sT0}, s{sTT}")
    a(f"s_lshl_b32 s{sT0}, s{sT0}, {FS}")
    a(f"s_add_u32 s{sT0}, s{sT0}, {FKV_OFF}")
    a(f"s_add_u32 s{sRING}, s{sT0}, s{sKVBIG}", "kv flag offset")
    WP, KP, KS, KO = 16, 24, 62, 94
    vm.wait("k")
    for i in range(4): a(f"v_accvgpr_read_b32 v{110+i}, a{36+i}")
    for r in range(19): a(f"v_accvgpr_read_b32 v{KP+2*r+1}, a{r}")
    for t in range(4):
        for ch in range(2):
            src = 110 + 2 * ch + t // 2
            a(f"v_lshlrev_b32 v{WP+2*t+ch}, 16, v{src}" if t % 2 == 0 else f"v_and_b32 v{WP+2*t+ch}, 0xffff0000, v{src}")
    for r in range(19):
        a(f"v_lshlrev_b32 v{KP+2*r}, 16, v{KP+2*r+1}")
        a(f"v_and_b32 v{KP+2*r+1}, 0xffff0000, v{KP+2*r+1}")
    for r in range(16): a(f"v_pk_mul_f32 {pk(KS+2*r)}, {pk(KP+2*r)}, {pk(WP+6)}")
    for t in (2, 1, 0):
        for r in range(16):
            a(f"v_pk_fma_f32 {pk(KS+2*r)}, {pk(KP+2*(r+3-t))}, {pk(WP+2*t)}, {pk(KS+2*r)}")
    vm.wait("v")
    for r in range(16): a(f"v_accvgpr_read_b32 v{KP+2*r+1}, a{19+r}")
    for r in range(16):
        a(f"v_lshlrev_b32 v{KP+2*r}, 16, v{KP+2*r+1}")
        a(f"v_and_b32 v{KP+2*r+1}, 0xffff0000, v{KP+2*r+1}")
    for r in range(16): a(f"v_pk_mul_f32 {pk(KS+2*r)}, {pk(KS+2*r)}, {pk(KP+2*r)}")
    for c2 in range(2):
        for ch in range(2):
            for q in range(4):
                a(f"v_cvt_pk_bf16_f32 v{KO+8*c2+4*ch+q}, v{KS+2*(8*c2+7-2*q)+ch}, v{KS+2*(8*c2+6-2*q)+ch}")
            a(f"ds_write_b128 v{4+c2}, v[{KO+8*c2+4*ch}:{KO+8*c2+4*ch+3}] offset:{128*ch}")
    sbar("PK_HB2", 2)
    for i in range(4):
        a(f"ds_read_b128 v[{KO+4*i}:{KO+4*i+3}], v{6+(i&1)} offset:{1024*i}")
    a("s_setprio 3")
    for i in range(4):
        a(f"s_mov_b32 s{sT0}, {32768*i}")
        a(f"s_waitcnt lgkmcnt({3-i})")
        vm.op(f"buffer_store_dwordx4 v[{KO+4*i}:{KO+4*i+3}], v8, {R(S_WS)}, s{sT0} offen sc1", "kvst")
    lds_arrive(3)
    pstamp(a, 5)
    a("v_lshrrev_b32 v14, 4, v1", "g")
    a("v_and_b32 v15, 15, v1", "n")
    a(f"s_lshl_b32 s{sCH}, s2, 1")
    a(f"s_mul_i32 s{sT0}, s2, 3")
    a(f"s_sub_u32 s{sT0}, s{sT0}, 128")
    a("s_cmp_ge_u32 s2, 128")
    a(f"s_cselect_b32 s{sCH}, s{sT0}, s{sCH}")
    a(f"s_cselect_b32 s{sT0}, 3, 2")
    a(f"s_add_u32 s{sCH}, s{sCH}, s3")
    a(f"s_cmp_lt_u32 s3, s{sT0}")
    a(f"s_cselect_b32 s{sCH}, s{sCH}, {1 << 16}", "ch (65536 = none)")
    a(f"s_mul_i32 s{sCVB}, s3, {CONV_SZ}")
    a(f"s_add_u32 s{sCVB}, s{sCVB}, {AUX}")
    a(f"s_lshr_b32 s{sT0}, s{sCH}, 5")
    a(f"s_lshl_b32 s{sT0}, s{sT0}, {5+FS}")
    a(f"s_add_u32 s{sT0}, s{sT0}, {FKV_OFF}")
    a("v_and_b32 v29, 31, v1")
    a(f"v_lshl_add_u32 v29, v29, {FS}, s{sT0}", "kv poll address")
    a(f"s_lshl_b32 s{sT0}, s{sCH}, 12")
    a(f"v_lshl_add_u32 v31, v1, 4, s{sT0}")
    a("v_add_u32 v32, 2, v31")
    a(f"v_add_u32 v33, {KVB_OFF}, v31")
    a(f"v_mov_b32 v34, s{sT0}")
    a(f"s_lshl_b32 s{sT1}, s{sCH}, 1")
    a(f"v_mov_b32 v36, s{sT1}")
    VA, VB, VE, VS = 38, 42, 43, 44
    a("v_lshlrev_b32 v2, 5, v15")
    a(f"v_lshl_add_u32 v{VS}, v14, 3, v2")
    a(f"s_add_u32 s{sT0}, s{sT0}, {YA_OFF}")
    a(f"v_add_u32 v{VS}, s{sT0}, v{VS}")
    a("v_lshlrev_b32 v45, 4, v1")
    a(f"v_add_u32 v46, s{sCVB}, v45")
    a(f"v_add_u32 v2, {CV_K0-512}, v45")
    a(f"v_add_u32 v3, {CV_K1-544}, v45")
    a("v_cmp_lt_u32 vcc, 31, v1")
    a(f"v_lshl_add_u32 v{VA}, v14, 3, v15")
    a(f"v_lshlrev_b32 v{VA}, 1, v{VA}")
    a("v_cndmask_b32 v45, v45, v2, vcc")
    a("v_cmp_lt_u32 vcc, 33, v1")
    a("v_and_b32 v2, 1, v1")
    a(f"v_mul_u32_u24 v2, {CV_K1 - CV_K0 - 2}, v2")
    a("v_cndmask_b32 v45, v45, v3, vcc")
    a("v_cmp_lt_u32 vcc, 35, v1")
    a(f"v_sub_u32 v{VA}, v{VA}, v2")
    a(f"v_add_u32 v{VA}, {CV_K1}, v{VA}")
    a("v_cndmask_b32 v45, v45, 0, vcc")
    a(f"v_add_u32 v45, s{sCVB}, v45")
    a(f"v_add_u32 v{VA}, s{sCVB}, v{VA}")
    for p in range(1, 4): a(f"v_add_u32 v{VA+p}, {1024*p}, v{VA}")
    a("v_lshlrev_b32 v2, 1, v15")
    a("v_sub_u32 v2, v2, v14")
    a("v_lshlrev_b32 v2, 4, v2")
    a(f"v_add_u32 v2, {528-448}, v2")
    a(f"v_add_u32 v{VB}, s{sCVB}, v2")
    a("v_lshrrev_b32 v2, 1, v14")
    a("v_lshl_add_u32 v2, v15, 1, v2")
    a("v_lshlrev_b32 v2, 4, v2")
    a("v_and_b32 v3, 1, v14")
    a("v_lshlrev_b32 v3, 3, v3")
    a("v_sub_u32 v2, v2, v3")
    a("v_add_u32 v2, 520, v2")
    a(f"v_add_u32 v{VE}, s{sCVB}, v2")
    vm.wait("kvst")
    flag_store(sRING)
    a(f"s_cmp_ge_u32 s{sCH}, 640")
    a("s_cbranch_scc1 PK_NOCONV")
    lds_wait("PK_HB3", 3)
    if E("KERN_LATE", 0):
        a("s_setprio 0")
        lds_wait("PK_KW0", 10, n=4, sleep=4)
        a("s_setprio 3")
    vm.reset()
    a(f"s_add_u32 m0, s{sCVB}, {CV_K0+32}")
    a(f"buffer_load_ushort v35, v34, {R(S_SSMK)}, 0 offen")
    for q in range(4): a(f"buffer_load_dwordx4 v31, {R(S_SSMK)}, 0 offen offset:{q*1024} lds")
    a(f"s_add_u32 m0, s{sCVB}, {CV_K1+32}")
    a(f"buffer_load_ushort v37, v36, {R(S_SSMD)}, 0 offen")
    for q in range(4): a(f"buffer_load_dwordx4 v32, {R(S_SSMK)}, 0 offen offset:{q*1024} lds")
    a("s_setprio 0")
    lds_wait("PK_KW", 10, n=4, sleep=4)
    a("s_setprio 3")
    if not E("NOKV", 0): spin("PK_SPIN_KV", [(29, 30)], sleep=E("KVPOLL_SLEEP", 0))
    KVR = 48
    for q in range(4):
        vm.op(f"buffer_load_dwordx4 v[{KVR+4*q}:{KVR+4*q+3}], v33, {R(S_WS)}, 0 offen offset:{q*1024} sc1", "cfill")
    a("s_setprio 0")
    a("v_mov_b32 v96, 0"); a("v_mov_b32 v97, 0"); a("v_mov_b32 v98, 0")
    a("v_cmp_eq_u32 vcc, 35, v1")
    a("v_lshlrev_b32 v35, 16, v35")
    a("v_lshlrev_b32 v37, 16, v37", "D")
    a("v_cndmask_b32 v99, 0, v35, vcc")
    a("ds_write_b128 v45, v[96:99]")
    vm.wait("cfill")
    for q in range(4):
        a(f"ds_write_b128 v46, v[{KVR+4*q}:{KVR+4*q+3}] offset:{512+1024*q}")
    a("s_waitcnt lgkmcnt(0)")
    CACC = 64; BUF = [(0, 32), (64, 96)]
    def frag_loads(buf, rr):
        A_, B_ = BUF[buf]
        out = []
        for t in range(8):
            o = (t & 1) * 128 + rr * 16
            out.append(f"ds_read_b128 a[{B_+4*t}:{B_+4*t+3}], v{VB} offset:{512*t + 64*(1-rr)}")
            out.append(f"ds_read2_b32 a[{A_+4*t}:{A_+4*t+1}], v{VA + t//2} offset0:{o} offset1:{o+1}")
            out.append(f"ds_read2_b32 a[{A_+4*t+2}:{A_+4*t+3}], v{VA + t//2} offset0:{o+2} offset1:{o+3}")
        return out
    for i in range(32): a(f"v_mov_b32 v{CACC+i}, 0")
    a(f"v_add_u32 v{VB}, {448-64}, v{VB}", "64 below the r-even address")
    emit(frag_loads(0, 0))
    pstamp(a, 6)
    lds_wait("PK_CW", 8, n=E("CONV_WAIT_N", 4), sleep=2)
    a(f"s_setprio {E('CONV_PRIO', 3)}")
    pstamp(a, 7)
    a(f"s_mov_b32 s{sT0}, 0")
    a.label("PK_CV_LOOP")
    for half in range(2):
        a("s_waitcnt lgkmcnt(0)")
        if half == 0: side = frag_loads(1, 1)
        else:
            for p in range(4): a(f"v_add_u32 v{VA+p}, 128, v{VA+p}")
            a(f"v_subrev_u32 v{VB}, 128, v{VB}")
            side = frag_loads(0, 0)
        A_, B_ = BUF[half]
        i = 0
        for c in range(8):
            for t in range(c + 1):
                u = c - t
                a(f"v_mfma_f32_16x16x32_bf16 v[{CACC+4*c}:{CACC+4*c+3}], a[{A_+4*t}:{A_+4*t+3}], a[{B_+4*u}:{B_+4*u+3}], v[{CACC+4*c}:{CACC+4*c+3}]")
                if i < len(side): a(side[i])
                i += 1
    a(f"s_add_u32 s{sT0}, s{sT0}, 1")
    a(f"s_cmp_lt_u32 s{sT0}, 4")
    a("s_cbranch_scc1 PK_CV_LOOP")
    a("s_setprio 3")
    for c in range(8): a(f"ds_read_b64 v[{100+2*c}:{101+2*c}], v{VE} offset:{512*c}")
    a("s_waitcnt lgkmcnt(0)")
    TT = 116
    for c in range(8):
        d0, d1 = 100 + 2 * c, 101 + 2 * c
        emit([f"v_and_b32 v{TT}, 0xffff0000, v{d1}", f"v_lshlrev_b32 v{TT+1}, 16, v{d1}",
              f"v_and_b32 v{TT+2}, 0xffff0000, v{d0}", f"v_lshlrev_b32 v{TT+3}, 16, v{d0}"])
        for i in range(4): a(f"v_fmac_f32 v{CACC+4*c+i}, v{TT+i}, v37")
        a(f"v_cvt_pk_bf16_f32 v{d0}, v{CACC+4*c}, v{CACC+4*c+1}")
        a(f"v_cvt_pk_bf16_f32 v{d1}, v{CACC+4*c+2}, v{CACC+4*c+3}")
        a(f"buffer_store_dwordx2 v[{d0}:{d1}], v{VS}, {R(S_WS)}, 0 offen offset:{512*c} sc1")
    pstamp(a, 8)
    a(f"s_lshl_b32 s{sT0}, s{sCH}, {FS}")
    a(f"s_add_u32 s{sT0}, s{sT0}, {FY_OFF}")
    a("s_waitcnt vmcnt(0)")
    flag_store(sT0)
    a("s_branch PK_PCOMP")
    a.label("PK_NOCONV")
    a("s_setprio 0")
    lds_wait("PK_NCW", 8, n=4, sleep=16)
    a("s_setprio 3")
    a.label("PK_PCOMP")
    vm.reset()
    a(f"s_mul_i32 s{sT3}, s{sDT2}, 80", "d0")
    a(f"s_lshl_b32 s{sT0}, s{sST}, 6")
    a(f"s_lshl_b32 s{sT1}, s3, 4")
    a(f"s_add_u32 s{sT0}, s{sT0}, s{sT1}")
    a(f"v_add_u32 v4, s{sT0}, v15", "s")
    a("v_mul_u32_u24 v5, 1280, v4")
    a("v_lshl_add_u32 v5, v14, 3, v5")
    a(f"s_lshl_b32 s{sT0}, s{sT3}, 1")
    a(f"v_add_u32 v5, s{sT0}, v5", "x offset")
    XR = 16
    for m in range(5):
        a(f"buffer_load_dwordx2 v[{XR+2*m}:{XR+2*m+1}], v5, {R(S_X)}, 0 offen offset:{32*m}")
    a("v_lshlrev_b32 v6, 3, v4")
    a(f"v_add_u32 v6, {STAT_OFF}, v6")
    a(f"s_lshl_b32 s{sT0}, s{sT3}, {FS}")
    a(f"s_add_u32 s{sT0}, s{sT0}, {FY_OFF}")
    a(f"v_lshl_add_u32 v7, v1, {FS}, s{sT0}")
    a(f"v_add_u32 v8, {64 << FS}, v7")
    a("v_bfe_u32 v2, v4, 1, 2")
    a("v_lshlrev_b32 v2, 8, v2")
    a("v_lshrrev_b32 v3, 3, v4")
    a("v_add_u32 v2, v2, v3")
    a("v_cmp_lt_u32 vcc, 15, v1")
    a(f"v_lshlrev_b32 v2, {FS}, v2")
    a(f"v_add_u32 v2, {FH_OFF}, v2")
    a("v_cndmask_b32 v8, v8, v2, vcc")
    a("v_lshrrev_b32 v9, 1, v1")
    a("v_lshlrev_b32 v9, 12, v9")
    a("v_and_b32 v2, 1, v1")
    a("v_lshl_add_u32 v9, v2, 4, v9")
    a(f"s_lshl_b32 s{sT0}, s{sT3}, 12")
    a(f"s_lshl_b32 s{sT1}, s{sST}, 7")
    a(f"s_add_u32 s{sT0}, s{sT0}, s{sT1}")
    a(f"s_lshl_b32 s{sT1}, s3, 5")
    a(f"s_add_u32 s{sT0}, s{sT0}, s{sT1}")
    a(f"s_add_u32 s{sT0}, s{sT0}, {YA_OFF}")
    a(f"v_add_u32 v9, s{sT0}, v9")
    a("v_cmp_lt_u32 vcc, 31, v1")
    a("v_add_u32 v10, 0x20000, v9")
    a("v_add_u32 v11, 0x40000, v9")
    a(f"v_mov_b32 v2, {BIG}")
    a("v_cndmask_b32 v11, v11, v2, vcc")
    a(f"s_mul_i32 s{sT0}, s3, 2560")
    a(f"s_add_u32 s{sT0}, s{sT0}, {PT_LDS}")
    a(f"v_lshl_add_u32 v12, v1, 4, s{sT0}")
    a(f"v_lshl_add_u32 v13, v1, 3, s{sT0}")
    a("s_setprio 0")
    lds_wait("PK_YW", 9, n=4 * (CNT + 36), sleep=4)
    a("s_setprio 3")
    spin("PK_SPIN_Y", [(7, 26), (8, 27)], sleep=E("YPOLL_SLEEP", 0))
    pstamp(a, 9)
    YL, ST_, XF, XN, T2, YR, YF = 28, 40, 44, 64, 84, 94, 104
    for t in range(3):
        vm.op(f"buffer_load_dwordx4 v[{YL+4*t}:{YL+4*t+3}], v{9+t}, {R(S_WS)}, 0 offen sc1", "ya")
    vm.op(f"buffer_load_dwordx2 v[{ST_}:{ST_+1}], v6, {R(S_WS)}, 0 offen sc1", "st")
    for i in range(10):
        a(f"v_lshlrev_b32 v{XF+2*i}, 16, v{XR+i}")
        a(f"v_and_b32 v{XF+2*i+1}, 0xffff0000, v{XR+i}")
    vm.wait("ya")
    a(f"ds_write_b128 v12, v[{YL}:{YL+3}]")
    a(f"ds_write_b128 v12, v[{YL+4}:{YL+7}] offset:1024")
    a("s_mov_b32 exec_hi, 0")
    a(f"ds_write_b128 v12, v[{YL+8}:{YL+11}] offset:2048")
    a("s_mov_b64 exec, -1")
    vm.wait("st", "lgkmcnt(0)")
    for m in range(5):
        a(f"ds_read_b64_tr_b16 v[{YR+2*m}:{YR+2*m+1}], v13 offset:{m*512}")
    a(f"v_mul_f32 v42, v{ST_}, v{ST_+1}")
    a(f"v_mul_f32 v43, v{ST_}, v{ST_+1}")
    a(f"v_mov_b32 v{ST_}, v{ST_+1}")
    for i in range(0, 20, 2):
        a(f"v_pk_fma_f32 {pk(XN+i)}, {pk(XF+i)}, {pk(ST_)}, v[42:43] neg_lo:[0,0,1] neg_hi:[0,0,1]")
    for i in range(0, 20, 2): a(f"v_cvt_pk_bf16_f32 v{T2+i//2}, v{XN+i}, v{XN+i+1}")
    for i in range(0, 20, 2):
        a(f"v_lshlrev_b32 v{XN+i}, 16, v{T2+i//2}")
        a(f"v_and_b32 v{XN+i+1}, 0xffff0000, v{T2+i//2}")
    a("s_waitcnt lgkmcnt(0)")
    for i in range(10):
        a(f"v_lshlrev_b32 v{YF+2*i}, 16, v{YR+i}")
        a(f"v_and_b32 v{YF+2*i+1}, 0xffff0000, v{YR+i}")
    for i in range(0, 20, 2): a(f"v_pk_fma_f32 {pk(XN+i)}, {pk(XN+i)}, {pk(YF+i)}, {pk(XF+i)}")
    for m in range(5):
        a(f"v_cvt_pk_bf16_f32 v{T2+2*m}, v{XN+4*m}, v{XN+4*m+1}")
        a(f"v_cvt_pk_bf16_f32 v{T2+2*m+1}, v{XN+4*m+2}, v{XN+4*m+3}")
        a(f"ds_write_b64 v13, v[{T2+2*m}:{T2+2*m+1}] offset:{m*512}")
    pstamp(a, 10)
    a("s_waitcnt lgkmcnt(0)")
    a("s_barrier")
    pstamp(a, 11)
    finish_stamps()
    a.label("PK_END")
    a("s_endpgm")
    return a

def build():
    ref = open(f"cdna_kernels/{NAME}.s.ref").read().splitlines()
    head = []
    for l in ref:
        if l.startswith("; Override"): break
        head.append(l)
    body = gen()
    out = "\n".join(head) + "\n"
    out += f"; @launch grid=({GRID},1,1) block=({BLOCK},1,1) lds={LDS_BYTES}\n"
    out += '.amdgcn_target "amdgcn-amd-amdhsa--gfx950"\n.text\n'
    out += body.text()
    out += '.section .rodata,"a"\n' + kernel_desc(NAME + "_kernel", 256, 102, 128)
    return out
if __name__ == "__main__":
    import sys
    out = sys.argv[1] if len(sys.argv) > 1 else f"cdna_kernels/{NAME}.s"
    open(out, "w").write(build())
    print("wrote", out)
```

```python
import os, math
from asmlib import *
from layout import *

NAME = "parallel_sum__ssm_conv_h3__mixer_token_mlp__prompt"
GRID, BLOCK, LDS_BYTES = 256, 512, 163840
NT = os.environ.get("NT", "")
BIG = 0x40000000
SPIN_MAX = 20000
E = lambda k, d: int(os.environ.get(k, d))

S_X, S_K, S_V, S_SHK, S_SSMK, S_SSMD, S_W1, S_B1, S_W2, S_B2, S_OUT, S_WS = [32 + 4 * i for i in range(12)]
def R(b): return f"s[{b}:{b+3}]"
sEP, sDT, sFT, sDT2, sST, sRING, sPOS, sWOFF, sHOFF, sKB = range(80, 90)
sT0, sT1, sT2, sT3, sCH, sCVB, sG1BIG, sKVBIG, sC1, sSPIN, sROT, sT4 = range(90, 102)
sROT2, sKB2 = sCH, sCVB

FS = E("FS", 4)
NSLOT = 7
NR1 = E("NR1", 7)
NR2 = 5
RINGB = NSLOT * 4096
AUX = 4 * RINGB
LNX = AUX
HROW = 1344
KVX = LNX + 8 * HROW
CV_K0, CV_K1, CONV_SZ = 4608, 8768, 12928
PT_LDS = AUX + 3 * CONV_SZ
CNT = PT_LDS + 4 * 2560
assert KVX + 16384 <= PT_LDS and CNT + 64 <= LDS_BYTES and KVX % 128 == 0

class VM:
    def __init__(self, a): self.a = a; self.q = []
    def op(self, ins, tag): self.a(ins); self.q.append(tag)
    def count(self, tag):
        idx = [i for i, t in enumerate(self.q) if t == tag]
        return len(self.q) - 1 - idx[-1] if idx else None
    def wait(self, tag, extra=""):
        n = self.count(tag)
        if n is None:
            if extra: self.a(f"s_waitcnt {extra}")
            return
        self.a(f"s_waitcnt vmcnt({min(n, 63)}) {extra}")
        self.q = self.q[len(self.q) - n:] if n else []
    def reset(self): self.q = []

TIMER = "s_memtime" if os.environ.get("CYC") else "s_memrealtime"
MUTE = [False]
def pstamp(a, i, force=False):
    if STAMP and (force or not MUTE[0]): a(f"{TIMER} s[{4+2*i}:{5+2*i}]")
def pk(r): return f"v[{r}:{r+1}]"

def gen():
    a = Asm()
    vm = VM(a)
    def emit(items):
        for it in items:
            if isinstance(it, list): emit(it)
            elif isinstance(it, tuple): vm.op(it[0], it[1])
            else: a(it)
    def flag_store(soff, tmp=2):
        a(f"v_mov_b32 v{tmp}, s{sEP}")
        a(f"v_mov_b32 v{tmp+1}, s{soff}")
        a("s_mov_b64 exec, 1")
        vm.op(f"buffer_store_dword v{tmp}, v{tmp+1}, {R(S_WS)}, 0 offen sc1", "flag")
        a("s_mov_b64 exec, -1")
    def spin(label, pairs, first_tag=None, sleep=0):
        def check():
            a(f"v_cmp_ne_u32 vcc, s{sEP}, v{pairs[0][1]}")
            for _, d in pairs[1:]:
                a(f"v_cmp_ne_u32 s[28:29], s{sEP}, v{d}")
                a("s_or_b64 vcc, vcc, s[28:29]")
        if first_tag:
            vm.wait(first_tag)
            check()
            a(f"s_cbranch_vccz {label}_OK")
        a(f"s_mov_b32 s{sSPIN}, 0")
        a.label(label)
        if sleep: a(f"s_sleep {sleep}", "poll back-off")
        for ad, d in pairs:
            a(f"buffer_load_dword v{d}, v{ad}, {R(S_WS)}, 0 offen sc1")
        a(f"s_add_u32 s{sSPIN}, s{sSPIN}, 1")
        a("s_waitcnt vmcnt(0)")
        check()
        a(f"s_cmp_gt_u32 s{sSPIN}, {SPIN_MAX}")
        a(f"s_cbranch_scc1 {label}_OK")
        a(f"s_cbranch_vccnz {label}")
        a.label(label + "_OK")
        if not first_tag: vm.reset()
    def lds_arrive(idx, t=2):
        a(f"v_mov_b32 v{t}, {CNT + 4*idx}")
        a(f"v_mov_b32 v{t+1}, 1")
        a("s_waitcnt lgkmcnt(0)")
        a("s_mov_b64 exec, 1")
        a(f"ds_add_u32 v{t}, v{t+1}")
        a("s_mov_b64 exec, -1")
    def lds_wait(label, idx, n=4, t=2, sleep=0):
        a(f"v_mov_b32 v{t}, {CNT + 4*idx}")
        a(f"s_mov_b32 s{sSPIN}, 0")
        a.label(label)
        if sleep: a(f"s_sleep {sleep}", "poll back-off")
        a(f"ds_read_b32 v{t+1}, v{t}")
        a(f"s_add_u32 s{sSPIN}, s{sSPIN}, 1")
        a(f"s_cmp_gt_u32 s{sSPIN}, {1 << 21}")
        a("s_waitcnt lgkmcnt(0)")
        a(f"v_cmp_gt_u32 vcc, {n}, v{t+1}")
        a(f"s_cbranch_scc1 {label}_OK")
        a(f"s_cbranch_vccnz {label}")
        a.label(label + "_OK")
    def sbar(label, idx, t=2):
        lds_arrive(idx, t); lds_wait(label, idx, 4, t)
    def read_epoch(vdata):
        vm.wait("ep")
        a(f"v_readfirstlane_b32 s{sEP}, v{vdata}")
        a("s_nop 3")
        a(f"s_mul_i32 s{sEP}, s{sEP}, 1664525")
        a(f"s_add_u32 s{sEP}, s{sEP}, 1013904223")
    def finish_stamps():
        if not STAMP: return
        a("s_waitcnt vmcnt(0)")
        a(f"{TIMER} s[28:29]")
        a("s_waitcnt lgkmcnt(0)")
        a("s_load_dwordx2 s[30:31], s[0:1], 104")
        a("s_waitcnt lgkmcnt(0)")
        srd(a, S_X, 30, 1 << 20, 16 << 20)
        a(f"s_lshl_b32 s{sT0}, s2, 9")
        a("v_lshrrev_b32 v1, 6, v0")
        a(f"v_lshl_add_u32 v1, v1, 6, s{sT0}")
        a("s_mov_b64 exec, 1")
        for i in range(13):
            a(f"v_mov_b32 v2, s{4+2*i}")
            a(f"buffer_store_dword v2, v1, {R(S_X)}, 0 offen offset:{4*i}")

    kernel_begin(a, NAME + "_kernel")
    a(f"s_cmp_ge_u32 s2, {GRID}")
    a("s_cbranch_scc1 PK_END")
    a("s_load_dwordx8 s[4:11], s[0:1], 0", "x k v shift_k")
    a("s_load_dwordx2 s[26:27], s[0:1], 104", "ws")
    a("s_load_dwordx8 s[16:23], s[0:1], 56", "w1 b1 w2 b2")
    a("s_load_dwordx4 s[12:15], s[0:1], 32", "ssm_k ssm_D")
    a("s_load_dwordx2 s[24:25], s[0:1], 88", "out")
    if STAMP: a(f"{TIMER} s[30:31]")
    a("v_lshrrev_b32 v2, 6, v0")
    a("v_and_b32 v1, 63, v0", "lane")
    a(f"v_readfirstlane_b32 s{sT4}, v2", "wave 0..7")
    a("v_lshlrev_b32 v3, 2, v1", "lane*4")
    a(f"v_and_b32 v4, 60, v3")
    a(f"v_add_u32 v4, {CNT}, v4")
    a("v_mov_b32 v5, 0")
    a("ds_write_b32 v4, v5", "zero the 16 lds counters")
    a(f"s_and_b32 s3, s{sT4}, 3", "w within the role")
    a(f"s_and_b32 s{sT0}, s2, 7", "x")
    a(f"s_lshr_b32 s{sT1}, s2, 3", "j")
    a(f"s_and_b32 s{sT2}, s{sT0}, 1")
    a(f"s_lshl_b32 s{sDT2}, s{sT2}, 2")
    a(f"s_and_b32 s{sT3}, s{sT1}, 3")
    a(f"s_add_u32 s{sDT2}, s{sDT2}, s{sT3}", "dt2")
    a(f"s_lshr_b32 s{sT0}, s{sT0}, 1")
    a(f"s_lshl_b32 s{sST}, s{sT0}, 3")
    a(f"s_lshr_b32 s{sT3}, s{sT1}, 2")
    a(f"s_add_u32 s{sST}, s{sST}, s{sT3}", "st")
    a(f"v_mov_b32 v8, {EPOCH_OFF}")
    a(f"s_cmp_lt_u32 s{sT4}, 4")
    a("s_cbranch_scc1 PK_G")
    a("s_setprio 3")
    a(f"s_lshl_b32 s{sT0}, s2, 2")
    a(f"s_add_u32 s{sT0}, s{sT0}, s3")
    a(f"s_mul_i32 s{sT4}, s{sT0}, 2560", "x soffset")
    a("s_waitcnt lgkmcnt(0)")
    srd(a, S_X, 4, SD_BYTES)
    for r in range(2):
        for i in range(5):
            a(f"buffer_load_dword v{16+5*r+i}, v3, {R(S_X)}, s{sT4} offen offset:{r*1280+i*256} {NT}")
    a("s_barrier", "lds counters zeroed")
    a("s_branch PK_H")
    a.label("PK_G")
    a("s_getpc_b64 s[28:29]")
    a.label("PK_PC")
    a(f"s_sub_u32 s28, s28, PK_PC-{NAME}_kernel")
    a("s_subb_u32 s29, s29, 0")
    a("v_and_b32 v9, 7, v0")
    a(f"s_andn2_b32 s{sT3}, s2, 7")
    a(f"v_add_lshl_u32 v9, v9, s{sT3}, 7")
    a(f"v_min_u32 v9, PK_END-{NAME}_kernel, v9")
    a("global_load_dword v127, v9, s[28:29]")

    a("s_setprio 1")
    a(f"s_mul_hi_u32 s{sFT}, s{sT1}, 0x33333334", "j/5")
    a(f"s_mul_i32 s{sT3}, s{sFT}, 5")
    a(f"s_sub_u32 s{sDT}, s{sT1}, s{sT3}", "j%5")
    a(f"s_mul_i32 s{sROT}, s{sDT}, 13")
    a(f"s_lshr_b32 s{sROT}, s{sROT}, 2", "rot = 3.25*dt_local")
    if not E("ROT", 1): a(f"s_mov_b32 s{sROT}, 0")
    if E("ROT", 1) == 2:
        a(f"s_add_u32 s{sROT}, s{sDT}, s{sFT}")
        a(f"s_sub_u32 s{sT3}, s{sROT}, 6")
        a(f"s_min_u32 s{sROT}, s{sROT}, s{sT3}")
        a(f"s_mul_i32 s{sROT}, s{sROT}, 11")
        a(f"s_lshr_b32 s{sROT}, s{sROT}, 2", "2.75 * index")
    a(f"s_mul_i32 s{sT3}, s{sT2}, 5")
    a(f"s_add_u32 s{sDT}, s{sDT}, s{sT3}", "dt")
    a(f"s_mul_i32 s{sT3}, s{sT0}, 6")
    a(f"s_add_u32 s{sFT}, s{sFT}, s{sT3}", "ft")
    a(f"s_cmp_ge_u32 s{sT1}, 30")
    a(f"s_cselect_b32 s{sG1BIG}, {BIG}, 0")
    a(f"s_mul_i32 s{sRING}, s3, {RINGB}")
    a(f"s_lshl_b32 s{sKB}, s3, 4")
    a(f"s_mov_b32 s{sPOS}, s{sROT}")
    a("v_lshrrev_b32 v2, 3, v1")
    a("v_mul_u32_u24 v4, 3072, v2")
    a("v_bfe_u32 v2, v1, 4, 1")
    a("v_lshlrev_b32 v2, 2, v2")
    a("v_and_b32 v3, 7, v1")
    a("v_xor_b32 v2, v2, v3")
    a("v_lshl_add_u32 v4, v2, 4, v4")
    a(f"s_lshl_b32 s{sT1}, s{sFT}, 7")
    a(f"s_add_u32 s{sT1}, s{sT1}, s{sG1BIG}")
    a(f"v_add_u32 v4, s{sT1}, v4")
    for q in range(1, 4):
        a(f"v_add_u32 v{4+q}, {q*(24576-1024)}, v4")
    a("s_waitcnt lgkmcnt(0)")
    srd(a, S_W1, 16, S * F * 2)
    a("s_barrier", "lds counters zeroed")
    def w1_stage(i):
        items = [f"s_add_u32 s{sWOFF}, s{sKB}, s{sPOS}", f"s_mul_i32 s{sWOFF}, s{sWOFF}, 98304",
                 f"s_add_u32 m0, s{sRING}, {(i % NSLOT)*4096}", f"s_add_u32 s{sPOS}, s{sPOS}, 1", f"s_and_b32 s{sPOS}, s{sPOS}, 15"]
        for q in range(4):
            items.append((f"buffer_load_dwordx4 v{4+q}, {R(S_W1)}, s{sWOFF} offen offset:{q*1024} lds", f"w1_{i}"))
        return items
    def w1_tr(i):
        out = []
        for kh in range(2):
            for mt in range(2):
                for h in range(2):
                    r = 16 * (i % NR1) + 4 * (2 * kh + mt) + 2 * h
                    out.append(f"ds_read_b64_tr_b16 a[{r}:{r+1}], v{10+mt} offset:{(i % NSLOT)*4096 + kh*2048 + h*512}")
        return out
    WD = E("WD", 2)
    for i in range(WD): emit(w1_stage(i))
    srd(a, S_WS, 26, WS_USED)
    vm.op(f"buffer_load_dword v9, v8, {R(S_WS)}, 0 offen sc1", "ep")
    srd(a, S_W2, 20, S * F * 2)
    srd(a, S_B2, 22, S * 2)
    srd(a, S_OUT, 24, SD_BYTES)
    if STAMP:
        a("s_mov_b32 s4, s30"); a("s_mov_b32 s5, s31")
    pstamp(a, 1)
    a("v_lshrrev_b32 v2, 5, v1")
    a("v_lshlrev_b32 v10, 10, v2")
    a("v_mul_u32_u24 v12, 10240, v2")
    a("v_bfe_u32 v2, v1, 2, 2")
    a("v_lshl_add_u32 v10, v2, 7, v10")
    a("v_bfe_u32 v2, v1, 3, 1")
    a("v_lshl_add_u32 v10, v2, 6, v10")
    a("v_bfe_u32 v2, v1, 4, 1")
    a("v_lshl_add_u32 v10, v2, 5, v10")
    a("v_and_b32 v2, 3, v1")
    a("v_lshl_add_u32 v10, v2, 3, v10")
    a(f"v_add_u32 v10, s{sRING}, v10")
    a("v_xor_b32 v11, 64, v10")
    a("v_and_b32 v2, 31, v1")
    a("v_lshl_add_u32 v12, v2, 4, v12")
    a(f"s_lshl_b32 s{sT0}, s{sDT}, 10")
    a(f"s_add_u32 s{sT0}, s{sT0}, s{sG1BIG}")
    if HBLK_OFF: a(f"s_add_u32 s{sT0}, s{sT0}, {HBLK_OFF}")
    a(f"v_add_u32 v12, s{sT0}, v12")
    a("v_add_u32 v13, 20480, v12")
    a(f"s_and_b32 s{sT0}, s{sDT}, 3")
    a(f"s_lshl_b32 s{sT0}, s{sT0}, {8+FS}")
    a(f"s_add_u32 s{sT0}, s{sT0}, {FH_OFF}")
    a(f"v_lshl_add_u32 v14, v0, {FS}, s{sT0}")
    a(f"s_and_b32 s{sROT2}, s{sDT2}, 3")
    a(f"s_mul_i32 s{sROT2}, s{sROT2}, 3")
    if E("ROT2", 1) == 2:
        a(f"s_and_b32 s{sT0}, s{sST}, 7")
        a(f"s_mul_i32 s{sT0}, s{sT0}, 3")
        a(f"s_lshr_b32 s{sT0}, s{sT0}, 1")
        a(f"s_add_u32 s{sROT2}, s{sROT2}, s{sT0}")
        a(f"s_sub_u32 s{sT0}, s{sROT2}, 12")
        a(f"s_min_u32 s{sROT2}, s{sROT2}, s{sT0}")
    a(f"s_mul_i32 s{sKB2}, s3, 12")
    c0 = -2.0 * math.sqrt(2.0 / math.pi) * math.log2(math.e)
    a(f"s_mov_b32 s{sC1}, {f32(c0*0.044715)}")
    NPRE = NR1 + NSLOT
    for i in range(NPRE - WD + 1):
        vm.wait(f"w1_{i}")
        if i < NR1: emit(w1_tr(i))
        nx = i + WD
        if nx < NPRE:
            if nx >= NSLOT:
                later = sum(1 for k in range(nx - NSLOT + 1, i + 1) if k < NR1)
                a(f"s_waitcnt lgkmcnt({8 if later else 0})")
            emit(w1_stage(nx))
        if i == WD:
            read_epoch(9); lds_arrive(6)
    if E("W1ONLY", 0):
        a("s_waitcnt vmcnt(0)")
        for i in range(2, 12): pstamp(a, i)
        finish_stamps()
        a("s_endpgm")
    vm.op(f"buffer_load_dword v15, v14, {R(S_WS)}, 0 offen sc1", "hpoll")
    a(f"s_lshr_b32 s{sT0}, s2, 3")
    a(f"s_mul_hi_u32 s{sT0}, s{sT0}, 0x33333334", "ft_local")
    a(f"s_mul_i32 s{sT0}, s{sT0}, 11")
    a("v_lshrrev_b32 v2, 3, v1")
    a(f"v_add_u32 v2, s{sT0}, v2")
    a("v_add_u32 v3, 5, v2")
    a("v_min_u32 v2, 63, v2")
    a("v_min_u32 v3, 63, v3")
    a("v_mul_u32_u24 v8, 10240, v2")
    a("v_mul_u32_u24 v9, 10240, v3")
    a("v_and_b32 v2, 7, v1")
    a(f"s_mul_i32 s{sT0}, s3, {64*10240}")
    a(f"s_lshl_b32 s{sT1}, s{sDT}, 10")
    a(f"s_add_u32 s{sT0}, s{sT0}, s{sT1}")
    a(f"s_add_u32 s{sT0}, s{sT0}, s{sG1BIG}")
    if HBLK_OFF: a(f"s_add_u32 s{sT0}, s{sT0}, {HBLK_OFF}")
    a(f"v_lshl_add_u32 v2, v2, 7, s{sT0}")
    a("v_add_u32 v8, v8, v2")
    a("v_add_u32 v9, v9, v2")
    lds_wait("PK_B1W", 1)
    pstamp(a, 2)
    spin("PK_SPIN_H", [(14, 15)], "hpoll" if vm.count("hpoll") is not None else "x")
    if E("GBAR1", 0): sbar("PK_GB1", 13)
    pstamp(a, 3)
    a("s_setprio 2")
    ACC = 64
    HB = [("v", 16), ("v", 32), ("v", 48)] + [("a", 16 * k) for k in range(NR1, 8)]
    HD = len(HB)
    HB = HB[-((16 - 0) % HD or HD):] + HB[:-((16 - 0) % HD or HD)] if False else HB
    def hreg(i, kh, nt):
        f, b = HB[(i + HSH) % HD]
        r = b + 4 * (2 * kh + nt)
        return f"{f}[{r}:{r+3}]"
    HSH = (1 - 13) % HD
    sHP = sKVBIG
    a(f"s_mov_b32 s{sHP}, s{sROT}")
    def h_adv():
        return [f"s_add_u32 s{sHOFF}, s{sKB}, s{sHP}", f"s_mul_i32 s{sHOFF}, s{sHOFF}, 40960",
                f"s_add_u32 s{sHP}, s{sHP}, 1", f"s_and_b32 s{sHP}, s{sHP}, 15"]
    def hload(i, nt, kh):
        return (f"buffer_load_dwordx4 {hreg(i, kh, nt)}, v{12+kh}, {R(S_WS)}, s{sHOFF} offen offset:{nt*512} {os.environ.get('HFLAG', 'sc1')}", f"h{i}_{kh}{nt}")
    HPRE = E("HPRE", HD)
    for i in range(HPRE):
        emit(h_adv())
        for kh in range(2):
            for nt in range(2): emit([hload(i, nt, kh)])
        if i == 0 and E("TOUCH", 0):
            vm.op(f"buffer_load_dword v15, v8, {R(S_WS)}, 0 offen sc1", "touch")
            vm.op(f"buffer_load_dword v14, v9, {R(S_WS)}, 0 offen sc1", "touch")
    a("s_waitcnt lgkmcnt(0)")
    def pos2(i):
        return [f"s_add_u32 s{sT0}, s{sROT2}, {i}", f"s_sub_u32 s{sT1}, s{sT0}, 12", f"s_min_u32 s{sT0}, s{sT0}, s{sT1}",
                f"s_add_u32 s{sT0}, s{sT0}, s{sKB2}"]
    def w2_slot(i): return i % NSLOT
    def w2_dma(i):
        items = pos2(i) + [f"s_add_u32 m0, s{sRING}, {w2_slot(i)*4096}", f"s_lshl_b32 s{sWOFF}, s{sT0}, 17"]
        for q in range(4):
            items.append((f"buffer_load_dwordx4 v{4+q}, {R(S_W2)}, s{sWOFF} offen offset:{q*1024} lds", f"w2_{i}"))
        return items
    BB = 16
    for i in range(16):
        nx = i + HPRE
        if E("G1STEPS", 0):
            MUTE[0] = True
            if i in (1, 3, 5, 7, 9, 11, 13): pstamp(a, 4 + i // 2, True)
        if nx < 16: emit(h_adv())
        side = []
        st_tr = NR1 - 1 + i
        if i >= 1 and st_tr < 16:
            vm.wait(f"w1_{st_tr}")
            side = w1_tr(st_tr)
        st_ld = NPRE + i - 3
        if i >= 3 and st_ld < 16:
            a("s_waitcnt lgkmcnt(8)")
            emit(w1_stage(st_ld))
        elif i >= NR1:
            a("s_waitcnt lgkmcnt(8)" if NR1 - 1 + i - 1 < 16 else "s_waitcnt lgkmcnt(0)")
        if E("KV_LATE", 0) and i == E("KV_LATE", 0):
            a(f"v_mov_b32 v2, {CNT + 48}")
            a("s_mov_b64 exec, 1")
            a("ds_add_u32 v2, v2")
            a("s_mov_b64 exec, -1")
        if i == 12:
            side = ["v_lshrrev_b32 v2, 3, v1", "v_lshlrev_b32 v4, 12, v2", "v_bfe_u32 v2, v1, 4, 1", "v_lshlrev_b32 v2, 1, v2",
                    "v_and_b32 v3, 7, v1", "v_xor_b32 v2, v2, v3", "v_lshl_add_u32 v4, v2, 4, v4", f"s_lshl_b32 s{sT0}, s{sST}, 7",
                    f"v_add_u32 v4, s{sT0}, v4", "v_xor_b32 v2, 64, v4", f"v_add_u32 v5, {1*(32768-1024)}, v2",
                    f"v_add_u32 v6, {2*(32768-1024)}, v4", f"v_add_u32 v7, {3*(32768-1024)}, v2",
                    ]
        if i == E("KGO", 11): lds_arrive(10)
        if i == 13:
            side = [f"s_add_u32 s{sT2}, s{sRING}, {3*4096}", f"v_lshl_add_u32 v9, v1, 4, s{sT2}",
                    f"s_lshl_b32 s{sT2}, s3, 12", f"s_add_u32 s{sT2}, s{sT2}, {3*4096}", f"v_lshl_add_u32 v10, v1, 4, s{sT2}",
                    f"v_add_u32 v11, {2*RINGB}, v10",
                    f"s_lshr_b32 s{sT0}, s3, 1", f"s_lshl_b32 s{sT0}, s{sT0}, 6", f"s_add_u32 s{sT0}, s{sT0}, {PT_LDS}",
                    "v_lshrrev_b32 v8, 5, v1", f"v_lshl_add_u32 v8, v8, 3, s{sT0}",
                    f"s_lshr_b32 s{sT0}, s3, 1", f"s_lshl_b32 s{sT0}, s{sT0}, 2", f"s_lshl_b32 s{sT1}, s{sFT}, 3",
                    f"s_add_u32 s{sT0}, s{sT0}, s{sT1}", f"s_mul_i32 s{sT0}, s{sT0}, 10240", f"s_and_b32 s{sT1}, s3, 1",
                    f"s_lshl_b32 s{sT1}, s{sT1}, 9", f"s_add_u32 s{sT0}, s{sT0}, s{sT1}",
                    f"s_add_u32 s{sT0}, s{sT0}, {UBLK_OFF - HBLK_OFF - 20480}", f"v_add_u32 v14, s{sT0}, v13", "v_add_u32 v15, 20480, v14",
                    f"v_mov_b32 v13, {f32(c0)}", "s_mov_b32 s28, 1.0", "s_mov_b32 s29, 1.0"]
        if i == 14:
            side = [f"ds_read_b64 v[{32+2*q}:{33+2*q}], v8 offset:{16*q}" for q in range(4)]
        if i == 15:
            for kh in range(2):
                for nt in range(2): vm.wait(f"h{i}_{kh}{nt}")
            def mf(t_):
                mt, nt = t_ >> 1, t_ & 1
                t = ACC + 16 * t_
                for kh in range(2):
                    wr = 16 * (i % NR1) + 4 * (2 * kh + mt)
                    a(f"v_mfma_f32_32x32x16_bf16 v[{t}:{t+15}], a[{wr}:{wr+3}], {hreg(i, kh, nt)}, v[{t}:{t+15}]")
            def wr_(t_):
                for q in range(4):
                    r = ACC + 16 * t_ + 4 * q
                    a(f"ds_write_b128 v9, v[{r}:{r+3}] offset:{t_*4096 + q*1024}")
            FIN = 48
            mf(0); mf(1)
            a("s_waitcnt lgkmcnt(0)")
            for q in range(0, 10, 2):
                a(f"v_lshlrev_b32 v{FIN+q}, 16, v{32+q//2}")
                a(f"v_and_b32 v{FIN+q+1}, 0xffff0000, v{32+q//2}")
            wr_(0); mf(2); wr_(1); mf(3)
            for q in range(10, 16, 2):
                a(f"v_lshlrev_b32 v{FIN+q}, 16, v{32+q//2}")
                a(f"v_and_b32 v{FIN+q+1}, 0xffff0000, v{32+q//2}")
            wr_(2)
            a("s_nop 1")
            wr_(3)
            continue
        k = 0; si = 0
        for kh in range(2):
            for nt in range(2):
                vm.wait(f"h{i}_{kh}{nt}")
                for mt in range(2):
                    t = ACC + 16 * (2 * mt + nt)
                    wr = 16 * (i % NR1) + 4 * (2 * kh + mt)
                    c = "0" if (i == 0 and kh == 0) else f"v[{t}:{t+15}]"
                    if not E("NOMF1", 0): a(f"v_mfma_f32_32x32x16_bf16 v[{t}:{t+15}], a[{wr}:{wr+3}], {hreg(i, kh, nt)}, {c}")
                    k += 1
                    while si < (len(side) * k + 7) // 8:
                        emit([side[si]]); si += 1
                if nx < 16: emit([hload(nx, nt, kh)])
    pstamp(a, 4)
    if E("G1STEPS", 0): pstamp(a, 11, True)
    lds_arrive(4)
    H3L = E("H3L", 1)
    if not H3L: emit(w2_dma(0)); emit(w2_dma(1))
    lds_wait("PK_XW1", 4)
    PT = 64
    for o in range(4):
        for q in range(4):
            r = PT + 16 * o + 4 * q
            a(f"ds_read_b128 v[{r}:{r+3}], v{10+o//2} offset:{(o&1)*RINGB + q*1024}")
    for o in range(4):
        a(f"s_waitcnt lgkmcnt({12-4*o})")
        for i in range(0, 16, 2):
            a(f"v_pk_add_f32 {pk(FIN+i)}, {pk(FIN+i)}, {pk(PT+16*o+i)}")
    lds_arrive(5)
    T = 64
    for i in range(0, 16, 2): a(f"v_pk_mul_f32 {pk(T+i)}, {pk(FIN+i)}, {pk(FIN+i)}")
    for i in range(16): a(f"v_fma_f32 v{T+i}, v{T+i}, s{sC1}, v13")
    for i in range(0, 16, 2): a(f"v_pk_mul_f32 {pk(T+i)}, {pk(T+i)}, {pk(FIN+i)}")
    for i in range(16): a(f"v_exp_f32 v{T+i}, v{T+i}")
    if E("W2MID", 0): emit(w2_dma(2))
    for i in range(0, 16, 2): a(f"v_pk_add_f32 {pk(T+i)}, {pk(T+i)}, s[28:29]")
    for i in range(16): a(f"v_rcp_f32 v{T+i}, v{T+i}")
    for i in range(0, 16, 2): a(f"v_pk_mul_f32 {pk(FIN+i)}, {pk(FIN+i)}, {pk(T+i)}")
    P = T + 16
    for i in range(0, 16, 2): a(f"v_cvt_pk_bf16_f32 v{P+i//2}, v{FIN+i}, v{FIN+i+1}")
    a("s_nop 1")
    for qp in range(2):
        r = P + 4 * qp
        a(f"v_permlane32_swap_b32 v{r}, v{r+2}")
        a(f"v_permlane32_swap_b32 v{r+1}, v{r+3}")
        vm.op(f"buffer_store_dwordx4 v[{r}:{r+3}], v{14+qp}, {R(S_WS)}, 0 offen sc1", "ust")
    pstamp(a, 5)
    lds_arrive(8)
    a(f"s_lshl_b32 s{sT0}, s{sDT}, 1")
    a(f"s_and_b32 s{sT1}, s3, 1")
    a(f"s_add_u32 s{sT0}, s{sT0}, s{sT1}")
    a(f"s_mul_i32 s{sT0}, s{sT0}, 48")
    a(f"s_lshl_b32 s{sT1}, s{sFT}, 1")
    a(f"s_add_u32 s{sT0}, s{sT0}, s{sT1}")
    a(f"s_lshr_b32 s{sT1}, s3, 1")
    a(f"s_add_u32 s{sT0}, s{sT0}, s{sT1}")
    a(f"s_lshl_b32 s{sT0}, s{sT0}, {FS}")
    a(f"s_add_u32 s{sT0}, s{sT0}, {FU_OFF}")
    a(f"s_add_u32 s{sT4}, s{sT0}, s{sG1BIG}")
    TR2 = 100
    a("v_lshrrev_b32 v106, 4, v1", "g")
    a("v_and_b32 v107, 15, v1", "n")
    a(f"v_lshlrev_b32 v{TR2}, 10, v106")
    a("v_bfe_u32 v2, v1, 2, 2")
    a(f"v_lshl_add_u32 v{TR2}, v2, 7, v{TR2}")
    a("v_bfe_u32 v2, v1, 3, 2")
    a(f"v_lshl_add_u32 v{TR2}, v2, 5, v{TR2}")
    a("v_and_b32 v2, 3, v1")
    a(f"v_lshl_add_u32 v{TR2}, v2, 3, v{TR2}")
    a(f"v_add_u32 v{TR2}, s{sRING}, v{TR2}")
    for j in range(1, 4): a(f"v_xor_b32 v{TR2+j}, {32*j}, v{TR2}")
    a("v_min_u32 v2, 35, v1")
    a("v_mul_u32_u24 v3, 43, v2")
    a("v_lshrrev_b32 v3, 9, v3")
    a("v_mul_u32_u24 v104, 36, v3")
    a("v_add_u32 v104, v104, v2")
    a(f"s_mul_i32 s{sT3}, s{sDT2}, 80", "d0")
    a(f"s_lshr_b32 s{sT0}, s{sT3}, 5")
    a(f"s_mul_i32 s{sT0}, s{sT0}, 48")
    a(f"s_add_u32 s{sT0}, s{sT0}, s{sKB2}")
    a(f"s_lshl_b32 s{sT0}, s{sT0}, {FS}")
    a(f"s_add_u32 s{sT0}, s{sT0}, {FU_OFF}")
    a(f"v_lshl_add_u32 v104, v104, {FS}, s{sT0}")
    a("v_mul_u32_u24 v105, 10240, v106")
    a("v_lshl_add_u32 v105, v107, 4, v105")
    a(f"s_lshl_b32 s{sT0}, s{sT3}, 4")
    a(f"s_add_u32 s{sT0}, s{sT0}, {UBLK_OFF}")
    a(f"v_add_u32 v105, s{sT0}, v105")
    def w2_tr(i, tr):
        out = []
        for j in range(4):
            for h in range(2):
                r = 16 * (i % NR2) + 4 * j + 2 * h
                out.append(f"ds_read_b64_tr_b16 a[{r}:{r+1}], v{tr+j} offset:{w2_slot(i)*4096 + h*512}")
        return out
    if H3L:
        lds_wait("PK_XW2", 5, n=5)
        for k in range(3): emit(w2_tr(k, TR2))
        vm.wait("ust")
        flag_store(sT4)
        pstamp(a, 6)
        emit(w2_dma(3)); emit(w2_dma(4))
        a("s_waitcnt lgkmcnt(0)")
    else:
        vm.wait("w2_1")
        for k in range(2): emit(w2_tr(k, TR2))
        lds_wait("PK_XW2", 5)
        vm.wait("ust")
        flag_store(sT4)
        pstamp(a, 6)
        if not E("W2MID", 0): emit(w2_dma(2))
        emit(w2_dma(3)); emit(w2_dma(4))
        vm.wait("w2_2")
        emit(w2_tr(2, TR2))
    for i in range(3, 12):
        nx = i + 2
        if nx < 12:
            if nx >= 9: a("s_waitcnt lgkmcnt(0)")
            emit(w2_dma(nx))
        vm.wait(f"w2_{i}")
        if i < NR2: emit(w2_tr(i, TR2))
        if i == E("UPOLL_AT", 10):
            vm.op(f"buffer_load_dword v108, v104, {R(S_WS)}, 0 offen sc1", "upoll")
    for j in range(4): a(f"v_mov_b32 v{4+j}, v{TR2+j}")
    a("v_mul_u32_u24 v109, 26, v1")
    a("v_lshrrev_b32 v109, 8, v109", "L/10")
    a("v_mul_u32_u24 v110, 10, v109")
    a("v_sub_u32 v110, v1, v110", "L%10")
    a("v_min_u32 v109, 5, v109")
    a("v_mul_u32_u24 v109, 10240, v109")
    a("v_lshl_add_u32 v109, v110, 7, v109")
    a(f"s_and_b32 s{sT0}, s{sST}, 7")
    a(f"s_mul_i32 s{sT0}, s{sT0}, 6")
    a(f"s_mul_i32 s{sT1}, s3, 48")
    a(f"s_add_u32 s{sT0}, s{sT0}, s{sT1}")
    a(f"s_mul_i32 s{sT0}, s{sT0}, 10240")
    a(f"s_mul_i32 s{sT1}, s{sDT2}, 1280")
    a(f"s_add_u32 s{sT0}, s{sT0}, s{sT1}")
    a(f"s_add_u32 s{sT0}, s{sT0}, {UBLK_OFF}")
    a(f"v_add_u32 v109, s{sT0}, v109")
    a("v_mov_b32 v3, v105")
    pstamp(a, 7)
    spin("PK_SPIN_U", [(104, 108)], "upoll" if vm.count("upoll") is not None else "x")
    if E("GBAR2", 0): sbar("PK_GB2", 14, t=110)
    pstamp(a, 8)
    if E("G2STEPS", 0): pstamp(a, 1, True)
    ACC2 = 48
    UB = [("a", 100), ("v", 8), ("v", 28), ("a", 80)]; UD = 4
    def ureg(i, m):
        f, b = UB[i % UD]
        return f"{f}[{b+4*m}:{b+4*m+3}]"
    def u_adv(i): return pos2(i) + [f"s_mul_i32 s{sHOFF}, s{sT0}, 40960"]
    def uload(i, m):
        return (f"buffer_load_dwordx4 {ureg(i, m)}, v3, {R(S_WS)}, s{sHOFF} offen offset:{m*256} sc1", f"u{i}_{m}")
    UPRE = E("UPRE", UD)
    for i in range(UPRE):
        emit(u_adv(i))
        for m in range(5): emit([uload(i, m)])
        if i == 0 and E("TOUCH", 0):
            vm.op(f"buffer_load_dword a127, v109, {R(S_WS)}, 0 offen sc1", "touch")
    a("s_waitcnt lgkmcnt(0)")
    for i in range(12):
        nx = i + UPRE
        if E("G2STEPS", 0):
            MUTE[0] = True
            if i in (0, 1, 3, 5, 7, 9, 11): pstamp(a, 2 + (i + 1) // 2, True)
        if nx < 12: emit(u_adv(nx))
        side = w2_tr(NR2 - 1 + i, 4) if (i >= 1 and NR2 - 1 + i < 12) else []
        if NR2 <= i <= 8: a("s_waitcnt lgkmcnt(8)")
        if i == 9: a("s_waitcnt lgkmcnt(0)")
        if i == E("YGO", 7):
            a(f"v_mov_b32 v2, {CNT + 36}")
            a("s_mov_b64 exec, 1")
            a("ds_add_u32 v2, v2", "counter 9 += its own address")
            a("s_mov_b64 exec, -1")
        if i == 10:
            side = ["v_lshrrev_b32 v8, 4, v1", "v_and_b32 v9, 15, v1",
                    f"s_lshl_b32 s{sT0}, s{sST}, 6", f"s_lshl_b32 s{sT1}, s3, 4", f"s_add_u32 s{sT0}, s{sT0}, s{sT1}",
                    f"v_add_u32 v9, s{sT0}, v9", "v_mul_u32_u24 v10, 1280, v9", "v_lshl_add_u32 v10, v8, 3, v10",
                    f"s_mul_i32 s{sT0}, s{sDT2}, 160", f"v_add_u32 v10, s{sT0}, v10", "v_lshlrev_b32 v9, 1, v9",
                    (f"buffer_load_ushort v16, v9, {R(S_B2)}, 0 offen", "b2"),
                    f"v_lshl_add_u32 v11, v1, 4, s{sRING}",
                    f"s_mul_i32 s{sT0}, s3, 2560", f"s_add_u32 s{sT0}, s{sT0}, {PT_LDS}", f"v_lshl_add_u32 v15, v1, 3, s{sT0}",
                    f"s_mul_i32 s{sT0}, s3, 5120", f"v_lshl_add_u32 v12, v1, 4, s{sT0}", f"v_add_u32 v13, {2*RINGB}, v12"]
        TL2 = E("TL2", 2)
        if i > 12 - TL2: continue
        if i == 12 - TL2:
            assert nx >= 12
            emit(side)
            vm.wait("u11_4")
            pend = []
            for j in range(4):
                for ii in range(i, 12):
                    for m in range(5):
                        t = ACC2 + 4 * (5 * j + m); wr = 16 * (ii % NR2) + 4 * j
                        a(f"v_mfma_f32_16x16x32_bf16 v[{t}:{t+3}], {ureg(ii, m)}, a[{wr}:{wr+3}], v[{t}:{t+3}]")
                        for p in pend: p[0] += 1
                        if pend and pend[0][0] >= 9:
                            a(pend.pop(0)[1])
                            for p in pend: p[0] += 1
                        if ii == 11:
                            pend.append([0, f"ds_write_b128 v11, v[{t}:{t+3}] offset:{j*5120 + m*1024}"])
            while pend:
                if pend[0][0] < 9:
                    n = 9 - pend[0][0]
                    a(f"s_nop {n-1}")
                    for p in pend: p[0] += n
                a(pend.pop(0)[1])
                for p in pend: p[0] += 1
            continue
        k = 0; si = 0
        for m in range(5):
            vm.wait(f"u{i}_{m}")
            for j in range(4):
                t = ACC2 + 4 * (5 * j + m)
                wr = 16 * (i % NR2) + 4 * j
                c = "0" if i == 0 else f"v[{t}:{t+3}]"
                a(f"v_mfma_f32_16x16x32_bf16 v[{t}:{t+3}], {ureg(i, m)}, a[{wr}:{wr+3}], {c}")
                k += 1
                while si < (len(side) * k + 19) // 20:
                    emit([side[si]]); si += 1
            if nx < 12: emit([uload(nx, m)])
    pstamp(a, 9, True)
    MUTE[0] = False
    FIN2 = 28
    lds_arrive(11)
    vm.wait("b2")
    a("v_lshlrev_b32 v17, 16, v16")
    a("v_lshlrev_b32 v16, 16, v16")
    lds_wait("PK_GB3", 11)
    PT2 = 48; PR = 18; PF = 108
    for half in range(2):
        for o in range(2 * half, 2 * half + 2):
            for m in range(5):
                r = PT2 + 20 * o + 4 * m
                a(f"ds_read_b128 v[{r}:{r+3}], v{12+o//2} offset:{(o&1)*RINGB + m*1024}")
    for o in range(4):
        a(f"s_waitcnt lgkmcnt({min(10, 15-5*o)})")
        for i in range(0, 20, 2):
            src = "v[16:17]" if o == 0 else pk(FIN2 + i)
            a(f"v_pk_add_f32 {pk(FIN2+i)}, {src}, {pk(PT2+20*o+i)}")
    T2 = 48
    for i in range(0, 20, 2): a(f"v_cvt_pk_bf16_f32 v{T2+i//2}, v{FIN2+i}, v{FIN2+i+1}")
    for i in range(0, 20, 2):
        a(f"v_lshlrev_b32 v{FIN2+i}, 16, v{T2+i//2}")
        a(f"v_and_b32 v{FIN2+i+1}, 0xffff0000, v{T2+i//2}")
    a("s_barrier", "P tiles of the H waves")
    pstamp(a, 10)
    for m in range(5):
        a(f"ds_read_b64 v[{PR+2*m}:{PR+2*m+1}], v15 offset:{m*512}")
    a("s_waitcnt lgkmcnt(0)")
    for m in range(5):
        for h in range(2):
            i = 4 * m + 2 * h
            a(f"v_lshlrev_b32 v{PF+i}, 16, v{PR+i//2}")
            a(f"v_and_b32 v{PF+i+1}, 0xffff0000, v{PR+i//2}")
            a(f"v_pk_add_f32 {pk(FIN2+i)}, {pk(FIN2+i)}, {pk(PF+i)}")
            a(f"v_cvt_pk_bf16_f32 v{60+i//2}, v{FIN2+i}, v{FIN2+i+1}")
        a(f"buffer_store_dwordx2 v[{60+2*m}:{61+2*m}], v10, {R(S_OUT)}, 0 offen offset:{32*m} {os.environ.get('OUTF', '')}")
    a(f"s_or_b32 s{sT0}, s2, s3")
    a(f"s_cmp_lg_u32 s{sT0}, 0")
    a("s_cbranch_scc1 PK_NOEP")
    a(f"s_mov_b32 s{sT0}, {EPOCH_OFF}")
    flag_store(sT0)
    a.label("PK_NOEP")
    pstamp(a, 11)
    finish_stamps()
    a("s_endpgm")

    a.label("PK_H")
    MUTE[0] = False
    vm.reset()
    for r in range(2):
        for i in range(5): vm.q.append(f"x{r}{i}")
    a("s_cmp_ge_u32 s2, 160")
    a(f"s_cselect_b32 s{sKVBIG}, {BIG}, 0")
    if E("NOKV", 0): a(f"s_mov_b32 s{sKVBIG}, {BIG}")
    sTT, sCW = sDT, sFT
    a(f"s_mul_hi_u32 s{sTT}, s2, 0x33333334", "T")
    a(f"s_mul_i32 s{sCW}, s{sTT}, 5")
    a(f"s_sub_u32 s{sCW}, s2, s{sCW}", "cw")
    a(f"s_lshl_b32 s{sT0}, s{sTT}, 2")
    a(f"s_add_u32 s{sT0}, s{sT0}, s3")
    a(f"s_mul_i32 s{sT0}, s{sT0}, 20480")
    a(f"s_lshl_b32 s{sT1}, s{sCW}, 8")
    a(f"s_add_u32 s{sT0}, s{sT0}, s{sT1}")
    a(f"s_add_u32 s{sT0}, s{sT0}, s{sKVBIG}")
    VKV = 10
    a(f"v_add_u32 v{VKV+1}, s{sT0}, v3")
    a(f"v_subrev_u32 v{VKV}, 3840, v{VKV+1}")
    for i in range(1, 4): a(f"v_add_u32 v{VKV+1+i}, {5120*i}, v{VKV+1}")
    a(f"s_lshl_b32 s{sT1}, s{sCW}, 10")
    a(f"v_lshl_add_u32 v15, v1, 4, s{sT1}")
    XRAW = 16
    if E("W1ONLY", 0):
        if STAMP:
            a("s_mov_b32 s4, s30"); a("s_mov_b32 s5, s31")
        for i in range(1, 12): pstamp(a, i)
        finish_stamps()
        a("s_endpgm")
    srd(a, S_WS, 26, WS_USED)
    vm.op(f"buffer_load_dword v9, v8, {R(S_WS)}, 0 offen sc1", "ep")
    srd(a, S_K, 6, SD_BYTES)
    srd(a, S_V, 8, SD_BYTES)
    srd(a, S_SHK, 10, D * 8)
    srd(a, S_SSMK, 12, SD_BYTES)
    srd(a, S_SSMD, 14, D * 2)
    srd(a, S_W2, 20, S * F * 2)
    if STAMP:
        a("s_mov_b32 s4, s30"); a("s_mov_b32 s5, s31")
    def kv_loads():
        vm.op(f"buffer_load_dwordx4 a[36:39], v15, {R(S_SHK)}, 0 offen", "shk")
        for r in range(3):
            vm.op(f"buffer_load_dword a{r}, v{VKV}, {R(S_K)}, 0 offen offset:{r*1280} {NT}", "k")
        for r in range(16):
            vm.op(f"buffer_load_dword a{3+r}, v{VKV+1+r//4}, {R(S_K)}, 0 offen offset:{(r%4)*1280} {NT}", "k")
        for r in range(16):
            vm.op(f"buffer_load_dword a{19+r}, v{VKV+1+r//4}, {R(S_V)}, 0 offen offset:{(r%4)*1280} {NT}", "v")
    KV_EARLY = E("KV_EARLY", 0)
    if KV_EARLY: kv_loads()
    srd(a, S_B1, 18, F * 2)
    a(f"s_lshr_b32 s{sT0}, s2, 3")
    a(f"s_mul_hi_u32 s{sT0}, s{sT0}, 0x33333334")
    a(f"s_bfe_u32 s{sT1}, s2, 0x20001")
    a(f"s_mul_i32 s{sT1}, s{sT1}, 6")
    a(f"s_add_u32 s{sT0}, s{sT0}, s{sT1}")
    a(f"s_lshl_b32 s{sT0}, s{sT0}, 7")
    a("v_and_b32 v125, 124, v3")
    vm.op(f"buffer_load_dword v126, v125, {R(S_B1)}, s{sT0} offen", "b1")
    a(f"v_add_u32 v125, {PT_LDS}, v125")
    pstamp(a, 1)
    a(f"s_mul_i32 s{sT0}, s3, {2*HROW}")
    a(f"s_add_u32 s{sT0}, s{sT0}, {LNX}")
    a(f"v_add_u32 v4, s{sT0}, v3")
    a("v_lshrrev_b32 v5, 4, v1")
    a("v_lshlrev_b32 v5, 5, v5")
    a("v_and_b32 v2, 3, v1")
    a("v_lshl_add_u32 v5, v2, 3, v5")
    a("v_bfe_u32 v2, v1, 2, 2")
    a(f"v_mul_u32_u24 v2, {HROW}, v2")
    a("v_add_u32 v5, v5, v2")
    a(f"s_lshl_b32 s{sT0}, s3, 7")
    a(f"s_add_u32 s{sT0}, s{sT0}, {LNX}")
    a(f"v_add_u32 v5, s{sT0}, v5")
    a(f"s_mul_i32 s{sT0}, s2, 10240")
    a(f"s_lshl_b32 s{sT1}, s3, 10")
    a(f"s_add_u32 s{sT0}, s{sT0}, s{sT1}")
    if HBLK_OFF: a(f"s_add_u32 s{sT0}, s{sT0}, {HBLK_OFF}")
    a(f"v_lshl_add_u32 v6, v1, 4, s{sT0}")
    a("v_add_u32 v7, 4096, v6")
    a("s_cmp_ge_u32 s3, 2")
    a(f"s_cselect_b32 s{sT1}, {BIG}, 8192")
    a(f"v_add_u32 v8, s{sT1}, v6")
    a(f"s_lshl_b32 s{sT0}, s2, 2")
    a(f"s_add_u32 s{sT0}, s{sT0}, s3")
    a(f"s_lshl_b32 s{sT0}, s{sT0}, 4")
    a(f"s_add_u32 s{sT0}, s{sT0}, {STAT_OFF}")
    a(f"v_mov_b32 v90, s{sT0}")
    a(f"s_lshl_b32 s{sT0}, s3, 8")
    a(f"s_add_u32 s{sT0}, s{sT0}, s2")
    a(f"s_lshl_b32 s{sT0}, s{sT0}, {FS}")
    a(f"s_add_u32 s{sRING}, s{sT0}, {FH_OFF}", "h flag offset")
    X = [26, 36]; A = [46, 56]; SUM = [66, 70]; TMP = [74, 82]
    PIV = [28, 30]; SS = [(sT0, sT1), (sT2, sT3)]
    for r in range(2):
        for i in range(5):
            vm.wait(f"x{r}{i}")
            a(f"v_lshlrev_b32 v{X[r]+2*i}, 16, v{XRAW+5*r+i}")
            a(f"v_and_b32 v{X[r]+2*i+1}, 0xffff0000, v{XRAW+5*r+i}")
            if i == 0: a(f"v_readfirstlane_b32 s{PIV[r]}, v{X[r]}")
            if i == 2: a(f"s_mov_b32 s{PIV[r]+1}, s{PIV[r]}")
    pstamp(a, 2)
    def zip2(f):
        out = []
        for p, q in zip(f(0), f(1)): out += [p, q]
        return out
    def sums(src):
        def f(r):
            Sr = SUM[r]; B = src[r]
            l = [f"v_pk_mul_f32 {pk(Sr+2)}, {pk(B)}, {pk(B)}", f"v_pk_add_f32 {pk(Sr)}, {pk(B)}, {pk(B+2)}"]
            for i in range(1, 5):
                l.append(f"v_pk_fma_f32 {pk(Sr+2)}, {pk(B+2*i)}, {pk(B+2*i)}, {pk(Sr+2)}")
                if i >= 2: l.append(f"v_pk_add_f32 {pk(Sr)}, {pk(Sr)}, {pk(B+2*i)}")
            l += [f"v_add_f32 v{Sr}, v{Sr}, v{Sr+1}", f"v_add_f32 v{Sr+1}, v{Sr+2}, v{Sr+3}"]
            return l
        l = zip2(f)
        steps = ["row_shr:1 row_mask:0xf bank_mask:0xf bound_ctrl:0", "row_shr:2 row_mask:0xf bank_mask:0xf bound_ctrl:0",
                 "row_shr:4 row_mask:0xf bank_mask:0xf bound_ctrl:0", "row_shr:8 row_mask:0xf bank_mask:0xf bound_ctrl:0",
                 "row_bcast:15 row_mask:0xa bank_mask:0xf", "row_bcast:31 row_mask:0xc bank_mask:0xf"]
        regs = [SUM[0], SUM[1], SUM[0] + 1, SUM[1] + 1]
        for st in steps:
            for v in regs: l.append(f"v_add_f32_dpp v{v}, v{v}, v{v} {st}")
        l += [f"v_readlane_b32 s{SS[0][0]}, v{SUM[0]}, 63", f"v_readlane_b32 s{SS[1][0]}, v{SUM[1]}, 63",
              f"v_readlane_b32 s{SS[0][1]}, v{SUM[0]+1}, 63", f"v_readlane_b32 s{SS[1][1]}, v{SUM[1]+1}, 63"]
        return l
    def statsl(piv):
        inv = f32(1.0 / D)
        def f(r):
            t0, t1 = TMP[r] + 6, TMP[r] + 7; m = TMP[r]; rr = TMP[r] + 1
            l = [f"v_mul_f32 v{t0}, s{SS[r][0]}, v91", f"v_mul_f32 v{t1}, s{SS[r][1]}, v91",
                 f"v_fma_f32 v{t1}, -v{t0}, v{t0}, v{t1}", f"v_max_f32 v{t1}, 0, v{t1}"]
            if piv: l.append(f"v_add_f32 v{t0}, s{PIV[r]}, v{t0}")
            l += [f"v_cvt_pk_bf16_f32 v{t0}, v{t0}, v{t1}", f"v_lshlrev_b32 v{m}, 16, v{t0}",
                  f"v_and_b32 v{t1}, 0xffff0000, v{t0}", f"v_add_f32 v{t1}, {f32(1e-5)}, v{t1}",
                  f"v_cvt_pk_bf16_f32 v{t1}, v{t1}, v{t1}", f"v_lshlrev_b32 v{t1}, 16, v{t1}",
                  f"v_sqrt_f32 v{t1}, v{t1}", f"v_cvt_pk_bf16_f32 v{t1}, v{t1}, v{t1}",
                  f"v_lshlrev_b32 v{t1}, 16, v{t1}", f"v_rcp_f32 v{rr}, v{t1}",
                  f"v_mul_f32 v{TMP[r]+4}, v{m}, v{rr}", f"v_mov_b32 v{TMP[r]+2}, v{rr}",
                  f"v_mul_f32 v{TMP[r]+5}, v{m}, v{rr}", f"v_mov_b32 v{TMP[r]+3}, v{rr}"]
            return l
        return zip2(f)
    def norm(dst, src):
        return zip2(lambda r: [f"v_pk_fma_f32 {pk(dst[r]+2*i)}, {pk(src[r]+2*i)}, {pk(TMP[r]+2)}, {pk(TMP[r]+4)} neg_lo:[0,0,1] neg_hi:[0,0,1]" for i in range(5)])
    a(f"v_mov_b32 v91, {f32(1.0/D)}")
    emit(zip2(lambda r: [f"v_pk_add_f32 {pk(A[r]+2*i)}, {pk(X[r]+2*i)}, s[{PIV[r]}:{PIV[r]+1}] neg_lo:[0,1] neg_hi:[0,1]" for i in range(5)]))
    emit(sums(A)); emit(statsl(True))
    emit(["s_mov_b64 exec, 1",
          (f"buffer_store_dwordx2 {pk(TMP[0])}, v90, {R(S_WS)}, 0 offen sc1", "hst"),
          (f"buffer_store_dwordx2 {pk(TMP[1])}, v90, {R(S_WS)}, 0 offen offset:8 sc1", "hst"),
          "s_mov_b64 exec, -1"])
    emit(norm(A, X))
    emit(zip2(lambda r: [f"v_cvt_pk_bf16_f32 v{XRAW+5*r+i}, v{A[r]+2*i}, v{A[r]+2*i+1}" for i in range(5)]))
    emit(zip2(lambda r: sum([[f"v_lshlrev_b32 v{X[r]+2*i}, 16, v{XRAW+5*r+i}", f"v_and_b32 v{X[r]+2*i+1}, 0xffff0000, v{XRAW+5*r+i}"] for i in range(5)], [])))
    emit(sums(X)); emit(statsl(False)); emit(norm(A, X))
    emit(zip2(lambda r: sum([[f"v_cvt_pk_bf16_f32 v{XRAW+5*r+i}, v{A[r]+2*i}, v{A[r]+2*i+1}", f"ds_write_b32 v4, v{XRAW+5*r+i} offset:{r*HROW+i*256}"] for i in range(5)], [])))
    vm.wait("b1")
    a("ds_write_b32 v125, v126")
    read_epoch(9)
    sbar("PK_HB1", 1)
    HT = 26
    for t in range(3):
        a(f"ds_read_b64_tr_b16 v[{HT+4*t}:{HT+4*t+1}], v5 offset:{512*t}")
        a(f"ds_read_b64_tr_b16 v[{HT+4*t+2}:{HT+4*t+3}], v5 offset:{512*t+4*HROW}")
    for t in range(3):
        a(f"s_waitcnt lgkmcnt({4-2*t})")
        vm.op(f"buffer_store_dwordx4 v[{HT+4*t}:{HT+4*t+3}], v{6+t}, {R(S_WS)}, 0 offen sc1", "hst")
    pstamp(a, 3)
    a("v_and_b32 v2, 7, v1")
    a(f"s_lshl_b32 s{sT0}, s3, 1")
    a(f"v_xor_b32 v4, s{sT0}, v2")
    a("v_lshlrev_b32 v4, 4, v4")
    a("v_lshl_add_u32 v4, v1, 8, v4")
    a(f"v_add_u32 v4, {KVX}, v4")
    a("v_xor_b32 v5, 16, v4")
    a("v_lshrrev_b32 v8, 3, v1")
    a("v_lshrrev_b32 v6, 4, v1")
    a("v_xor_b32 v6, v6, v2")
    a("v_lshlrev_b32 v6, 4, v6")
    a("v_lshl_add_u32 v6, v8, 7, v6")
    a(f"s_lshl_b32 s{sT0}, s3, 12")
    a(f"s_add_u32 s{sT0}, s{sT0}, {KVX}")
    a(f"v_add_u32 v6, s{sT0}, v6")
    a("v_xor_b32 v7, 64, v6")
    a("v_lshlrev_b32 v8, 12, v8")
    a("v_lshl_add_u32 v8, v2, 4, v8")
    a(f"s_lshl_b32 s{sT0}, s{sCW}, 19")
    a(f"s_lshl_b32 s{sT1}, s3, 17")
    a(f"s_add_u32 s{sT0}, s{sT0}, s{sT1}")
    a(f"s_lshl_b32 s{sT1}, s{sTT}, 7")
    a(f"s_add_u32 s{sT0}, s{sT0}, s{sT1}")
    a(f"s_add_u32 s{sT0}, s{sT0}, {KVB_OFF}")
    a(f"s_add_u32 s{sT0}, s{sT0}, s{sKVBIG}")
    a(f"v_add_u32 v8, s{sT0}, v8")
    lds_wait("PK_EPW", 6)
    vm.wait("hst")
    flag_store(sRING)
    pstamp(a, 4)
    if E("KV_LATE", 0):
        a("s_setprio 0")
        lds_wait("PK_KVL", 12, n=4 * (CNT + 48), sleep=4)
        a("s_setprio 3")
    if not KV_EARLY: kv_loads()
    a("s_setprio 0")
    a(f"s_lshl_b32 s{sT0}, s{sCW}, 2")
    a(f"s_add_u32 s{sT0}, s{sT0}, s3")
    a(f"s_lshl_b32 s{sT0}, s{sT0}, 5")
    a(f"s_add_u32 s{sT0}, s{sT0}, s{sTT}")
    a(f"s_lshl_b32 s{sT0}, s{sT0}, {FS}")
    a(f"s_add_u32 s{sT0}, s{sT0}, {FKV_OFF}")
    a(f"s_add_u32 s{sRING}, s{sT0}, s{sKVBIG}", "kv flag offset")
    WP, KP, KS, KO = 16, 24, 62, 94
    vm.wait("k")
    for i in range(4): a(f"v_accvgpr_read_b32 v{110+i}, a{36+i}")
    for r in range(19): a(f"v_accvgpr_read_b32 v{KP+2*r+1}, a{r}")
    for t in range(4):
        for ch in range(2):
            src = 110 + 2 * ch + t // 2
            a(f"v_lshlrev_b32 v{WP+2*t+ch}, 16, v{src}" if t % 2 == 0 else f"v_and_b32 v{WP+2*t+ch}, 0xffff0000, v{src}")
    for r in range(19):
        a(f"v_lshlrev_b32 v{KP+2*r}, 16, v{KP+2*r+1}")
        a(f"v_and_b32 v{KP+2*r+1}, 0xffff0000, v{KP+2*r+1}")
    for r in range(16): a(f"v_pk_mul_f32 {pk(KS+2*r)}, {pk(KP+2*r)}, {pk(WP+6)}")
    for t in (2, 1, 0):
        for r in range(16):
            a(f"v_pk_fma_f32 {pk(KS+2*r)}, {pk(KP+2*(r+3-t))}, {pk(WP+2*t)}, {pk(KS+2*r)}")
    vm.wait("v")
    for r in range(16): a(f"v_accvgpr_read_b32 v{KP+2*r+1}, a{19+r}")
    for r in range(16):
        a(f"v_lshlrev_b32 v{KP+2*r}, 16, v{KP+2*r+1}")
        a(f"v_and_b32 v{KP+2*r+1}, 0xffff0000, v{KP+2*r+1}")
    for r in range(16): a(f"v_pk_mul_f32 {pk(KS+2*r)}, {pk(KS+2*r)}, {pk(KP+2*r)}")
    for c2 in range(2):
        for ch in range(2):
            for q in range(4):
                a(f"v_cvt_pk_bf16_f32 v{KO+8*c2+4*ch+q}, v{KS+2*(8*c2+7-2*q)+ch}, v{KS+2*(8*c2+6-2*q)+ch}")
            a(f"ds_write_b128 v{4+c2}, v[{KO+8*c2+4*ch}:{KO+8*c2+4*ch+3}] offset:{128*ch}")
    sbar("PK_HB2", 2)
    for i in range(4):
        a(f"ds_read_b128 v[{KO+4*i}:{KO+4*i+3}], v{6+(i&1)} offset:{1024*i}")
    a("s_setprio 3")
    for i in range(4):
        a(f"s_mov_b32 s{sT0}, {32768*i}")
        a(f"s_waitcnt lgkmcnt({3-i})")
        vm.op(f"buffer_store_dwordx4 v[{KO+4*i}:{KO+4*i+3}], v8, {R(S_WS)}, s{sT0} offen sc1", "kvst")
    lds_arrive(3)
    pstamp(a, 5)
    a("v_lshrrev_b32 v14, 4, v1", "g")
    a("v_and_b32 v15, 15, v1", "n")
    a(f"s_lshl_b32 s{sCH}, s2, 1")
    a(f"s_mul_i32 s{sT0}, s2, 3")
    a(f"s_sub_u32 s{sT0}, s{sT0}, 128")
    a("s_cmp_ge_u32 s2, 128")
    a(f"s_cselect_b32 s{sCH}, s{sT0}, s{sCH}")
    a(f"s_cselect_b32 s{sT0}, 3, 2")
    a(f"s_add_u32 s{sCH}, s{sCH}, s3")
    a(f"s_cmp_lt_u32 s3, s{sT0}")
    a(f"s_cselect_b32 s{sCH}, s{sCH}, {1 << 16}", "ch (65536 = none)")
    a(f"s_mul_i32 s{sCVB}, s3, {CONV_SZ}")
    a(f"s_add_u32 s{sCVB}, s{sCVB}, {AUX}")
    a(f"s_lshr_b32 s{sT0}, s{sCH}, 5")
    a(f"s_lshl_b32 s{sT0}, s{sT0}, {5+FS}")
    a(f"s_add_u32 s{sT0}, s{sT0}, {FKV_OFF}")
    a("v_and_b32 v29, 31, v1")
    a(f"v_lshl_add_u32 v29, v29, {FS}, s{sT0}", "kv poll address")
    a(f"s_lshl_b32 s{sT0}, s{sCH}, 12")
    a(f"v_lshl_add_u32 v31, v1, 4, s{sT0}")
    a("v_add_u32 v32, 2, v31")
    a(f"v_add_u32 v33, {KVB_OFF}, v31")
    a(f"v_mov_b32 v34, s{sT0}")
    a(f"s_lshl_b32 s{sT1}, s{sCH}, 1")
    a(f"v_mov_b32 v36, s{sT1}")
    VA, VB, VE, VS = 38, 42, 43, 44
    a("v_lshlrev_b32 v2, 5, v15")
    a(f"v_lshl_add_u32 v{VS}, v14, 3, v2")
    a(f"s_add_u32 s{sT0}, s{sT0}, {YA_OFF}")
    a(f"v_add_u32 v{VS}, s{sT0}, v{VS}")
    a("v_lshlrev_b32 v45, 4, v1")
    a(f"v_add_u32 v46, s{sCVB}, v45")
    a(f"v_add_u32 v2, {CV_K0-512}, v45")
    a(f"v_add_u32 v3, {CV_K1-544}, v45")
    a("v_cmp_lt_u32 vcc, 31, v1")
    a(f"v_lshl_add_u32 v{VA}, v14, 3, v15")
    a(f"v_lshlrev_b32 v{VA}, 1, v{VA}")
    a("v_cndmask_b32 v45, v45, v2, vcc")
    a("v_cmp_lt_u32 vcc, 33, v1")
    a("v_and_b32 v2, 1, v1")
    a(f"v_mul_u32_u24 v2, {CV_K1 - CV_K0 - 2}, v2")
    a("v_cndmask_b32 v45, v45, v3, vcc")
    a("v_cmp_lt_u32 vcc, 35, v1")
    a(f"v_sub_u32 v{VA}, v{VA}, v2")
    a(f"v_add_u32 v{VA}, {CV_K1}, v{VA}")
    a("v_cndmask_b32 v45, v45, 0, vcc")
    a(f"v_add_u32 v45, s{sCVB}, v45")
    a(f"v_add_u32 v{VA}, s{sCVB}, v{VA}")
    for p in range(1, 4): a(f"v_add_u32 v{VA+p}, {1024*p}, v{VA}")
    a("v_lshlrev_b32 v2, 1, v15")
    a("v_sub_u32 v2, v2, v14")
    a("v_lshlrev_b32 v2, 4, v2")
    a(f"v_add_u32 v2, {528-448}, v2")
    a(f"v_add_u32 v{VB}, s{sCVB}, v2")
    a("v_lshrrev_b32 v2, 1, v14")
    a("v_lshl_add_u32 v2, v15, 1, v2")
    a("v_lshlrev_b32 v2, 4, v2")
    a("v_and_b32 v3, 1, v14")
    a("v_lshlrev_b32 v3, 3, v3")
    a("v_sub_u32 v2, v2, v3")
    a("v_add_u32 v2, 520, v2")
    a(f"v_add_u32 v{VE}, s{sCVB}, v2")
    vm.wait("kvst")
    flag_store(sRING)
    a(f"s_cmp_ge_u32 s{sCH}, 640")
    a("s_cbranch_scc1 PK_NOCONV")
    lds_wait("PK_HB3", 3)
    if E("KERN_LATE", 0):
        a("s_setprio 0")
        lds_wait("PK_KW0", 10, n=4, sleep=4)
        a("s_setprio 3")
    vm.reset()
    a(f"s_add_u32 m0, s{sCVB}, {CV_K0+32}")
    a(f"buffer_load_ushort v35, v34, {R(S_SSMK)}, 0 offen")
    for q in range(4): a(f"buffer_load_dwordx4 v31, {R(S_SSMK)}, 0 offen offset:{q*1024} lds")
    a(f"s_add_u32 m0, s{sCVB}, {CV_K1+32}")
    a(f"buffer_load_ushort v37, v36, {R(S_SSMD)}, 0 offen")
    for q in range(4): a(f"buffer_load_dwordx4 v32, {R(S_SSMK)}, 0 offen offset:{q*1024} lds")
    a("s_setprio 0")
    lds_wait("PK_KW", 10, n=4, sleep=4)
    a("s_setprio 3")
    if not E("NOKV", 0): spin("PK_SPIN_KV", [(29, 30)], sleep=E("KVPOLL_SLEEP", 0))
    KVR = 48
    for q in range(4):
        vm.op(f"buffer_load_dwordx4 v[{KVR+4*q}:{KVR+4*q+3}], v33, {R(S_WS)}, 0 offen offset:{q*1024} sc1", "cfill")
    a("s_setprio 0")
    a("v_mov_b32 v96, 0"); a("v_mov_b32 v97, 0"); a("v_mov_b32 v98, 0")
    a("v_cmp_eq_u32 vcc, 35, v1")
    a("v_lshlrev_b32 v35, 16, v35")
    a("v_lshlrev_b32 v37, 16, v37", "D")
    a("v_cndmask_b32 v99, 0, v35, vcc")
    a("ds_write_b128 v45, v[96:99]")
    vm.wait("cfill")
    for q in range(4):
        a(f"ds_write_b128 v46, v[{KVR+4*q}:{KVR+4*q+3}] offset:{512+1024*q}")
    a("s_waitcnt lgkmcnt(0)")
    CACC = 64; BUF = [(0, 32), (64, 96)]
    def frag_loads(buf, rr):
        A_, B_ = BUF[buf]
        out = []
        for t in range(8):
            o = (t & 1) * 128 + rr * 16
            out.append(f"ds_read_b128 a[{B_+4*t}:{B_+4*t+3}], v{VB} offset:{512*t + 64*(1-rr)}")
            out.append(f"ds_read2_b32 a[{A_+4*t}:{A_+4*t+1}], v{VA + t//2} offset0:{o} offset1:{o+1}")
            out.append(f"ds_read2_b32 a[{A_+4*t+2}:{A_+4*t+3}], v{VA + t//2} offset0:{o+2} offset1:{o+3}")
        return out
    for i in range(32): a(f"v_mov_b32 v{CACC+i}, 0")
    a(f"v_add_u32 v{VB}, {448-64}, v{VB}", "64 below the r-even address")
    emit(frag_loads(0, 0))
    pstamp(a, 6)
    lds_wait("PK_CW", 8, n=E("CONV_WAIT_N", 4), sleep=2)
    a(f"s_setprio {E('CONV_PRIO', 3)}")
    pstamp(a, 7)
    a(f"s_mov_b32 s{sT0}, 0")
    a.label("PK_CV_LOOP")
    for half in range(2):
        a("s_waitcnt lgkmcnt(0)")
        if half == 0: side = frag_loads(1, 1)
        else:
            for p in range(4): a(f"v_add_u32 v{VA+p}, 128, v{VA+p}")
            a(f"v_subrev_u32 v{VB}, 128, v{VB}")
            side = frag_loads(0, 0)
        A_, B_ = BUF[half]
        i = 0
        for c in range(8):
            for t in range(c + 1):
                u = c - t
                a(f"v_mfma_f32_16x16x32_bf16 v[{CACC+4*c}:{CACC+4*c+3}], a[{A_+4*t}:{A_+4*t+3}], a[{B_+4*u}:{B_+4*u+3}], v[{CACC+4*c}:{CACC+4*c+3}]")
                if i < len(side): a(side[i])
                i += 1
    a(f"s_add_u32 s{sT0}, s{sT0}, 1")
    a(f"s_cmp_lt_u32 s{sT0}, 4")
    a("s_cbranch_scc1 PK_CV_LOOP")
    a("s_setprio 3")
    for c in range(8): a(f"ds_read_b64 v[{100+2*c}:{101+2*c}], v{VE} offset:{512*c}")
    a("s_waitcnt lgkmcnt(0)")
    TT = 116
    for c in range(8):
        d0, d1 = 100 + 2 * c, 101 + 2 * c
        emit([f"v_and_b32 v{TT}, 0xffff0000, v{d1}", f"v_lshlrev_b32 v{TT+1}, 16, v{d1}",
              f"v_and_b32 v{TT+2}, 0xffff0000, v{d0}", f"v_lshlrev_b32 v{TT+3}, 16, v{d0}"])
        for i in range(4): a(f"v_fmac_f32 v{CACC+4*c+i}, v{TT+i}, v37")
        a(f"v_cvt_pk_bf16_f32 v{d0}, v{CACC+4*c}, v{CACC+4*c+1}")
        a(f"v_cvt_pk_bf16_f32 v{d1}, v{CACC+4*c+2}, v{CACC+4*c+3}")
        a(f"buffer_store_dwordx2 v[{d0}:{d1}], v{VS}, {R(S_WS)}, 0 offen offset:{512*c} sc1")
    pstamp(a, 8)
    a(f"s_lshl_b32 s{sT0}, s{sCH}, {FS}")
    a(f"s_add_u32 s{sT0}, s{sT0}, {FY_OFF}")
    a("s_waitcnt vmcnt(0)")
    flag_store(sT0)
    a("s_branch PK_PCOMP")
    a.label("PK_NOCONV")
    if E("H3L", 1):
        a("s_cmp_lg_u32 s3, 3")
        a("s_cbranch_scc1 PK_NOLOAD")
        emit(["v_lshrrev_b32 v2, 3, v1", "v_lshlrev_b32 v4, 12, v2", "v_bfe_u32 v2, v1, 4, 1", "v_lshlrev_b32 v2, 1, v2",
              "v_and_b32 v3, 7, v1", "v_xor_b32 v2, v2, v3", "v_lshl_add_u32 v4, v2, 4, v4", f"s_lshl_b32 s{sT0}, s{sST}, 7",
              f"v_add_u32 v4, s{sT0}, v4", "v_xor_b32 v2, 64, v4", f"v_add_u32 v5, {1*(32768-1024)}, v2",
              f"v_add_u32 v6, {2*(32768-1024)}, v4", f"v_add_u32 v7, {3*(32768-1024)}, v2",
              f"s_and_b32 s{sT2}, s{sDT2}, 3", f"s_mul_i32 s{sT2}, s{sT2}, {3 << 17}"])
        a("s_setprio 0")
        lds_wait("PK_LW", 10, n=4, sleep=4)
        a(f"s_setprio {E('H3PRIO', 1)}")
        for k in range(3):
            for w in range(4):
                a(f"s_mov_b32 m0, {w*RINGB + k*4096}")
                a(f"s_add_u32 s{sT3}, s{sT2}, {(12*w + k) << 17}")
                for q in range(4):
                    a(f"buffer_load_dwordx4 v{4+q}, {R(S_W2)}, s{sT3} offen offset:{q*1024} lds")
        a("s_waitcnt vmcnt(0)")
        lds_arrive(5)
        a.label("PK_NOLOAD")
    a("s_setprio 0")
    lds_wait("PK_NCW", 8, n=4, sleep=16)
    a("s_setprio 3")
    a.label("PK_PCOMP")
    vm.reset()
    a(f"s_mul_i32 s{sT3}, s{sDT2}, 80", "d0")
    a(f"s_lshl_b32 s{sT0}, s{sST}, 6")
    a(f"s_lshl_b32 s{sT1}, s3, 4")
    a(f"s_add_u32 s{sT0}, s{sT0}, s{sT1}")
    a(f"v_add_u32 v4, s{sT0}, v15", "s")
    a("v_mul_u32_u24 v5, 1280, v4")
    a("v_lshl_add_u32 v5, v14, 3, v5")
    a(f"s_lshl_b32 s{sT0}, s{sT3}, 1")
    a(f"v_add_u32 v5, s{sT0}, v5", "x offset")
    XR = 16
    for m in range(5):
        a(f"buffer_load_dwordx2 v[{XR+2*m}:{XR+2*m+1}], v5, {R(S_X)}, 0 offen offset:{32*m}")
    a("v_lshlrev_b32 v6, 3, v4")
    a(f"v_add_u32 v6, {STAT_OFF}, v6")
    a(f"s_lshl_b32 s{sT0}, s{sT3}, {FS}")
    a(f"s_add_u32 s{sT0}, s{sT0}, {FY_OFF}")
    a(f"v_lshl_add_u32 v7, v1, {FS}, s{sT0}")
    a(f"v_add_u32 v8, {64 << FS}, v7")
    a("v_bfe_u32 v2, v4, 1, 2")
    a("v_lshlrev_b32 v2, 8, v2")
    a("v_lshrrev_b32 v3, 3, v4")
    a("v_add_u32 v2, v2, v3")
    a("v_cmp_lt_u32 vcc, 15, v1")
    a(f"v_lshlrev_b32 v2, {FS}, v2")
    a(f"v_add_u32 v2, {FH_OFF}, v2")
    a("v_cndmask_b32 v8, v8, v2, vcc")
    a("v_lshrrev_b32 v9, 1, v1")
    a("v_lshlrev_b32 v9, 12, v9")
    a("v_and_b32 v2, 1, v1")
    a("v_lshl_add_u32 v9, v2, 4, v9")
    a(f"s_lshl_b32 s{sT0}, s{sT3}, 12")
    a(f"s_lshl_b32 s{sT1}, s{sST}, 7")
    a(f"s_add_u32 s{sT0}, s{sT0}, s{sT1}")
    a(f"s_lshl_b32 s{sT1}, s3, 5")
    a(f"s_add_u32 s{sT0}, s{sT0}, s{sT1}")
    a(f"s_add_u32 s{sT0}, s{sT0}, {YA_OFF}")
    a(f"v_add_u32 v9, s{sT0}, v9")
    a("v_cmp_lt_u32 vcc, 31, v1")
    a("v_add_u32 v10, 0x20000, v9")
    a("v_add_u32 v11, 0x40000, v9")
    a(f"v_mov_b32 v2, {BIG}")
    a("v_cndmask_b32 v11, v11, v2, vcc")
    a(f"s_mul_i32 s{sT0}, s3, 2560")
    a(f"s_add_u32 s{sT0}, s{sT0}, {PT_LDS}")
    a(f"v_lshl_add_u32 v12, v1, 4, s{sT0}")
    a(f"v_lshl_add_u32 v13, v1, 3, s{sT0}")
    a("s_setprio 0")
    lds_wait("PK_YW", 9, n=4 * (CNT + 36), sleep=4)
    a("s_setprio 3")
    spin("PK_SPIN_Y", [(7, 26), (8, 27)], sleep=E("YPOLL_SLEEP", 0))
    pstamp(a, 9)
    YL, ST_, XF, XN, T2, YR, YF = 28, 40, 44, 64, 84, 94, 104
    for t in range(3):
        vm.op(f"buffer_load_dwordx4 v[{YL+4*t}:{YL+4*t+3}], v{9+t}, {R(S_WS)}, 0 offen sc1", "ya")
    vm.op(f"buffer_load_dwordx2 v[{ST_}:{ST_+1}], v6, {R(S_WS)}, 0 offen sc1", "st")
    for i in range(10):
        a(f"v_lshlrev_b32 v{XF+2*i}, 16, v{XR+i}")
        a(f"v_and_b32 v{XF+2*i+1}, 0xffff0000, v{XR+i}")
    vm.wait("ya")
    a(f"ds_write_b128 v12, v[{YL}:{YL+3}]")
    a(f"ds_write_b128 v12, v[{YL+4}:{YL+7}] offset:1024")
    a("s_mov_b32 exec_hi, 0")
    a(f"ds_write_b128 v12, v[{YL+8}:{YL+11}] offset:2048")
    a("s_mov_b64 exec, -1")
    vm.wait("st", "lgkmcnt(0)")
    for m in range(5):
        a(f"ds_read_b64_tr_b16 v[{YR+2*m}:{YR+2*m+1}], v13 offset:{m*512}")
    a(f"v_mul_f32 v42, v{ST_}, v{ST_+1}")
    a(f"v_mul_f32 v43, v{ST_}, v{ST_+1}")
    a(f"v_mov_b32 v{ST_}, v{ST_+1}")
    for i in range(0, 20, 2):
        a(f"v_pk_fma_f32 {pk(XN+i)}, {pk(XF+i)}, {pk(ST_)}, v[42:43] neg_lo:[0,0,1] neg_hi:[0,0,1]")
    for i in range(0, 20, 2): a(f"v_cvt_pk_bf16_f32 v{T2+i//2}, v{XN+i}, v{XN+i+1}")
    for i in range(0, 20, 2):
        a(f"v_lshlrev_b32 v{XN+i}, 16, v{T2+i//2}")
        a(f"v_and_b32 v{XN+i+1}, 0xffff0000, v{T2+i//2}")
    a("s_waitcnt lgkmcnt(0)")
    for i in range(10):
        a(f"v_lshlrev_b32 v{YF+2*i}, 16, v{YR+i}")
        a(f"v_and_b32 v{YF+2*i+1}, 0xffff0000, v{YR+i}")
    for i in range(0, 20, 2): a(f"v_pk_fma_f32 {pk(XN+i)}, {pk(XN+i)}, {pk(YF+i)}, {pk(XF+i)}")
    for m in range(5):
        a(f"v_cvt_pk_bf16_f32 v{T2+2*m}, v{XN+4*m}, v{XN+4*m+1}")
        a(f"v_cvt_pk_bf16_f32 v{T2+2*m+1}, v{XN+4*m+2}, v{XN+4*m+3}")
        a(f"ds_write_b64 v13, v[{T2+2*m}:{T2+2*m+1}] offset:{m*512}")
    pstamp(a, 10)
    a("s_waitcnt lgkmcnt(0)")
    a("s_barrier")
    pstamp(a, 11)
    finish_stamps()
    a.label("PK_END")
    a("s_endpgm")
    return a

def build():
    ref = open(f"cdna_kernels/{NAME}.s.ref").read().splitlines()
    head = []
    for l in ref:
        if l.startswith("; Override"): break
        head.append(l)
    body = gen()
    out = "\n".join(head) + "\n"
    out += f"; @launch grid=({GRID},1,1) block=({BLOCK},1,1) lds={LDS_BYTES}\n"
    out += '.amdgcn_target "amdgcn-amd-amdhsa--gfx950"\n.text\n'
    out += body.text()
    out += '.section .rodata,"a"\n' + kernel_desc(NAME + "_kernel", 256, 102, 128)
    return out
if __name__ == "__main__":
    import sys
    out = sys.argv[1] if len(sys.argv) > 1 else f"cdna_kernels/{NAME}.s"
    open(out, "w").write(build())
    print("wrote", out)
```

```python
import os, math
from asmlib import *
from layout import *

NAME = "parallel_sum__ssm_conv_h3__mixer_token_mlp__prompt"
GRID, BLOCK, LDS_BYTES = 256, 512, 163840
NT = os.environ.get("NT", "")
BIG = 0x40000000
SPIN_MAX = 20000
E = lambda k, d: int(os.environ.get(k, d))

S_X, S_K, S_V, S_SHK, S_SSMK, S_SSMD, S_W1, S_B1, S_W2, S_B2, S_OUT, S_WS = [32 + 4 * i for i in range(12)]
def R(b): return f"s[{b}:{b+3}]"
sEP, sDT, sFT, sDT2, sST, sRING, sPOS, sWOFF, sHOFF, sKB = range(80, 90)
sT0, sT1, sT2, sT3, sCH, sCVB, sG1BIG, sKVBIG, sC1, sSPIN, sROT, sT4 = range(90, 102)
sROT2, sKB2 = sCH, sCVB

FS = E("FS", 4)
NSLOT = 7
NR1 = E("NR1", 7)
NR2 = 5
RINGB = NSLOT * 4096
AUX = 4 * RINGB
LNX = AUX
HROW = 1344
KVX = LNX + 8 * HROW
CV_K0, CV_K1, CONV_SZ = 4608, 8768, 12928
PT_LDS = AUX + 3 * CONV_SZ
CNT = PT_LDS + 4 * 2560
assert KVX + 16384 <= PT_LDS and CNT + 64 <= LDS_BYTES and KVX % 128 == 0

class VM:
    def __init__(self, a): self.a = a; self.q = []
    def op(self, ins, tag): self.a(ins); self.q.append(tag)
    def count(self, tag):
        idx = [i for i, t in enumerate(self.q) if t == tag]
        return len(self.q) - 1 - idx[-1] if idx else None
    def wait(self, tag, extra=""):
        n = self.count(tag)
        if n is None:
            if extra: self.a(f"s_waitcnt {extra}")
            return
        self.a(f"s_waitcnt vmcnt({min(n, 63)}) {extra}")
        self.q = self.q[len(self.q) - n:] if n else []
    def reset(self): self.q = []

TIMER = "s_memtime" if os.environ.get("CYC") else "s_memrealtime"
MUTE = [False]
def pstamp(a, i, force=False):
    if STAMP and (force or not MUTE[0]): a(f"{TIMER} s[{4+2*i}:{5+2*i}]")
def pk(r): return f"v[{r}:{r+1}]"

def gen():
    a = Asm()
    vm = VM(a)
    def emit(items):
        for it in items:
            if isinstance(it, list): emit(it)
            elif isinstance(it, tuple): vm.op(it[0], it[1])
            else: a(it)
    def flag_store(soff, tmp=2):
        a(f"v_mov_b32 v{tmp}, s{sEP}")
        a(f"v_mov_b32 v{tmp+1}, s{soff}")
        a("s_mov_b64 exec, 1")
        vm.op(f"buffer_store_dword v{tmp}, v{tmp+1}, {R(S_WS)}, 0 offen sc1", "flag")
        a("s_mov_b64 exec, -1")
    def spin(label, pairs, first_tag=None, sleep=0):
        def check():
            a(f"v_cmp_ne_u32 vcc, s{sEP}, v{pairs[0][1]}")
            for _, d in pairs[1:]:
                a(f"v_cmp_ne_u32 s[28:29], s{sEP}, v{d}")
                a("s_or_b64 vcc, vcc, s[28:29]")
        if first_tag:
            vm.wait(first_tag)
            check()
            a(f"s_cbranch_vccz {label}_OK")
        a(f"s_mov_b32 s{sSPIN}, 0")
        a.label(label)
        if sleep: a(f"s_sleep {sleep}", "poll back-off")
        for ad, d in pairs:
            a(f"buffer_load_dword v{d}, v{ad}, {R(S_WS)}, 0 offen sc1")
        a(f"s_add_u32 s{sSPIN}, s{sSPIN}, 1")
        a("s_waitcnt vmcnt(0)")
        check()
        a(f"s_cmp_gt_u32 s{sSPIN}, {SPIN_MAX}")
        a(f"s_cbranch_scc1 {label}_OK")
        a(f"s_cbranch_vccnz {label}")
        a.label(label + "_OK")
        if not first_tag: vm.reset()
    def lds_arrive(idx, t=2):
        a(f"v_mov_b32 v{t}, {CNT + 4*idx}")
        a(f"v_mov_b32 v{t+1}, 1")
        a("s_waitcnt lgkmcnt(0)")
        a("s_mov_b64 exec, 1")
        a(f"ds_add_u32 v{t}, v{t+1}")
        a("s_mov_b64 exec, -1")
    def lds_wait(label, idx, n=4, t=2, sleep=0):
        a(f"v_mov_b32 v{t}, {CNT + 4*idx}")
        a(f"s_mov_b32 s{sSPIN}, 0")
        a.label(label)
        if sleep: a(f"s_sleep {sleep}", "poll back-off")
        a(f"ds_read_b32 v{t+1}, v{t}")
        a(f"s_add_u32 s{sSPIN}, s{sSPIN}, 1")
        a(f"s_cmp_gt_u32 s{sSPIN}, {1 << 21}")
        a("s_waitcnt lgkmcnt(0)")
        a(f"v_cmp_gt_u32 vcc, {n}, v{t+1}")
        a(f"s_cbranch_scc1 {label}_OK")
        a(f"s_cbranch_vccnz {label}")
        a.label(label + "_OK")
    def sbar(label, idx, t=2):
        lds_arrive(idx, t); lds_wait(label, idx, 4, t)
    def read_epoch(vdata):
        vm.wait("ep")
        a(f"v_readfirstlane_b32 s{sEP}, v{vdata}")
        a("s_nop 3")
        a(f"s_mul_i32 s{sEP}, s{sEP}, 1664525")
        a(f"s_add_u32 s{sEP}, s{sEP}, 1013904223")
    def finish_stamps(role='X'):
        if not STAMP: return
        a("s_waitcnt vmcnt(0)")
        a(f"{TIMER} s[28:29]")
        a("s_waitcnt lgkmcnt(0)")
        if os.environ.get("AMP") and role == os.environ.get("AMPROLE", "G"):
            a("s_load_dwordx2 s[30:31], s[0:1], 96")
            a("s_waitcnt lgkmcnt(0)")
            srd(a, S_K, 30, 256)
            a("s_cmp_lg_u32 s3, 0")
            a(f"s_cbranch_scc1 AMPSKIP{role}")
            a("v_mov_b32 v1, 0")
            a("s_mov_b64 exec, 1")
            a(f"v_mov_b32 v2, s{4+2*int(os.environ['AMPIDX'])}")
            a(f"buffer_atomic_umax v2, v1, {R(S_K)}, 0 offen")
            a("s_not_b32 s4, s4")
            a("v_mov_b32 v2, s4")
            a(f"buffer_atomic_umax v2, v1, {R(S_K)}, 0 offen offset:128")
            a("s_not_b32 s4, s4")
            a("s_mov_b64 exec, -1")
            a.label(f"AMPSKIP{role}")
        a("s_load_dwordx2 s[30:31], s[0:1], 104")
        a("s_waitcnt lgkmcnt(0)")
        srd(a, S_X, 30, 1 << 20, 16 << 20)
        a(f"s_lshl_b32 s{sT0}, s2, 9")
        a("v_lshrrev_b32 v1, 6, v0")
        a(f"v_lshl_add_u32 v1, v1, 6, s{sT0}")
        a("s_mov_b64 exec, 1")
        for i in range(13):
            a(f"v_mov_b32 v2, s{4+2*i}")
            a(f"buffer_store_dword v2, v1, {R(S_X)}, 0 offen offset:{4*i}")

    kernel_begin(a, NAME + "_kernel")
    a(f"s_cmp_ge_u32 s2, {GRID}")
    a("s_cbranch_scc1 PK_END")
    a("s_load_dwordx8 s[4:11], s[0:1], 0", "x k v shift_k")
    a("s_load_dwordx2 s[26:27], s[0:1], 104", "ws")
    a("s_load_dwordx8 s[16:23], s[0:1], 56", "w1 b1 w2 b2")
    a("s_load_dwordx4 s[12:15], s[0:1], 32", "ssm_k ssm_D")
    a("s_load_dwordx2 s[24:25], s[0:1], 88", "out")
    if STAMP: a(f"{TIMER} s[30:31]")
    a("v_lshrrev_b32 v2, 6, v0")
    a("v_and_b32 v1, 63, v0", "lane")
    a(f"v_readfirstlane_b32 s{sT4}, v2", "wave 0..7")
    a("v_lshlrev_b32 v3, 2, v1", "lane*4")
    a(f"v_and_b32 v4, 60, v3")
    a(f"v_add_u32 v4, {CNT}, v4")
    a("v_mov_b32 v5, 0")
    a("ds_write_b32 v4, v5", "zero the 16 lds counters")
    a(f"s_and_b32 s3, s{sT4}, 3", "w within the role")
    a(f"s_and_b32 s{sT0}, s2, 7", "x")
    a(f"s_lshr_b32 s{sT1}, s2, 3", "j")
    a(f"s_and_b32 s{sT2}, s{sT0}, 1")
    a(f"s_lshl_b32 s{sDT2}, s{sT2}, 2")
    a(f"s_and_b32 s{sT3}, s{sT1}, 3")
    a(f"s_add_u32 s{sDT2}, s{sDT2}, s{sT3}", "dt2")
    a(f"s_lshr_b32 s{sT0}, s{sT0}, 1")
    a(f"s_lshl_b32 s{sST}, s{sT0}, 3")
    a(f"s_lshr_b32 s{sT3}, s{sT1}, 2")
    a(f"s_add_u32 s{sST}, s{sST}, s{sT3}", "st")
    a(f"v_mov_b32 v8, {EPOCH_OFF}")
    a(f"s_cmp_lt_u32 s{sT4}, 4")
    a("s_cbranch_scc1 PK_G")
    a("s_setprio 3")
    a(f"s_lshl_b32 s{sT0}, s2, 2")
    a(f"s_add_u32 s{sT0}, s{sT0}, s3")
    a(f"s_mul_i32 s{sT4}, s{sT0}, 2560", "x soffset")
    a("s_waitcnt lgkmcnt(0)")
    srd(a, S_X, 4, SD_BYTES)
    for r in range(2):
        for i in range(5):
            a(f"buffer_load_dword v{16+5*r+i}, v3, {R(S_X)}, s{sT4} offen offset:{r*1280+i*256} {NT}")
    a("s_barrier", "lds counters zeroed")
    a("s_branch PK_H")
    a.label("PK_G")
    a("s_getpc_b64 s[28:29]")
    a.label("PK_PC")
    a(f"s_sub_u32 s28, s28, PK_PC-{NAME}_kernel")
    a("s_subb_u32 s29, s29, 0")
    a("v_and_b32 v9, 7, v0")
    a(f"s_andn2_b32 s{sT3}, s2, 7")
    a(f"v_add_lshl_u32 v9, v9, s{sT3}, 7")
    a(f"v_min_u32 v9, PK_END-{NAME}_kernel, v9")
    a("global_load_dword v127, v9, s[28:29]")

    a("s_setprio 1")
    a(f"s_mul_hi_u32 s{sFT}, s{sT1}, 0x33333334", "j/5")
    a(f"s_mul_i32 s{sT3}, s{sFT}, 5")
    a(f"s_sub_u32 s{sDT}, s{sT1}, s{sT3}", "j%5")
    a(f"s_mul_i32 s{sROT}, s{sDT}, 13")
    a(f"s_lshr_b32 s{sROT}, s{sROT}, 2", "rot = 3.25*dt_local")
    if not E("ROT", 1): a(f"s_mov_b32 s{sROT}, 0")
    if E("ROT", 1) == 2:
        a(f"s_add_u32 s{sROT}, s{sDT}, s{sFT}")
        a(f"s_sub_u32 s{sT3}, s{sROT}, 6")
        a(f"s_min_u32 s{sROT}, s{sROT}, s{sT3}")
        a(f"s_mul_i32 s{sROT}, s{sROT}, 11")
        a(f"s_lshr_b32 s{sROT}, s{sROT}, 2", "2.75 * index")
    a(f"s_mul_i32 s{sT3}, s{sT2}, 5")
    a(f"s_add_u32 s{sDT}, s{sDT}, s{sT3}", "dt")
    a(f"s_mul_i32 s{sT3}, s{sT0}, 6")
    a(f"s_add_u32 s{sFT}, s{sFT}, s{sT3}", "ft")
    a(f"s_cmp_ge_u32 s{sT1}, 30")
    a(f"s_cselect_b32 s{sG1BIG}, {BIG}, 0")
    a(f"s_mul_i32 s{sRING}, s3, {RINGB}")
    a(f"s_lshl_b32 s{sKB}, s3, 4")
    a(f"s_mov_b32 s{sPOS}, s{sROT}")
    a("v_lshrrev_b32 v2, 3, v1")
    a("v_mul_u32_u24 v4, 3072, v2")
    a("v_bfe_u32 v2, v1, 4, 1")
    a("v_lshlrev_b32 v2, 2, v2")
    a("v_and_b32 v3, 7, v1")
    a("v_xor_b32 v2, v2, v3")
    a("v_lshl_add_u32 v4, v2, 4, v4")
    a(f"s_lshl_b32 s{sT1}, s{sFT}, 7")
    a(f"s_add_u32 s{sT1}, s{sT1}, s{sG1BIG}")
    a(f"v_add_u32 v4, s{sT1}, v4")
    for q in range(1, 4):
        a(f"v_add_u32 v{4+q}, {q*(24576-1024)}, v4")
    a("s_waitcnt lgkmcnt(0)")
    srd(a, S_W1, 16, S * F * 2)
    a("s_barrier", "lds counters zeroed")
    def w1_stage(i):
        items = [f"s_add_u32 s{sWOFF}, s{sKB}, s{sPOS}", f"s_mul_i32 s{sWOFF}, s{sWOFF}, 98304",
                 f"s_add_u32 m0, s{sRING}, {(i % NSLOT)*4096}", f"s_add_u32 s{sPOS}, s{sPOS}, 1", f"s_and_b32 s{sPOS}, s{sPOS}, 15"]
        for q in range(4):
            items.append((f"buffer_load_dwordx4 v{4+q}, {R(S_W1)}, s{sWOFF} offen offset:{q*1024} lds", f"w1_{i}"))
        return items
    def w1_tr(i):
        out = []
        for kh in range(2):
            for mt in range(2):
                for h in range(2):
                    r = 16 * (i % NR1) + 4 * (2 * kh + mt) + 2 * h
                    out.append(f"ds_read_b64_tr_b16 a[{r}:{r+1}], v{10+mt} offset:{(i % NSLOT)*4096 + kh*2048 + h*512}")
        return out
    WD = E("WD", 2)
    for i in range(WD): emit(w1_stage(i))
    srd(a, S_WS, 26, WS_USED)
    vm.op(f"buffer_load_dword v9, v8, {R(S_WS)}, 0 offen sc1", "ep")
    srd(a, S_W2, 20, S * F * 2)
    srd(a, S_B2, 22, S * 2)
    srd(a, S_OUT, 24, SD_BYTES)
    if STAMP:
        a("s_mov_b32 s4, s30"); a("s_mov_b32 s5, s31")
    pstamp(a, 1)
    a("v_lshrrev_b32 v2, 5, v1")
    a("v_lshlrev_b32 v10, 10, v2")
    a("v_mul_u32_u24 v12, 10240, v2")
    a("v_bfe_u32 v2, v1, 2, 2")
    a("v_lshl_add_u32 v10, v2, 7, v10")
    a("v_bfe_u32 v2, v1, 3, 1")
    a("v_lshl_add_u32 v10, v2, 6, v10")
    a("v_bfe_u32 v2, v1, 4, 1")
    a("v_lshl_add_u32 v10, v2, 5, v10")
    a("v_and_b32 v2, 3, v1")
    a("v_lshl_add_u32 v10, v2, 3, v10")
    a(f"v_add_u32 v10, s{sRING}, v10")
    a("v_xor_b32 v11, 64, v10")
    a("v_and_b32 v2, 31, v1")
    a("v_lshl_add_u32 v12, v2, 4, v12")
    a(f"s_lshl_b32 s{sT0}, s{sDT}, 10")
    a(f"s_add_u32 s{sT0}, s{sT0}, s{sG1BIG}")
    if HBLK_OFF: a(f"s_add_u32 s{sT0}, s{sT0}, {HBLK_OFF}")
    a(f"v_add_u32 v12, s{sT0}, v12")
    a("v_add_u32 v13, 20480, v12")
    a(f"s_and_b32 s{sT0}, s{sDT}, 3")
    a(f"s_lshl_b32 s{sT0}, s{sT0}, {8+FS}")
    a(f"s_add_u32 s{sT0}, s{sT0}, {FH_OFF}")
    a(f"v_lshl_add_u32 v14, v0, {FS}, s{sT0}")
    a(f"s_and_b32 s{sROT2}, s{sDT2}, 3")
    a(f"s_mul_i32 s{sROT2}, s{sROT2}, 3")
    if E("ROT2", 1) == 2:
        a(f"s_and_b32 s{sT0}, s{sST}, 7")
        a(f"s_mul_i32 s{sT0}, s{sT0}, 3")
        a(f"s_lshr_b32 s{sT0}, s{sT0}, 1")
        a(f"s_add_u32 s{sROT2}, s{sROT2}, s{sT0}")
        a(f"s_sub_u32 s{sT0}, s{sROT2}, 12")
        a(f"s_min_u32 s{sROT2}, s{sROT2}, s{sT0}")
    a(f"s_mul_i32 s{sKB2}, s3, 12")
    c0 = -2.0 * math.sqrt(2.0 / math.pi) * math.log2(math.e)
    a(f"s_mov_b32 s{sC1}, {f32(c0*0.044715)}")
    NPRE = NR1 + NSLOT
    for i in range(NPRE - WD + 1):
        vm.wait(f"w1_{i}")
        if i < NR1: emit(w1_tr(i))
        nx = i + WD
        if nx < NPRE:
            if nx >= NSLOT:
                later = sum(1 for k in range(nx - NSLOT + 1, i + 1) if k < NR1)
                a(f"s_waitcnt lgkmcnt({8 if later else 0})")
            emit(w1_stage(nx))
        if i == WD:
            read_epoch(9); lds_arrive(6)
    if E("W1ONLY", 0):
        a("s_waitcnt vmcnt(0)")
        for i in range(2, 12): pstamp(a, i)
        finish_stamps()
        a("s_endpgm")
    vm.op(f"buffer_load_dword v15, v14, {R(S_WS)}, 0 offen sc1", "hpoll")
    a(f"s_lshr_b32 s{sT0}, s2, 3")
    a(f"s_mul_hi_u32 s{sT0}, s{sT0}, 0x33333334", "ft_local")
    a(f"s_mul_i32 s{sT0}, s{sT0}, 11")
    a("v_lshrrev_b32 v2, 3, v1")
    a(f"v_add_u32 v2, s{sT0}, v2")
    a("v_add_u32 v3, 5, v2")
    a("v_min_u32 v2, 63, v2")
    a("v_min_u32 v3, 63, v3")
    a("v_mul_u32_u24 v8, 10240, v2")
    a("v_mul_u32_u24 v9, 10240, v3")
    a("v_and_b32 v2, 7, v1")
    a(f"s_mul_i32 s{sT0}, s3, {64*10240}")
    a(f"s_lshl_b32 s{sT1}, s{sDT}, 10")
    a(f"s_add_u32 s{sT0}, s{sT0}, s{sT1}")
    a(f"s_add_u32 s{sT0}, s{sT0}, s{sG1BIG}")
    if HBLK_OFF: a(f"s_add_u32 s{sT0}, s{sT0}, {HBLK_OFF}")
    a(f"v_lshl_add_u32 v2, v2, 7, s{sT0}")
    a("v_add_u32 v8, v8, v2")
    a("v_add_u32 v9, v9, v2")
    lds_wait("PK_B1W", 1)
    pstamp(a, 2)
    spin("PK_SPIN_H", [(14, 15)], "hpoll" if vm.count("hpoll") is not None else "x")
    if E("GBAR1", 0): sbar("PK_GB1", 13)
    pstamp(a, 3)
    a("s_setprio 2")
    ACC = 64
    HB = [("v", 16), ("v", 32), ("v", 48)] + [("a", 16 * k) for k in range(NR1, 8)]
    HD = len(HB)
    HB = HB[-((16 - 0) % HD or HD):] + HB[:-((16 - 0) % HD or HD)] if False else HB
    def hreg(i, kh, nt):
        f, b = HB[(i + HSH) % HD]
        r = b + 4 * (2 * kh + nt)
        return f"{f}[{r}:{r+3}]"
    HSH = (1 - 13) % HD
    sHP = sKVBIG
    a(f"s_mov_b32 s{sHP}, s{sROT}")
    def h_adv():
        return [f"s_add_u32 s{sHOFF}, s{sKB}, s{sHP}", f"s_mul_i32 s{sHOFF}, s{sHOFF}, 40960",
                f"s_add_u32 s{sHP}, s{sHP}, 1", f"s_and_b32 s{sHP}, s{sHP}, 15"]
    def hload(i, nt, kh):
        return (f"buffer_load_dwordx4 {hreg(i, kh, nt)}, v{12+kh}, {R(S_WS)}, s{sHOFF} offen offset:{nt*512} {os.environ.get('HFLAG', 'sc1')}", f"h{i}_{kh}{nt}")
    HPRE = E("HPRE", HD)
    for i in range(HPRE):
        emit(h_adv())
        for kh in range(2):
            for nt in range(2): emit([hload(i, nt, kh)])
        if i == 0 and E("TOUCH", 0):
            vm.op(f"buffer_load_dword v15, v8, {R(S_WS)}, 0 offen sc1", "touch")
            vm.op(f"buffer_load_dword v14, v9, {R(S_WS)}, 0 offen sc1", "touch")
    a("s_waitcnt lgkmcnt(0)")
    def pos2(i):
        return [f"s_add_u32 s{sT0}, s{sROT2}, {i}", f"s_sub_u32 s{sT1}, s{sT0}, 12", f"s_min_u32 s{sT0}, s{sT0}, s{sT1}",
                f"s_add_u32 s{sT0}, s{sT0}, s{sKB2}"]
    def w2_slot(i): return i % NSLOT
    def w2_dma(i):
        items = pos2(i) + [f"s_add_u32 m0, s{sRING}, {w2_slot(i)*4096}", f"s_lshl_b32 s{sWOFF}, s{sT0}, 17"]
        for q in range(4):
            items.append((f"buffer_load_dwordx4 v{4+q}, {R(S_W2)}, s{sWOFF} offen offset:{q*1024} lds", f"w2_{i}"))
        return items
    BB = 16
    for i in range(16):
        nx = i + HPRE
        if E("G1STEPS", 0):
            MUTE[0] = True
            if i in (1, 3, 5, 7, 9, 11, 13): pstamp(a, 4 + i // 2, True)
        if nx < 16: emit(h_adv())
        side = []
        st_tr = NR1 - 1 + i
        if i >= 1 and st_tr < 16:
            vm.wait(f"w1_{st_tr}")
            side = w1_tr(st_tr)
        st_ld = NPRE + i - 3
        if i >= 3 and st_ld < 16:
            a("s_waitcnt lgkmcnt(8)")
            emit(w1_stage(st_ld))
        elif i >= NR1:
            a("s_waitcnt lgkmcnt(8)" if NR1 - 1 + i - 1 < 16 else "s_waitcnt lgkmcnt(0)")
        if E("KV_LATE", 0) and i == E("KV_LATE", 0):
            a(f"v_mov_b32 v2, {CNT + 48}")
            a("s_mov_b64 exec, 1")
            a("ds_add_u32 v2, v2")
            a("s_mov_b64 exec, -1")
        if i == 12:
            side = ["v_lshrrev_b32 v2, 3, v1", "v_lshlrev_b32 v4, 12, v2", "v_bfe_u32 v2, v1, 4, 1", "v_lshlrev_b32 v2, 1, v2",
                    "v_and_b32 v3, 7, v1", "v_xor_b32 v2, v2, v3", "v_lshl_add_u32 v4, v2, 4, v4", f"s_lshl_b32 s{sT0}, s{sST}, 7",
                    f"v_add_u32 v4, s{sT0}, v4", "v_xor_b32 v2, 64, v4", f"v_add_u32 v5, {1*(32768-1024)}, v2",
                    f"v_add_u32 v6, {2*(32768-1024)}, v4", f"v_add_u32 v7, {3*(32768-1024)}, v2",
                    ]
        if i == E("KGO", 11): lds_arrive(10)
        if i == 13:
            side = [f"s_add_u32 s{sT2}, s{sRING}, {3*4096}", f"v_lshl_add_u32 v9, v1, 4, s{sT2}",
                    f"s_lshl_b32 s{sT2}, s3, 12", f"s_add_u32 s{sT2}, s{sT2}, {3*4096}", f"v_lshl_add_u32 v10, v1, 4, s{sT2}",
                    f"v_add_u32 v11, {2*RINGB}, v10",
                    f"s_lshr_b32 s{sT0}, s3, 1", f"s_lshl_b32 s{sT0}, s{sT0}, 6", f"s_add_u32 s{sT0}, s{sT0}, {PT_LDS}",
                    "v_lshrrev_b32 v8, 5, v1", f"v_lshl_add_u32 v8, v8, 3, s{sT0}",
                    f"s_lshr_b32 s{sT0}, s3, 1", f"s_lshl_b32 s{sT0}, s{sT0}, 2", f"s_lshl_b32 s{sT1}, s{sFT}, 3",
                    f"s_add_u32 s{sT0}, s{sT0}, s{sT1}", f"s_mul_i32 s{sT0}, s{sT0}, 10240", f"s_and_b32 s{sT1}, s3, 1",
                    f"s_lshl_b32 s{sT1}, s{sT1}, 9", f"s_add_u32 s{sT0}, s{sT0}, s{sT1}",
                    f"s_add_u32 s{sT0}, s{sT0}, {UBLK_OFF - HBLK_OFF - 20480}", f"v_add_u32 v14, s{sT0}, v13", "v_add_u32 v15, 20480, v14",
                    f"v_mov_b32 v13, {f32(c0)}", "s_mov_b32 s28, 1.0", "s_mov_b32 s29, 1.0"]
        if i == 14:
            side = [f"ds_read_b64 v[{32+2*q}:{33+2*q}], v8 offset:{16*q}" for q in range(4)]
        if i == 15:
            for kh in range(2):
                for nt in range(2): vm.wait(f"h{i}_{kh}{nt}")
            def mf(t_):
                mt, nt = t_ >> 1, t_ & 1
                t = ACC + 16 * t_
                for kh in range(2):
                    wr = 16 * (i % NR1) + 4 * (2 * kh + mt)
                    a(f"v_mfma_f32_32x32x16_bf16 v[{t}:{t+15}], a[{wr}:{wr+3}], {hreg(i, kh, nt)}, v[{t}:{t+15}]")
            def wr_(t_):
                for q in range(4):
                    r = ACC + 16 * t_ + 4 * q
                    a(f"ds_write_b128 v9, v[{r}:{r+3}] offset:{t_*4096 + q*1024}")
            FIN = 48
            mf(0); mf(1)
            a("s_waitcnt lgkmcnt(0)")
            for q in range(0, 10, 2):
                a(f"v_lshlrev_b32 v{FIN+q}, 16, v{32+q//2}")
                a(f"v_and_b32 v{FIN+q+1}, 0xffff0000, v{32+q//2}")
            wr_(0); mf(2); wr_(1); mf(3)
            for q in range(10, 16, 2):
                a(f"v_lshlrev_b32 v{FIN+q}, 16, v{32+q//2}")
                a(f"v_and_b32 v{FIN+q+1}, 0xffff0000, v{32+q//2}")
            wr_(2)
            a("s_nop 1")
            wr_(3)
            continue
        k = 0; si = 0
        for kh in range(2):
            for nt in range(2):
                vm.wait(f"h{i}_{kh}{nt}")
                for mt in range(2):
                    t = ACC + 16 * (2 * mt + nt)
                    wr = 16 * (i % NR1) + 4 * (2 * kh + mt)
                    c = "0" if (i == 0 and kh == 0) else f"v[{t}:{t+15}]"
                    if not E("NOMF1", 0): a(f"v_mfma_f32_32x32x16_bf16 v[{t}:{t+15}], a[{wr}:{wr+3}], {hreg(i, kh, nt)}, {c}")
                    k += 1
                    while si < (len(side) * k + 7) // 8:
                        emit([side[si]]); si += 1
                if nx < 16: emit([hload(nx, nt, kh)])
    pstamp(a, 4)
    if E("G1STEPS", 0): pstamp(a, 11, True)
    lds_arrive(4)
    H3L = E("H3L", 1)
    if not H3L: emit(w2_dma(0)); emit(w2_dma(1))
    lds_wait("PK_XW1", 4)
    PT = 64
    for o in range(4):
        for q in range(4):
            r = PT + 16 * o + 4 * q
            a(f"ds_read_b128 v[{r}:{r+3}], v{10+o//2} offset:{(o&1)*RINGB + q*1024}")
    for o in range(4):
        a(f"s_waitcnt lgkmcnt({12-4*o})")
        for i in range(0, 16, 2):
            a(f"v_pk_add_f32 {pk(FIN+i)}, {pk(FIN+i)}, {pk(PT+16*o+i)}")
    lds_arrive(5)
    T = 64
    for i in range(0, 16, 2): a(f"v_pk_mul_f32 {pk(T+i)}, {pk(FIN+i)}, {pk(FIN+i)}")
    for i in range(16): a(f"v_fma_f32 v{T+i}, v{T+i}, s{sC1}, v13")
    for i in range(0, 16, 2): a(f"v_pk_mul_f32 {pk(T+i)}, {pk(T+i)}, {pk(FIN+i)}")
    for i in range(16): a(f"v_exp_f32 v{T+i}, v{T+i}")
    if E("W2MID", 0): emit(w2_dma(2))
    for i in range(0, 16, 2): a(f"v_pk_add_f32 {pk(T+i)}, {pk(T+i)}, s[28:29]")
    for i in range(16): a(f"v_rcp_f32 v{T+i}, v{T+i}")
    for i in range(0, 16, 2): a(f"v_pk_mul_f32 {pk(FIN+i)}, {pk(FIN+i)}, {pk(T+i)}")
    P = T + 16
    for i in range(0, 16, 2): a(f"v_cvt_pk_bf16_f32 v{P+i//2}, v{FIN+i}, v{FIN+i+1}")
    a("s_nop 1")
    for qp in range(2):
        r = P + 4 * qp
        a(f"v_permlane32_swap_b32 v{r}, v{r+2}")
        a(f"v_permlane32_swap_b32 v{r+1}, v{r+3}")
        vm.op(f"buffer_store_dwordx4 v[{r}:{r+3}], v{14+qp}, {R(S_WS)}, 0 offen sc1", "ust")
    pstamp(a, 5)
    lds_arrive(8)
    a(f"s_lshl_b32 s{sT0}, s{sDT}, 1")
    a(f"s_and_b32 s{sT1}, s3, 1")
    a(f"s_add_u32 s{sT0}, s{sT0}, s{sT1}")
    a(f"s_mul_i32 s{sT0}, s{sT0}, 48")
    a(f"s_lshl_b32 s{sT1}, s{sFT}, 1")
    a(f"s_add_u32 s{sT0}, s{sT0}, s{sT1}")
    a(f"s_lshr_b32 s{sT1}, s3, 1")
    a(f"s_add_u32 s{sT0}, s{sT0}, s{sT1}")
    a(f"s_lshl_b32 s{sT0}, s{sT0}, {FS}")
    a(f"s_add_u32 s{sT0}, s{sT0}, {FU_OFF}")
    a(f"s_add_u32 s{sT4}, s{sT0}, s{sG1BIG}")
    TR2 = 100
    a("v_lshrrev_b32 v106, 4, v1", "g")
    a("v_and_b32 v107, 15, v1", "n")
    a(f"v_lshlrev_b32 v{TR2}, 10, v106")
    a("v_bfe_u32 v2, v1, 2, 2")
    a(f"v_lshl_add_u32 v{TR2}, v2, 7, v{TR2}")
    a("v_bfe_u32 v2, v1, 3, 2")
    a(f"v_lshl_add_u32 v{TR2}, v2, 5, v{TR2}")
    a("v_and_b32 v2, 3, v1")
    a(f"v_lshl_add_u32 v{TR2}, v2, 3, v{TR2}")
    a(f"v_add_u32 v{TR2}, s{sRING}, v{TR2}")
    for j in range(1, 4): a(f"v_xor_b32 v{TR2+j}, {32*j}, v{TR2}")
    a("v_min_u32 v2, 35, v1")
    a("v_mul_u32_u24 v3, 43, v2")
    a("v_lshrrev_b32 v3, 9, v3")
    a("v_mul_u32_u24 v104, 36, v3")
    a("v_add_u32 v104, v104, v2")
    a(f"s_mul_i32 s{sT3}, s{sDT2}, 80", "d0")
    a(f"s_lshr_b32 s{sT0}, s{sT3}, 5")
    a(f"s_mul_i32 s{sT0}, s{sT0}, 48")
    a(f"s_add_u32 s{sT0}, s{sT0}, s{sKB2}")
    a(f"s_lshl_b32 s{sT0}, s{sT0}, {FS}")
    a(f"s_add_u32 s{sT0}, s{sT0}, {FU_OFF}")
    a(f"v_lshl_add_u32 v104, v104, {FS}, s{sT0}")
    a("v_mul_u32_u24 v105, 10240, v106")
    a("v_lshl_add_u32 v105, v107, 4, v105")
    a(f"s_lshl_b32 s{sT0}, s{sT3}, 4")
    a(f"s_add_u32 s{sT0}, s{sT0}, {UBLK_OFF}")
    a(f"v_add_u32 v105, s{sT0}, v105")
    def w2_tr(i, tr):
        out = []
        for j in range(4):
            for h in range(2):
                r = 16 * (i % NR2) + 4 * j + 2 * h
                out.append(f"ds_read_b64_tr_b16 a[{r}:{r+1}], v{tr+j} offset:{w2_slot(i)*4096 + h*512}")
        return out
    if H3L:
        lds_wait("PK_XW2", 5, n=5)
        for k in range(3): emit(w2_tr(k, TR2))
        vm.wait("ust")
        flag_store(sT4)
        pstamp(a, 6)
        emit(w2_dma(3)); emit(w2_dma(4))
        a("s_waitcnt lgkmcnt(0)")
    else:
        vm.wait("w2_1")
        for k in range(2): emit(w2_tr(k, TR2))
        lds_wait("PK_XW2", 5)
        vm.wait("ust")
        flag_store(sT4)
        pstamp(a, 6)
        if not E("W2MID", 0): emit(w2_dma(2))
        emit(w2_dma(3)); emit(w2_dma(4))
        vm.wait("w2_2")
        emit(w2_tr(2, TR2))
    for i in range(3, 12):
        nx = i + 2
        if nx < 12:
            if nx >= 9: a("s_waitcnt lgkmcnt(0)")
            emit(w2_dma(nx))
        vm.wait(f"w2_{i}")
        if i < NR2: emit(w2_tr(i, TR2))
        if i == E("UPOLL_AT", 10):
            vm.op(f"buffer_load_dword v108, v104, {R(S_WS)}, 0 offen sc1", "upoll")
    for j in range(4): a(f"v_mov_b32 v{4+j}, v{TR2+j}")
    a("v_mul_u32_u24 v109, 26, v1")
    a("v_lshrrev_b32 v109, 8, v109", "L/10")
    a("v_mul_u32_u24 v110, 10, v109")
    a("v_sub_u32 v110, v1, v110", "L%10")
    a("v_min_u32 v109, 5, v109")
    a("v_mul_u32_u24 v109, 10240, v109")
    a("v_lshl_add_u32 v109, v110, 7, v109")
    a(f"s_and_b32 s{sT0}, s{sST}, 7")
    a(f"s_mul_i32 s{sT0}, s{sT0}, 6")
    a(f"s_mul_i32 s{sT1}, s3, 48")
    a(f"s_add_u32 s{sT0}, s{sT0}, s{sT1}")
    a(f"s_mul_i32 s{sT0}, s{sT0}, 10240")
    a(f"s_mul_i32 s{sT1}, s{sDT2}, 1280")
    a(f"s_add_u32 s{sT0}, s{sT0}, s{sT1}")
    a(f"s_add_u32 s{sT0}, s{sT0}, {UBLK_OFF}")
    a(f"v_add_u32 v109, s{sT0}, v109")
    a("v_mov_b32 v3, v105")
    pstamp(a, 7)
    spin("PK_SPIN_U", [(104, 108)], "upoll" if vm.count("upoll") is not None else "x")
    if E("GBAR2", 0): sbar("PK_GB2", 14, t=110)
    pstamp(a, 8)
    if E("G2STEPS", 0): pstamp(a, 1, True)
    ACC2 = 48
    UB = [("a", 100), ("v", 8), ("v", 28), ("a", 80)]; UD = 4
    def ureg(i, m):
        f, b = UB[i % UD]
        return f"{f}[{b+4*m}:{b+4*m+3}]"
    def u_adv(i): return pos2(i) + [f"s_mul_i32 s{sHOFF}, s{sT0}, 40960"]
    def uload(i, m):
        return (f"buffer_load_dwordx4 {ureg(i, m)}, v3, {R(S_WS)}, s{sHOFF} offen offset:{m*256} sc1", f"u{i}_{m}")
    UPRE = E("UPRE", UD)
    for i in range(UPRE):
        emit(u_adv(i))
        for m in range(5): emit([uload(i, m)])
        if i == 0 and E("TOUCH", 0):
            vm.op(f"buffer_load_dword a127, v109, {R(S_WS)}, 0 offen sc1", "touch")
    a("s_waitcnt lgkmcnt(0)")
    for i in range(12):
        nx = i + UPRE
        if E("G2STEPS", 0):
            MUTE[0] = True
            if i in (0, 1, 3, 5, 7, 9, 11): pstamp(a, 2 + (i + 1) // 2, True)
        if nx < 12: emit(u_adv(nx))
        side = w2_tr(NR2 - 1 + i, 4) if (i >= 1 and NR2 - 1 + i < 12) else []
        if NR2 <= i <= 8: a("s_waitcnt lgkmcnt(8)")
        if i == 9: a("s_waitcnt lgkmcnt(0)")
        if i == E("YGO", 7):
            a(f"v_mov_b32 v2, {CNT + 36}")
            a("s_mov_b64 exec, 1")
            a("ds_add_u32 v2, v2", "counter 9 += its own address")
            a("s_mov_b64 exec, -1")
        if i == 10:
            side = ["v_lshrrev_b32 v8, 4, v1", "v_and_b32 v9, 15, v1",
                    f"s_lshl_b32 s{sT0}, s{sST}, 6", f"s_lshl_b32 s{sT1}, s3, 4", f"s_add_u32 s{sT0}, s{sT0}, s{sT1}",
                    f"v_add_u32 v9, s{sT0}, v9", "v_mul_u32_u24 v10, 1280, v9", "v_lshl_add_u32 v10, v8, 3, v10",
                    f"s_mul_i32 s{sT0}, s{sDT2}, 160", f"v_add_u32 v10, s{sT0}, v10", "v_lshlrev_b32 v9, 1, v9",
                    (f"buffer_load_ushort v16, v9, {R(S_B2)}, 0 offen", "b2"),
                    f"v_lshl_add_u32 v11, v1, 4, s{sRING}",
                    f"s_mul_i32 s{sT0}, s3, 2560", f"s_add_u32 s{sT0}, s{sT0}, {PT_LDS}", f"v_lshl_add_u32 v15, v1, 3, s{sT0}",
                    f"s_mul_i32 s{sT0}, s3, 5120", f"v_lshl_add_u32 v12, v1, 4, s{sT0}", f"v_add_u32 v13, {2*RINGB}, v12"]
        TL2 = E("TL2", 2)
        if i > 12 - TL2: continue
        if i == 12 - TL2:
            assert nx >= 12
            emit(side)
            vm.wait("u11_4")
            pend = []
            for j in range(4):
                for ii in range(i, 12):
                    for m in range(5):
                        t = ACC2 + 4 * (5 * j + m); wr = 16 * (ii % NR2) + 4 * j
                        a(f"v_mfma_f32_16x16x32_bf16 v[{t}:{t+3}], {ureg(ii, m)}, a[{wr}:{wr+3}], v[{t}:{t+3}]")
                        for p in pend: p[0] += 1
                        if pend and pend[0][0] >= 9:
                            a(pend.pop(0)[1])
                            for p in pend: p[0] += 1
                        if ii == 11:
                            pend.append([0, f"ds_write_b128 v11, v[{t}:{t+3}] offset:{j*5120 + m*1024}"])
            while pend:
                if pend[0][0] < 9:
                    n = 9 - pend[0][0]
                    a(f"s_nop {n-1}")
                    for p in pend: p[0] += n
                a(pend.pop(0)[1])
                for p in pend: p[0] += 1
            continue
        k = 0; si = 0
        for m in range(5):
            vm.wait(f"u{i}_{m}")
            for j in range(4):
                t = ACC2 + 4 * (5 * j + m)
                wr = 16 * (i % NR2) + 4 * j
                c = "0" if i == 0 else f"v[{t}:{t+3}]"
                a(f"v_mfma_f32_16x16x32_bf16 v[{t}:{t+3}], {ureg(i, m)}, a[{wr}:{wr+3}], {c}")
                k += 1
                while si < (len(side) * k + 19) // 20:
                    emit([side[si]]); si += 1
            if nx < 12: emit([uload(nx, m)])
    pstamp(a, 9, True)
    MUTE[0] = False
    FIN2 = 28
    lds_arrive(11)
    vm.wait("b2")
    a("v_lshlrev_b32 v17, 16, v16")
    a("v_lshlrev_b32 v16, 16, v16")
    lds_wait("PK_GB3", 11)
    PT2 = 48; PR = 18; PF = 108
    for half in range(2):
        for o in range(2 * half, 2 * half + 2):
            for m in range(5):
                r = PT2 + 20 * o + 4 * m
                a(f"ds_read_b128 v[{r}:{r+3}], v{12+o//2} offset:{(o&1)*RINGB + m*1024}")
    for o in range(4):
        a(f"s_waitcnt lgkmcnt({min(10, 15-5*o)})")
        for i in range(0, 20, 2):
            src = "v[16:17]" if o == 0 else pk(FIN2 + i)
            a(f"v_pk_add_f32 {pk(FIN2+i)}, {src}, {pk(PT2+20*o+i)}")
    T2 = 48
    for i in range(0, 20, 2): a(f"v_cvt_pk_bf16_f32 v{T2+i//2}, v{FIN2+i}, v{FIN2+i+1}")
    for i in range(0, 20, 2):
        a(f"v_lshlrev_b32 v{FIN2+i}, 16, v{T2+i//2}")
        a(f"v_and_b32 v{FIN2+i+1}, 0xffff0000, v{T2+i//2}")
    a("s_barrier", "P tiles of the H waves")
    pstamp(a, 10)
    for m in range(5):
        a(f"ds_read_b64 v[{PR+2*m}:{PR+2*m+1}], v15 offset:{m*512}")
    a("s_waitcnt lgkmcnt(0)")
    for m in range(5):
        for h in range(2):
            i = 4 * m + 2 * h
            a(f"v_lshlrev_b32 v{PF+i}, 16, v{PR+i//2}")
            a(f"v_and_b32 v{PF+i+1}, 0xffff0000, v{PR+i//2}")
            a(f"v_pk_add_f32 {pk(FIN2+i)}, {pk(FIN2+i)}, {pk(PF+i)}")
            a(f"v_cvt_pk_bf16_f32 v{60+i//2}, v{FIN2+i}, v{FIN2+i+1}")
        a(f"buffer_store_dwordx2 v[{60+2*m}:{61+2*m}], v10, {R(S_OUT)}, 0 offen offset:{32*m} {os.environ.get('OUTF', '')}")
    a(f"s_or_b32 s{sT0}, s2, s3")
    a(f"s_cmp_lg_u32 s{sT0}, 0")
    a("s_cbranch_scc1 PK_NOEP")
    a(f"s_mov_b32 s{sT0}, {EPOCH_OFF}")
    flag_store(sT0)
    a.label("PK_NOEP")
    pstamp(a, 11)
    finish_stamps("G")
    a("s_endpgm")

    a.label("PK_H")
    MUTE[0] = False
    vm.reset()
    for r in range(2):
        for i in range(5): vm.q.append(f"x{r}{i}")
    a("s_cmp_ge_u32 s2, 160")
    a(f"s_cselect_b32 s{sKVBIG}, {BIG}, 0")
    if E("NOKV", 0): a(f"s_mov_b32 s{sKVBIG}, {BIG}")
    sTT, sCW = sDT, sFT
    a(f"s_mul_hi_u32 s{sTT}, s2, 0x33333334", "T")
    a(f"s_mul_i32 s{sCW}, s{sTT}, 5")
    a(f"s_sub_u32 s{sCW}, s2, s{sCW}", "cw")
    a(f"s_lshl_b32 s{sT0}, s{sTT}, 2")
    a(f"s_add_u32 s{sT0}, s{sT0}, s3")
    a(f"s_mul_i32 s{sT0}, s{sT0}, 20480")
    a(f"s_lshl_b32 s{sT1}, s{sCW}, 8")
    a(f"s_add_u32 s{sT0}, s{sT0}, s{sT1}")
    a(f"s_add_u32 s{sT0}, s{sT0}, s{sKVBIG}")
    VKV = 10
    a(f"v_add_u32 v{VKV+1}, s{sT0}, v3")
    a(f"v_subrev_u32 v{VKV}, 3840, v{VKV+1}")
    for i in range(1, 4): a(f"v_add_u32 v{VKV+1+i}, {5120*i}, v{VKV+1}")
    a(f"s_lshl_b32 s{sT1}, s{sCW}, 10")
    a(f"v_lshl_add_u32 v15, v1, 4, s{sT1}")
    XRAW = 16
    if E("W1ONLY", 0):
        if STAMP:
            a("s_mov_b32 s4, s30"); a("s_mov_b32 s5, s31")
        for i in range(1, 12): pstamp(a, i)
        finish_stamps()
        a("s_endpgm")
    srd(a, S_WS, 26, WS_USED)
    vm.op(f"buffer_load_dword v9, v8, {R(S_WS)}, 0 offen sc1", "ep")
    srd(a, S_K, 6, SD_BYTES)
    srd(a, S_V, 8, SD_BYTES)
    srd(a, S_SHK, 10, D * 8)
    srd(a, S_SSMK, 12, SD_BYTES)
    srd(a, S_SSMD, 14, D * 2)
    srd(a, S_W2, 20, S * F * 2)
    if STAMP:
        a("s_mov_b32 s4, s30"); a("s_mov_b32 s5, s31")
    def kv_loads():
        vm.op(f"buffer_load_dwordx4 a[36:39], v15, {R(S_SHK)}, 0 offen", "shk")
        for r in range(3):
            vm.op(f"buffer_load_dword a{r}, v{VKV}, {R(S_K)}, 0 offen offset:{r*1280} {NT}", "k")
        for r in range(16):
            vm.op(f"buffer_load_dword a{3+r}, v{VKV+1+r//4}, {R(S_K)}, 0 offen offset:{(r%4)*1280} {NT}", "k")
        for r in range(16):
            vm.op(f"buffer_load_dword a{19+r}, v{VKV+1+r//4}, {R(S_V)}, 0 offen offset:{(r%4)*1280} {NT}", "v")
    KV_EARLY = E("KV_EARLY", 0)
    if KV_EARLY: kv_loads()
    srd(a, S_B1, 18, F * 2)
    a(f"s_lshr_b32 s{sT0}, s2, 3")
    a(f"s_mul_hi_u32 s{sT0}, s{sT0}, 0x33333334")
    a(f"s_bfe_u32 s{sT1}, s2, 0x20001")
    a(f"s_mul_i32 s{sT1}, s{sT1}, 6")
    a(f"s_add_u32 s{sT0}, s{sT0}, s{sT1}")
    a(f"s_lshl_b32 s{sT0}, s{sT0}, 7")
    a("v_and_b32 v125, 124, v3")
    vm.op(f"buffer_load_dword v126, v125, {R(S_B1)}, s{sT0} offen", "b1")
    a(f"v_add_u32 v125, {PT_LDS}, v125")
    pstamp(a, 1)
    a(f"s_mul_i32 s{sT0}, s3, {2*HROW}")
    a(f"s_add_u32 s{sT0}, s{sT0}, {LNX}")
    a(f"v_add_u32 v4, s{sT0}, v3")
    a("v_lshrrev_b32 v5, 4, v1")
    a("v_lshlrev_b32 v5, 5, v5")
    a("v_and_b32 v2, 3, v1")
    a("v_lshl_add_u32 v5, v2, 3, v5")
    a("v_bfe_u32 v2, v1, 2, 2")
    a(f"v_mul_u32_u24 v2, {HROW}, v2")
    a("v_add_u32 v5, v5, v2")
    a(f"s_lshl_b32 s{sT0}, s3, 7")
    a(f"s_add_u32 s{sT0}, s{sT0}, {LNX}")
    a(f"v_add_u32 v5, s{sT0}, v5")
    a(f"s_mul_i32 s{sT0}, s2, 10240")
    a(f"s_lshl_b32 s{sT1}, s3, 10")
    a(f"s_add_u32 s{sT0}, s{sT0}, s{sT1}")
    if HBLK_OFF: a(f"s_add_u32 s{sT0}, s{sT0}, {HBLK_OFF}")
    a(f"v_lshl_add_u32 v6, v1, 4, s{sT0}")
    a("v_add_u32 v7, 4096, v6")
    a("s_cmp_ge_u32 s3, 2")
    a(f"s_cselect_b32 s{sT1}, {BIG}, 8192")
    a(f"v_add_u32 v8, s{sT1}, v6")
    a(f"s_lshl_b32 s{sT0}, s2, 2")
    a(f"s_add_u32 s{sT0}, s{sT0}, s3")
    a(f"s_lshl_b32 s{sT0}, s{sT0}, 4")
    a(f"s_add_u32 s{sT0}, s{sT0}, {STAT_OFF}")
    a(f"v_mov_b32 v90, s{sT0}")
    a(f"s_lshl_b32 s{sT0}, s3, 8")
    a(f"s_add_u32 s{sT0}, s{sT0}, s2")
    a(f"s_lshl_b32 s{sT0}, s{sT0}, {FS}")
    a(f"s_add_u32 s{sRING}, s{sT0}, {FH_OFF}", "h flag offset")
    X = [26, 36]; A = [46, 56]; SUM = [66, 70]; TMP = [74, 82]
    PIV = [28, 30]; SS = [(sT0, sT1), (sT2, sT3)]
    for r in range(2):
        for i in range(5):
            vm.wait(f"x{r}{i}")
            a(f"v_lshlrev_b32 v{X[r]+2*i}, 16, v{XRAW+5*r+i}")
            a(f"v_and_b32 v{X[r]+2*i+1}, 0xffff0000, v{XRAW+5*r+i}")
            if i == 0: a(f"v_readfirstlane_b32 s{PIV[r]}, v{X[r]}")
            if i == 2: a(f"s_mov_b32 s{PIV[r]+1}, s{PIV[r]}")
    pstamp(a, 2)
    def zip2(f):
        out = []
        for p, q in zip(f(0), f(1)): out += [p, q]
        return out
    def sums(src):
        def f(r):
            Sr = SUM[r]; B = src[r]
            l = [f"v_pk_mul_f32 {pk(Sr+2)}, {pk(B)}, {pk(B)}", f"v_pk_add_f32 {pk(Sr)}, {pk(B)}, {pk(B+2)}"]
            for i in range(1, 5):
                l.append(f"v_pk_fma_f32 {pk(Sr+2)}, {pk(B+2*i)}, {pk(B+2*i)}, {pk(Sr+2)}")
                if i >= 2: l.append(f"v_pk_add_f32 {pk(Sr)}, {pk(Sr)}, {pk(B+2*i)}")
            l += [f"v_add_f32 v{Sr}, v{Sr}, v{Sr+1}", f"v_add_f32 v{Sr+1}, v{Sr+2}, v{Sr+3}"]
            return l
        l = zip2(f)
        steps = ["row_shr:1 row_mask:0xf bank_mask:0xf bound_ctrl:0", "row_shr:2 row_mask:0xf bank_mask:0xf bound_ctrl:0",
                 "row_shr:4 row_mask:0xf bank_mask:0xf bound_ctrl:0", "row_shr:8 row_mask:0xf bank_mask:0xf bound_ctrl:0",
                 "row_bcast:15 row_mask:0xa bank_mask:0xf", "row_bcast:31 row_mask:0xc bank_mask:0xf"]
        regs = [SUM[0], SUM[1], SUM[0] + 1, SUM[1] + 1]
        for st in steps:
            for v in regs: l.append(f"v_add_f32_dpp v{v}, v{v}, v{v} {st}")
        l += [f"v_readlane_b32 s{SS[0][0]}, v{SUM[0]}, 63", f"v_readlane_b32 s{SS[1][0]}, v{SUM[1]}, 63",
              f"v_readlane_b32 s{SS[0][1]}, v{SUM[0]+1}, 63", f"v_readlane_b32 s{SS[1][1]}, v{SUM[1]+1}, 63"]
        return l
    def statsl(piv):
        inv = f32(1.0 / D)
        def f(r):
            t0, t1 = TMP[r] + 6, TMP[r] + 7; m = TMP[r]; rr = TMP[r] + 1
            l = [f"v_mul_f32 v{t0}, s{SS[r][0]}, v91", f"v_mul_f32 v{t1}, s{SS[r][1]}, v91",
                 f"v_fma_f32 v{t1}, -v{t0}, v{t0}, v{t1}", f"v_max_f32 v{t1}, 0, v{t1}"]
            if piv: l.append(f"v_add_f32 v{t0}, s{PIV[r]}, v{t0}")
            l += [f"v_cvt_pk_bf16_f32 v{t0}, v{t0}, v{t1}", f"v_lshlrev_b32 v{m}, 16, v{t0}",
                  f"v_and_b32 v{t1}, 0xffff0000, v{t0}", f"v_add_f32 v{t1}, {f32(1e-5)}, v{t1}",
                  f"v_cvt_pk_bf16_f32 v{t1}, v{t1}, v{t1}", f"v_lshlrev_b32 v{t1}, 16, v{t1}",
                  f"v_sqrt_f32 v{t1}, v{t1}", f"v_cvt_pk_bf16_f32 v{t1}, v{t1}, v{t1}",
                  f"v_lshlrev_b32 v{t1}, 16, v{t1}", f"v_rcp_f32 v{rr}, v{t1}",
                  f"v_mul_f32 v{TMP[r]+4}, v{m}, v{rr}", f"v_mov_b32 v{TMP[r]+2}, v{rr}",
                  f"v_mul_f32 v{TMP[r]+5}, v{m}, v{rr}", f"v_mov_b32 v{TMP[r]+3}, v{rr}"]
            return l
        return zip2(f)
    def norm(dst, src):
        return zip2(lambda r: [f"v_pk_fma_f32 {pk(dst[r]+2*i)}, {pk(src[r]+2*i)}, {pk(TMP[r]+2)}, {pk(TMP[r]+4)} neg_lo:[0,0,1] neg_hi:[0,0,1]" for i in range(5)])
    a(f"v_mov_b32 v91, {f32(1.0/D)}")
    emit(zip2(lambda r: [f"v_pk_add_f32 {pk(A[r]+2*i)}, {pk(X[r]+2*i)}, s[{PIV[r]}:{PIV[r]+1}] neg_lo:[0,1] neg_hi:[0,1]" for i in range(5)]))
    emit(sums(A)); emit(statsl(True))
    emit(["s_mov_b64 exec, 1",
          (f"buffer_store_dwordx2 {pk(TMP[0])}, v90, {R(S_WS)}, 0 offen sc1", "hst"),
          (f"buffer_store_dwordx2 {pk(TMP[1])}, v90, {R(S_WS)}, 0 offen offset:8 sc1", "hst"),
          "s_mov_b64 exec, -1"])
    emit(norm(A, X))
    emit(zip2(lambda r: [f"v_cvt_pk_bf16_f32 v{XRAW+5*r+i}, v{A[r]+2*i}, v{A[r]+2*i+1}" for i in range(5)]))
    emit(zip2(lambda r: sum([[f"v_lshlrev_b32 v{X[r]+2*i}, 16, v{XRAW+5*r+i}", f"v_and_b32 v{X[r]+2*i+1}, 0xffff0000, v{XRAW+5*r+i}"] for i in range(5)], [])))
    emit(sums(X)); emit(statsl(False)); emit(norm(A, X))
    emit(zip2(lambda r: sum([[f"v_cvt_pk_bf16_f32 v{XRAW+5*r+i}, v{A[r]+2*i}, v{A[r]+2*i+1}", f"ds_write_b32 v4, v{XRAW+5*r+i} offset:{r*HROW+i*256}"] for i in range(5)], [])))
    vm.wait("b1")
    a("ds_write_b32 v125, v126")
    read_epoch(9)
    sbar("PK_HB1", 1)
    HT = 26
    for t in range(3):
        a(f"ds_read_b64_tr_b16 v[{HT+4*t}:{HT+4*t+1}], v5 offset:{512*t}")
        a(f"ds_read_b64_tr_b16 v[{HT+4*t+2}:{HT+4*t+3}], v5 offset:{512*t+4*HROW}")
    for t in range(3):
        a(f"s_waitcnt lgkmcnt({4-2*t})")
        vm.op(f"buffer_store_dwordx4 v[{HT+4*t}:{HT+4*t+3}], v{6+t}, {R(S_WS)}, 0 offen sc1", "hst")
    pstamp(a, 3)
    a("v_and_b32 v2, 7, v1")
    a(f"s_lshl_b32 s{sT0}, s3, 1")
    a(f"v_xor_b32 v4, s{sT0}, v2")
    a("v_lshlrev_b32 v4, 4, v4")
    a("v_lshl_add_u32 v4, v1, 8, v4")
    a(f"v_add_u32 v4, {KVX}, v4")
    a("v_xor_b32 v5, 16, v4")
    a("v_lshrrev_b32 v8, 3, v1")
    a("v_lshrrev_b32 v6, 4, v1")
    a("v_xor_b32 v6, v6, v2")
    a("v_lshlrev_b32 v6, 4, v6")
    a("v_lshl_add_u32 v6, v8, 7, v6")
    a(f"s_lshl_b32 s{sT0}, s3, 12")
    a(f"s_add_u32 s{sT0}, s{sT0}, {KVX}")
    a(f"v_add_u32 v6, s{sT0}, v6")
    a("v_xor_b32 v7, 64, v6")
    a("v_lshlrev_b32 v8, 12, v8")
    a("v_lshl_add_u32 v8, v2, 4, v8")
    a(f"s_lshl_b32 s{sT0}, s{sCW}, 19")
    a(f"s_lshl_b32 s{sT1}, s3, 17")
    a(f"s_add_u32 s{sT0}, s{sT0}, s{sT1}")
    a(f"s_lshl_b32 s{sT1}, s{sTT}, 7")
    a(f"s_add_u32 s{sT0}, s{sT0}, s{sT1}")
    a(f"s_add_u32 s{sT0}, s{sT0}, {KVB_OFF}")
    a(f"s_add_u32 s{sT0}, s{sT0}, s{sKVBIG}")
    a(f"v_add_u32 v8, s{sT0}, v8")
    lds_wait("PK_EPW", 6)
    vm.wait("hst")
    flag_store(sRING)
    pstamp(a, 4)
    if E("KV_LATE", 0):
        a("s_setprio 0")
        lds_wait("PK_KVL", 12, n=4 * (CNT + 48), sleep=4)
        a("s_setprio 3")
    if not KV_EARLY: kv_loads()
    a("s_setprio 0")
    a(f"s_lshl_b32 s{sT0}, s{sCW}, 2")
    a(f"s_add_u32 s{sT0}, s{sT0}, s3")
    a(f"s_lshl_b32 s{sT0}, s{sT0}, 5")
    a(f"s_add_u32 s{sT0}, s{sT0}, s{sTT}")
    a(f"s_lshl_b32 s{sT0}, s{sT0}, {FS}")
    a(f"s_add_u32 s{sT0}, s{sT0}, {FKV_OFF}")
    a(f"s_add_u32 s{sRING}, s{sT0}, s{sKVBIG}", "kv flag offset")
    WP, KP, KS, KO = 16, 24, 62, 94
    vm.wait("k")
    for i in range(4): a(f"v_accvgpr_read_b32 v{110+i}, a{36+i}")
    for r in range(19): a(f"v_accvgpr_read_b32 v{KP+2*r+1}, a{r}")
    for t in range(4):
        for ch in range(2):
            src = 110 + 2 * ch + t // 2
            a(f"v_lshlrev_b32 v{WP+2*t+ch}, 16, v{src}" if t % 2 == 0 else f"v_and_b32 v{WP+2*t+ch}, 0xffff0000, v{src}")
    for r in range(19):
        a(f"v_lshlrev_b32 v{KP+2*r}, 16, v{KP+2*r+1}")
        a(f"v_and_b32 v{KP+2*r+1}, 0xffff0000, v{KP+2*r+1}")
    for r in range(16): a(f"v_pk_mul_f32 {pk(KS+2*r)}, {pk(KP+2*r)}, {pk(WP+6)}")
    for t in (2, 1, 0):
        for r in range(16):
            a(f"v_pk_fma_f32 {pk(KS+2*r)}, {pk(KP+2*(r+3-t))}, {pk(WP+2*t)}, {pk(KS+2*r)}")
    vm.wait("v")
    for r in range(16): a(f"v_accvgpr_read_b32 v{KP+2*r+1}, a{19+r}")
    for r in range(16):
        a(f"v_lshlrev_b32 v{KP+2*r}, 16, v{KP+2*r+1}")
        a(f"v_and_b32 v{KP+2*r+1}, 0xffff0000, v{KP+2*r+1}")
    for r in range(16): a(f"v_pk_mul_f32 {pk(KS+2*r)}, {pk(KS+2*r)}, {pk(KP+2*r)}")
    for c2 in range(2):
        for ch in range(2):
            for q in range(4):
                a(f"v_cvt_pk_bf16_f32 v{KO+8*c2+4*ch+q}, v{KS+2*(8*c2+7-2*q)+ch}, v{KS+2*(8*c2+6-2*q)+ch}")
            a(f"ds_write_b128 v{4+c2}, v[{KO+8*c2+4*ch}:{KO+8*c2+4*ch+3}] offset:{128*ch}")
    sbar("PK_HB2", 2)
    for i in range(4):
        a(f"ds_read_b128 v[{KO+4*i}:{KO+4*i+3}], v{6+(i&1)} offset:{1024*i}")
    a("s_setprio 3")
    for i in range(4):
        a(f"s_mov_b32 s{sT0}, {32768*i}")
        a(f"s_waitcnt lgkmcnt({3-i})")
        vm.op(f"buffer_store_dwordx4 v[{KO+4*i}:{KO+4*i+3}], v8, {R(S_WS)}, s{sT0} offen sc1", "kvst")
    lds_arrive(3)
    pstamp(a, 5)
    a("v_lshrrev_b32 v14, 4, v1", "g")
    a("v_and_b32 v15, 15, v1", "n")
    a(f"s_lshl_b32 s{sCH}, s2, 1")
    a(f"s_mul_i32 s{sT0}, s2, 3")
    a(f"s_sub_u32 s{sT0}, s{sT0}, 128")
    a("s_cmp_ge_u32 s2, 128")
    a(f"s_cselect_b32 s{sCH}, s{sT0}, s{sCH}")
    a(f"s_cselect_b32 s{sT0}, 3, 2")
    a(f"s_add_u32 s{sCH}, s{sCH}, s3")
    a(f"s_cmp_lt_u32 s3, s{sT0}")
    a(f"s_cselect_b32 s{sCH}, s{sCH}, {1 << 16}", "ch (65536 = none)")
    a(f"s_mul_i32 s{sCVB}, s3, {CONV_SZ}")
    a(f"s_add_u32 s{sCVB}, s{sCVB}, {AUX}")
    a(f"s_lshr_b32 s{sT0}, s{sCH}, 5")
    a(f"s_lshl_b32 s{sT0}, s{sT0}, {5+FS}")
    a(f"s_add_u32 s{sT0}, s{sT0}, {FKV_OFF}")
    a("v_and_b32 v29, 31, v1")
    a(f"v_lshl_add_u32 v29, v29, {FS}, s{sT0}", "kv poll address")
    a(f"s_lshl_b32 s{sT0}, s{sCH}, 12")
    a(f"v_lshl_add_u32 v31, v1, 4, s{sT0}")
    a("v_add_u32 v32, 2, v31")
    a(f"v_add_u32 v33, {KVB_OFF}, v31")
    a(f"v_mov_b32 v34, s{sT0}")
    a(f"s_lshl_b32 s{sT1}, s{sCH}, 1")
    a(f"v_mov_b32 v36, s{sT1}")
    VA, VB, VE, VS = 38, 42, 43, 44
    a("v_lshlrev_b32 v2, 5, v15")
    a(f"v_lshl_add_u32 v{VS}, v14, 3, v2")
    a(f"s_add_u32 s{sT0}, s{sT0}, {YA_OFF}")
    a(f"v_add_u32 v{VS}, s{sT0}, v{VS}")
    a("v_lshlrev_b32 v45, 4, v1")
    a(f"v_add_u32 v46, s{sCVB}, v45")
    a(f"v_add_u32 v2, {CV_K0-512}, v45")
    a(f"v_add_u32 v3, {CV_K1-544}, v45")
    a("v_cmp_lt_u32 vcc, 31, v1")
    a(f"v_lshl_add_u32 v{VA}, v14, 3, v15")
    a(f"v_lshlrev_b32 v{VA}, 1, v{VA}")
    a("v_cndmask_b32 v45, v45, v2, vcc")
    a("v_cmp_lt_u32 vcc, 33, v1")
    a("v_and_b32 v2, 1, v1")
    a(f"v_mul_u32_u24 v2, {CV_K1 - CV_K0 - 2}, v2")
    a("v_cndmask_b32 v45, v45, v3, vcc")
    a("v_cmp_lt_u32 vcc, 35, v1")
    a(f"v_sub_u32 v{VA}, v{VA}, v2")
    a(f"v_add_u32 v{VA}, {CV_K1}, v{VA}")
    a("v_cndmask_b32 v45, v45, 0, vcc")
    a(f"v_add_u32 v45, s{sCVB}, v45")
    a(f"v_add_u32 v{VA}, s{sCVB}, v{VA}")
    for p in range(1, 4): a(f"v_add_u32 v{VA+p}, {1024*p}, v{VA}")
    a("v_lshlrev_b32 v2, 1, v15")
    a("v_sub_u32 v2, v2, v14")
    a("v_lshlrev_b32 v2, 4, v2")
    a(f"v_add_u32 v2, {528-448}, v2")
    a(f"v_add_u32 v{VB}, s{sCVB}, v2")
    a("v_lshrrev_b32 v2, 1, v14")
    a("v_lshl_add_u32 v2, v15, 1, v2")
    a("v_lshlrev_b32 v2, 4, v2")
    a("v_and_b32 v3, 1, v14")
    a("v_lshlrev_b32 v3, 3, v3")
    a("v_sub_u32 v2, v2, v3")
    a("v_add_u32 v2, 520, v2")
    a(f"v_add_u32 v{VE}, s{sCVB}, v2")
    vm.wait("kvst")
    flag_store(sRING)
    a(f"s_cmp_ge_u32 s{sCH}, 640")
    a("s_cbranch_scc1 PK_NOCONV")
    lds_wait("PK_HB3", 3)
    if E("KERN_LATE", 0):
        a("s_setprio 0")
        lds_wait("PK_KW0", 10, n=4, sleep=4)
        a("s_setprio 3")
    vm.reset()
    a(f"s_add_u32 m0, s{sCVB}, {CV_K0+32}")
    a(f"buffer_load_ushort v35, v34, {R(S_SSMK)}, 0 offen")
    for q in range(4): a(f"buffer_load_dwordx4 v31, {R(S_SSMK)}, 0 offen offset:{q*1024} lds")
    a(f"s_add_u32 m0, s{sCVB}, {CV_K1+32}")
    a(f"buffer_load_ushort v37, v36, {R(S_SSMD)}, 0 offen")
    for q in range(4): a(f"buffer_load_dwordx4 v32, {R(S_SSMK)}, 0 offen offset:{q*1024} lds")
    a("s_setprio 0")
    lds_wait("PK_KW", 10, n=4, sleep=4)
    a("s_setprio 3")
    if not E("NOKV", 0): spin("PK_SPIN_KV", [(29, 30)], sleep=E("KVPOLL_SLEEP", 0))
    KVR = 48
    for q in range(4):
        vm.op(f"buffer_load_dwordx4 v[{KVR+4*q}:{KVR+4*q+3}], v33, {R(S_WS)}, 0 offen offset:{q*1024} sc1", "cfill")
    a("s_setprio 0")
    a("v_mov_b32 v96, 0"); a("v_mov_b32 v97, 0"); a("v_mov_b32 v98, 0")
    a("v_cmp_eq_u32 vcc, 35, v1")
    a("v_lshlrev_b32 v35, 16, v35")
    a("v_lshlrev_b32 v37, 16, v37", "D")
    a("v_cndmask_b32 v99, 0, v35, vcc")
    a("ds_write_b128 v45, v[96:99]")
    vm.wait("cfill")
    for q in range(4):
        a(f"ds_write_b128 v46, v[{KVR+4*q}:{KVR+4*q+3}] offset:{512+1024*q}")
    a("s_waitcnt lgkmcnt(0)")
    CACC = 64; BUF = [(0, 32), (64, 96)]
    def frag_loads(buf, rr):
        A_, B_ = BUF[buf]
        out = []
        for t in range(8):
            o = (t & 1) * 128 + rr * 16
            out.append(f"ds_read_b128 a[{B_+4*t}:{B_+4*t+3}], v{VB} offset:{512*t + 64*(1-rr)}")
            out.append(f"ds_read2_b32 a[{A_+4*t}:{A_+4*t+1}], v{VA + t//2} offset0:{o} offset1:{o+1}")
            out.append(f"ds_read2_b32 a[{A_+4*t+2}:{A_+4*t+3}], v{VA + t//2} offset0:{o+2} offset1:{o+3}")
        return out
    for i in range(32): a(f"v_mov_b32 v{CACC+i}, 0")
    a(f"v_add_u32 v{VB}, {448-64}, v{VB}", "64 below the r-even address")
    emit(frag_loads(0, 0))
    pstamp(a, 6)
    lds_wait("PK_CW", 8, n=E("CONV_WAIT_N", 4), sleep=2)
    a(f"s_setprio {E('CONV_PRIO', 3)}")
    pstamp(a, 7)
    a(f"s_mov_b32 s{sT0}, 0")
    a.label("PK_CV_LOOP")
    for half in range(2):
        a("s_waitcnt lgkmcnt(0)")
        if half == 0: side = frag_loads(1, 1)
        else:
            for p in range(4): a(f"v_add_u32 v{VA+p}, 128, v{VA+p}")
            a(f"v_subrev_u32 v{VB}, 128, v{VB}")
            side = frag_loads(0, 0)
        A_, B_ = BUF[half]
        i = 0
        for c in range(8):
            for t in range(c + 1):
                u = c - t
                a(f"v_mfma_f32_16x16x32_bf16 v[{CACC+4*c}:{CACC+4*c+3}], a[{A_+4*t}:{A_+4*t+3}], a[{B_+4*u}:{B_+4*u+3}], v[{CACC+4*c}:{CACC+4*c+3}]")
                if i < len(side): a(side[i])
                i += 1
    a(f"s_add_u32 s{sT0}, s{sT0}, 1")
    a(f"s_cmp_lt_u32 s{sT0}, 4")
    a("s_cbranch_scc1 PK_CV_LOOP")
    a("s_setprio 3")
    for c in range(8): a(f"ds_read_b64 v[{100+2*c}:{101+2*c}], v{VE} offset:{512*c}")
    a("s_waitcnt lgkmcnt(0)")
    TT = 116
    for c in range(8):
        d0, d1 = 100 + 2 * c, 101 + 2 * c
        emit([f"v_and_b32 v{TT}, 0xffff0000, v{d1}", f"v_lshlrev_b32 v{TT+1}, 16, v{d1}",
              f"v_and_b32 v{TT+2}, 0xffff0000, v{d0}", f"v_lshlrev_b32 v{TT+3}, 16, v{d0}"])
        for i in range(4): a(f"v_fmac_f32 v{CACC+4*c+i}, v{TT+i}, v37")
        a(f"v_cvt_pk_bf16_f32 v{d0}, v{CACC+4*c}, v{CACC+4*c+1}")
        a(f"v_cvt_pk_bf16_f32 v{d1}, v{CACC+4*c+2}, v{CACC+4*c+3}")
        a(f"buffer_store_dwordx2 v[{d0}:{d1}], v{VS}, {R(S_WS)}, 0 offen offset:{512*c} sc1")
    pstamp(a, 8)
    a(f"s_lshl_b32 s{sT0}, s{sCH}, {FS}")
    a(f"s_add_u32 s{sT0}, s{sT0}, {FY_OFF}")
    a("s_waitcnt vmcnt(0)")
    flag_store(sT0)
    a("s_branch PK_PCOMP")
    a.label("PK_NOCONV")
    if E("H3L", 1):
        a("s_cmp_lg_u32 s3, 3")
        a("s_cbranch_scc1 PK_NOLOAD")
        emit(["v_lshrrev_b32 v2, 3, v1", "v_lshlrev_b32 v4, 12, v2", "v_bfe_u32 v2, v1, 4, 1", "v_lshlrev_b32 v2, 1, v2",
              "v_and_b32 v3, 7, v1", "v_xor_b32 v2, v2, v3", "v_lshl_add_u32 v4, v2, 4, v4", f"s_lshl_b32 s{sT0}, s{sST}, 7",
              f"v_add_u32 v4, s{sT0}, v4", "v_xor_b32 v2, 64, v4", f"v_add_u32 v5, {1*(32768-1024)}, v2",
              f"v_add_u32 v6, {2*(32768-1024)}, v4", f"v_add_u32 v7, {3*(32768-1024)}, v2",
              f"s_and_b32 s{sT2}, s{sDT2}, 3", f"s_mul_i32 s{sT2}, s{sT2}, {3 << 17}"])
        a("s_setprio 0")
        lds_wait("PK_LW", 10, n=4, sleep=4)
        a(f"s_setprio {E('H3PRIO', 1)}")
        for k in range(3):
            for w in range(4):
                a(f"s_mov_b32 m0, {w*RINGB + k*4096}")
                a(f"s_add_u32 s{sT3}, s{sT2}, {(12*w + k) << 17}")
                for q in range(4):
                    a(f"buffer_load_dwordx4 v{4+q}, {R(S_W2)}, s{sT3} offen offset:{q*1024} lds")
        a("s_waitcnt vmcnt(0)")
        lds_arrive(5)
        a.label("PK_NOLOAD")
    a("s_setprio 0")
    lds_wait("PK_NCW", 8, n=4, sleep=16)
    a("s_setprio 3")
    a.label("PK_PCOMP")
    vm.reset()
    a(f"s_mul_i32 s{sT3}, s{sDT2}, 80", "d0")
    a(f"s_lshl_b32 s{sT0}, s{sST}, 6")
    a(f"s_lshl_b32 s{sT1}, s3, 4")
    a(f"s_add_u32 s{sT0}, s{sT0}, s{sT1}")
    a(f"v_add_u32 v4, s{sT0}, v15", "s")
    a("v_mul_u32_u24 v5, 1280, v4")
    a("v_lshl_add_u32 v5, v14, 3, v5")
    a(f"s_lshl_b32 s{sT0}, s{sT3}, 1")
    a(f"v_add_u32 v5, s{sT0}, v5", "x offset")
    XR = 16
    for m in range(5):
        a(f"buffer_load_dwordx2 v[{XR+2*m}:{XR+2*m+1}], v5, {R(S_X)}, 0 offen offset:{32*m}")
    a("v_lshlrev_b32 v6, 3, v4")
    a(f"v_add_u32 v6, {STAT_OFF}, v6")
    a(f"s_lshl_b32 s{sT0}, s{sT3}, {FS}")
    a(f"s_add_u32 s{sT0}, s{sT0}, {FY_OFF}")
    a(f"v_lshl_add_u32 v7, v1, {FS}, s{sT0}")
    a(f"v_add_u32 v8, {64 << FS}, v7")
    a("v_bfe_u32 v2, v4, 1, 2")
    a("v_lshlrev_b32 v2, 8, v2")
    a("v_lshrrev_b32 v3, 3, v4")
    a("v_add_u32 v2, v2, v3")
    a("v_cmp_lt_u32 vcc, 15, v1")
    a(f"v_lshlrev_b32 v2, {FS}, v2")
    a(f"v_add_u32 v2, {FH_OFF}, v2")
    a("v_cndmask_b32 v8, v8, v2, vcc")
    a("v_lshrrev_b32 v9, 1, v1")
    a("v_lshlrev_b32 v9, 12, v9")
    a("v_and_b32 v2, 1, v1")
    a("v_lshl_add_u32 v9, v2, 4, v9")
    a(f"s_lshl_b32 s{sT0}, s{sT3}, 12")
    a(f"s_lshl_b32 s{sT1}, s{sST}, 7")
    a(f"s_add_u32 s{sT0}, s{sT0}, s{sT1}")
    a(f"s_lshl_b32 s{sT1}, s3, 5")
    a(f"s_add_u32 s{sT0}, s{sT0}, s{sT1}")
    a(f"s_add_u32 s{sT0}, s{sT0}, {YA_OFF}")
    a(f"v_add_u32 v9, s{sT0}, v9")
    a("v_cmp_lt_u32 vcc, 31, v1")
    a("v_add_u32 v10, 0x20000, v9")
    a("v_add_u32 v11, 0x40000, v9")
    a(f"v_mov_b32 v2, {BIG}")
    a("v_cndmask_b32 v11, v11, v2, vcc")
    a(f"s_mul_i32 s{sT0}, s3, 2560")
    a(f"s_add_u32 s{sT0}, s{sT0}, {PT_LDS}")
    a(f"v_lshl_add_u32 v12, v1, 4, s{sT0}")
    a(f"v_lshl_add_u32 v13, v1, 3, s{sT0}")
    a("s_setprio 0")
    lds_wait("PK_YW", 9, n=4 * (CNT + 36), sleep=4)
    a("s_setprio 3")
    spin("PK_SPIN_Y", [(7, 26), (8, 27)], sleep=E("YPOLL_SLEEP", 0))
    pstamp(a, 9)
    YL, ST_, XF, XN, T2, YR, YF = 28, 40, 44, 64, 84, 94, 104
    for t in range(3):
        vm.op(f"buffer_load_dwordx4 v[{YL+4*t}:{YL+4*t+3}], v{9+t}, {R(S_WS)}, 0 offen sc1", "ya")
    vm.op(f"buffer_load_dwordx2 v[{ST_}:{ST_+1}], v6, {R(S_WS)}, 0 offen sc1", "st")
    for i in range(10):
        a(f"v_lshlrev_b32 v{XF+2*i}, 16, v{XR+i}")
        a(f"v_and_b32 v{XF+2*i+1}, 0xffff0000, v{XR+i}")
    vm.wait("ya")
    a(f"ds_write_b128 v12, v[{YL}:{YL+3}]")
    a(f"ds_write_b128 v12, v[{YL+4}:{YL+7}] offset:1024")
    a("s_mov_b32 exec_hi, 0")
    a(f"ds_write_b128 v12, v[{YL+8}:{YL+11}] offset:2048")
    a("s_mov_b64 exec, -1")
    vm.wait("st", "lgkmcnt(0)")
    for m in range(5):
        a(f"ds_read_b64_tr_b16 v[{YR+2*m}:{YR+2*m+1}], v13 offset:{m*512}")
    a(f"v_mul_f32 v42, v{ST_}, v{ST_+1}")
    a(f"v_mul_f32 v43, v{ST_}, v{ST_+1}")
    a(f"v_mov_b32 v{ST_}, v{ST_+1}")
    for i in range(0, 20, 2):
        a(f"v_pk_fma_f32 {pk(XN+i)}, {pk(XF+i)}, {pk(ST_)}, v[42:43] neg_lo:[0,0,1] neg_hi:[0,0,1]")
    for i in range(0, 20, 2): a(f"v_cvt_pk_bf16_f32 v{T2+i//2}, v{XN+i}, v{XN+i+1}")
    for i in range(0, 20, 2):
        a(f"v_lshlrev_b32 v{XN+i}, 16, v{T2+i//2}")
        a(f"v_and_b32 v{XN+i+1}, 0xffff0000, v{T2+i//2}")
    a("s_waitcnt lgkmcnt(0)")
    for i in range(10):
        a(f"v_lshlrev_b32 v{YF+2*i}, 16, v{YR+i}")
        a(f"v_and_b32 v{YF+2*i+1}, 0xffff0000, v{YR+i}")
    for i in range(0, 20, 2): a(f"v_pk_fma_f32 {pk(XN+i)}, {pk(XN+i)}, {pk(YF+i)}, {pk(XF+i)}")
    for m in range(5):
        a(f"v_cvt_pk_bf16_f32 v{T2+2*m}, v{XN+4*m}, v{XN+4*m+1}")
        a(f"v_cvt_pk_bf16_f32 v{T2+2*m+1}, v{XN+4*m+2}, v{XN+4*m+3}")
        a(f"ds_write_b64 v13, v[{T2+2*m}:{T2+2*m+1}] offset:{m*512}")
    pstamp(a, 10)
    a("s_waitcnt lgkmcnt(0)")
    a("s_barrier")
    pstamp(a, 11)
    finish_stamps("H")
    a.label("PK_END")
    a("s_endpgm")
    return a

def build():
    ref = open(f"cdna_kernels/{NAME}.s.ref").read().splitlines()
    head = []
    for l in ref:
        if l.startswith("; Override"): break
        head.append(l)
    body = gen()
    out = "\n".join(head) + "\n"
    if os.environ.get("AMP"):
        out += f"; @launch kernel={NAME}_kernel grid=({GRID},1,1) block=({BLOCK},1,1) lds={LDS_BYTES}\n"
        out += f"; @launch kernel=amp_kernel grid=(1,1,1) block=(64,1,1) lds=0\n"
        b = Asm()
        kernel_begin(b, "amp_kernel")
        b("s_cmp_ge_u32 s2, 1")
        b("s_cbranch_scc1 AMP_END")
        b("s_load_dwordx2 s[4:5], s[0:1], 96")
        b("s_waitcnt lgkmcnt(0)")
        b("s_sub_u32 s8, s4, 512")
        b("s_subb_u32 s9, s5, 0")
        b("s_mov_b32 s10, 256")
        b("s_mov_b32 s11, 0x00020000")
        b("v_mov_b32 v1, 0")
        b("buffer_load_dword v2, v1, s[8:11], 0 offen sc1")
        b("buffer_load_dword v3, v1, s[8:11], 0 offen offset:128 sc1")
        b("s_waitcnt vmcnt(0)")
        b("v_readfirstlane_b32 s12, v2")
        b("v_readfirstlane_b32 s13, v3")
        b("s_nop 3")
        b("s_not_b32 s13, s13")
        b("s_sub_u32 s12, s12, s13")
        b("s_min_u32 s12, s12, 10000")
        b(f"s_mul_i32 s12, s12, {int(os.environ['AMP'])}")
        b("s_memrealtime s[14:15]")
        b("s_waitcnt lgkmcnt(0)")
        b.label("AMP_L")
        b("s_memrealtime s[16:17]")
        b("s_waitcnt lgkmcnt(0)")
        b("s_sub_u32 s18, s16, s14")
        b("s_cmp_lt_u32 s18, s12")
        b("s_cbranch_scc1 AMP_L")
        b.label("AMP_END")
        b("s_endpgm")
    else:
        out += f"; @launch grid=({GRID},1,1) block=({BLOCK},1,1) lds={LDS_BYTES}\n"
    out += '.amdgcn_target "amdgcn-amd-amdhsa--gfx950"\n.text\n'
    out += body.text()
    if os.environ.get("AMP"): out += b.text()
    out += '.section .rodata,"a"\n' + kernel_desc(NAME + "_kernel", 256, 102, 128)
    if os.environ.get("AMP"): out += kernel_desc("amp_kernel", 8, 32)
    return out
if __name__ == "__main__":
    import sys
    out = sys.argv[1] if len(sys.argv) > 1 else f"cdna_kernels/{NAME}.s"
    open(out, "w").write(build())
    print("wrote", out)
```

```python
import os, math
from asmlib import *
from layout import *

NAME = "parallel_sum__ssm_conv_h3__mixer_token_mlp__prompt"
GRID, BLOCK, LDS_BYTES = 256, 512, 163840
NT = os.environ.get("NT", "")
BIG = 0x40000000
SPIN_MAX = 20000
E = lambda k, d: int(os.environ.get(k, d))

S_X, S_K, S_V, S_SHK, S_SSMK, S_SSMD, S_W1, S_B1, S_W2, S_B2, S_OUT, S_WS = [32 + 4 * i for i in range(12)]
def R(b): return f"s[{b}:{b+3}]"
sEP, sDT, sFT, sDT2, sST, sRING, sPOS, sWOFF, sHOFF, sKB = range(80, 90)
sT0, sT1, sT2, sT3, sCH, sCVB, sG1BIG, sKVBIG, sC1, sSPIN, sROT, sT4 = range(90, 102)
sROT2, sKB2 = sCH, sCVB

FS = E("FS", 4)
NSLOT = 7
NR1 = E("NR1", 7)
NR2 = 5
RINGB = NSLOT * 4096
AUX = 4 * RINGB
LNX = AUX
HROW = 1344
KVX = LNX + 8 * HROW
CV_K0, CV_K1, CONV_SZ = 4608, 8768, 12928
PT_LDS = AUX + 3 * CONV_SZ
CNT = PT_LDS + 4 * 2560
assert KVX + 16384 <= PT_LDS and CNT + 64 <= LDS_BYTES and KVX % 128 == 0

class VM:
    def __init__(self, a): self.a = a; self.q = []
    def op(self, ins, tag): self.a(ins); self.q.append(tag)
    def count(self, tag):
        idx = [i for i, t in enumerate(self.q) if t == tag]
        return len(self.q) - 1 - idx[-1] if idx else None
    def wait(self, tag, extra=""):
        n = self.count(tag)
        if n is None:
            if extra: self.a(f"s_waitcnt {extra}")
            return
        self.a(f"s_waitcnt vmcnt({min(n, 63)}) {extra}")
        self.q = self.q[len(self.q) - n:] if n else []
    def reset(self): self.q = []

TIMER = "s_memtime" if os.environ.get("CYC") else "s_memrealtime"
MUTE = [False]
def pstamp(a, i, force=False):
    if STAMP and (force or not MUTE[0]): a(f"{TIMER} s[{4+2*i}:{5+2*i}]")
def pk(r): return f"v[{r}:{r+1}]"

def gen():
    a = Asm()
    vm = VM(a)
    def emit(items):
        for it in items:
            if isinstance(it, list): emit(it)
            elif isinstance(it, tuple): vm.op(it[0], it[1])
            else: a(it)
    def flag_store(soff, tmp=2):
        a(f"v_mov_b32 v{tmp}, s{sEP}")
        a(f"v_mov_b32 v{tmp+1}, s{soff}")
        a("s_mov_b64 exec, 1")
        vm.op(f"buffer_store_dword v{tmp}, v{tmp+1}, {R(S_WS)}, 0 offen sc1", "flag")
        a("s_mov_b64 exec, -1")
    def spin(label, pairs, first_tag=None, sleep=0):
        def check():
            a(f"v_cmp_ne_u32 vcc, s{sEP}, v{pairs[0][1]}")
            for _, d in pairs[1:]:
                a(f"v_cmp_ne_u32 s[28:29], s{sEP}, v{d}")
                a("s_or_b64 vcc, vcc, s[28:29]")
        if first_tag:
            vm.wait(first_tag)
            check()
            a(f"s_cbranch_vccz {label}_OK")
        a(f"s_mov_b32 s{sSPIN}, 0")
        a.label(label)
        if sleep: a(f"s_sleep {sleep}", "poll back-off")
        for ad, d in pairs:
            a(f"buffer_load_dword v{d}, v{ad}, {R(S_WS)}, 0 offen sc1")
        a(f"s_add_u32 s{sSPIN}, s{sSPIN}, 1")
        a("s_waitcnt vmcnt(0)")
        check()
        a(f"s_cmp_gt_u32 s{sSPIN}, {SPIN_MAX}")
        a(f"s_cbranch_scc1 {label}_OK")
        a(f"s_cbranch_vccnz {label}")
        a.label(label + "_OK")
        if not first_tag: vm.reset()
    def lds_arrive(idx, t=2):
        a(f"v_mov_b32 v{t}, {CNT + 4*idx}")
        a(f"v_mov_b32 v{t+1}, 1")
        a("s_waitcnt lgkmcnt(0)")
        a("s_mov_b64 exec, 1")
        a(f"ds_add_u32 v{t}, v{t+1}")
        a("s_mov_b64 exec, -1")
    def lds_wait(label, idx, n=4, t=2, sleep=0):
        a(f"v_mov_b32 v{t}, {CNT + 4*idx}")
        a(f"s_mov_b32 s{sSPIN}, 0")
        a.label(label)
        if sleep: a(f"s_sleep {sleep}", "poll back-off")
        a(f"ds_read_b32 v{t+1}, v{t}")
        a(f"s_add_u32 s{sSPIN}, s{sSPIN}, 1")
        a(f"s_cmp_gt_u32 s{sSPIN}, {1 << 21}")
        a("s_waitcnt lgkmcnt(0)")
        a(f"v_cmp_gt_u32 vcc, {n}, v{t+1}")
        a(f"s_cbranch_scc1 {label}_OK")
        a(f"s_cbranch_vccnz {label}")
        a.label(label + "_OK")
    def sbar(label, idx, t=2):
        lds_arrive(idx, t); lds_wait(label, idx, 4, t)
    def read_epoch(vdata):
        vm.wait("ep")
        a(f"v_readfirstlane_b32 s{sEP}, v{vdata}")
        a("s_nop 3")
        a(f"s_mul_i32 s{sEP}, s{sEP}, 1664525")
        a(f"s_add_u32 s{sEP}, s{sEP}, 1013904223")
    def finish_stamps(role='X'):
        if not STAMP: return
        a("s_waitcnt vmcnt(0)")
        a(f"{TIMER} s[28:29]")
        a("s_waitcnt lgkmcnt(0)")
        if os.environ.get("AMP") and role == os.environ.get("AMPROLE", "G"):
            a("s_load_dwordx2 s[30:31], s[0:1], 96")
            a("s_waitcnt lgkmcnt(0)")
            srd(a, S_K, 30, 256)
            a("s_cmp_lg_u32 s3, 0")
            a(f"s_cbranch_scc1 AMPSKIP{role}")
            a("v_mov_b32 v1, 0")
            a("s_mov_b64 exec, 1")
            a(f"v_mov_b32 v2, s{4+2*int(os.environ['AMPIDX'])}")
            a(f"buffer_atomic_umax v2, v1, {R(S_K)}, 0 offen")
            a("s_not_b32 s4, s4")
            a("v_mov_b32 v2, s4")
            a(f"buffer_atomic_umax v2, v1, {R(S_K)}, 0 offen offset:128")
            a("s_not_b32 s4, s4")
            a("s_mov_b64 exec, -1")
            a.label(f"AMPSKIP{role}")
        a("s_load_dwordx2 s[30:31], s[0:1], 104")
        a("s_waitcnt lgkmcnt(0)")
        srd(a, S_X, 30, 1 << 20, 16 << 20)
        a(f"s_lshl_b32 s{sT0}, s2, 9")
        a("v_lshrrev_b32 v1, 6, v0")
        a(f"v_lshl_add_u32 v1, v1, 6, s{sT0}")
        a("s_mov_b64 exec, 1")
        for i in range(13):
            a(f"v_mov_b32 v2, s{4+2*i}")
            a(f"buffer_store_dword v2, v1, {R(S_X)}, 0 offen offset:{4*i}")

    kernel_begin(a, NAME + "_kernel")
    a(f"s_cmp_ge_u32 s2, {GRID}")
    a("s_cbranch_scc1 PK_END")
    a("s_load_dwordx8 s[4:11], s[0:1], 0", "x k v shift_k")
    a("s_load_dwordx2 s[26:27], s[0:1], 104", "ws")
    a("s_load_dwordx8 s[16:23], s[0:1], 56", "w1 b1 w2 b2")
    a("s_load_dwordx4 s[12:15], s[0:1], 32", "ssm_k ssm_D")
    a("s_load_dwordx2 s[24:25], s[0:1], 88", "out")
    if STAMP: a(f"{TIMER} s[30:31]")
    a("v_lshrrev_b32 v2, 6, v0")
    a("v_and_b32 v1, 63, v0", "lane")
    a(f"v_readfirstlane_b32 s{sT4}, v2", "wave 0..7")
    a("v_lshlrev_b32 v3, 2, v1", "lane*4")
    a(f"v_and_b32 v4, 60, v3")
    a(f"v_add_u32 v4, {CNT}, v4")
    a("v_mov_b32 v5, 0")
    a("ds_write_b32 v4, v5", "zero the 16 lds counters")
    a(f"s_and_b32 s3, s{sT4}, 3", "w within the role")
    a(f"s_and_b32 s{sT0}, s2, 7", "x")
    a(f"s_lshr_b32 s{sT1}, s2, 3", "j")
    a(f"s_and_b32 s{sT2}, s{sT0}, 1")
    a(f"s_lshl_b32 s{sDT2}, s{sT2}, 2")
    a(f"s_and_b32 s{sT3}, s{sT1}, 3")
    a(f"s_add_u32 s{sDT2}, s{sDT2}, s{sT3}", "dt2")
    a(f"s_lshr_b32 s{sT0}, s{sT0}, 1")
    a(f"s_lshl_b32 s{sST}, s{sT0}, 3")
    a(f"s_lshr_b32 s{sT3}, s{sT1}, 2")
    a(f"s_add_u32 s{sST}, s{sST}, s{sT3}", "st")
    a(f"v_mov_b32 v8, {EPOCH_OFF}")
    a(f"s_cmp_lt_u32 s{sT4}, 4")
    a("s_cbranch_scc1 PK_G")
    a("s_setprio 3")
    a(f"s_lshl_b32 s{sT0}, s2, 2")
    a(f"s_add_u32 s{sT0}, s{sT0}, s3")
    a(f"s_mul_i32 s{sT4}, s{sT0}, 2560", "x soffset")
    a("s_waitcnt lgkmcnt(0)")
    srd(a, S_X, 4, SD_BYTES)
    for r in range(2):
        for i in range(5):
            a(f"buffer_load_dword v{16+5*r+i}, v3, {R(S_X)}, s{sT4} offen offset:{r*1280+i*256} {NT}")
    a("s_barrier", "lds counters zeroed")
    a("s_branch PK_H")
    a.label("PK_G")
    a("s_getpc_b64 s[28:29]")
    a.label("PK_PC")
    a(f"s_sub_u32 s28, s28, PK_PC-{NAME}_kernel")
    a("s_subb_u32 s29, s29, 0")
    a("v_and_b32 v9, 7, v0")
    a(f"s_andn2_b32 s{sT3}, s2, 7")
    a(f"v_add_lshl_u32 v9, v9, s{sT3}, 7")
    a(f"v_min_u32 v9, PK_END-{NAME}_kernel, v9")
    a("global_load_dword v127, v9, s[28:29]")

    a("s_setprio 1")
    a(f"s_mul_hi_u32 s{sFT}, s{sT1}, 0x33333334", "j/5")
    a(f"s_mul_i32 s{sT3}, s{sFT}, 5")
    a(f"s_sub_u32 s{sDT}, s{sT1}, s{sT3}", "j%5")
    a(f"s_mul_i32 s{sROT}, s{sDT}, 13")
    a(f"s_lshr_b32 s{sROT}, s{sROT}, 2", "rot = 3.25*dt_local")
    if not E("ROT", 1): a(f"s_mov_b32 s{sROT}, 0")
    if E("ROT", 1) == 2:
        a(f"s_add_u32 s{sROT}, s{sDT}, s{sFT}")
        a(f"s_sub_u32 s{sT3}, s{sROT}, 6")
        a(f"s_min_u32 s{sROT}, s{sROT}, s{sT3}")
        a(f"s_mul_i32 s{sROT}, s{sROT}, 11")
        a(f"s_lshr_b32 s{sROT}, s{sROT}, 2", "2.75 * index")
    a(f"s_mul_i32 s{sT3}, s{sT2}, 5")
    a(f"s_add_u32 s{sDT}, s{sDT}, s{sT3}", "dt")
    a(f"s_mul_i32 s{sT3}, s{sT0}, 6")
    a(f"s_add_u32 s{sFT}, s{sFT}, s{sT3}", "ft")
    a(f"s_cmp_ge_u32 s{sT1}, 30")
    a(f"s_cselect_b32 s{sG1BIG}, {BIG}, 0")
    a(f"s_mul_i32 s{sRING}, s3, {RINGB}")
    a(f"s_lshl_b32 s{sKB}, s3, 4")
    a(f"s_mov_b32 s{sPOS}, s{sROT}")
    a("v_lshrrev_b32 v2, 3, v1")
    a("v_mul_u32_u24 v4, 3072, v2")
    a("v_bfe_u32 v2, v1, 4, 1")
    a("v_lshlrev_b32 v2, 2, v2")
    a("v_and_b32 v3, 7, v1")
    a("v_xor_b32 v2, v2, v3")
    a("v_lshl_add_u32 v4, v2, 4, v4")
    a(f"s_lshl_b32 s{sT1}, s{sFT}, 7")
    a(f"s_add_u32 s{sT1}, s{sT1}, s{sG1BIG}")
    a(f"v_add_u32 v4, s{sT1}, v4")
    for q in range(1, 4):
        a(f"v_add_u32 v{4+q}, {q*(24576-1024)}, v4")
    a("s_waitcnt lgkmcnt(0)")
    srd(a, S_W1, 16, S * F * 2)
    a("s_barrier", "lds counters zeroed")
    def w1_stage(i):
        items = [f"s_add_u32 s{sWOFF}, s{sKB}, s{sPOS}", f"s_mul_i32 s{sWOFF}, s{sWOFF}, 98304",
                 f"s_add_u32 m0, s{sRING}, {(i % NSLOT)*4096}", f"s_add_u32 s{sPOS}, s{sPOS}, 1", f"s_and_b32 s{sPOS}, s{sPOS}, 15"]
        for q in range(4):
            items.append((f"buffer_load_dwordx4 v{4+q}, {R(S_W1)}, s{sWOFF} offen offset:{q*1024} lds", f"w1_{i}"))
        return items
    def w1_tr(i):
        out = []
        for kh in range(2):
            for mt in range(2):
                for h in range(2):
                    r = 16 * (i % NR1) + 4 * (2 * kh + mt) + 2 * h
                    out.append(f"ds_read_b64_tr_b16 a[{r}:{r+1}], v{10+mt} offset:{(i % NSLOT)*4096 + kh*2048 + h*512}")
        return out
    WD = E("WD", 2)
    for i in range(WD): emit(w1_stage(i))
    srd(a, S_WS, 26, WS_USED, E("WSMB", 0) << 20)
    vm.op(f"buffer_load_dword v9, v8, {R(S_WS)}, 0 offen sc1", "ep")
    srd(a, S_W2, 20, S * F * 2)
    srd(a, S_B2, 22, S * 2)
    srd(a, S_OUT, 24, SD_BYTES)
    if STAMP:
        a("s_mov_b32 s4, s30"); a("s_mov_b32 s5, s31")
    pstamp(a, 1)
    a("v_lshrrev_b32 v2, 5, v1")
    a("v_lshlrev_b32 v10, 10, v2")
    a("v_mul_u32_u24 v12, 10240, v2")
    a("v_bfe_u32 v2, v1, 2, 2")
    a("v_lshl_add_u32 v10, v2, 7, v10")
    a("v_bfe_u32 v2, v1, 3, 1")
    a("v_lshl_add_u32 v10, v2, 6, v10")
    a("v_bfe_u32 v2, v1, 4, 1")
    a("v_lshl_add_u32 v10, v2, 5, v10")
    a("v_and_b32 v2, 3, v1")
    a("v_lshl_add_u32 v10, v2, 3, v10")
    a(f"v_add_u32 v10, s{sRING}, v10")
    a("v_xor_b32 v11, 64, v10")
    a("v_and_b32 v2, 31, v1")
    a("v_lshl_add_u32 v12, v2, 4, v12")
    a(f"s_lshl_b32 s{sT0}, s{sDT}, 10")
    a(f"s_add_u32 s{sT0}, s{sT0}, s{sG1BIG}")
    if HBLK_OFF: a(f"s_add_u32 s{sT0}, s{sT0}, {HBLK_OFF}")
    a(f"v_add_u32 v12, s{sT0}, v12")
    a("v_add_u32 v13, 20480, v12")
    a(f"s_and_b32 s{sT0}, s{sDT}, 3")
    a(f"s_lshl_b32 s{sT0}, s{sT0}, {8+FS}")
    a(f"s_add_u32 s{sT0}, s{sT0}, {FH_OFF}")
    a(f"v_lshl_add_u32 v14, v0, {FS}, s{sT0}")
    a(f"s_and_b32 s{sROT2}, s{sDT2}, 3")
    a(f"s_mul_i32 s{sROT2}, s{sROT2}, 3")
    if E("ROT2", 1) == 2:
        a(f"s_and_b32 s{sT0}, s{sST}, 7")
        a(f"s_mul_i32 s{sT0}, s{sT0}, 3")
        a(f"s_lshr_b32 s{sT0}, s{sT0}, 1")
        a(f"s_add_u32 s{sROT2}, s{sROT2}, s{sT0}")
        a(f"s_sub_u32 s{sT0}, s{sROT2}, 12")
        a(f"s_min_u32 s{sROT2}, s{sROT2}, s{sT0}")
    a(f"s_mul_i32 s{sKB2}, s3, 12")
    c0 = -2.0 * math.sqrt(2.0 / math.pi) * math.log2(math.e)
    a(f"s_mov_b32 s{sC1}, {f32(c0*0.044715)}")
    NPRE = NR1 + NSLOT
    BURST = E("BURST", 1)
    last = NR1 if BURST else NPRE - WD + 1
    for i in range(last):
        vm.wait(f"w1_{i}")
        if i < NR1: emit(w1_tr(i))
        nx = i + WD
        if nx < NPRE:
            if nx >= NSLOT:
                later = sum(1 for k in range(nx - NSLOT + 1, i + 1) if k < NR1)
                a(f"s_waitcnt lgkmcnt({8 if later else 0})")
            emit(w1_stage(nx))
        if i == WD:
            read_epoch(9); lds_arrive(6)
    EARLY = E("EARLY", 0); NP0 = E("NP0", 10)
    sLATE = 31
    if BURST:
        a("s_waitcnt lgkmcnt(0)")
        if EARLY:
            assert NR1 == 7
            vm.op(f"buffer_load_dword v15, v14, {R(S_WS)}, 0 offen sc1", "hpoll0")
            for nx in range(NR1 - 1 + WD + 1, NP0): emit(w1_stage(nx))
            lds_wait("PK_B1W", 1)
            vm.wait("hpoll0")
            a(f"v_cmp_ne_u32 vcc, s{sEP}, v15")
            a(f"s_mov_b32 s{sLATE}, 1")
            pstamp(a, 2)
            a("s_cbranch_vccz PK_SPIN_H_OK")
            a(f"s_mov_b32 s{sLATE}, 0")
            keep = list(vm.q)
            for nx in range(NP0, NPRE): emit(w1_stage(nx))
            vm.q = keep
        else:
            for nx in range(NR1 - 1 + WD + 1, NPRE): emit(w1_stage(nx))
    if E("W1ONLY", 0):
        a("s_waitcnt vmcnt(0)")
        for i in range(2, 12): pstamp(a, i)
        finish_stamps()
        a("s_endpgm")
    if EARLY:
        keep = list(vm.q)
        spin("PK_SPIN_H", [(14, 15)])
        vm.q = keep
    else:
        vm.op(f"buffer_load_dword v15, v14, {R(S_WS)}, 0 offen sc1", "hpoll")
        lds_wait("PK_B1W", 1)
        pstamp(a, 2)
        spin("PK_SPIN_H", [(14, 15)], "hpoll")
    if E("GBAR1", 0): sbar("PK_GB1", 13)
    pstamp(a, 3)
    a("s_setprio 2")
    ACC = 64
    HB = [("v", 16), ("v", 32), ("v", 48)] + [("a", 16 * k) for k in range(NR1, 8)]
    HD = len(HB)
    HB = HB[-((16 - 0) % HD or HD):] + HB[:-((16 - 0) % HD or HD)] if False else HB
    def hreg(i, kh, nt):
        f, b = HB[(i + HSH) % HD]
        r = b + 4 * (2 * kh + nt)
        return f"{f}[{r}:{r+3}]"
    HSH = (1 - 13) % HD
    sHP = sKVBIG
    a(f"s_mov_b32 s{sHP}, s{sROT}")
    def h_adv():
        return [f"s_add_u32 s{sHOFF}, s{sKB}, s{sHP}", f"s_mul_i32 s{sHOFF}, s{sHOFF}, 40960",
                f"s_add_u32 s{sHP}, s{sHP}, 1", f"s_and_b32 s{sHP}, s{sHP}, 15"]
    def hload(i, nt, kh):
        return (f"buffer_load_dwordx4 {hreg(i, kh, nt)}, v{12+kh}, {R(S_WS)}, s{sHOFF} offen offset:{nt*512} {os.environ.get('HFLAG', 'sc1')}", f"h{i}_{kh}{nt}")
    HPRE = E("HPRE", HD)
    for i in range(HPRE):
        emit(h_adv())
        for kh in range(2):
            for nt in range(2): emit([hload(i, nt, kh)])
    a("s_waitcnt lgkmcnt(0)")
    def pos2(i):
        return [f"s_add_u32 s{sT0}, s{sROT2}, {i}", f"s_sub_u32 s{sT1}, s{sT0}, 12", f"s_min_u32 s{sT0}, s{sT0}, s{sT1}",
                f"s_add_u32 s{sT0}, s{sT0}, s{sKB2}"]
    def w2_slot(i): return i % NSLOT
    def w2_dma(i):
        items = pos2(i) + [f"s_add_u32 m0, s{sRING}, {w2_slot(i)*4096}", f"s_lshl_b32 s{sWOFF}, s{sT0}, 17"]
        for q in range(4):
            items.append((f"buffer_load_dwordx4 v{4+q}, {R(S_W2)}, s{sWOFF} offen offset:{q*1024} lds", f"w2_{i}"))
        return items
    BB = 16
    for i in range(16):
        nx = i + HPRE
        if E("G1STEPS", 0):
            MUTE[0] = True
            if i in (1, 3, 5, 7, 9, 11, 13): pstamp(a, 4 + i // 2, True)
        if nx < 16: emit(h_adv())
        side = []
        if EARLY:
            if 4 <= i <= 12:
                if i + 3 < NP0: vm.wait(f"w1_{i+3}")
                side = w1_tr(i + 3)
            if i >= 6: a("s_waitcnt lgkmcnt(8)" if i <= 13 else "s_waitcnt lgkmcnt(0)")
            if NP0 + i <= 13:
                a(f"s_cmp_eq_u32 s{sLATE}, 0")
                a(f"s_cbranch_scc1 PK_NOLATE{i}")
                keep = list(vm.q); emit(w1_stage(NP0 + i)); vm.q = keep
                a.label(f"PK_NOLATE{i}")
            if i in (6, 7): emit(w1_stage(8 + i))
        else:
            st_tr = NR1 - 1 + i
            if i >= 1 and st_tr < 16:
                vm.wait(f"w1_{st_tr}")
                side = w1_tr(st_tr)
            st_ld = NPRE + i - 3
            if i >= 3 and st_ld < 16:
                a("s_waitcnt lgkmcnt(8)")
                emit(w1_stage(st_ld))
            elif i >= NR1:
                a("s_waitcnt lgkmcnt(8)" if NR1 - 1 + i - 1 < 16 else "s_waitcnt lgkmcnt(0)")
        if E("KV_LATE", 0) and i == E("KV_LATE", 0):
            a(f"v_mov_b32 v2, {CNT + 48}")
            a("s_mov_b64 exec, 1")
            a("ds_add_u32 v2, v2")
            a("s_mov_b64 exec, -1")
        if i == 12:
            side = side + ["v_lshrrev_b32 v2, 3, v1", "v_lshlrev_b32 v4, 12, v2", "v_bfe_u32 v2, v1, 4, 1", "v_lshlrev_b32 v2, 1, v2",
                    "v_and_b32 v3, 7, v1", "v_xor_b32 v2, v2, v3", "v_lshl_add_u32 v4, v2, 4, v4", f"s_lshl_b32 s{sT0}, s{sST}, 7",
                    f"v_add_u32 v4, s{sT0}, v4", "v_xor_b32 v2, 64, v4", f"v_add_u32 v5, {1*(32768-1024)}, v2",
                    f"v_add_u32 v6, {2*(32768-1024)}, v4", f"v_add_u32 v7, {3*(32768-1024)}, v2",
                    ]
        if i == E("KGO", 11): lds_arrive(10)
        if i == 13:
            side = [f"s_add_u32 s{sT2}, s{sRING}, {3*4096}", f"v_lshl_add_u32 v9, v1, 4, s{sT2}",
                    f"s_lshl_b32 s{sT2}, s3, 12", f"s_add_u32 s{sT2}, s{sT2}, {3*4096}", f"v_lshl_add_u32 v10, v1, 4, s{sT2}",
                    f"v_add_u32 v11, {2*RINGB}, v10",
                    f"s_lshr_b32 s{sT0}, s3, 1", f"s_lshl_b32 s{sT0}, s{sT0}, 6", f"s_add_u32 s{sT0}, s{sT0}, {PT_LDS}",
                    "v_lshrrev_b32 v8, 5, v1", f"v_lshl_add_u32 v8, v8, 3, s{sT0}",
                    f"s_lshr_b32 s{sT0}, s3, 1", f"s_lshl_b32 s{sT0}, s{sT0}, 2", f"s_lshl_b32 s{sT1}, s{sFT}, 3",
                    f"s_add_u32 s{sT0}, s{sT0}, s{sT1}", f"s_mul_i32 s{sT0}, s{sT0}, 10240", f"s_and_b32 s{sT1}, s3, 1",
                    f"s_lshl_b32 s{sT1}, s{sT1}, 9", f"s_add_u32 s{sT0}, s{sT0}, s{sT1}",
                    f"s_add_u32 s{sT0}, s{sT0}, {UBLK_OFF - HBLK_OFF - 20480}", f"v_add_u32 v14, s{sT0}, v13", "v_add_u32 v15, 20480, v14",
                    f"v_mov_b32 v13, {f32(c0)}", "s_mov_b32 s28, 1.0", "s_mov_b32 s29, 1.0"]
        if i == 14:
            side = [f"ds_read_b64 v[{32+2*q}:{33+2*q}], v8 offset:{16*q}" for q in range(4)]
        if i == 15:
            for kh in range(2):
                for nt in range(2): vm.wait(f"h{i}_{kh}{nt}")
            def mf(t_):
                mt, nt = t_ >> 1, t_ & 1
                t = ACC + 16 * t_
                for kh in range(2):
                    wr = 16 * (i % NR1) + 4 * (2 * kh + mt)
                    a(f"v_mfma_f32_32x32x16_bf16 v[{t}:{t+15}], a[{wr}:{wr+3}], {hreg(i, kh, nt)}, v[{t}:{t+15}]")
            def wr_(t_):
                for q in range(4):
                    r = ACC + 16 * t_ + 4 * q
                    a(f"ds_write_b128 v9, v[{r}:{r+3}] offset:{t_*4096 + q*1024}")
            FIN = 48
            mf(0); mf(1)
            a("s_waitcnt lgkmcnt(0)")
            for q in range(0, 10, 2):
                a(f"v_lshlrev_b32 v{FIN+q}, 16, v{32+q//2}")
                a(f"v_and_b32 v{FIN+q+1}, 0xffff0000, v{32+q//2}")
            wr_(0); mf(2); wr_(1); mf(3)
            for q in range(10, 16, 2):
                a(f"v_lshlrev_b32 v{FIN+q}, 16, v{32+q//2}")
                a(f"v_and_b32 v{FIN+q+1}, 0xffff0000, v{32+q//2}")
            wr_(2)
            a("s_nop 1")
            wr_(3)
            continue
        k = 0; si = 0
        for kh in range(2):
            for nt in range(2):
                vm.wait(f"h{i}_{kh}{nt}")
                for mt in range(2):
                    t = ACC + 16 * (2 * mt + nt)
                    wr = 16 * (i % NR1) + 4 * (2 * kh + mt)
                    c = "0" if (i == 0 and kh == 0) else f"v[{t}:{t+15}]"
                    if not E("NOMF1", 0): a(f"v_mfma_f32_32x32x16_bf16 v[{t}:{t+15}], a[{wr}:{wr+3}], {hreg(i, kh, nt)}, {c}")
                    k += 1
                    while si < (len(side) * k + 7) // 8:
                        emit([side[si]]); si += 1
                if nx < 16: emit([hload(nx, nt, kh)])
    pstamp(a, 4)
    if E("G1STEPS", 0): pstamp(a, 11, True)
    lds_arrive(4)
    H3L = E("H3L", 0)
    if not H3L: emit(w2_dma(0)); emit(w2_dma(1))
    lds_wait("PK_XW1", 4)
    PT = 64
    for o in range(4):
        for q in range(4):
            r = PT + 16 * o + 4 * q
            a(f"ds_read_b128 v[{r}:{r+3}], v{10+o//2} offset:{(o&1)*RINGB + q*1024}")
    for o in range(4):
        a(f"s_waitcnt lgkmcnt({12-4*o})")
        for i in range(0, 16, 2):
            a(f"v_pk_add_f32 {pk(FIN+i)}, {pk(FIN+i)}, {pk(PT+16*o+i)}")
    lds_arrive(5)
    T = 64
    for i in range(0, 16, 2): a(f"v_pk_mul_f32 {pk(T+i)}, {pk(FIN+i)}, {pk(FIN+i)}")
    for i in range(16): a(f"v_fma_f32 v{T+i}, v{T+i}, s{sC1}, v13")
    for i in range(0, 16, 2): a(f"v_pk_mul_f32 {pk(T+i)}, {pk(T+i)}, {pk(FIN+i)}")
    for i in range(16): a(f"v_exp_f32 v{T+i}, v{T+i}")
    if E("W2MID", 0): emit(w2_dma(2))
    for i in range(0, 16, 2): a(f"v_pk_add_f32 {pk(T+i)}, {pk(T+i)}, s[28:29]")
    for i in range(16): a(f"v_rcp_f32 v{T+i}, v{T+i}")
    for i in range(0, 16, 2): a(f"v_pk_mul_f32 {pk(FIN+i)}, {pk(FIN+i)}, {pk(T+i)}")
    P = T + 16
    for i in range(0, 16, 2): a(f"v_cvt_pk_bf16_f32 v{P+i//2}, v{FIN+i}, v{FIN+i+1}")
    a("s_nop 1")
    for qp in range(2):
        r = P + 4 * qp
        a(f"v_permlane32_swap_b32 v{r}, v{r+2}")
        a(f"v_permlane32_swap_b32 v{r+1}, v{r+3}")
        vm.op(f"buffer_store_dwordx4 v[{r}:{r+3}], v{14+qp}, {R(S_WS)}, 0 offen sc1", "ust")
    pstamp(a, 5)
    lds_arrive(8)
    a(f"s_lshl_b32 s{sT0}, s{sDT}, 1")
    a(f"s_and_b32 s{sT1}, s3, 1")
    a(f"s_add_u32 s{sT0}, s{sT0}, s{sT1}")
    a(f"s_mul_i32 s{sT0}, s{sT0}, 48")
    a(f"s_lshl_b32 s{sT1}, s{sFT}, 1")
    a(f"s_add_u32 s{sT0}, s{sT0}, s{sT1}")
    a(f"s_lshr_b32 s{sT1}, s3, 1")
    a(f"s_add_u32 s{sT0}, s{sT0}, s{sT1}")
    a(f"s_lshl_b32 s{sT0}, s{sT0}, {FS}")
    a(f"s_add_u32 s{sT0}, s{sT0}, {FU_OFF}")
    a(f"s_add_u32 s{sT4}, s{sT0}, s{sG1BIG}")
    TR2 = 100
    a("v_lshrrev_b32 v106, 4, v1", "g")
    a("v_and_b32 v107, 15, v1", "n")
    a(f"v_lshlrev_b32 v{TR2}, 10, v106")
    a("v_bfe_u32 v2, v1, 2, 2")
    a(f"v_lshl_add_u32 v{TR2}, v2, 7, v{TR2}")
    a("v_bfe_u32 v2, v1, 3, 2")
    a(f"v_lshl_add_u32 v{TR2}, v2, 5, v{TR2}")
    a("v_and_b32 v2, 3, v1")
    a(f"v_lshl_add_u32 v{TR2}, v2, 3, v{TR2}")
    a(f"v_add_u32 v{TR2}, s{sRING}, v{TR2}")
    for j in range(1, 4): a(f"v_xor_b32 v{TR2+j}, {32*j}, v{TR2}")
    a("v_min_u32 v2, 35, v1")
    a("v_mul_u32_u24 v3, 43, v2")
    a("v_lshrrev_b32 v3, 9, v3")
    a("v_mul_u32_u24 v104, 36, v3")
    a("v_add_u32 v104, v104, v2")
    a(f"s_mul_i32 s{sT3}, s{sDT2}, 80", "d0")
    a(f"s_lshr_b32 s{sT0}, s{sT3}, 5")
    a(f"s_mul_i32 s{sT0}, s{sT0}, 48")
    a(f"s_add_u32 s{sT0}, s{sT0}, s{sKB2}")
    a(f"s_lshl_b32 s{sT0}, s{sT0}, {FS}")
    a(f"s_add_u32 s{sT0}, s{sT0}, {FU_OFF}")
    a(f"v_lshl_add_u32 v104, v104, {FS}, s{sT0}")
    a("v_mul_u32_u24 v105, 10240, v106")
    a("v_lshl_add_u32 v105, v107, 4, v105")
    a(f"s_lshl_b32 s{sT0}, s{sT3}, 4")
    a(f"s_add_u32 s{sT0}, s{sT0}, {UBLK_OFF}")
    a(f"v_add_u32 v105, s{sT0}, v105")
    def w2_tr(i, tr):
        out = []
        for j in range(4):
            for h in range(2):
                r = 16 * (i % NR2) + 4 * j + 2 * h
                out.append(f"ds_read_b64_tr_b16 a[{r}:{r+1}], v{tr+j} offset:{w2_slot(i)*4096 + h*512}")
        return out
    if H3L:
        lds_wait("PK_XW2", 5, n=5)
        for k in range(3): emit(w2_tr(k, TR2))
        vm.wait("ust")
        flag_store(sT4)
        pstamp(a, 6)
        emit(w2_dma(3)); emit(w2_dma(4))
        a("s_waitcnt lgkmcnt(0)")
    else:
        vm.wait("w2_1")
        for k in range(2): emit(w2_tr(k, TR2))
        lds_wait("PK_XW2", 5)
        vm.wait("ust")
        flag_store(sT4)
        pstamp(a, 6)
        if not E("W2MID", 0): emit(w2_dma(2))
        emit(w2_dma(3)); emit(w2_dma(4))
        vm.wait("w2_2")
        emit(w2_tr(2, TR2))
        a("s_waitcnt lgkmcnt(0)")
    if E("BURST2", 1):
        for nx in range(5, 10): emit(w2_dma(nx))
        for i in (3, 4):
            vm.wait(f"w2_{i}"); emit(w2_tr(i, TR2))
        a("s_waitcnt lgkmcnt(0)")
        emit(w2_dma(10)); emit(w2_dma(11))
        vm.op(f"buffer_load_dword v108, v104, {R(S_WS)}, 0 offen sc1", "upoll")
    else:
      for i in range(3, 12):
        nx = i + 2
        if nx < 12:
            if nx >= 9: a("s_waitcnt lgkmcnt(0)")
            emit(w2_dma(nx))
        vm.wait(f"w2_{i}")
        if i < NR2: emit(w2_tr(i, TR2))
        if i == E("UPOLL_AT", 10):
            vm.op(f"buffer_load_dword v108, v104, {R(S_WS)}, 0 offen sc1", "upoll")
    for j in range(4): a(f"v_mov_b32 v{4+j}, v{TR2+j}")
    a("v_mul_u32_u24 v109, 26, v1")
    a("v_lshrrev_b32 v109, 8, v109", "L/10")
    a("v_mul_u32_u24 v110, 10, v109")
    a("v_sub_u32 v110, v1, v110", "L%10")
    a("v_min_u32 v109, 5, v109")
    a("v_mul_u32_u24 v109, 10240, v109")
    a("v_lshl_add_u32 v109, v110, 7, v109")
    a(f"s_and_b32 s{sT0}, s{sST}, 7")
    a(f"s_mul_i32 s{sT0}, s{sT0}, 6")
    a(f"s_mul_i32 s{sT1}, s3, 48")
    a(f"s_add_u32 s{sT0}, s{sT0}, s{sT1}")
    a(f"s_mul_i32 s{sT0}, s{sT0}, 10240")
    a(f"s_mul_i32 s{sT1}, s{sDT2}, 1280")
    a(f"s_add_u32 s{sT0}, s{sT0}, s{sT1}")
    a(f"s_add_u32 s{sT0}, s{sT0}, {UBLK_OFF}")
    a(f"v_add_u32 v109, s{sT0}, v109")
    a("v_mov_b32 v3, v105")
    pstamp(a, 7)
    spin("PK_SPIN_U", [(104, 108)], "upoll" if vm.count("upoll") is not None else "x")
    if E("GBAR2", 0): sbar("PK_GB2", 14, t=110)
    pstamp(a, 8)
    if E("G2STEPS", 0): pstamp(a, 1, True)
    ACC2 = 48
    UB = [("a", 100), ("v", 8), ("v", 28), ("a", 80)]; UD = 4
    def ureg(i, m):
        f, b = UB[i % UD]
        return f"{f}[{b+4*m}:{b+4*m+3}]"
    def u_adv(i): return pos2(i) + [f"s_mul_i32 s{sHOFF}, s{sT0}, 40960"]
    def uload(i, m):
        return (f"buffer_load_dwordx4 {ureg(i, m)}, v3, {R(S_WS)}, s{sHOFF} offen offset:{m*256} sc1", f"u{i}_{m}")
    UPRE = E("UPRE", UD)
    for i in range(UPRE):
        emit(u_adv(i))
        for m in range(5): emit([uload(i, m)])
        if i == 0 and E("TOUCH", 0):
            vm.op(f"buffer_load_dword a127, v109, {R(S_WS)}, 0 offen sc1", "touch")
    a("s_waitcnt lgkmcnt(0)")
    for i in range(12):
        nx = i + UPRE
        if E("G2STEPS", 0):
            MUTE[0] = True
            if i in (0, 1, 3, 5, 7, 9, 11): pstamp(a, 2 + (i + 1) // 2, True)
        if nx < 12: emit(u_adv(nx))
        side = w2_tr(NR2 - 1 + i, 4) if (i >= 1 and NR2 - 1 + i < 12) else []
        if NR2 <= i <= 8: a("s_waitcnt lgkmcnt(8)")
        if i == 9: a("s_waitcnt lgkmcnt(0)")
        if i == E("YGO", 7):
            a(f"v_mov_b32 v2, {CNT + 36}")
            a("s_mov_b64 exec, 1")
            a("ds_add_u32 v2, v2", "counter 9 += its own address")
            a("s_mov_b64 exec, -1")
        if i == 10:
            side = ["v_lshrrev_b32 v8, 4, v1", "v_and_b32 v9, 15, v1",
                    f"s_lshl_b32 s{sT0}, s{sST}, 6", f"s_lshl_b32 s{sT1}, s3, 4", f"s_add_u32 s{sT0}, s{sT0}, s{sT1}",
                    f"v_add_u32 v9, s{sT0}, v9", "v_mul_u32_u24 v10, 1280, v9", "v_lshl_add_u32 v10, v8, 3, v10",
                    f"s_mul_i32 s{sT0}, s{sDT2}, 160", f"v_add_u32 v10, s{sT0}, v10", "v_lshlrev_b32 v9, 1, v9",
                    (f"buffer_load_ushort v16, v9, {R(S_B2)}, 0 offen", "b2"),
                    f"v_lshl_add_u32 v11, v1, 4, s{sRING}",
                    f"s_mul_i32 s{sT0}, s3, 2560", f"s_add_u32 s{sT0}, s{sT0}, {PT_LDS}", f"v_lshl_add_u32 v15, v1, 3, s{sT0}",
                    f"s_mul_i32 s{sT0}, s3, 5120", f"v_lshl_add_u32 v12, v1, 4, s{sT0}", f"v_add_u32 v13, {2*RINGB}, v12"]
        TL2 = E("TL2", 2)
        if i > 12 - TL2: continue
        if i == 12 - TL2:
            assert nx >= 12
            emit(side)
            vm.wait("u11_4")
            pend = []
            for j in range(4):
                for ii in range(i, 12):
                    for m in range(5):
                        t = ACC2 + 4 * (5 * j + m); wr = 16 * (ii % NR2) + 4 * j
                        a(f"v_mfma_f32_16x16x32_bf16 v[{t}:{t+3}], {ureg(ii, m)}, a[{wr}:{wr+3}], v[{t}:{t+3}]")
                        for p in pend: p[0] += 1
                        if pend and pend[0][0] >= 9:
                            a(pend.pop(0)[1])
                            for p in pend: p[0] += 1
                        if ii == 11:
                            pend.append([0, f"ds_write_b128 v11, v[{t}:{t+3}] offset:{j*5120 + m*1024}"])
            while pend:
                if pend[0][0] < 9:
                    n = 9 - pend[0][0]
                    a(f"s_nop {n-1}")
                    for p in pend: p[0] += n
                a(pend.pop(0)[1])
                for p in pend: p[0] += 1
            continue
        k = 0; si = 0
        for m in range(5):
            vm.wait(f"u{i}_{m}")
            for j in range(4):
                t = ACC2 + 4 * (5 * j + m)
                wr = 16 * (i % NR2) + 4 * j
                c = "0" if i == 0 else f"v[{t}:{t+3}]"
                a(f"v_mfma_f32_16x16x32_bf16 v[{t}:{t+3}], {ureg(i, m)}, a[{wr}:{wr+3}], {c}")
                k += 1
                while si < (len(side) * k + 19) // 20:
                    emit([side[si]]); si += 1
            if nx < 12: emit([uload(nx, m)])
    pstamp(a, 9, True)
    MUTE[0] = False
    FIN2 = 28
    lds_arrive(11)
    vm.wait("b2")
    a("v_lshlrev_b32 v17, 16, v16")
    a("v_lshlrev_b32 v16, 16, v16")
    lds_wait("PK_GB3", 11)
    PT2 = 48; PR = 18; PF = 108
    GM = E("GM", 3)
    NG = 4 * GM
    for o in range(4):
        for m in range(GM):
            r = PT2 + 20 * o + 4 * m
            a(f"ds_read_b128 v[{r}:{r+3}], v{12+o//2} offset:{(o&1)*RINGB + m*1024}")
    for o in range(4):
        a(f"s_waitcnt lgkmcnt({min(10, GM*(3-o))})")
        for i in range(0, NG, 2):
            src = "v[16:17]" if o == 0 else pk(FIN2 + i)
            a(f"v_pk_add_f32 {pk(FIN2+i)}, {src}, {pk(PT2+20*o+i)}")
    T2 = 48
    for i in range(0, NG, 2): a(f"v_cvt_pk_bf16_f32 v{T2+i//2}, v{FIN2+i}, v{FIN2+i+1}")
    for i in range(0, NG, 2):
        a(f"v_lshlrev_b32 v{FIN2+i}, 16, v{T2+i//2}")
        a(f"v_and_b32 v{FIN2+i+1}, 0xffff0000, v{T2+i//2}")
    lds_wait("PK_PW", 15)
    pstamp(a, 10)
    for m in range(GM):
        a(f"ds_read_b64 v[{PR+2*m}:{PR+2*m+1}], v15 offset:{m*512}")
    a("s_waitcnt lgkmcnt(0)")
    for m in range(GM):
        for h in range(2):
            i = 4 * m + 2 * h
            a(f"v_lshlrev_b32 v{PF+i}, 16, v{PR+i//2}")
            a(f"v_and_b32 v{PF+i+1}, 0xffff0000, v{PR+i//2}")
            a(f"v_pk_add_f32 {pk(FIN2+i)}, {pk(FIN2+i)}, {pk(PF+i)}")
            a(f"v_cvt_pk_bf16_f32 v{60+i//2}, v{FIN2+i}, v{FIN2+i+1}")
        a(f"buffer_store_dwordx2 v[{60+2*m}:{61+2*m}], v10, {R(S_OUT)}, 0 offen offset:{32*m}")
    a(f"s_or_b32 s{sT0}, s2, s3")
    a(f"s_cmp_lg_u32 s{sT0}, 0")
    a("s_cbranch_scc1 PK_NOEP")
    a(f"s_mov_b32 s{sT0}, {EPOCH_OFF}")
    flag_store(sT0)
    a.label("PK_NOEP")
    pstamp(a, 11)
    finish_stamps("G")
    a("s_endpgm")

    a.label("PK_H")
    MUTE[0] = False
    vm.reset()
    for r in range(2):
        for i in range(5): vm.q.append(f"x{r}{i}")
    a("s_cmp_ge_u32 s2, 160")
    a(f"s_cselect_b32 s{sKVBIG}, {BIG}, 0")
    if E("NOKV", 0): a(f"s_mov_b32 s{sKVBIG}, {BIG}")
    sTT, sCW = sDT, sFT
    a(f"s_mul_hi_u32 s{sTT}, s2, 0x33333334", "T")
    a(f"s_mul_i32 s{sCW}, s{sTT}, 5")
    a(f"s_sub_u32 s{sCW}, s2, s{sCW}", "cw")
    a(f"s_lshl_b32 s{sT0}, s{sTT}, 2")
    a(f"s_add_u32 s{sT0}, s{sT0}, s3")
    a(f"s_mul_i32 s{sT0}, s{sT0}, 20480")
    a(f"s_lshl_b32 s{sT1}, s{sCW}, 8")
    a(f"s_add_u32 s{sT0}, s{sT0}, s{sT1}")
    a(f"s_add_u32 s{sT0}, s{sT0}, s{sKVBIG}")
    VKV = 10
    a(f"v_add_u32 v{VKV+1}, s{sT0}, v3")
    a(f"v_subrev_u32 v{VKV}, 3840, v{VKV+1}")
    for i in range(1, 4): a(f"v_add_u32 v{VKV+1+i}, {5120*i}, v{VKV+1}")
    a(f"s_lshl_b32 s{sT1}, s{sCW}, 10")
    a(f"v_lshl_add_u32 v15, v1, 4, s{sT1}")
    XRAW = 16
    if E("W1ONLY", 0):
        if STAMP:
            a("s_mov_b32 s4, s30"); a("s_mov_b32 s5, s31")
        for i in range(1, 12): pstamp(a, i)
        finish_stamps()
        a("s_endpgm")
    srd(a, S_WS, 26, WS_USED, E("WSMB", 0) << 20)
    vm.op(f"buffer_load_dword v9, v8, {R(S_WS)}, 0 offen sc1", "ep")
    srd(a, S_K, 6, SD_BYTES)
    srd(a, S_V, 8, SD_BYTES)
    srd(a, S_SHK, 10, D * 8)
    srd(a, S_SSMK, 12, SD_BYTES)
    srd(a, S_SSMD, 14, D * 2)
    srd(a, S_W2, 20, S * F * 2)
    srd(a, S_B2, 22, S * 2)
    srd(a, S_OUT, 24, SD_BYTES)
    if STAMP:
        a("s_mov_b32 s4, s30"); a("s_mov_b32 s5, s31")
    def kv_loads():
        vm.op(f"buffer_load_dwordx4 a[36:39], v15, {R(S_SHK)}, 0 offen", "shk")
        for r in range(3):
            vm.op(f"buffer_load_dword a{r}, v{VKV}, {R(S_K)}, 0 offen offset:{r*1280} {NT}", "k")
        for r in range(16):
            vm.op(f"buffer_load_dword a{3+r}, v{VKV+1+r//4}, {R(S_K)}, 0 offen offset:{(r%4)*1280} {NT}", "k")
        for r in range(16):
            vm.op(f"buffer_load_dword a{19+r}, v{VKV+1+r//4}, {R(S_V)}, 0 offen offset:{(r%4)*1280} {NT}", "v")
    KV_EARLY = E("KV_EARLY", 0)
    if KV_EARLY: kv_loads()
    srd(a, S_B1, 18, F * 2)
    a(f"s_lshr_b32 s{sT0}, s2, 3")
    a(f"s_mul_hi_u32 s{sT0}, s{sT0}, 0x33333334")
    a(f"s_bfe_u32 s{sT1}, s2, 0x20001")
    a(f"s_mul_i32 s{sT1}, s{sT1}, 6")
    a(f"s_add_u32 s{sT0}, s{sT0}, s{sT1}")
    a(f"s_lshl_b32 s{sT0}, s{sT0}, 7")
    a("v_and_b32 v125, 124, v3")
    vm.op(f"buffer_load_dword v126, v125, {R(S_B1)}, s{sT0} offen", "b1")
    a(f"v_add_u32 v125, {PT_LDS}, v125")
    pstamp(a, 1)
    a(f"s_mul_i32 s{sT0}, s3, {2*HROW}")
    a(f"s_add_u32 s{sT0}, s{sT0}, {LNX}")
    a(f"v_add_u32 v4, s{sT0}, v3")
    a("v_lshrrev_b32 v5, 4, v1")
    a("v_lshlrev_b32 v5, 5, v5")
    a("v_and_b32 v2, 3, v1")
    a("v_lshl_add_u32 v5, v2, 3, v5")
    a("v_bfe_u32 v2, v1, 2, 2")
    a(f"v_mul_u32_u24 v2, {HROW}, v2")
    a("v_add_u32 v5, v5, v2")
    a(f"s_lshl_b32 s{sT0}, s3, 7")
    a(f"s_add_u32 s{sT0}, s{sT0}, {LNX}")
    a(f"v_add_u32 v5, s{sT0}, v5")
    a(f"s_mul_i32 s{sT0}, s2, 10240")
    a(f"s_lshl_b32 s{sT1}, s3, 10")
    a(f"s_add_u32 s{sT0}, s{sT0}, s{sT1}")
    if HBLK_OFF: a(f"s_add_u32 s{sT0}, s{sT0}, {HBLK_OFF}")
    a(f"v_lshl_add_u32 v6, v1, 4, s{sT0}")
    a("v_add_u32 v7, 4096, v6")
    a("s_cmp_ge_u32 s3, 2")
    a(f"s_cselect_b32 s{sT1}, {BIG}, 8192")
    a(f"v_add_u32 v8, s{sT1}, v6")
    a(f"s_lshl_b32 s{sT0}, s2, 2")
    a(f"s_add_u32 s{sT0}, s{sT0}, s3")
    a(f"s_lshl_b32 s{sT0}, s{sT0}, 4")
    a(f"s_add_u32 s{sT0}, s{sT0}, {STAT_OFF}")
    a(f"v_mov_b32 v90, s{sT0}")
    a(f"s_lshl_b32 s{sT0}, s3, 8")
    a(f"s_add_u32 s{sT0}, s{sT0}, s2")
    a(f"s_lshl_b32 s{sT0}, s{sT0}, {FS}")
    a(f"s_add_u32 s{sRING}, s{sT0}, {FH_OFF}", "h flag offset")
    X = [26, 36]; A = [46, 56]; SUM = [66, 70]; TMP = [74, 82]
    PIV = [28, 30]; SS = [(sT0, sT1), (sT2, sT3)]
    for r in range(2):
        for i in range(5):
            vm.wait(f"x{r}{i}")
            a(f"v_lshlrev_b32 v{X[r]+2*i}, 16, v{XRAW+5*r+i}")
            a(f"v_and_b32 v{X[r]+2*i+1}, 0xffff0000, v{XRAW+5*r+i}")
            if i == 0: a(f"v_readfirstlane_b32 s{PIV[r]}, v{X[r]}")
            if i == 2: a(f"s_mov_b32 s{PIV[r]+1}, s{PIV[r]}")
    pstamp(a, 2)
    def zip2(f):
        out = []
        for p, q in zip(f(0), f(1)): out += [p, q]
        return out
    def sums(src):
        def f(r):
            Sr = SUM[r]; B = src[r]
            l = [f"v_pk_mul_f32 {pk(Sr+2)}, {pk(B)}, {pk(B)}", f"v_pk_add_f32 {pk(Sr)}, {pk(B)}, {pk(B+2)}"]
            for i in range(1, 5):
                l.append(f"v_pk_fma_f32 {pk(Sr+2)}, {pk(B+2*i)}, {pk(B+2*i)}, {pk(Sr+2)}")
                if i >= 2: l.append(f"v_pk_add_f32 {pk(Sr)}, {pk(Sr)}, {pk(B+2*i)}")
            l += [f"v_add_f32 v{Sr}, v{Sr}, v{Sr+1}", f"v_add_f32 v{Sr+1}, v{Sr+2}, v{Sr+3}"]
            return l
        l = zip2(f)
        steps = ["row_shr:1 row_mask:0xf bank_mask:0xf bound_ctrl:0", "row_shr:2 row_mask:0xf bank_mask:0xf bound_ctrl:0",
                 "row_shr:4 row_mask:0xf bank_mask:0xf bound_ctrl:0", "row_shr:8 row_mask:0xf bank_mask:0xf bound_ctrl:0",
                 "row_bcast:15 row_mask:0xa bank_mask:0xf", "row_bcast:31 row_mask:0xc bank_mask:0xf"]
        regs = [SUM[0], SUM[1], SUM[0] + 1, SUM[1] + 1]
        for st in steps:
            for v in regs: l.append(f"v_add_f32_dpp v{v}, v{v}, v{v} {st}")
        l += [f"v_readlane_b32 s{SS[0][0]}, v{SUM[0]}, 63", f"v_readlane_b32 s{SS[1][0]}, v{SUM[1]}, 63",
              f"v_readlane_b32 s{SS[0][1]}, v{SUM[0]+1}, 63", f"v_readlane_b32 s{SS[1][1]}, v{SUM[1]+1}, 63"]
        return l
    def statsl(piv):
        inv = f32(1.0 / D)
        def f(r):
            t0, t1 = TMP[r] + 6, TMP[r] + 7; m = TMP[r]; rr = TMP[r] + 1
            l = [f"v_mul_f32 v{t0}, s{SS[r][0]}, v91", f"v_mul_f32 v{t1}, s{SS[r][1]}, v91",
                 f"v_fma_f32 v{t1}, -v{t0}, v{t0}, v{t1}", f"v_max_f32 v{t1}, 0, v{t1}"]
            if piv: l.append(f"v_add_f32 v{t0}, s{PIV[r]}, v{t0}")
            l += [f"v_cvt_pk_bf16_f32 v{t0}, v{t0}, v{t1}", f"v_lshlrev_b32 v{m}, 16, v{t0}",
                  f"v_and_b32 v{t1}, 0xffff0000, v{t0}", f"v_add_f32 v{t1}, {f32(1e-5)}, v{t1}",
                  f"v_cvt_pk_bf16_f32 v{t1}, v{t1}, v{t1}", f"v_lshlrev_b32 v{t1}, 16, v{t1}",
                  f"v_sqrt_f32 v{t1}, v{t1}", f"v_cvt_pk_bf16_f32 v{t1}, v{t1}, v{t1}",
                  f"v_lshlrev_b32 v{t1}, 16, v{t1}", f"v_rcp_f32 v{rr}, v{t1}",
                  f"v_mul_f32 v{TMP[r]+4}, v{m}, v{rr}", f"v_mov_b32 v{TMP[r]+2}, v{rr}",
                  f"v_mul_f32 v{TMP[r]+5}, v{m}, v{rr}", f"v_mov_b32 v{TMP[r]+3}, v{rr}"]
            return l
        return zip2(f)
    def norm(dst, src):
        return zip2(lambda r: [f"v_pk_fma_f32 {pk(dst[r]+2*i)}, {pk(src[r]+2*i)}, {pk(TMP[r]+2)}, {pk(TMP[r]+4)} neg_lo:[0,0,1] neg_hi:[0,0,1]" for i in range(5)])
    a(f"v_mov_b32 v91, {f32(1.0/D)}")
    emit(zip2(lambda r: [f"v_pk_add_f32 {pk(A[r]+2*i)}, {pk(X[r]+2*i)}, s[{PIV[r]}:{PIV[r]+1}] neg_lo:[0,1] neg_hi:[0,1]" for i in range(5)]))
    emit(sums(A)); emit(statsl(True))
    emit(["s_mov_b64 exec, 1",
          (f"buffer_store_dwordx2 {pk(TMP[0])}, v90, {R(S_WS)}, 0 offen sc1", "hst"),
          (f"buffer_store_dwordx2 {pk(TMP[1])}, v90, {R(S_WS)}, 0 offen offset:8 sc1", "hst"),
          "s_mov_b64 exec, -1"])
    emit(norm(A, X))
    emit(zip2(lambda r: [f"v_cvt_pk_bf16_f32 v{XRAW+5*r+i}, v{A[r]+2*i}, v{A[r]+2*i+1}" for i in range(5)]))
    emit(zip2(lambda r: sum([[f"v_lshlrev_b32 v{X[r]+2*i}, 16, v{XRAW+5*r+i}", f"v_and_b32 v{X[r]+2*i+1}, 0xffff0000, v{XRAW+5*r+i}"] for i in range(5)], [])))
    emit(sums(X)); emit(statsl(False)); emit(norm(A, X))
    emit(zip2(lambda r: sum([[f"v_cvt_pk_bf16_f32 v{XRAW+5*r+i}, v{A[r]+2*i}, v{A[r]+2*i+1}", f"ds_write_b32 v4, v{XRAW+5*r+i} offset:{r*HROW+i*256}"] for i in range(5)], [])))
    vm.wait("b1")
    a("ds_write_b32 v125, v126")
    read_epoch(9)
    sbar("PK_HB1", 1)
    HT = 26
    for t in range(3):
        a(f"ds_read_b64_tr_b16 v[{HT+4*t}:{HT+4*t+1}], v5 offset:{512*t}")
        a(f"ds_read_b64_tr_b16 v[{HT+4*t+2}:{HT+4*t+3}], v5 offset:{512*t+4*HROW}")
    for t in range(3):
        a(f"s_waitcnt lgkmcnt({4-2*t})")
        vm.op(f"buffer_store_dwordx4 v[{HT+4*t}:{HT+4*t+3}], v{6+t}, {R(S_WS)}, 0 offen sc1", "hst")
    pstamp(a, 3)
    a("v_and_b32 v2, 7, v1")
    a(f"s_lshl_b32 s{sT0}, s3, 1")
    a(f"v_xor_b32 v4, s{sT0}, v2")
    a("v_lshlrev_b32 v4, 4, v4")
    a("v_lshl_add_u32 v4, v1, 8, v4")
    a(f"v_add_u32 v4, {KVX}, v4")
    a("v_xor_b32 v5, 16, v4")
    a("v_lshrrev_b32 v8, 3, v1")
    a("v_lshrrev_b32 v6, 4, v1")
    a("v_xor_b32 v6, v6, v2")
    a("v_lshlrev_b32 v6, 4, v6")
    a("v_lshl_add_u32 v6, v8, 7, v6")
    a(f"s_lshl_b32 s{sT0}, s3, 12")
    a(f"s_add_u32 s{sT0}, s{sT0}, {KVX}")
    a(f"v_add_u32 v6, s{sT0}, v6")
    a("v_xor_b32 v7, 64, v6")
    a("v_lshlrev_b32 v8, 12, v8")
    a("v_lshl_add_u32 v8, v2, 4, v8")
    a(f"s_lshl_b32 s{sT0}, s{sCW}, 19")
    a(f"s_lshl_b32 s{sT1}, s3, 17")
    a(f"s_add_u32 s{sT0}, s{sT0}, s{sT1}")
    a(f"s_lshl_b32 s{sT1}, s{sTT}, 7")
    a(f"s_add_u32 s{sT0}, s{sT0}, s{sT1}")
    a(f"s_add_u32 s{sT0}, s{sT0}, {KVB_OFF}")
    a(f"s_add_u32 s{sT0}, s{sT0}, s{sKVBIG}")
    a(f"v_add_u32 v8, s{sT0}, v8")
    lds_wait("PK_EPW", 6)
    vm.wait("hst")
    flag_store(sRING)
    pstamp(a, 4)
    if E("KV_LATE", 0):
        a("s_setprio 0")
        lds_wait("PK_KVL", 12, n=4 * (CNT + 48), sleep=4)
        a("s_setprio 3")
    if not KV_EARLY: kv_loads()
    a("s_setprio 0")
    a(f"s_lshl_b32 s{sT0}, s{sCW}, 2")
    a(f"s_add_u32 s{sT0}, s{sT0}, s3")
    a(f"s_lshl_b32 s{sT0}, s{sT0}, 5")
    a(f"s_add_u32 s{sT0}, s{sT0}, s{sTT}")
    a(f"s_lshl_b32 s{sT0}, s{sT0}, {FS}")
    a(f"s_add_u32 s{sT0}, s{sT0}, {FKV_OFF}")
    a(f"s_add_u32 s{sRING}, s{sT0}, s{sKVBIG}", "kv flag offset")
    WP, KP, KS, KO = 16, 24, 62, 94
    vm.wait("k")
    for i in range(4): a(f"v_accvgpr_read_b32 v{110+i}, a{36+i}")
    for r in range(19): a(f"v_accvgpr_read_b32 v{KP+2*r+1}, a{r}")
    for t in range(4):
        for ch in range(2):
            src = 110 + 2 * ch + t // 2
            a(f"v_lshlrev_b32 v{WP+2*t+ch}, 16, v{src}" if t % 2 == 0 else f"v_and_b32 v{WP+2*t+ch}, 0xffff0000, v{src}")
    for r in range(19):
        a(f"v_lshlrev_b32 v{KP+2*r}, 16, v{KP+2*r+1}")
        a(f"v_and_b32 v{KP+2*r+1}, 0xffff0000, v{KP+2*r+1}")
    for r in range(16): a(f"v_pk_mul_f32 {pk(KS+2*r)}, {pk(KP+2*r)}, {pk(WP+6)}")
    for t in (2, 1, 0):
        for r in range(16):
            a(f"v_pk_fma_f32 {pk(KS+2*r)}, {pk(KP+2*(r+3-t))}, {pk(WP+2*t)}, {pk(KS+2*r)}")
    vm.wait("v")
    for r in range(16): a(f"v_accvgpr_read_b32 v{KP+2*r+1}, a{19+r}")
    for r in range(16):
        a(f"v_lshlrev_b32 v{KP+2*r}, 16, v{KP+2*r+1}")
        a(f"v_and_b32 v{KP+2*r+1}, 0xffff0000, v{KP+2*r+1}")
    for r in range(16): a(f"v_pk_mul_f32 {pk(KS+2*r)}, {pk(KS+2*r)}, {pk(KP+2*r)}")
    for c2 in range(2):
        for ch in range(2):
            for q in range(4):
                a(f"v_cvt_pk_bf16_f32 v{KO+8*c2+4*ch+q}, v{KS+2*(8*c2+7-2*q)+ch}, v{KS+2*(8*c2+6-2*q)+ch}")
            a(f"ds_write_b128 v{4+c2}, v[{KO+8*c2+4*ch}:{KO+8*c2+4*ch+3}] offset:{128*ch}")
    sbar("PK_HB2", 2)
    for i in range(4):
        a(f"ds_read_b128 v[{KO+4*i}:{KO+4*i+3}], v{6+(i&1)} offset:{1024*i}")
    a("s_setprio 3")
    for i in range(4):
        a(f"s_mov_b32 s{sT0}, {32768*i}")
        a(f"s_waitcnt lgkmcnt({3-i})")
        vm.op(f"buffer_store_dwordx4 v[{KO+4*i}:{KO+4*i+3}], v8, {R(S_WS)}, s{sT0} offen sc1", "kvst")
    lds_arrive(3)
    pstamp(a, 5)
    a("v_lshrrev_b32 v14, 4, v1", "g")
    a("v_and_b32 v15, 15, v1", "n")
    a(f"s_lshl_b32 s{sCH}, s2, 1")
    a(f"s_mul_i32 s{sT0}, s2, 3")
    a(f"s_sub_u32 s{sT0}, s{sT0}, 128")
    a("s_cmp_ge_u32 s2, 128")
    a(f"s_cselect_b32 s{sCH}, s{sT0}, s{sCH}")
    a(f"s_cselect_b32 s{sT0}, 3, 2")
    a(f"s_add_u32 s{sCH}, s{sCH}, s3")
    a(f"s_cmp_lt_u32 s3, s{sT0}")
    a(f"s_cselect_b32 s{sCH}, s{sCH}, {1 << 16}", "ch (65536 = none)")
    a(f"s_mul_i32 s{sCVB}, s3, {CONV_SZ}")
    a(f"s_add_u32 s{sCVB}, s{sCVB}, {AUX}")
    a(f"s_lshr_b32 s{sT0}, s{sCH}, 5")
    a(f"s_lshl_b32 s{sT0}, s{sT0}, {5+FS}")
    a(f"s_add_u32 s{sT0}, s{sT0}, {FKV_OFF}")
    a("v_and_b32 v29, 31, v1")
    a(f"v_lshl_add_u32 v29, v29, {FS}, s{sT0}", "kv poll address")
    a(f"s_lshl_b32 s{sT0}, s{sCH}, 12")
    a(f"v_lshl_add_u32 v31, v1, 4, s{sT0}")
    a("v_add_u32 v32, 2, v31")
    a(f"v_add_u32 v33, {KVB_OFF}, v31")
    a(f"v_mov_b32 v34, s{sT0}")
    a(f"s_lshl_b32 s{sT1}, s{sCH}, 1")
    a(f"v_mov_b32 v36, s{sT1}")
    VA, VB, VE, VS = 38, 42, 43, 44
    a("v_lshlrev_b32 v2, 5, v15")
    a(f"v_lshl_add_u32 v{VS}, v14, 3, v2")
    a(f"s_add_u32 s{sT0}, s{sT0}, {YA_OFF}")
    a(f"v_add_u32 v{VS}, s{sT0}, v{VS}")
    a("v_lshlrev_b32 v45, 4, v1")
    a(f"v_add_u32 v46, s{sCVB}, v45")
    a(f"v_add_u32 v2, {CV_K0-512}, v45")
    a(f"v_add_u32 v3, {CV_K1-544}, v45")
    a("v_cmp_lt_u32 vcc, 31, v1")
    a(f"v_lshl_add_u32 v{VA}, v14, 3, v15")
    a(f"v_lshlrev_b32 v{VA}, 1, v{VA}")
    a("v_cndmask_b32 v45, v45, v2, vcc")
    a("v_cmp_lt_u32 vcc, 33, v1")
    a("v_and_b32 v2, 1, v1")
    a(f"v_mul_u32_u24 v2, {CV_K1 - CV_K0 - 2}, v2")
    a("v_cndmask_b32 v45, v45, v3, vcc")
    a("v_cmp_lt_u32 vcc, 35, v1")
    a(f"v_sub_u32 v{VA}, v{VA}, v2")
    a(f"v_add_u32 v{VA}, {CV_K1}, v{VA}")
    a("v_cndmask_b32 v45, v45, 0, vcc")
    a(f"v_add_u32 v45, s{sCVB}, v45")
    a(f"v_add_u32 v{VA}, s{sCVB}, v{VA}")
    for p in range(1, 4): a(f"v_add_u32 v{VA+p}, {1024*p}, v{VA}")
    a("v_lshlrev_b32 v2, 1, v15")
    a("v_sub_u32 v2, v2, v14")
    a("v_lshlrev_b32 v2, 4, v2")
    a(f"v_add_u32 v2, {528-448}, v2")
    a(f"v_add_u32 v{VB}, s{sCVB}, v2")
    a("v_lshrrev_b32 v2, 1, v14")
    a("v_lshl_add_u32 v2, v15, 1, v2")
    a("v_lshlrev_b32 v2, 4, v2")
    a("v_and_b32 v3, 1, v14")
    a("v_lshlrev_b32 v3, 3, v3")
    a("v_sub_u32 v2, v2, v3")
    a("v_add_u32 v2, 520, v2")
    a(f"v_add_u32 v{VE}, s{sCVB}, v2")
    vm.wait("kvst")
    flag_store(sRING)
    a(f"s_cmp_ge_u32 s{sCH}, 640")
    a("s_cbranch_scc1 PK_NOCONV")
    lds_wait("PK_HB3", 3)
    if E("KERN_LATE", 0):
        a("s_setprio 0")
        lds_wait("PK_KW0", 10, n=4, sleep=4)
        a("s_setprio 3")
    vm.reset()
    a(f"s_add_u32 m0, s{sCVB}, {CV_K0+32}")
    a(f"buffer_load_ushort v35, v34, {R(S_SSMK)}, 0 offen")
    for q in range(4): a(f"buffer_load_dwordx4 v31, {R(S_SSMK)}, 0 offen offset:{q*1024} lds")
    a(f"s_add_u32 m0, s{sCVB}, {CV_K1+32}")
    a(f"buffer_load_ushort v37, v36, {R(S_SSMD)}, 0 offen")
    for q in range(4): a(f"buffer_load_dwordx4 v32, {R(S_SSMK)}, 0 offen offset:{q*1024} lds")
    a("s_setprio 0")
    lds_wait("PK_KW", 10, n=4, sleep=4)
    a("s_setprio 3")
    if not E("NOKV", 0): spin("PK_SPIN_KV", [(29, 30)], sleep=E("KVPOLL_SLEEP", 0))
    KVR = 48
    for q in range(4):
        vm.op(f"buffer_load_dwordx4 v[{KVR+4*q}:{KVR+4*q+3}], v33, {R(S_WS)}, 0 offen offset:{q*1024} sc1", "cfill")
    a("s_setprio 0")
    a("v_mov_b32 v96, 0"); a("v_mov_b32 v97, 0"); a("v_mov_b32 v98, 0")
    a("v_cmp_eq_u32 vcc, 35, v1")
    a("v_lshlrev_b32 v35, 16, v35")
    a("v_lshlrev_b32 v37, 16, v37", "D")
    a("v_cndmask_b32 v99, 0, v35, vcc")
    a("ds_write_b128 v45, v[96:99]")
    vm.wait("cfill")
    for q in range(4):
        a(f"ds_write_b128 v46, v[{KVR+4*q}:{KVR+4*q+3}] offset:{512+1024*q}")
    a("s_waitcnt lgkmcnt(0)")
    CACC = 64; BUF = [(0, 32), (64, 96)]
    def frag_loads(buf, rr):
        A_, B_ = BUF[buf]
        out = []
        for t in range(8):
            o = (t & 1) * 128 + rr * 16
            out.append(f"ds_read_b128 a[{B_+4*t}:{B_+4*t+3}], v{VB} offset:{512*t + 64*(1-rr)}")
            out.append(f"ds_read2_b32 a[{A_+4*t}:{A_+4*t+1}], v{VA + t//2} offset0:{o} offset1:{o+1}")
            out.append(f"ds_read2_b32 a[{A_+4*t+2}:{A_+4*t+3}], v{VA + t//2} offset0:{o+2} offset1:{o+3}")
        return out
    for i in range(32): a(f"v_mov_b32 v{CACC+i}, 0")
    a(f"v_add_u32 v{VB}, {448-64}, v{VB}", "64 below the r-even address")
    emit(frag_loads(0, 0))
    pstamp(a, 6)
    lds_wait("PK_CW", 8, n=E("CONV_WAIT_N", 4), sleep=2)
    a(f"s_setprio {E('CONV_PRIO', 3)}")
    pstamp(a, 7)
    a(f"s_mov_b32 s{sT0}, 0")
    a.label("PK_CV_LOOP")
    for half in range(2):
        a("s_waitcnt lgkmcnt(0)")
        if half == 0: side = frag_loads(1, 1)
        else:
            for p in range(4): a(f"v_add_u32 v{VA+p}, 128, v{VA+p}")
            a(f"v_subrev_u32 v{VB}, 128, v{VB}")
            side = frag_loads(0, 0)
        A_, B_ = BUF[half]
        i = 0
        for c in range(8):
            for t in range(c + 1):
                u = c - t
                a(f"v_mfma_f32_16x16x32_bf16 v[{CACC+4*c}:{CACC+4*c+3}], a[{A_+4*t}:{A_+4*t+3}], a[{B_+4*u}:{B_+4*u+3}], v[{CACC+4*c}:{CACC+4*c+3}]")
                if i < len(side): a(side[i])
                i += 1
    a(f"s_add_u32 s{sT0}, s{sT0}, 1")
    a(f"s_cmp_lt_u32 s{sT0}, 4")
    a("s_cbranch_scc1 PK_CV_LOOP")
    a("s_setprio 3")
    for c in range(8): a(f"ds_read_b64 v[{100+2*c}:{101+2*c}], v{VE} offset:{512*c}")
    a("s_waitcnt lgkmcnt(0)")
    TT = 116
    for c in range(8):
        d0, d1 = 100 + 2 * c, 101 + 2 * c
        emit([f"v_and_b32 v{TT}, 0xffff0000, v{d1}", f"v_lshlrev_b32 v{TT+1}, 16, v{d1}",
              f"v_and_b32 v{TT+2}, 0xffff0000, v{d0}", f"v_lshlrev_b32 v{TT+3}, 16, v{d0}"])
        for i in range(4): a(f"v_fmac_f32 v{CACC+4*c+i}, v{TT+i}, v37")
        a(f"v_cvt_pk_bf16_f32 v{d0}, v{CACC+4*c}, v{CACC+4*c+1}")
        a(f"v_cvt_pk_bf16_f32 v{d1}, v{CACC+4*c+2}, v{CACC+4*c+3}")
        a(f"buffer_store_dwordx2 v[{d0}:{d1}], v{VS}, {R(S_WS)}, 0 offen offset:{512*c} sc1")
    pstamp(a, 8)
    a(f"s_lshl_b32 s{sT0}, s{sCH}, {FS}")
    a(f"s_add_u32 s{sT0}, s{sT0}, {FY_OFF}")
    a("s_waitcnt vmcnt(0)")
    flag_store(sT0)
    a("s_branch PK_PCOMP")
    a.label("PK_NOCONV")
    if E("H3L", 0):
        a("s_cmp_lg_u32 s3, 3")
        a("s_cbranch_scc1 PK_NOLOAD")
        emit(["v_lshrrev_b32 v2, 3, v1", "v_lshlrev_b32 v4, 12, v2", "v_bfe_u32 v2, v1, 4, 1", "v_lshlrev_b32 v2, 1, v2",
              "v_and_b32 v3, 7, v1", "v_xor_b32 v2, v2, v3", "v_lshl_add_u32 v4, v2, 4, v4", f"s_lshl_b32 s{sT0}, s{sST}, 7",
              f"v_add_u32 v4, s{sT0}, v4", "v_xor_b32 v2, 64, v4", f"v_add_u32 v5, {1*(32768-1024)}, v2",
              f"v_add_u32 v6, {2*(32768-1024)}, v4", f"v_add_u32 v7, {3*(32768-1024)}, v2",
              f"s_and_b32 s{sT2}, s{sDT2}, 3", f"s_mul_i32 s{sT2}, s{sT2}, {3 << 17}"])
        a("s_setprio 0")
        lds_wait("PK_LW", 10, n=4, sleep=4)
        a(f"s_setprio {E('H3PRIO', 1)}")
        for k in range(3):
            for w in range(4):
                a(f"s_mov_b32 m0, {w*RINGB + k*4096}")
                a(f"s_add_u32 s{sT3}, s{sT2}, {(12*w + k) << 17}")
                for q in range(4):
                    a(f"buffer_load_dwordx4 v{4+q}, {R(S_W2)}, s{sT3} offen offset:{q*1024} lds")
        a("s_waitcnt vmcnt(0)")
        lds_arrive(5)
        a.label("PK_NOLOAD")
    a("s_setprio 0")
    lds_wait("PK_NCW", 8, n=4, sleep=16)
    a("s_setprio 3")
    a.label("PK_PCOMP")
    vm.reset()
    a(f"s_mul_i32 s{sT3}, s{sDT2}, 80", "d0")
    a(f"s_lshl_b32 s{sT0}, s{sST}, 6")
    a(f"s_lshl_b32 s{sT1}, s3, 4")
    a(f"s_add_u32 s{sT0}, s{sT0}, s{sT1}")
    a(f"v_add_u32 v4, s{sT0}, v15", "s")
    a("v_mul_u32_u24 v5, 1280, v4")
    a("v_lshl_add_u32 v5, v14, 3, v5")
    a(f"s_lshl_b32 s{sT0}, s{sT3}, 1")
    a(f"v_add_u32 v5, s{sT0}, v5", "x offset")
    XR = 16
    for m in range(5):
        a(f"buffer_load_dwordx2 v[{XR+2*m}:{XR+2*m+1}], v5, {R(S_X)}, 0 offen offset:{32*m}")
    a("v_lshlrev_b32 v6, 1, v4")
    a(f"buffer_load_ushort v124, v6, {R(S_B2)}, 0 offen")
    a("v_lshlrev_b32 v6, 3, v4")
    a(f"v_add_u32 v6, {STAT_OFF}, v6")
    a(f"s_lshl_b32 s{sT0}, s{sT3}, {FS}")
    a(f"s_add_u32 s{sT0}, s{sT0}, {FY_OFF}")
    a(f"v_lshl_add_u32 v7, v1, {FS}, s{sT0}")
    a(f"v_add_u32 v8, {64 << FS}, v7")
    a("v_bfe_u32 v2, v4, 1, 2")
    a("v_lshlrev_b32 v2, 8, v2")
    a("v_lshrrev_b32 v3, 3, v4")
    a("v_add_u32 v2, v2, v3")
    a("v_cmp_lt_u32 vcc, 15, v1")
    a(f"v_lshlrev_b32 v2, {FS}, v2")
    a(f"v_add_u32 v2, {FH_OFF}, v2")
    a("v_cndmask_b32 v8, v8, v2, vcc")
    a("v_lshrrev_b32 v9, 1, v1")
    a("v_lshlrev_b32 v9, 12, v9")
    a("v_and_b32 v2, 1, v1")
    a("v_lshl_add_u32 v9, v2, 4, v9")
    a(f"s_lshl_b32 s{sT0}, s{sT3}, 12")
    a(f"s_lshl_b32 s{sT1}, s{sST}, 7")
    a(f"s_add_u32 s{sT0}, s{sT0}, s{sT1}")
    a(f"s_lshl_b32 s{sT1}, s3, 5")
    a(f"s_add_u32 s{sT0}, s{sT0}, s{sT1}")
    a(f"s_add_u32 s{sT0}, s{sT0}, {YA_OFF}")
    a(f"v_add_u32 v9, s{sT0}, v9")
    a("v_cmp_lt_u32 vcc, 31, v1")
    a("v_add_u32 v10, 0x20000, v9")
    a("v_add_u32 v11, 0x40000, v9")
    a(f"v_mov_b32 v2, {BIG}")
    a("v_cndmask_b32 v11, v11, v2, vcc")
    a(f"s_mul_i32 s{sT0}, s3, 2560")
    a(f"s_add_u32 s{sT0}, s{sT0}, {PT_LDS}")
    a(f"v_lshl_add_u32 v12, v1, 4, s{sT0}")
    a(f"v_lshl_add_u32 v13, v1, 3, s{sT0}")
    a("s_setprio 0")
    lds_wait("PK_YW", 9, n=4 * (CNT + 36), sleep=4)
    a("s_setprio 3")
    spin("PK_SPIN_Y", [(7, 26), (8, 27)], sleep=E("YPOLL_SLEEP", 0))
    pstamp(a, 9)
    YL, ST_, XF, XN, T2, YR, YF = 28, 40, 44, 64, 84, 94, 104
    for t in range(3):
        vm.op(f"buffer_load_dwordx4 v[{YL+4*t}:{YL+4*t+3}], v{9+t}, {R(S_WS)}, 0 offen sc1", "ya")
    vm.op(f"buffer_load_dwordx2 v[{ST_}:{ST_+1}], v6, {R(S_WS)}, 0 offen sc1", "st")
    for i in range(10):
        a(f"v_lshlrev_b32 v{XF+2*i}, 16, v{XR+i}")
        a(f"v_and_b32 v{XF+2*i+1}, 0xffff0000, v{XR+i}")
    vm.wait("ya")
    a(f"ds_write_b128 v12, v[{YL}:{YL+3}]")
    a(f"ds_write_b128 v12, v[{YL+4}:{YL+7}] offset:1024")
    a("s_mov_b32 exec_hi, 0")
    a(f"ds_write_b128 v12, v[{YL+8}:{YL+11}] offset:2048")
    a("s_mov_b64 exec, -1")
    vm.wait("st", "lgkmcnt(0)")
    for m in range(5):
        a(f"ds_read_b64_tr_b16 v[{YR+2*m}:{YR+2*m+1}], v13 offset:{m*512}")
    a(f"v_mul_f32 v42, v{ST_}, v{ST_+1}")
    a(f"v_mul_f32 v43, v{ST_}, v{ST_+1}")
    a(f"v_mov_b32 v{ST_}, v{ST_+1}")
    for i in range(0, 20, 2):
        a(f"v_pk_fma_f32 {pk(XN+i)}, {pk(XF+i)}, {pk(ST_)}, v[42:43] neg_lo:[0,0,1] neg_hi:[0,0,1]")
    for i in range(0, 20, 2): a(f"v_cvt_pk_bf16_f32 v{T2+i//2}, v{XN+i}, v{XN+i+1}")
    for i in range(0, 20, 2):
        a(f"v_lshlrev_b32 v{XN+i}, 16, v{T2+i//2}")
        a(f"v_and_b32 v{XN+i+1}, 0xffff0000, v{T2+i//2}")
    a("s_waitcnt lgkmcnt(0)")
    for i in range(10):
        a(f"v_lshlrev_b32 v{YF+2*i}, 16, v{YR+i}")
        a(f"v_and_b32 v{YF+2*i+1}, 0xffff0000, v{YR+i}")
    for i in range(0, 20, 2): a(f"v_pk_fma_f32 {pk(XN+i)}, {pk(XN+i)}, {pk(YF+i)}, {pk(XF+i)}")
    for m in range(5):
        a(f"v_cvt_pk_bf16_f32 v{T2+2*m}, v{XN+4*m}, v{XN+4*m+1}")
        a(f"v_cvt_pk_bf16_f32 v{T2+2*m+1}, v{XN+4*m+2}, v{XN+4*m+3}")
        if m < GM: a(f"ds_write_b64 v13, v[{T2+2*m}:{T2+2*m+1}] offset:{m*512}")
    lds_arrive(15)
    pstamp(a, 10)
    if GM < 5:
        HM = list(range(GM, 5)); NH = 4 * len(HM)
        for k, m in enumerate(HM):
            for h in range(2):
                a(f"v_lshlrev_b32 v{XN+4*k+2*h}, 16, v{T2+2*m+h}")
                a(f"v_and_b32 v{XN+4*k+2*h+1}, 0xffff0000, v{T2+2*m+h}")
        a("v_lshlrev_b32 v125, 16, v124")
        a("v_lshlrev_b32 v124, 16, v124")
        a(f"s_mul_i32 s{sT0}, s3, 5120")
        a(f"v_lshl_add_u32 v12, v1, 4, s{sT0}")
        a(f"v_add_u32 v13, {2*RINGB}, v12")
        lds_wait("PK_HFW", 11)
        HP = 16; HF = 100
        for o in range(4):
            for k, m in enumerate(HM):
                r = HP + NH * o + 4 * k
                a(f"ds_read_b128 v[{r}:{r+3}], v{12+o//2} offset:{(o&1)*RINGB + m*1024}")
        for o in range(4):
            a(f"s_waitcnt lgkmcnt({len(HM)*(3-o)})")
            for i in range(0, NH, 2):
                src = "v[124:125]" if o == 0 else pk(HF + i)
                a(f"v_pk_add_f32 {pk(HF+i)}, {src}, {pk(HP+NH*o+i)}")
        for i in range(0, NH, 2): a(f"v_cvt_pk_bf16_f32 v{HP+i//2}, v{HF+i}, v{HF+i+1}")
        for i in range(0, NH, 2):
            a(f"v_lshlrev_b32 v{HF+i}, 16, v{HP+i//2}")
            a(f"v_and_b32 v{HF+i+1}, 0xffff0000, v{HP+i//2}")
        for i in range(0, NH, 2): a(f"v_pk_add_f32 {pk(HF+i)}, {pk(HF+i)}, {pk(XN+i)}")
        for k, m in enumerate(HM):
            a(f"v_cvt_pk_bf16_f32 v{HP+2*k}, v{HF+4*k}, v{HF+4*k+1}")
            a(f"v_cvt_pk_bf16_f32 v{HP+2*k+1}, v{HF+4*k+2}, v{HF+4*k+3}")
            a(f"buffer_store_dwordx2 v[{HP+2*k}:{HP+2*k+1}], v5, {R(S_OUT)}, 0 offen offset:{32*m}")
    pstamp(a, 11)
    finish_stamps("H")
    a.label("PK_END")
    a("s_endpgm")
    return a

def build():
    ref = open(f"cdna_kernels/{NAME}.s.ref").read().splitlines()
    head = []
    for l in ref:
        if l.startswith("; Override"): break
        head.append(l)
    body = gen()
    out = "\n".join(head) + "\n"
    if os.environ.get("AMP"):
        out += f"; @launch kernel={NAME}_kernel grid=({GRID},1,1) block=({BLOCK},1,1) lds={LDS_BYTES}\n"
        out += f"; @launch kernel=amp_kernel grid=(1,1,1) block=(64,1,1) lds=0\n"
        b = Asm()
        kernel_begin(b, "amp_kernel")
        b("s_cmp_ge_u32 s2, 1")
        b("s_cbranch_scc1 AMP_END")
        b("s_load_dwordx2 s[4:5], s[0:1], 96")
        b("s_waitcnt lgkmcnt(0)")
        b("s_sub_u32 s8, s4, 512")
        b("s_subb_u32 s9, s5, 0")
        b("s_mov_b32 s10, 256")
        b("s_mov_b32 s11, 0x00020000")
        b("v_mov_b32 v1, 0")
        b("buffer_load_dword v2, v1, s[8:11], 0 offen sc1")
        b("buffer_load_dword v3, v1, s[8:11], 0 offen offset:128 sc1")
        b("s_waitcnt vmcnt(0)")
        b("v_readfirstlane_b32 s12, v2")
        b("v_readfirstlane_b32 s13, v3")
        b("s_nop 3")
        b("s_not_b32 s13, s13")
        b("s_sub_u32 s12, s12, s13")
        b("s_min_u32 s12, s12, 10000")
        b(f"s_mul_i32 s12, s12, {int(os.environ['AMP'])}")
        b("s_memrealtime s[14:15]")
        b("s_waitcnt lgkmcnt(0)")
        b.label("AMP_L")
        b("s_memrealtime s[16:17]")
        b("s_waitcnt lgkmcnt(0)")
        b("s_sub_u32 s18, s16, s14")
        b("s_cmp_lt_u32 s18, s12")
        b("s_cbranch_scc1 AMP_L")
        b.label("AMP_END")
        b("s_endpgm")
    else:
        out += f"; @launch grid=({GRID},1,1) block=({BLOCK},1,1) lds={LDS_BYTES}\n"
    out += '.amdgcn_target "amdgcn-amd-amdhsa--gfx950"\n.text\n'
    out += body.text()
    if os.environ.get("AMP"): out += b.text()
    out += '.section .rodata,"a"\n' + kernel_desc(NAME + "_kernel", 256, 102, 128)
    if os.environ.get("AMP"): out += kernel_desc("amp_kernel", 8, 32)
    return out
if __name__ == "__main__":
    import sys
    out = sys.argv[1] if len(sys.argv) > 1 else f"cdna_kernels/{NAME}.s"
    open(out, "w").write(build())
    print("wrote", out)
```

```python
import os, math
from asmlib import *
from layout import *

NAME = "parallel_sum__ssm_conv_h3__mixer_token_mlp__prompt"
GRID, BLOCK, LDS_BYTES = 256, 512, 163840
NT = os.environ.get("NT", "")
BIG = 0x40000000
SPIN_MAX = 20000
E = lambda k, d: int(os.environ.get(k, d))

S_X, S_K, S_V, S_SHK, S_SSMK, S_SSMD, S_W1, S_B1, S_W2, S_B2, S_OUT, S_WS = [32 + 4 * i for i in range(12)]
def R(b): return f"s[{b}:{b+3}]"
sEP, sDT, sFT, sDT2, sST, sRING, sPOS, sWOFF, sHOFF, sKB = range(80, 90)
sT0, sT1, sT2, sT3, sCH, sCVB, sG1BIG, sKVBIG, sC1, sSPIN, sROT, sT4 = range(90, 102)
sROT2, sKB2 = sCH, sCVB

FS = E("FS", 4)
NSLOT = 7
NR1 = E("NR1", 7)
NR2 = 5
RINGB = NSLOT * 4096
AUX = 4 * RINGB
LNX = AUX
HROW = 1344
KVX = LNX + 8 * HROW
CV_K0, CV_K1, CONV_SZ = 4608, 8768, 12928
PT_LDS = AUX + 3 * CONV_SZ
CNT = PT_LDS + 4 * 2560
assert KVX + 16384 <= PT_LDS and CNT + 64 <= LDS_BYTES and KVX % 128 == 0

class VM:
    def __init__(self, a): self.a = a; self.q = []
    def op(self, ins, tag): self.a(ins); self.q.append(tag)
    def count(self, tag):
        idx = [i for i, t in enumerate(self.q) if t == tag]
        return len(self.q) - 1 - idx[-1] if idx else None
    def wait(self, tag, extra=""):
        n = self.count(tag)
        if n is None:
            if extra: self.a(f"s_waitcnt {extra}")
            return
        self.a(f"s_waitcnt vmcnt({min(n, 63)}) {extra}")
        self.q = self.q[len(self.q) - n:] if n else []
    def reset(self): self.q = []

TIMER = "s_memtime" if os.environ.get("CYC") else "s_memrealtime"
MUTE = [False]
def pstamp(a, i, force=False):
    if STAMP and (force or not MUTE[0]): a(f"{TIMER} s[{4+2*i}:{5+2*i}]")
def pk(r): return f"v[{r}:{r+1}]"

def gen():
    a = Asm()
    vm = VM(a)
    def emit(items):
        for it in items:
            if isinstance(it, list): emit(it)
            elif isinstance(it, tuple): vm.op(it[0], it[1])
            else: a(it)
    def flag_store(soff, tmp=2):
        a(f"v_mov_b32 v{tmp}, s{sEP}")
        a(f"v_mov_b32 v{tmp+1}, s{soff}")
        a("s_mov_b64 exec, 1")
        vm.op(f"buffer_store_dword v{tmp}, v{tmp+1}, {R(S_WS)}, 0 offen sc1", "flag")
        a("s_mov_b64 exec, -1")
    def spin(label, pairs, first_tag=None, sleep=0):
        def check():
            a(f"v_cmp_ne_u32 vcc, s{sEP}, v{pairs[0][1]}")
            for _, d in pairs[1:]:
                a(f"v_cmp_ne_u32 s[28:29], s{sEP}, v{d}")
                a("s_or_b64 vcc, vcc, s[28:29]")
        if first_tag:
            vm.wait(first_tag)
            check()
            a(f"s_cbranch_vccz {label}_OK")
        a(f"s_mov_b32 s{sSPIN}, 0")
        a.label(label)
        if sleep: a(f"s_sleep {sleep}", "poll back-off")
        for ad, d in pairs:
            a(f"buffer_load_dword v{d}, v{ad}, {R(S_WS)}, 0 offen sc1")
        a(f"s_add_u32 s{sSPIN}, s{sSPIN}, 1")
        a("s_waitcnt vmcnt(0)")
        check()
        a(f"s_cmp_gt_u32 s{sSPIN}, {SPIN_MAX}")
        a(f"s_cbranch_scc1 {label}_OK")
        a(f"s_cbranch_vccnz {label}")
        a.label(label + "_OK")
        if not first_tag: vm.reset()
    def lds_arrive(idx, t=2):
        a(f"v_mov_b32 v{t}, {CNT + 4*idx}")
        a(f"v_mov_b32 v{t+1}, 1")
        a("s_waitcnt lgkmcnt(0)")
        a("s_mov_b64 exec, 1")
        a(f"ds_add_u32 v{t}, v{t+1}")
        a("s_mov_b64 exec, -1")
    def lds_wait(label, idx, n=4, t=2, sleep=0):
        a(f"v_mov_b32 v{t}, {CNT + 4*idx}")
        a(f"s_mov_b32 s{sSPIN}, 0")
        a.label(label)
        if sleep: a(f"s_sleep {sleep}", "poll back-off")
        a(f"ds_read_b32 v{t+1}, v{t}")
        a(f"s_add_u32 s{sSPIN}, s{sSPIN}, 1")
        a(f"s_cmp_gt_u32 s{sSPIN}, {1 << 21}")
        a("s_waitcnt lgkmcnt(0)")
        a(f"v_cmp_gt_u32 vcc, {n}, v{t+1}")
        a(f"s_cbranch_scc1 {label}_OK")
        a(f"s_cbranch_vccnz {label}")
        a.label(label + "_OK")
    def sbar(label, idx, t=2):
        lds_arrive(idx, t); lds_wait(label, idx, 4, t)
    def read_epoch(vdata):
        vm.wait("ep")
        a(f"v_readfirstlane_b32 s{sEP}, v{vdata}")
        a("s_nop 3")
        a(f"s_mul_i32 s{sEP}, s{sEP}, 1664525")
        a(f"s_add_u32 s{sEP}, s{sEP}, 1013904223")
    def finish_stamps(role='X'):
        if not STAMP: return
        a("s_waitcnt vmcnt(0)")
        a(f"{TIMER} s[28:29]")
        a("s_waitcnt lgkmcnt(0)")
        if os.environ.get("AMP") and role == os.environ.get("AMPROLE", "G"):
            a("s_load_dwordx2 s[30:31], s[0:1], 96")
            a("s_waitcnt lgkmcnt(0)")
            srd(a, S_K, 30, 256)
            a("s_cmp_lg_u32 s3, 0")
            a(f"s_cbranch_scc1 AMPSKIP{role}")
            a("v_mov_b32 v1, 0")
            a("s_mov_b64 exec, 1")
            a(f"v_mov_b32 v2, s{4+2*int(os.environ['AMPIDX'])}")
            a(f"buffer_atomic_umax v2, v1, {R(S_K)}, 0 offen")
            a("s_not_b32 s4, s4")
            a("v_mov_b32 v2, s4")
            a(f"buffer_atomic_umax v2, v1, {R(S_K)}, 0 offen offset:128")
            a("s_not_b32 s4, s4")
            a("s_mov_b64 exec, -1")
            a.label(f"AMPSKIP{role}")
        a("s_load_dwordx2 s[30:31], s[0:1], 104")
        a("s_waitcnt lgkmcnt(0)")
        srd(a, S_X, 30, 1 << 20, 16 << 20)
        a(f"s_lshl_b32 s{sT0}, s2, 9")
        a("v_lshrrev_b32 v1, 6, v0")
        a(f"v_lshl_add_u32 v1, v1, 6, s{sT0}")
        a("s_mov_b64 exec, 1")
        for i in range(13):
            a(f"v_mov_b32 v2, s{4+2*i}")
            a(f"buffer_store_dword v2, v1, {R(S_X)}, 0 offen offset:{4*i}")

    kernel_begin(a, NAME + "_kernel")
    a(f"s_cmp_ge_u32 s2, {GRID}")
    a("s_cbranch_scc1 PK_END")
    a("s_load_dwordx8 s[4:11], s[0:1], 0", "x k v shift_k")
    a("s_load_dwordx2 s[26:27], s[0:1], 104", "ws")
    a("s_load_dwordx8 s[16:23], s[0:1], 56", "w1 b1 w2 b2")
    a("s_load_dwordx4 s[12:15], s[0:1], 32", "ssm_k ssm_D")
    a("s_load_dwordx2 s[24:25], s[0:1], 88", "out")
    if STAMP: a(f"{TIMER} s[30:31]")
    a("v_lshrrev_b32 v2, 6, v0")
    a("v_and_b32 v1, 63, v0", "lane")
    a(f"v_readfirstlane_b32 s{sT4}, v2", "wave 0..7")
    a("v_lshlrev_b32 v3, 2, v1", "lane*4")
    a(f"v_and_b32 v4, 60, v3")
    a(f"v_add_u32 v4, {CNT}, v4")
    a("v_mov_b32 v5, 0")
    a("ds_write_b32 v4, v5", "zero the 16 lds counters")
    a(f"s_and_b32 s3, s{sT4}, 3", "w within the role")
    a(f"s_and_b32 s{sT0}, s2, 7", "x")
    a(f"s_lshr_b32 s{sT1}, s2, 3", "j")
    a(f"s_and_b32 s{sT2}, s{sT0}, 1")
    a(f"s_lshl_b32 s{sDT2}, s{sT2}, 2")
    a(f"s_and_b32 s{sT3}, s{sT1}, 3")
    a(f"s_add_u32 s{sDT2}, s{sDT2}, s{sT3}", "dt2")
    a(f"s_lshr_b32 s{sT0}, s{sT0}, 1")
    a(f"s_lshl_b32 s{sST}, s{sT0}, 3")
    a(f"s_lshr_b32 s{sT3}, s{sT1}, 2")
    a(f"s_add_u32 s{sST}, s{sST}, s{sT3}", "st")
    a(f"v_mov_b32 v8, {EPOCH_OFF}")
    a(f"s_cmp_lt_u32 s{sT4}, 4")
    a("s_cbranch_scc1 PK_G")
    a("s_setprio 3")
    a(f"s_lshl_b32 s{sT0}, s2, 2")
    a(f"s_add_u32 s{sT0}, s{sT0}, s3")
    a(f"s_mul_i32 s{sT4}, s{sT0}, 2560", "x soffset")
    a("s_waitcnt lgkmcnt(0)")
    srd(a, S_X, 4, SD_BYTES)
    for r in range(2):
        for i in range(5):
            a(f"buffer_load_dword v{16+5*r+i}, v3, {R(S_X)}, s{sT4} offen offset:{r*1280+i*256} {NT}")
    a("s_barrier", "lds counters zeroed")
    a("s_branch PK_H")
    a.label("PK_G")
    a("s_getpc_b64 s[28:29]")
    a.label("PK_PC")
    a(f"s_sub_u32 s28, s28, PK_PC-{NAME}_kernel")
    a("s_subb_u32 s29, s29, 0")
    a("v_and_b32 v9, 7, v0")
    a(f"s_andn2_b32 s{sT3}, s2, 7")
    a(f"v_add_lshl_u32 v9, v9, s{sT3}, 7")
    a(f"v_min_u32 v9, PK_END-{NAME}_kernel, v9")
    a("global_load_dword v127, v9, s[28:29]")

    a("s_setprio 1")
    a(f"s_mul_hi_u32 s{sFT}, s{sT1}, 0x33333334", "j/5")
    a(f"s_mul_i32 s{sT3}, s{sFT}, 5")
    a(f"s_sub_u32 s{sDT}, s{sT1}, s{sT3}", "j%5")
    a(f"s_mul_i32 s{sROT}, s{sDT}, 13")
    a(f"s_lshr_b32 s{sROT}, s{sROT}, 2", "rot = 3.25*dt_local")
    if not E("ROT", 1): a(f"s_mov_b32 s{sROT}, 0")
    if E("ROT", 1) == 2:
        a(f"s_add_u32 s{sROT}, s{sDT}, s{sFT}")
        a(f"s_sub_u32 s{sT3}, s{sROT}, 6")
        a(f"s_min_u32 s{sROT}, s{sROT}, s{sT3}")
        a(f"s_mul_i32 s{sROT}, s{sROT}, 11")
        a(f"s_lshr_b32 s{sROT}, s{sROT}, 2", "2.75 * index")
    a(f"s_mul_i32 s{sT3}, s{sT2}, 5")
    a(f"s_add_u32 s{sDT}, s{sDT}, s{sT3}", "dt")
    a(f"s_mul_i32 s{sT3}, s{sT0}, 6")
    a(f"s_add_u32 s{sFT}, s{sFT}, s{sT3}", "ft")
    a(f"s_cmp_ge_u32 s{sT1}, 30")
    a(f"s_cselect_b32 s{sG1BIG}, {BIG}, 0")
    a(f"s_mul_i32 s{sRING}, s3, {RINGB}")
    a(f"s_lshl_b32 s{sKB}, s3, 4")
    a(f"s_mov_b32 s{sPOS}, s{sROT}")
    a("v_lshrrev_b32 v2, 3, v1")
    a("v_mul_u32_u24 v4, 3072, v2")
    a("v_bfe_u32 v2, v1, 4, 1")
    a("v_lshlrev_b32 v2, 2, v2")
    a("v_and_b32 v3, 7, v1")
    a("v_xor_b32 v2, v2, v3")
    a("v_lshl_add_u32 v4, v2, 4, v4")
    a(f"s_lshl_b32 s{sT1}, s{sFT}, 7")
    a(f"s_add_u32 s{sT1}, s{sT1}, s{sG1BIG}")
    a(f"v_add_u32 v4, s{sT1}, v4")
    for q in range(1, 4):
        a(f"v_add_u32 v{4+q}, {q*(24576-1024)}, v4")
    a("s_waitcnt lgkmcnt(0)")
    srd(a, S_W1, 16, S * F * 2)
    a("s_barrier", "lds counters zeroed")
    def w1_stage(i):
        items = [f"s_add_u32 s{sWOFF}, s{sKB}, s{sPOS}", f"s_mul_i32 s{sWOFF}, s{sWOFF}, 98304",
                 f"s_add_u32 m0, s{sRING}, {(i % NSLOT)*4096}", f"s_add_u32 s{sPOS}, s{sPOS}, 1", f"s_and_b32 s{sPOS}, s{sPOS}, 15"]
        for q in range(4):
            items.append((f"buffer_load_dwordx4 v{4+q}, {R(S_W1)}, s{sWOFF} offen offset:{q*1024} lds", f"w1_{i}"))
        return items
    def w1_tr(i):
        out = []
        for kh in range(2):
            for mt in range(2):
                for h in range(2):
                    r = 16 * (i % NR1) + 4 * (2 * kh + mt) + 2 * h
                    out.append(f"ds_read_b64_tr_b16 a[{r}:{r+1}], v{10+mt} offset:{(i % NSLOT)*4096 + kh*2048 + h*512}")
        return out
    WD = E("WD", 2)
    for i in range(WD): emit(w1_stage(i))
    srd(a, S_WS, 26, WS_USED, E("WSMB", 0) << 20)
    vm.op(f"buffer_load_dword v9, v8, {R(S_WS)}, 0 offen sc1", "ep")
    srd(a, S_W2, 20, S * F * 2)
    srd(a, S_B2, 22, S * 2)
    srd(a, S_OUT, 24, SD_BYTES)
    if STAMP:
        a("s_mov_b32 s4, s30"); a("s_mov_b32 s5, s31")
    pstamp(a, 1)
    a("v_lshrrev_b32 v2, 5, v1")
    a("v_lshlrev_b32 v10, 10, v2")
    a("v_mul_u32_u24 v12, 10240, v2")
    a("v_bfe_u32 v2, v1, 2, 2")
    a("v_lshl_add_u32 v10, v2, 7, v10")
    a("v_bfe_u32 v2, v1, 3, 1")
    a("v_lshl_add_u32 v10, v2, 6, v10")
    a("v_bfe_u32 v2, v1, 4, 1")
    a("v_lshl_add_u32 v10, v2, 5, v10")
    a("v_and_b32 v2, 3, v1")
    a("v_lshl_add_u32 v10, v2, 3, v10")
    a(f"v_add_u32 v10, s{sRING}, v10")
    a("v_xor_b32 v11, 64, v10")
    a("v_and_b32 v2, 31, v1")
    a("v_lshl_add_u32 v12, v2, 4, v12")
    a(f"s_lshl_b32 s{sT0}, s{sDT}, 10")
    a(f"s_add_u32 s{sT0}, s{sT0}, s{sG1BIG}")
    if HBLK_OFF: a(f"s_add_u32 s{sT0}, s{sT0}, {HBLK_OFF}")
    a(f"v_add_u32 v12, s{sT0}, v12")
    a("v_add_u32 v13, 20480, v12")
    a(f"s_and_b32 s{sT0}, s{sDT}, 3")
    a(f"s_lshl_b32 s{sT0}, s{sT0}, {8+FS}")
    a(f"s_add_u32 s{sT0}, s{sT0}, {FH_OFF}")
    a(f"v_lshl_add_u32 v14, v0, {FS}, s{sT0}")
    a(f"s_and_b32 s{sROT2}, s{sDT2}, 3")
    a(f"s_mul_i32 s{sROT2}, s{sROT2}, 3")
    if E("ROT2", 1) == 2:
        a(f"s_and_b32 s{sT0}, s{sST}, 7")
        a(f"s_mul_i32 s{sT0}, s{sT0}, 3")
        a(f"s_lshr_b32 s{sT0}, s{sT0}, 1")
        a(f"s_add_u32 s{sROT2}, s{sROT2}, s{sT0}")
        a(f"s_sub_u32 s{sT0}, s{sROT2}, 12")
        a(f"s_min_u32 s{sROT2}, s{sROT2}, s{sT0}")
    a(f"s_mul_i32 s{sKB2}, s3, 12")
    c0 = -2.0 * math.sqrt(2.0 / math.pi) * math.log2(math.e)
    a(f"s_mov_b32 s{sC1}, {f32(c0*0.044715)}")
    NPRE = NR1 + NSLOT
    BURST = E("BURST", 1)
    last = NR1 if BURST else NPRE - WD + 1
    for i in range(last):
        vm.wait(f"w1_{i}")
        if i < NR1: emit(w1_tr(i))
        nx = i + WD
        if nx < NPRE:
            if nx >= NSLOT:
                later = sum(1 for k in range(nx - NSLOT + 1, i + 1) if k < NR1)
                a(f"s_waitcnt lgkmcnt({8 if later else 0})")
            emit(w1_stage(nx))
        if i == WD:
            read_epoch(9); lds_arrive(6)
    EARLY = E("EARLY", 0); NP0 = E("NP0", 10)
    sLATE = 31
    if BURST:
        a("s_waitcnt lgkmcnt(0)")
        if EARLY:
            assert NR1 == 7
            vm.op(f"buffer_load_dword v15, v14, {R(S_WS)}, 0 offen sc1", "hpoll0")
            for nx in range(NR1 - 1 + WD + 1, NP0): emit(w1_stage(nx))
            lds_wait("PK_B1W", 1)
            vm.wait("hpoll0")
            a(f"v_cmp_ne_u32 vcc, s{sEP}, v15")
            a(f"s_mov_b32 s{sLATE}, 1")
            pstamp(a, 2)
            a("s_cbranch_vccz PK_SPIN_H_OK")
            a(f"s_mov_b32 s{sLATE}, 0")
            keep = list(vm.q)
            for nx in range(NP0, NPRE): emit(w1_stage(nx))
            vm.q = keep
        else:
            for nx in range(NR1 - 1 + WD + 1, NPRE): emit(w1_stage(nx))
    if E("W1ONLY", 0):
        a("s_waitcnt vmcnt(0)")
        for i in range(2, 12): pstamp(a, i)
        finish_stamps()
        a("s_endpgm")
    if EARLY:
        keep = list(vm.q)
        spin("PK_SPIN_H", [(14, 15)])
        vm.q = keep
    else:
        if E("W2PF", 1):
            a(f"s_cmp_eq_u32 s{sG1BIG}, 0")
            a("s_cbranch_scc1 PK_NOPF")
            a(f"s_lshr_b32 s{sT0}, s2, 3")
            a(f"s_sub_u32 s{sT0}, s{sT0}, 30")
            a(f"s_lshl_b32 s{sT0}, s{sT0}, 2")
            a(f"s_add_u32 s{sT0}, s{sT0}, s3")
            a(f"s_and_b32 s{sT1}, s2, 1")
            a(f"s_lshl_b32 s{sT1}, s{sT1}, 3")
            a(f"s_add_u32 s{sT0}, s{sT0}, s{sT1}")
            a(f"s_mul_i32 s{sT0}, s{sT0}, {96*4096}")
            a(f"s_bfe_u32 s{sT1}, s2, 0x20001")
            a(f"s_lshl_b32 s{sT1}, s{sT1}, 10")
            a(f"s_add_u32 s{sT0}, s{sT0}, s{sT1}")
            a("v_lshrrev_b32 v2, 3, v1")
            a("v_lshlrev_b32 v2, 12, v2")
            a("v_and_b32 v3, 7, v1")
            a("v_lshl_add_u32 v2, v3, 7, v2")
            for t in range(12):
                a(f"buffer_load_dword v{16+t}, v2, {R(S_W2)}, s{sT0} offen")
                a(f"s_add_u32 s{sT0}, s{sT0}, 32768")
            a.label("PK_NOPF")
        vm.op(f"buffer_load_dword v15, v14, {R(S_WS)}, 0 offen sc1", "hpoll")
        lds_wait("PK_B1W", 1)
        pstamp(a, 2)
        spin("PK_SPIN_H", [(14, 15)], "hpoll")
    if E("GBAR1", 0): sbar("PK_GB1", 13)
    pstamp(a, 3)
    a("s_setprio 2")
    ACC = 64
    HB = [("v", 16), ("v", 32), ("v", 48)] + [("a", 16 * k) for k in range(NR1, 8)]
    HD = len(HB)
    HB = HB[-((16 - 0) % HD or HD):] + HB[:-((16 - 0) % HD or HD)] if False else HB
    def hreg(i, kh, nt):
        f, b = HB[(i + HSH) % HD]
        r = b + 4 * (2 * kh + nt)
        return f"{f}[{r}:{r+3}]"
    HSH = (1 - 13) % HD
    sHP = sKVBIG
    a(f"s_mov_b32 s{sHP}, s{sROT}")
    def h_adv():
        return [f"s_add_u32 s{sHOFF}, s{sKB}, s{sHP}", f"s_mul_i32 s{sHOFF}, s{sHOFF}, 40960",
                f"s_add_u32 s{sHP}, s{sHP}, 1", f"s_and_b32 s{sHP}, s{sHP}, 15"]
    def hload(i, nt, kh):
        return (f"buffer_load_dwordx4 {hreg(i, kh, nt)}, v{12+kh}, {R(S_WS)}, s{sHOFF} offen offset:{nt*512} {os.environ.get('HFLAG', 'sc1')}", f"h{i}_{kh}{nt}")
    HPRE = E("HPRE", HD)
    for i in range(HPRE):
        emit(h_adv())
        for kh in range(2):
            for nt in range(2): emit([hload(i, nt, kh)])
    a("s_waitcnt lgkmcnt(0)")
    def pos2(i):
        return [f"s_add_u32 s{sT0}, s{sROT2}, {i}", f"s_sub_u32 s{sT1}, s{sT0}, 12", f"s_min_u32 s{sT0}, s{sT0}, s{sT1}",
                f"s_add_u32 s{sT0}, s{sT0}, s{sKB2}"]
    def w2_slot(i): return i % NSLOT
    def w2_dma(i):
        items = pos2(i) + [f"s_add_u32 m0, s{sRING}, {w2_slot(i)*4096}", f"s_lshl_b32 s{sWOFF}, s{sT0}, 17"]
        for q in range(4):
            items.append((f"buffer_load_dwordx4 v{4+q}, {R(S_W2)}, s{sWOFF} offen offset:{q*1024} lds", f"w2_{i}"))
        return items
    BB = 16
    for i in range(16):
        nx = i + HPRE
        if E("G1STEPS", 0):
            MUTE[0] = True
            if i in (1, 3, 5, 7, 9, 11, 13): pstamp(a, 4 + i // 2, True)
        if nx < 16: emit(h_adv())
        side = []
        if EARLY:
            if 4 <= i <= 12:
                if i + 3 < NP0: vm.wait(f"w1_{i+3}")
                side = w1_tr(i + 3)
            if i >= 6: a("s_waitcnt lgkmcnt(8)" if i <= 13 else "s_waitcnt lgkmcnt(0)")
            if NP0 + i <= 13:
                a(f"s_cmp_eq_u32 s{sLATE}, 0")
                a(f"s_cbranch_scc1 PK_NOLATE{i}")
                keep = list(vm.q); emit(w1_stage(NP0 + i)); vm.q = keep
                a.label(f"PK_NOLATE{i}")
            if i in (6, 7): emit(w1_stage(8 + i))
        else:
            st_tr = NR1 - 1 + i
            if i >= 1 and st_tr < 16:
                vm.wait(f"w1_{st_tr}")
                side = w1_tr(st_tr)
            st_ld = NPRE + i - 3
            if i >= 3 and st_ld < 16:
                a("s_waitcnt lgkmcnt(8)")
                emit(w1_stage(st_ld))
            elif i >= NR1:
                a("s_waitcnt lgkmcnt(8)" if NR1 - 1 + i - 1 < 16 else "s_waitcnt lgkmcnt(0)")
        if E("KV_LATE", 0) and i == E("KV_LATE", 0):
            a(f"v_mov_b32 v2, {CNT + 48}")
            a("s_mov_b64 exec, 1")
            a("ds_add_u32 v2, v2")
            a("s_mov_b64 exec, -1")
        if i == 12:
            side = side + ["v_lshrrev_b32 v2, 3, v1", "v_lshlrev_b32 v4, 12, v2", "v_bfe_u32 v2, v1, 4, 1", "v_lshlrev_b32 v2, 1, v2",
                    "v_and_b32 v3, 7, v1", "v_xor_b32 v2, v2, v3", "v_lshl_add_u32 v4, v2, 4, v4", f"s_lshl_b32 s{sT0}, s{sST}, 7",
                    f"v_add_u32 v4, s{sT0}, v4", "v_xor_b32 v2, 64, v4", f"v_add_u32 v5, {1*(32768-1024)}, v2",
                    f"v_add_u32 v6, {2*(32768-1024)}, v4", f"v_add_u32 v7, {3*(32768-1024)}, v2",
                    ]
        if i == E("KGO", 11): lds_arrive(10)
        if i == 13:
            side = [f"s_add_u32 s{sT2}, s{sRING}, {3*4096}", f"v_lshl_add_u32 v9, v1, 4, s{sT2}",
                    f"s_lshl_b32 s{sT2}, s3, 12", f"s_add_u32 s{sT2}, s{sT2}, {3*4096}", f"v_lshl_add_u32 v10, v1, 4, s{sT2}",
                    f"v_add_u32 v11, {2*RINGB}, v10",
                    f"s_lshr_b32 s{sT0}, s3, 1", f"s_lshl_b32 s{sT0}, s{sT0}, 6", f"s_add_u32 s{sT0}, s{sT0}, {PT_LDS}",
                    "v_lshrrev_b32 v8, 5, v1", f"v_lshl_add_u32 v8, v8, 3, s{sT0}",
                    f"s_lshr_b32 s{sT0}, s3, 1", f"s_lshl_b32 s{sT0}, s{sT0}, 2", f"s_lshl_b32 s{sT1}, s{sFT}, 3",
                    f"s_add_u32 s{sT0}, s{sT0}, s{sT1}", f"s_mul_i32 s{sT0}, s{sT0}, 10240", f"s_and_b32 s{sT1}, s3, 1",
                    f"s_lshl_b32 s{sT1}, s{sT1}, 9", f"s_add_u32 s{sT0}, s{sT0}, s{sT1}",
                    f"s_add_u32 s{sT0}, s{sT0}, {UBLK_OFF - HBLK_OFF - 20480}", f"v_add_u32 v14, s{sT0}, v13", "v_add_u32 v15, 20480, v14",
                    f"v_mov_b32 v13, {f32(c0)}", "s_mov_b32 s28, 1.0", "s_mov_b32 s29, 1.0"]
        if i == 14:
            side = [f"ds_read_b64 v[{32+2*q}:{33+2*q}], v8 offset:{16*q}" for q in range(4)]
        if i == 15:
            for kh in range(2):
                for nt in range(2): vm.wait(f"h{i}_{kh}{nt}")
            def mf(t_):
                mt, nt = t_ >> 1, t_ & 1
                t = ACC + 16 * t_
                for kh in range(2):
                    wr = 16 * (i % NR1) + 4 * (2 * kh + mt)
                    a(f"v_mfma_f32_32x32x16_bf16 v[{t}:{t+15}], a[{wr}:{wr+3}], {hreg(i, kh, nt)}, v[{t}:{t+15}]")
            def wr_(t_):
                for q in range(4):
                    r = ACC + 16 * t_ + 4 * q
                    a(f"ds_write_b128 v9, v[{r}:{r+3}] offset:{t_*4096 + q*1024}")
            FIN = 48
            mf(0); mf(1)
            a("s_waitcnt lgkmcnt(0)")
            for q in range(0, 10, 2):
                a(f"v_lshlrev_b32 v{FIN+q}, 16, v{32+q//2}")
                a(f"v_and_b32 v{FIN+q+1}, 0xffff0000, v{32+q//2}")
            wr_(0); mf(2); wr_(1); mf(3)
            for q in range(10, 16, 2):
                a(f"v_lshlrev_b32 v{FIN+q}, 16, v{32+q//2}")
                a(f"v_and_b32 v{FIN+q+1}, 0xffff0000, v{32+q//2}")
            wr_(2)
            a("s_nop 1")
            wr_(3)
            continue
        k = 0; si = 0
        for kh in range(2):
            for nt in range(2):
                vm.wait(f"h{i}_{kh}{nt}")
                for mt in range(2):
                    t = ACC + 16 * (2 * mt + nt)
                    wr = 16 * (i % NR1) + 4 * (2 * kh + mt)
                    c = "0" if (i == 0 and kh == 0) else f"v[{t}:{t+15}]"
                    if not E("NOMF1", 0): a(f"v_mfma_f32_32x32x16_bf16 v[{t}:{t+15}], a[{wr}:{wr+3}], {hreg(i, kh, nt)}, {c}")
                    k += 1
                    while si < (len(side) * k + 7) // 8:
                        emit([side[si]]); si += 1
                if nx < 16: emit([hload(nx, nt, kh)])
    pstamp(a, 4)
    if E("G1STEPS", 0): pstamp(a, 11, True)
    lds_arrive(4)
    H3L = E("H3L", 0)
    W2AF = E("W2AF", 0)
    if not H3L and not W2AF: emit(w2_dma(0)); emit(w2_dma(1))
    lds_wait("PK_XW1", 4)
    PT = 64
    for o in range(4):
        for q in range(4):
            r = PT + 16 * o + 4 * q
            a(f"ds_read_b128 v[{r}:{r+3}], v{10+o//2} offset:{(o&1)*RINGB + q*1024}")
    for o in range(4):
        a(f"s_waitcnt lgkmcnt({12-4*o})")
        for i in range(0, 16, 2):
            a(f"v_pk_add_f32 {pk(FIN+i)}, {pk(FIN+i)}, {pk(PT+16*o+i)}")
    lds_arrive(5)
    T = 64
    for i in range(0, 16, 2): a(f"v_pk_mul_f32 {pk(T+i)}, {pk(FIN+i)}, {pk(FIN+i)}")
    for i in range(16): a(f"v_fma_f32 v{T+i}, v{T+i}, s{sC1}, v13")
    for i in range(0, 16, 2): a(f"v_pk_mul_f32 {pk(T+i)}, {pk(T+i)}, {pk(FIN+i)}")
    for i in range(16): a(f"v_exp_f32 v{T+i}, v{T+i}")
    if E("W2MID", 0): emit(w2_dma(2))
    for i in range(0, 16, 2): a(f"v_pk_add_f32 {pk(T+i)}, {pk(T+i)}, s[28:29]")
    for i in range(16): a(f"v_rcp_f32 v{T+i}, v{T+i}")
    for i in range(0, 16, 2): a(f"v_pk_mul_f32 {pk(FIN+i)}, {pk(FIN+i)}, {pk(T+i)}")
    P = T + 16
    for i in range(0, 16, 2): a(f"v_cvt_pk_bf16_f32 v{P+i//2}, v{FIN+i}, v{FIN+i+1}")
    a("s_nop 1")
    for qp in range(2):
        r = P + 4 * qp
        a(f"v_permlane32_swap_b32 v{r}, v{r+2}")
        a(f"v_permlane32_swap_b32 v{r+1}, v{r+3}")
        vm.op(f"buffer_store_dwordx4 v[{r}:{r+3}], v{14+qp}, {R(S_WS)}, 0 offen sc1", "ust")
    pstamp(a, 5)
    lds_arrive(8)
    a(f"s_lshl_b32 s{sT0}, s{sDT}, 1")
    a(f"s_and_b32 s{sT1}, s3, 1")
    a(f"s_add_u32 s{sT0}, s{sT0}, s{sT1}")
    a(f"s_mul_i32 s{sT0}, s{sT0}, 48")
    a(f"s_lshl_b32 s{sT1}, s{sFT}, 1")
    a(f"s_add_u32 s{sT0}, s{sT0}, s{sT1}")
    a(f"s_lshr_b32 s{sT1}, s3, 1")
    a(f"s_add_u32 s{sT0}, s{sT0}, s{sT1}")
    a(f"s_lshl_b32 s{sT0}, s{sT0}, {FS}")
    a(f"s_add_u32 s{sT0}, s{sT0}, {FU_OFF}")
    a(f"s_add_u32 s{sT4}, s{sT0}, s{sG1BIG}")
    TR2 = 100
    a("v_lshrrev_b32 v106, 4, v1", "g")
    a("v_and_b32 v107, 15, v1", "n")
    a(f"v_lshlrev_b32 v{TR2}, 10, v106")
    a("v_bfe_u32 v2, v1, 2, 2")
    a(f"v_lshl_add_u32 v{TR2}, v2, 7, v{TR2}")
    a("v_bfe_u32 v2, v1, 3, 2")
    a(f"v_lshl_add_u32 v{TR2}, v2, 5, v{TR2}")
    a("v_and_b32 v2, 3, v1")
    a(f"v_lshl_add_u32 v{TR2}, v2, 3, v{TR2}")
    a(f"v_add_u32 v{TR2}, s{sRING}, v{TR2}")
    for j in range(1, 4): a(f"v_xor_b32 v{TR2+j}, {32*j}, v{TR2}")
    a("v_min_u32 v2, 35, v1")
    a("v_mul_u32_u24 v3, 43, v2")
    a("v_lshrrev_b32 v3, 9, v3")
    a("v_mul_u32_u24 v104, 36, v3")
    a("v_add_u32 v104, v104, v2")
    a(f"s_mul_i32 s{sT3}, s{sDT2}, 80", "d0")
    a(f"s_lshr_b32 s{sT0}, s{sT3}, 5")
    a(f"s_mul_i32 s{sT0}, s{sT0}, 48")
    a(f"s_add_u32 s{sT0}, s{sT0}, s{sKB2}")
    a(f"s_lshl_b32 s{sT0}, s{sT0}, {FS}")
    a(f"s_add_u32 s{sT0}, s{sT0}, {FU_OFF}")
    a(f"v_lshl_add_u32 v104, v104, {FS}, s{sT0}")
    a("v_mul_u32_u24 v105, 10240, v106")
    a("v_lshl_add_u32 v105, v107, 4, v105")
    a(f"s_lshl_b32 s{sT0}, s{sT3}, 4")
    a(f"s_add_u32 s{sT0}, s{sT0}, {UBLK_OFF}")
    a(f"v_add_u32 v105, s{sT0}, v105")
    def w2_tr(i, tr):
        out = []
        for j in range(4):
            for h in range(2):
                r = 16 * (i % NR2) + 4 * j + 2 * h
                out.append(f"ds_read_b64_tr_b16 a[{r}:{r+1}], v{tr+j} offset:{w2_slot(i)*4096 + h*512}")
        return out
    if H3L:
        lds_wait("PK_XW2", 5, n=5)
        for k in range(3): emit(w2_tr(k, TR2))
        vm.wait("ust")
        flag_store(sT4)
        pstamp(a, 6)
        emit(w2_dma(3)); emit(w2_dma(4))
        a("s_waitcnt lgkmcnt(0)")
    else:
        if not W2AF:
            vm.wait("w2_1")
            for k in range(2): emit(w2_tr(k, TR2))
        lds_wait("PK_XW2", 5)
        vm.wait("ust")
        flag_store(sT4)
        pstamp(a, 6)
        if W2AF: emit(w2_dma(0)); emit(w2_dma(1))
        if not E("W2MID", 0): emit(w2_dma(2))
        emit(w2_dma(3)); emit(w2_dma(4))
        vm.wait("w2_2")
        if W2AF:
            for k in range(2): emit(w2_tr(k, TR2))
        emit(w2_tr(2, TR2))
        a("s_waitcnt lgkmcnt(0)")
    if E("BURST2", 1):
        for nx in range(5, 10): emit(w2_dma(nx))
        for i in (3, 4):
            vm.wait(f"w2_{i}"); emit(w2_tr(i, TR2))
        a("s_waitcnt lgkmcnt(0)")
        emit(w2_dma(10)); emit(w2_dma(11))
        vm.op(f"buffer_load_dword v108, v104, {R(S_WS)}, 0 offen sc1", "upoll")
    else:
      for i in range(3, 12):
        nx = i + 2
        if nx < 12:
            if nx >= 9: a("s_waitcnt lgkmcnt(0)")
            emit(w2_dma(nx))
        vm.wait(f"w2_{i}")
        if i < NR2: emit(w2_tr(i, TR2))
        if i == E("UPOLL_AT", 10):
            vm.op(f"buffer_load_dword v108, v104, {R(S_WS)}, 0 offen sc1", "upoll")
    for j in range(4): a(f"v_mov_b32 v{4+j}, v{TR2+j}")
    a("v_mul_u32_u24 v109, 26, v1")
    a("v_lshrrev_b32 v109, 8, v109", "L/10")
    a("v_mul_u32_u24 v110, 10, v109")
    a("v_sub_u32 v110, v1, v110", "L%10")
    a("v_min_u32 v109, 5, v109")
    a("v_mul_u32_u24 v109, 10240, v109")
    a("v_lshl_add_u32 v109, v110, 7, v109")
    a(f"s_and_b32 s{sT0}, s{sST}, 7")
    a(f"s_mul_i32 s{sT0}, s{sT0}, 6")
    a(f"s_mul_i32 s{sT1}, s3, 48")
    a(f"s_add_u32 s{sT0}, s{sT0}, s{sT1}")
    a(f"s_mul_i32 s{sT0}, s{sT0}, 10240")
    a(f"s_mul_i32 s{sT1}, s{sDT2}, 1280")
    a(f"s_add_u32 s{sT0}, s{sT0}, s{sT1}")
    a(f"s_add_u32 s{sT0}, s{sT0}, {UBLK_OFF}")
    a(f"v_add_u32 v109, s{sT0}, v109")
    a("v_mov_b32 v3, v105")
    pstamp(a, 7)
    spin("PK_SPIN_U", [(104, 108)], "upoll" if vm.count("upoll") is not None else "x")
    if E("GBAR2", 0): sbar("PK_GB2", 14, t=110)
    pstamp(a, 8)
    if E("G2STEPS", 0): pstamp(a, 1, True)
    ACC2 = 48
    UB = [("a", 100), ("v", 8), ("v", 28), ("a", 80)]; UD = 4
    def ureg(i, m):
        f, b = UB[i % UD]
        return f"{f}[{b+4*m}:{b+4*m+3}]"
    def u_adv(i): return pos2(i) + [f"s_mul_i32 s{sHOFF}, s{sT0}, 40960"]
    def uload(i, m):
        return (f"buffer_load_dwordx4 {ureg(i, m)}, v3, {R(S_WS)}, s{sHOFF} offen offset:{m*256} sc1", f"u{i}_{m}")
    UPRE = E("UPRE", UD)
    for i in range(UPRE):
        emit(u_adv(i))
        for m in range(5): emit([uload(i, m)])
        if i == 0 and E("TOUCH", 0):
            vm.op(f"buffer_load_dword a127, v109, {R(S_WS)}, 0 offen sc1", "touch")
    a("s_waitcnt lgkmcnt(0)")
    for i in range(12):
        nx = i + UPRE
        if E("G2STEPS", 0):
            MUTE[0] = True
            if i in (0, 1, 3, 5, 7, 9, 11): pstamp(a, 2 + (i + 1) // 2, True)
        if nx < 12: emit(u_adv(nx))
        side = w2_tr(NR2 - 1 + i, 4) if (i >= 1 and NR2 - 1 + i < 12) else []
        if NR2 <= i <= 8: a("s_waitcnt lgkmcnt(8)")
        if i == 9: a("s_waitcnt lgkmcnt(0)")
        if i == E("YGO", 7):
            a(f"v_mov_b32 v2, {CNT + 36}")
            a("s_mov_b64 exec, 1")
            a("ds_add_u32 v2, v2", "counter 9 += its own address")
            a("s_mov_b64 exec, -1")
        if i == 10:
            side = ["v_lshrrev_b32 v8, 4, v1", "v_and_b32 v9, 15, v1",
                    f"s_lshl_b32 s{sT0}, s{sST}, 6", f"s_lshl_b32 s{sT1}, s3, 4", f"s_add_u32 s{sT0}, s{sT0}, s{sT1}",
                    f"v_add_u32 v9, s{sT0}, v9", "v_mul_u32_u24 v10, 1280, v9", "v_lshl_add_u32 v10, v8, 3, v10",
                    f"s_mul_i32 s{sT0}, s{sDT2}, 160", f"v_add_u32 v10, s{sT0}, v10", "v_lshlrev_b32 v9, 1, v9",
                    (f"buffer_load_ushort v16, v9, {R(S_B2)}, 0 offen", "b2"),
                    f"v_lshl_add_u32 v11, v1, 4, s{sRING}",
                    f"s_mul_i32 s{sT0}, s3, 2560", f"s_add_u32 s{sT0}, s{sT0}, {PT_LDS}", f"v_lshl_add_u32 v15, v1, 3, s{sT0}",
                    f"s_mul_i32 s{sT0}, s3, 5120", f"v_lshl_add_u32 v12, v1, 4, s{sT0}", f"v_add_u32 v13, {2*RINGB}, v12"]
        TL2 = E("TL2", 2)
        if i > 12 - TL2: continue
        if i == 12 - TL2:
            assert nx >= 12
            emit(side)
            vm.wait("u11_4")
            pend = []
            for j in range(4):
                for ii in range(i, 12):
                    for m in range(5):
                        t = ACC2 + 4 * (5 * j + m); wr = 16 * (ii % NR2) + 4 * j
                        a(f"v_mfma_f32_16x16x32_bf16 v[{t}:{t+3}], {ureg(ii, m)}, a[{wr}:{wr+3}], v[{t}:{t+3}]")
                        for p in pend: p[0] += 1
                        if pend and pend[0][0] >= 9:
                            a(pend.pop(0)[1])
                            for p in pend: p[0] += 1
                        if ii == 11:
                            pend.append([0, f"ds_write_b128 v11, v[{t}:{t+3}] offset:{j*5120 + m*1024}"])
            while pend:
                if pend[0][0] < 9:
                    n = 9 - pend[0][0]
                    a(f"s_nop {n-1}")
                    for p in pend: p[0] += n
                a(pend.pop(0)[1])
                for p in pend: p[0] += 1
            continue
        k = 0; si = 0
        for m in range(5):
            vm.wait(f"u{i}_{m}")
            for j in range(4):
                t = ACC2 + 4 * (5 * j + m)
                wr = 16 * (i % NR2) + 4 * j
                c = "0" if i == 0 else f"v[{t}:{t+3}]"
                a(f"v_mfma_f32_16x16x32_bf16 v[{t}:{t+3}], {ureg(i, m)}, a[{wr}:{wr+3}], {c}")
                k += 1
                while si < (len(side) * k + 19) // 20:
                    emit([side[si]]); si += 1
            if nx < 12: emit([uload(nx, m)])
    pstamp(a, 9, True)
    MUTE[0] = False
    FIN2 = 28
    lds_arrive(11)
    vm.wait("b2")
    a("v_lshlrev_b32 v17, 16, v16")
    a("v_lshlrev_b32 v16, 16, v16")
    lds_wait("PK_GB3", 11)
    PT2 = 48; PR = 18; PF = 108
    GM = E("GM", 3)
    NG = 4 * GM
    for o in range(4):
        for m in range(GM):
            r = PT2 + 20 * o + 4 * m
            a(f"ds_read_b128 v[{r}:{r+3}], v{12+o//2} offset:{(o&1)*RINGB + m*1024}")
    for o in range(4):
        a(f"s_waitcnt lgkmcnt({min(10, GM*(3-o))})")
        for i in range(0, NG, 2):
            src = "v[16:17]" if o == 0 else pk(FIN2 + i)
            a(f"v_pk_add_f32 {pk(FIN2+i)}, {src}, {pk(PT2+20*o+i)}")
    T2 = 48
    for i in range(0, NG, 2): a(f"v_cvt_pk_bf16_f32 v{T2+i//2}, v{FIN2+i}, v{FIN2+i+1}")
    for i in range(0, NG, 2):
        a(f"v_lshlrev_b32 v{FIN2+i}, 16, v{T2+i//2}")
        a(f"v_and_b32 v{FIN2+i+1}, 0xffff0000, v{T2+i//2}")
    lds_wait("PK_PW", 15)
    pstamp(a, 10)
    for m in range(GM):
        a(f"ds_read_b64 v[{PR+2*m}:{PR+2*m+1}], v15 offset:{m*512}")
    a("s_waitcnt lgkmcnt(0)")
    for m in range(GM):
        for h in range(2):
            i = 4 * m + 2 * h
            a(f"v_lshlrev_b32 v{PF+i}, 16, v{PR+i//2}")
            a(f"v_and_b32 v{PF+i+1}, 0xffff0000, v{PR+i//2}")
            a(f"v_pk_add_f32 {pk(FIN2+i)}, {pk(FIN2+i)}, {pk(PF+i)}")
            a(f"v_cvt_pk_bf16_f32 v{60+i//2}, v{FIN2+i}, v{FIN2+i+1}")
        a(f"buffer_store_dwordx2 v[{60+2*m}:{61+2*m}], v10, {R(S_OUT)}, 0 offen offset:{32*m}")
    a(f"s_or_b32 s{sT0}, s2, s3")
    a(f"s_cmp_lg_u32 s{sT0}, 0")
    a("s_cbranch_scc1 PK_NOEP")
    a(f"s_mov_b32 s{sT0}, {EPOCH_OFF}")
    flag_store(sT0)
    a.label("PK_NOEP")
    pstamp(a, 11)
    finish_stamps("G")
    a("s_endpgm")

    a.label("PK_H")
    MUTE[0] = False
    vm.reset()
    for r in range(2):
        for i in range(5): vm.q.append(f"x{r}{i}")
    a("s_cmp_ge_u32 s2, 160")
    a(f"s_cselect_b32 s{sKVBIG}, {BIG}, 0")
    if E("NOKV", 0): a(f"s_mov_b32 s{sKVBIG}, {BIG}")
    sTT, sCW = sDT, sFT
    a(f"s_mul_hi_u32 s{sTT}, s2, 0x33333334", "T")
    a(f"s_mul_i32 s{sCW}, s{sTT}, 5")
    a(f"s_sub_u32 s{sCW}, s2, s{sCW}", "cw")
    a(f"s_lshl_b32 s{sT0}, s{sTT}, 2")
    a(f"s_add_u32 s{sT0}, s{sT0}, s3")
    a(f"s_mul_i32 s{sT0}, s{sT0}, 20480")
    a(f"s_lshl_b32 s{sT1}, s{sCW}, 8")
    a(f"s_add_u32 s{sT0}, s{sT0}, s{sT1}")
    a(f"s_add_u32 s{sT0}, s{sT0}, s{sKVBIG}")
    VKV = 10
    a(f"v_add_u32 v{VKV+1}, s{sT0}, v3")
    a(f"v_subrev_u32 v{VKV}, 3840, v{VKV+1}")
    for i in range(1, 4): a(f"v_add_u32 v{VKV+1+i}, {5120*i}, v{VKV+1}")
    a(f"s_lshl_b32 s{sT1}, s{sCW}, 10")
    a(f"v_lshl_add_u32 v15, v1, 4, s{sT1}")
    XRAW = 16
    if E("W1ONLY", 0):
        if STAMP:
            a("s_mov_b32 s4, s30"); a("s_mov_b32 s5, s31")
        for i in range(1, 12): pstamp(a, i)
        finish_stamps()
        a("s_endpgm")
    srd(a, S_WS, 26, WS_USED, E("WSMB", 0) << 20)
    vm.op(f"buffer_load_dword v9, v8, {R(S_WS)}, 0 offen sc1", "ep")
    srd(a, S_K, 6, SD_BYTES)
    srd(a, S_V, 8, SD_BYTES)
    srd(a, S_SHK, 10, D * 8)
    srd(a, S_SSMK, 12, SD_BYTES)
    srd(a, S_SSMD, 14, D * 2)
    srd(a, S_W2, 20, S * F * 2)
    srd(a, S_B2, 22, S * 2)
    srd(a, S_OUT, 24, SD_BYTES)
    if STAMP:
        a("s_mov_b32 s4, s30"); a("s_mov_b32 s5, s31")
    def kv_loads():
        vm.op(f"buffer_load_dwordx4 a[36:39], v15, {R(S_SHK)}, 0 offen", "shk")
        for r in range(3):
            vm.op(f"buffer_load_dword a{r}, v{VKV}, {R(S_K)}, 0 offen offset:{r*1280} {NT}", "k")
        for r in range(16):
            vm.op(f"buffer_load_dword a{3+r}, v{VKV+1+r//4}, {R(S_K)}, 0 offen offset:{(r%4)*1280} {NT}", "k")
        for r in range(16):
            vm.op(f"buffer_load_dword a{19+r}, v{VKV+1+r//4}, {R(S_V)}, 0 offen offset:{(r%4)*1280} {NT}", "v")
    KV_EARLY = E("KV_EARLY", 0)
    if KV_EARLY: kv_loads()
    srd(a, S_B1, 18, F * 2)
    a(f"s_lshr_b32 s{sT0}, s2, 3")
    a(f"s_mul_hi_u32 s{sT0}, s{sT0}, 0x33333334")
    a(f"s_bfe_u32 s{sT1}, s2, 0x20001")
    a(f"s_mul_i32 s{sT1}, s{sT1}, 6")
    a(f"s_add_u32 s{sT0}, s{sT0}, s{sT1}")
    a(f"s_lshl_b32 s{sT0}, s{sT0}, 7")
    a("v_and_b32 v125, 124, v3")
    vm.op(f"buffer_load_dword v126, v125, {R(S_B1)}, s{sT0} offen", "b1")
    a(f"v_add_u32 v125, {PT_LDS}, v125")
    pstamp(a, 1)
    a(f"s_mul_i32 s{sT0}, s3, {2*HROW}")
    a(f"s_add_u32 s{sT0}, s{sT0}, {LNX}")
    a(f"v_add_u32 v4, s{sT0}, v3")
    a("v_lshrrev_b32 v5, 4, v1")
    a("v_lshlrev_b32 v5, 5, v5")
    a("v_and_b32 v2, 3, v1")
    a("v_lshl_add_u32 v5, v2, 3, v5")
    a("v_bfe_u32 v2, v1, 2, 2")
    a(f"v_mul_u32_u24 v2, {HROW}, v2")
    a("v_add_u32 v5, v5, v2")
    a(f"s_lshl_b32 s{sT0}, s3, 7")
    a(f"s_add_u32 s{sT0}, s{sT0}, {LNX}")
    a(f"v_add_u32 v5, s{sT0}, v5")
    a(f"s_mul_i32 s{sT0}, s2, 10240")
    a(f"s_lshl_b32 s{sT1}, s3, 10")
    a(f"s_add_u32 s{sT0}, s{sT0}, s{sT1}")
    if HBLK_OFF: a(f"s_add_u32 s{sT0}, s{sT0}, {HBLK_OFF}")
    a(f"v_lshl_add_u32 v6, v1, 4, s{sT0}")
    a("v_add_u32 v7, 4096, v6")
    a("s_cmp_ge_u32 s3, 2")
    a(f"s_cselect_b32 s{sT1}, {BIG}, 8192")
    a(f"v_add_u32 v8, s{sT1}, v6")
    a(f"s_lshl_b32 s{sT0}, s2, 2")
    a(f"s_add_u32 s{sT0}, s{sT0}, s3")
    a(f"s_lshl_b32 s{sT0}, s{sT0}, 4")
    a(f"s_add_u32 s{sT0}, s{sT0}, {STAT_OFF}")
    a(f"v_mov_b32 v90, s{sT0}")
    a(f"s_lshl_b32 s{sT0}, s3, 8")
    a(f"s_add_u32 s{sT0}, s{sT0}, s2")
    a(f"s_lshl_b32 s{sT0}, s{sT0}, {FS}")
    a(f"s_add_u32 s{sRING}, s{sT0}, {FH_OFF}", "h flag offset")
    X = [26, 36]; A = [46, 56]; SUM = [66, 70]; TMP = [74, 82]
    PIV = [28, 30]; SS = [(sT0, sT1), (sT2, sT3)]
    for r in range(2):
        for i in range(5):
            vm.wait(f"x{r}{i}")
            a(f"v_lshlrev_b32 v{X[r]+2*i}, 16, v{XRAW+5*r+i}")
            a(f"v_and_b32 v{X[r]+2*i+1}, 0xffff0000, v{XRAW+5*r+i}")
            if i == 0: a(f"v_readfirstlane_b32 s{PIV[r]}, v{X[r]}")
            if i == 2: a(f"s_mov_b32 s{PIV[r]+1}, s{PIV[r]}")
    pstamp(a, 2)
    def zip2(f):
        out = []
        for p, q in zip(f(0), f(1)): out += [p, q]
        return out
    def sums(src):
        def f(r):
            Sr = SUM[r]; B = src[r]
            l = [f"v_pk_mul_f32 {pk(Sr+2)}, {pk(B)}, {pk(B)}", f"v_pk_add_f32 {pk(Sr)}, {pk(B)}, {pk(B+2)}"]
            for i in range(1, 5):
                l.append(f"v_pk_fma_f32 {pk(Sr+2)}, {pk(B+2*i)}, {pk(B+2*i)}, {pk(Sr+2)}")
                if i >= 2: l.append(f"v_pk_add_f32 {pk(Sr)}, {pk(Sr)}, {pk(B+2*i)}")
            l += [f"v_add_f32 v{Sr}, v{Sr}, v{Sr+1}", f"v_add_f32 v{Sr+1}, v{Sr+2}, v{Sr+3}"]
            return l
        l = zip2(f)
        steps = ["row_shr:1 row_mask:0xf bank_mask:0xf bound_ctrl:0", "row_shr:2 row_mask:0xf bank_mask:0xf bound_ctrl:0",
                 "row_shr:4 row_mask:0xf bank_mask:0xf bound_ctrl:0", "row_shr:8 row_mask:0xf bank_mask:0xf bound_ctrl:0",
                 "row_bcast:15 row_mask:0xa bank_mask:0xf", "row_bcast:31 row_mask:0xc bank_mask:0xf"]
        regs = [SUM[0], SUM[1], SUM[0] + 1, SUM[1] + 1]
        for st in steps:
            for v in regs: l.append(f"v_add_f32_dpp v{v}, v{v}, v{v} {st}")
        l += [f"v_readlane_b32 s{SS[0][0]}, v{SUM[0]}, 63", f"v_readlane_b32 s{SS[1][0]}, v{SUM[1]}, 63",
              f"v_readlane_b32 s{SS[0][1]}, v{SUM[0]+1}, 63", f"v_readlane_b32 s{SS[1][1]}, v{SUM[1]+1}, 63"]
        return l
    def statsl(piv):
        inv = f32(1.0 / D)
        def f(r):
            t0, t1 = TMP[r] + 6, TMP[r] + 7; m = TMP[r]; rr = TMP[r] + 1
            l = [f"v_mul_f32 v{t0}, s{SS[r][0]}, v91", f"v_mul_f32 v{t1}, s{SS[r][1]}, v91",
                 f"v_fma_f32 v{t1}, -v{t0}, v{t0}, v{t1}", f"v_max_f32 v{t1}, 0, v{t1}"]
            if piv: l.append(f"v_add_f32 v{t0}, s{PIV[r]}, v{t0}")
            l += [f"v_cvt_pk_bf16_f32 v{t0}, v{t0}, v{t1}", f"v_lshlrev_b32 v{m}, 16, v{t0}",
                  f"v_and_b32 v{t1}, 0xffff0000, v{t0}", f"v_add_f32 v{t1}, {f32(1e-5)}, v{t1}",
                  f"v_cvt_pk_bf16_f32 v{t1}, v{t1}, v{t1}", f"v_lshlrev_b32 v{t1}, 16, v{t1}",
                  f"v_sqrt_f32 v{t1}, v{t1}", f"v_cvt_pk_bf16_f32 v{t1}, v{t1}, v{t1}",
                  f"v_lshlrev_b32 v{t1}, 16, v{t1}", f"v_rcp_f32 v{rr}, v{t1}",
                  f"v_mul_f32 v{TMP[r]+4}, v{m}, v{rr}", f"v_mov_b32 v{TMP[r]+2}, v{rr}",
                  f"v_mul_f32 v{TMP[r]+5}, v{m}, v{rr}", f"v_mov_b32 v{TMP[r]+3}, v{rr}"]
            return l
        return zip2(f)
    def norm(dst, src):
        return zip2(lambda r: [f"v_pk_fma_f32 {pk(dst[r]+2*i)}, {pk(src[r]+2*i)}, {pk(TMP[r]+2)}, {pk(TMP[r]+4)} neg_lo:[0,0,1] neg_hi:[0,0,1]" for i in range(5)])
    a(f"v_mov_b32 v91, {f32(1.0/D)}")
    emit(zip2(lambda r: [f"v_pk_add_f32 {pk(A[r]+2*i)}, {pk(X[r]+2*i)}, s[{PIV[r]}:{PIV[r]+1}] neg_lo:[0,1] neg_hi:[0,1]" for i in range(5)]))
    emit(sums(A)); emit(statsl(True))
    emit(["s_mov_b64 exec, 1",
          (f"buffer_store_dwordx2 {pk(TMP[0])}, v90, {R(S_WS)}, 0 offen sc1", "hst"),
          (f"buffer_store_dwordx2 {pk(TMP[1])}, v90, {R(S_WS)}, 0 offen offset:8 sc1", "hst"),
          "s_mov_b64 exec, -1"])
    emit(norm(A, X))
    emit(zip2(lambda r: [f"v_cvt_pk_bf16_f32 v{XRAW+5*r+i}, v{A[r]+2*i}, v{A[r]+2*i+1}" for i in range(5)]))
    emit(zip2(lambda r: sum([[f"v_lshlrev_b32 v{X[r]+2*i}, 16, v{XRAW+5*r+i}", f"v_and_b32 v{X[r]+2*i+1}, 0xffff0000, v{XRAW+5*r+i}"] for i in range(5)], [])))
    emit(sums(X)); emit(statsl(False)); emit(norm(A, X))
    emit(zip2(lambda r: sum([[f"v_cvt_pk_bf16_f32 v{XRAW+5*r+i}, v{A[r]+2*i}, v{A[r]+2*i+1}", f"ds_write_b32 v4, v{XRAW+5*r+i} offset:{r*HROW+i*256}"] for i in range(5)], [])))
    vm.wait("b1")
    a("ds_write_b32 v125, v126")
    read_epoch(9)
    sbar("PK_HB1", 1)
    HT = 26
    for t in range(3):
        a(f"ds_read_b64_tr_b16 v[{HT+4*t}:{HT+4*t+1}], v5 offset:{512*t}")
        a(f"ds_read_b64_tr_b16 v[{HT+4*t+2}:{HT+4*t+3}], v5 offset:{512*t+4*HROW}")
    for t in range(3):
        a(f"s_waitcnt lgkmcnt({4-2*t})")
        vm.op(f"buffer_store_dwordx4 v[{HT+4*t}:{HT+4*t+3}], v{6+t}, {R(S_WS)}, 0 offen sc1", "hst")
    pstamp(a, 3)
    a("v_and_b32 v2, 7, v1")
    a(f"s_lshl_b32 s{sT0}, s3, 1")
    a(f"v_xor_b32 v4, s{sT0}, v2")
    a("v_lshlrev_b32 v4, 4, v4")
    a("v_lshl_add_u32 v4, v1, 8, v4")
    a(f"v_add_u32 v4, {KVX}, v4")
    a("v_xor_b32 v5, 16, v4")
    a("v_lshrrev_b32 v8, 3, v1")
    a("v_lshrrev_b32 v6, 4, v1")
    a("v_xor_b32 v6, v6, v2")
    a("v_lshlrev_b32 v6, 4, v6")
    a("v_lshl_add_u32 v6, v8, 7, v6")
    a(f"s_lshl_b32 s{sT0}, s3, 12")
    a(f"s_add_u32 s{sT0}, s{sT0}, {KVX}")
    a(f"v_add_u32 v6, s{sT0}, v6")
    a("v_xor_b32 v7, 64, v6")
    a("v_lshlrev_b32 v8, 12, v8")
    a("v_lshl_add_u32 v8, v2, 4, v8")
    a(f"s_lshl_b32 s{sT0}, s{sCW}, 19")
    a(f"s_lshl_b32 s{sT1}, s3, 17")
    a(f"s_add_u32 s{sT0}, s{sT0}, s{sT1}")
    a(f"s_lshl_b32 s{sT1}, s{sTT}, 7")
    a(f"s_add_u32 s{sT0}, s{sT0}, s{sT1}")
    a(f"s_add_u32 s{sT0}, s{sT0}, {KVB_OFF}")
    a(f"s_add_u32 s{sT0}, s{sT0}, s{sKVBIG}")
    a(f"v_add_u32 v8, s{sT0}, v8")
    lds_wait("PK_EPW", 6)
    vm.wait("hst")
    flag_store(sRING)
    pstamp(a, 4)
    if E("KV_LATE", 0):
        a("s_setprio 0")
        lds_wait("PK_KVL", 12, n=4 * (CNT + 48), sleep=4)
        a("s_setprio 3")
    if not KV_EARLY: kv_loads()
    a("s_setprio 0")
    a(f"s_lshl_b32 s{sT0}, s{sCW}, 2")
    a(f"s_add_u32 s{sT0}, s{sT0}, s3")
    a(f"s_lshl_b32 s{sT0}, s{sT0}, 5")
    a(f"s_add_u32 s{sT0}, s{sT0}, s{sTT}")
    a(f"s_lshl_b32 s{sT0}, s{sT0}, {FS}")
    a(f"s_add_u32 s{sT0}, s{sT0}, {FKV_OFF}")
    a(f"s_add_u32 s{sRING}, s{sT0}, s{sKVBIG}", "kv flag offset")
    WP, KP, KS, KO = 16, 24, 62, 94
    vm.wait("k")
    for i in range(4): a(f"v_accvgpr_read_b32 v{110+i}, a{36+i}")
    for r in range(19): a(f"v_accvgpr_read_b32 v{KP+2*r+1}, a{r}")
    for t in range(4):
        for ch in range(2):
            src = 110 + 2 * ch + t // 2
            a(f"v_lshlrev_b32 v{WP+2*t+ch}, 16, v{src}" if t % 2 == 0 else f"v_and_b32 v{WP+2*t+ch}, 0xffff0000, v{src}")
    for r in range(19):
        a(f"v_lshlrev_b32 v{KP+2*r}, 16, v{KP+2*r+1}")
        a(f"v_and_b32 v{KP+2*r+1}, 0xffff0000, v{KP+2*r+1}")
    for r in range(16): a(f"v_pk_mul_f32 {pk(KS+2*r)}, {pk(KP+2*r)}, {pk(WP+6)}")
    for t in (2, 1, 0):
        for r in range(16):
            a(f"v_pk_fma_f32 {pk(KS+2*r)}, {pk(KP+2*(r+3-t))}, {pk(WP+2*t)}, {pk(KS+2*r)}")
    vm.wait("v")
    for r in range(16): a(f"v_accvgpr_read_b32 v{KP+2*r+1}, a{19+r}")
    for r in range(16):
        a(f"v_lshlrev_b32 v{KP+2*r}, 16, v{KP+2*r+1}")
        a(f"v_and_b32 v{KP+2*r+1}, 0xffff0000, v{KP+2*r+1}")
    for r in range(16): a(f"v_pk_mul_f32 {pk(KS+2*r)}, {pk(KS+2*r)}, {pk(KP+2*r)}")
    for c2 in range(2):
        for ch in range(2):
            for q in range(4):
                a(f"v_cvt_pk_bf16_f32 v{KO+8*c2+4*ch+q}, v{KS+2*(8*c2+7-2*q)+ch}, v{KS+2*(8*c2+6-2*q)+ch}")
            a(f"ds_write_b128 v{4+c2}, v[{KO+8*c2+4*ch}:{KO+8*c2+4*ch+3}] offset:{128*ch}")
    sbar("PK_HB2", 2)
    for i in range(4):
        a(f"ds_read_b128 v[{KO+4*i}:{KO+4*i+3}], v{6+(i&1)} offset:{1024*i}")
    a("s_setprio 3")
    for i in range(4):
        a(f"s_mov_b32 s{sT0}, {32768*i}")
        a(f"s_waitcnt lgkmcnt({3-i})")
        vm.op(f"buffer_store_dwordx4 v[{KO+4*i}:{KO+4*i+3}], v8, {R(S_WS)}, s{sT0} offen sc1", "kvst")
    lds_arrive(3)
    pstamp(a, 5)
    a("v_lshrrev_b32 v14, 4, v1", "g")
    a("v_and_b32 v15, 15, v1", "n")
    a(f"s_lshl_b32 s{sCH}, s2, 1")
    a(f"s_mul_i32 s{sT0}, s2, 3")
    a(f"s_sub_u32 s{sT0}, s{sT0}, 128")
    a("s_cmp_ge_u32 s2, 128")
    a(f"s_cselect_b32 s{sCH}, s{sT0}, s{sCH}")
    a(f"s_cselect_b32 s{sT0}, 3, 2")
    a(f"s_add_u32 s{sCH}, s{sCH}, s3")
    a(f"s_cmp_lt_u32 s3, s{sT0}")
    a(f"s_cselect_b32 s{sCH}, s{sCH}, {1 << 16}", "ch (65536 = none)")
    a(f"s_mul_i32 s{sCVB}, s3, {CONV_SZ}")
    a(f"s_add_u32 s{sCVB}, s{sCVB}, {AUX}")
    a(f"s_lshr_b32 s{sT0}, s{sCH}, 5")
    a(f"s_lshl_b32 s{sT0}, s{sT0}, {5+FS}")
    a(f"s_add_u32 s{sT0}, s{sT0}, {FKV_OFF}")
    a("v_and_b32 v29, 31, v1")
    a(f"v_lshl_add_u32 v29, v29, {FS}, s{sT0}", "kv poll address")
    a(f"s_lshl_b32 s{sT0}, s{sCH}, 12")
    a(f"v_lshl_add_u32 v31, v1, 4, s{sT0}")
    a("v_add_u32 v32, 2, v31")
    a(f"v_add_u32 v33, {KVB_OFF}, v31")
    a(f"v_mov_b32 v34, s{sT0}")
    a(f"s_lshl_b32 s{sT1}, s{sCH}, 1")
    a(f"v_mov_b32 v36, s{sT1}")
    VA, VB, VE, VS = 38, 42, 43, 44
    a("v_lshlrev_b32 v2, 5, v15")
    a(f"v_lshl_add_u32 v{VS}, v14, 3, v2")
    a(f"s_add_u32 s{sT0}, s{sT0}, {YA_OFF}")
    a(f"v_add_u32 v{VS}, s{sT0}, v{VS}")
    a("v_lshlrev_b32 v45, 4, v1")
    a(f"v_add_u32 v46, s{sCVB}, v45")
    a(f"v_add_u32 v2, {CV_K0-512}, v45")
    a(f"v_add_u32 v3, {CV_K1-544}, v45")
    a("v_cmp_lt_u32 vcc, 31, v1")
    a(f"v_lshl_add_u32 v{VA}, v14, 3, v15")
    a(f"v_lshlrev_b32 v{VA}, 1, v{VA}")
    a("v_cndmask_b32 v45, v45, v2, vcc")
    a("v_cmp_lt_u32 vcc, 33, v1")
    a("v_and_b32 v2, 1, v1")
    a(f"v_mul_u32_u24 v2, {CV_K1 - CV_K0 - 2}, v2")
    a("v_cndmask_b32 v45, v45, v3, vcc")
    a("v_cmp_lt_u32 vcc, 35, v1")
    a(f"v_sub_u32 v{VA}, v{VA}, v2")
    a(f"v_add_u32 v{VA}, {CV_K1}, v{VA}")
    a("v_cndmask_b32 v45, v45, 0, vcc")
    a(f"v_add_u32 v45, s{sCVB}, v45")
    a(f"v_add_u32 v{VA}, s{sCVB}, v{VA}")
    for p in range(1, 4): a(f"v_add_u32 v{VA+p}, {1024*p}, v{VA}")
    a("v_lshlrev_b32 v2, 1, v15")
    a("v_sub_u32 v2, v2, v14")
    a("v_lshlrev_b32 v2, 4, v2")
    a(f"v_add_u32 v2, {528-448}, v2")
    a(f"v_add_u32 v{VB}, s{sCVB}, v2")
    a("v_lshrrev_b32 v2, 1, v14")
    a("v_lshl_add_u32 v2, v15, 1, v2")
    a("v_lshlrev_b32 v2, 4, v2")
    a("v_and_b32 v3, 1, v14")
    a("v_lshlrev_b32 v3, 3, v3")
    a("v_sub_u32 v2, v2, v3")
    a("v_add_u32 v2, 520, v2")
    a(f"v_add_u32 v{VE}, s{sCVB}, v2")
    vm.wait("kvst")
    flag_store(sRING)
    a(f"s_cmp_ge_u32 s{sCH}, 640")
    a("s_cbranch_scc1 PK_NOCONV")
    lds_wait("PK_HB3", 3)
    if E("KERN_LATE", 0):
        a("s_setprio 0")
        lds_wait("PK_KW0", 10, n=4, sleep=4)
        a("s_setprio 3")
    vm.reset()
    a(f"s_add_u32 m0, s{sCVB}, {CV_K0+32}")
    a(f"buffer_load_ushort v35, v34, {R(S_SSMK)}, 0 offen")
    for q in range(4): a(f"buffer_load_dwordx4 v31, {R(S_SSMK)}, 0 offen offset:{q*1024} lds")
    a(f"s_add_u32 m0, s{sCVB}, {CV_K1+32}")
    a(f"buffer_load_ushort v37, v36, {R(S_SSMD)}, 0 offen")
    for q in range(4): a(f"buffer_load_dwordx4 v32, {R(S_SSMK)}, 0 offen offset:{q*1024} lds")
    a("s_setprio 0")
    lds_wait("PK_KW", 10, n=4, sleep=4)
    a("s_setprio 3")
    if not E("NOKV", 0): spin("PK_SPIN_KV", [(29, 30)], sleep=E("KVPOLL_SLEEP", 0))
    KVR = 48
    for q in range(4):
        vm.op(f"buffer_load_dwordx4 v[{KVR+4*q}:{KVR+4*q+3}], v33, {R(S_WS)}, 0 offen offset:{q*1024} sc1", "cfill")
    a("s_setprio 0")
    a("v_mov_b32 v96, 0"); a("v_mov_b32 v97, 0"); a("v_mov_b32 v98, 0")
    a("v_cmp_eq_u32 vcc, 35, v1")
    a("v_lshlrev_b32 v35, 16, v35")
    a("v_lshlrev_b32 v37, 16, v37", "D")
    a("v_cndmask_b32 v99, 0, v35, vcc")
    a("ds_write_b128 v45, v[96:99]")
    vm.wait("cfill")
    for q in range(4):
        a(f"ds_write_b128 v46, v[{KVR+4*q}:{KVR+4*q+3}] offset:{512+1024*q}")
    a("s_waitcnt lgkmcnt(0)")
    CACC = 64; BUF = [(0, 32), (64, 96)]
    def frag_loads(buf, rr):
        A_, B_ = BUF[buf]
        out = []
        for t in range(8):
            o = (t & 1) * 128 + rr * 16
            out.append(f"ds_read_b128 a[{B_+4*t}:{B_+4*t+3}], v{VB} offset:{512*t + 64*(1-rr)}")
            out.append(f"ds_read2_b32 a[{A_+4*t}:{A_+4*t+1}], v{VA + t//2} offset0:{o} offset1:{o+1}")
            out.append(f"ds_read2_b32 a[{A_+4*t+2}:{A_+4*t+3}], v{VA + t//2} offset0:{o+2} offset1:{o+3}")
        return out
    for i in range(32): a(f"v_mov_b32 v{CACC+i}, 0")
    a(f"v_add_u32 v{VB}, {448-64}, v{VB}", "64 below the r-even address")
    emit(frag_loads(0, 0))
    pstamp(a, 6)
    lds_wait("PK_CW", 8, n=E("CONV_WAIT_N", 4), sleep=2)
    a(f"s_setprio {E('CONV_PRIO', 3)}")
    pstamp(a, 7)
    a(f"s_mov_b32 s{sT0}, 0")
    a.label("PK_CV_LOOP")
    for half in range(2):
        a("s_waitcnt lgkmcnt(0)")
        if half == 0: side = frag_loads(1, 1)
        else:
            for p in range(4): a(f"v_add_u32 v{VA+p}, 128, v{VA+p}")
            a(f"v_subrev_u32 v{VB}, 128, v{VB}")
            side = frag_loads(0, 0)
        A_, B_ = BUF[half]
        i = 0
        for c in range(8):
            for t in range(c + 1):
                u = c - t
                a(f"v_mfma_f32_16x16x32_bf16 v[{CACC+4*c}:{CACC+4*c+3}], a[{A_+4*t}:{A_+4*t+3}], a[{B_+4*u}:{B_+4*u+3}], v[{CACC+4*c}:{CACC+4*c+3}]")
                if i < len(side): a(side[i])
                i += 1
    a(f"s_add_u32 s{sT0}, s{sT0}, 1")
    a(f"s_cmp_lt_u32 s{sT0}, 4")
    a("s_cbranch_scc1 PK_CV_LOOP")
    a("s_setprio 3")
    for c in range(8): a(f"ds_read_b64 v[{100+2*c}:{101+2*c}], v{VE} offset:{512*c}")
    a("s_waitcnt lgkmcnt(0)")
    TT = 116
    for c in range(8):
        d0, d1 = 100 + 2 * c, 101 + 2 * c
        emit([f"v_and_b32 v{TT}, 0xffff0000, v{d1}", f"v_lshlrev_b32 v{TT+1}, 16, v{d1}",
              f"v_and_b32 v{TT+2}, 0xffff0000, v{d0}", f"v_lshlrev_b32 v{TT+3}, 16, v{d0}"])
        for i in range(4): a(f"v_fmac_f32 v{CACC+4*c+i}, v{TT+i}, v37")
        a(f"v_cvt_pk_bf16_f32 v{d0}, v{CACC+4*c}, v{CACC+4*c+1}")
        a(f"v_cvt_pk_bf16_f32 v{d1}, v{CACC+4*c+2}, v{CACC+4*c+3}")
        a(f"buffer_store_dwordx2 v[{d0}:{d1}], v{VS}, {R(S_WS)}, 0 offen offset:{512*c} sc1")
    pstamp(a, 8)
    a(f"s_lshl_b32 s{sT0}, s{sCH}, {FS}")
    a(f"s_add_u32 s{sT0}, s{sT0}, {FY_OFF}")
    a("s_waitcnt vmcnt(0)")
    flag_store(sT0)
    a("s_branch PK_PCOMP")
    a.label("PK_NOCONV")
    if E("H3L", 0):
        a("s_cmp_lg_u32 s3, 3")
        a("s_cbranch_scc1 PK_NOLOAD")
        emit(["v_lshrrev_b32 v2, 3, v1", "v_lshlrev_b32 v4, 12, v2", "v_bfe_u32 v2, v1, 4, 1", "v_lshlrev_b32 v2, 1, v2",
              "v_and_b32 v3, 7, v1", "v_xor_b32 v2, v2, v3", "v_lshl_add_u32 v4, v2, 4, v4", f"s_lshl_b32 s{sT0}, s{sST}, 7",
              f"v_add_u32 v4, s{sT0}, v4", "v_xor_b32 v2, 64, v4", f"v_add_u32 v5, {1*(32768-1024)}, v2",
              f"v_add_u32 v6, {2*(32768-1024)}, v4", f"v_add_u32 v7, {3*(32768-1024)}, v2",
              f"s_and_b32 s{sT2}, s{sDT2}, 3", f"s_mul_i32 s{sT2}, s{sT2}, {3 << 17}"])
        a("s_setprio 0")
        lds_wait("PK_LW", 10, n=4, sleep=4)
        a(f"s_setprio {E('H3PRIO', 1)}")
        for k in range(3):
            for w in range(4):
                a(f"s_mov_b32 m0, {w*RINGB + k*4096}")
                a(f"s_add_u32 s{sT3}, s{sT2}, {(12*w + k) << 17}")
                for q in range(4):
                    a(f"buffer_load_dwordx4 v{4+q}, {R(S_W2)}, s{sT3} offen offset:{q*1024} lds")
        a("s_waitcnt vmcnt(0)")
        lds_arrive(5)
        a.label("PK_NOLOAD")
    a("s_setprio 0")
    lds_wait("PK_NCW", 8, n=4, sleep=16)
    a("s_setprio 3")
    a.label("PK_PCOMP")
    vm.reset()
    a(f"s_mul_i32 s{sT3}, s{sDT2}, 80", "d0")
    a(f"s_lshl_b32 s{sT0}, s{sST}, 6")
    a(f"s_lshl_b32 s{sT1}, s3, 4")
    a(f"s_add_u32 s{sT0}, s{sT0}, s{sT1}")
    a(f"v_add_u32 v4, s{sT0}, v15", "s")
    a("v_mul_u32_u24 v5, 1280, v4")
    a("v_lshl_add_u32 v5, v14, 3, v5")
    a(f"s_lshl_b32 s{sT0}, s{sT3}, 1")
    a(f"v_add_u32 v5, s{sT0}, v5", "x offset")
    XR = 16
    for m in range(5):
        a(f"buffer_load_dwordx2 v[{XR+2*m}:{XR+2*m+1}], v5, {R(S_X)}, 0 offen offset:{32*m}")
    a("v_lshlrev_b32 v6, 1, v4")
    a(f"buffer_load_ushort v124, v6, {R(S_B2)}, 0 offen")
    a("v_lshlrev_b32 v6, 3, v4")
    a(f"v_add_u32 v6, {STAT_OFF}, v6")
    a(f"s_lshl_b32 s{sT0}, s{sT3}, {FS}")
    a(f"s_add_u32 s{sT0}, s{sT0}, {FY_OFF}")
    a(f"v_lshl_add_u32 v7, v1, {FS}, s{sT0}")
    a(f"v_add_u32 v8, {64 << FS}, v7")
    a("v_bfe_u32 v2, v4, 1, 2")
    a("v_lshlrev_b32 v2, 8, v2")
    a("v_lshrrev_b32 v3, 3, v4")
    a("v_add_u32 v2, v2, v3")
    a("v_cmp_lt_u32 vcc, 15, v1")
    a(f"v_lshlrev_b32 v2, {FS}, v2")
    a(f"v_add_u32 v2, {FH_OFF}, v2")
    a("v_cndmask_b32 v8, v8, v2, vcc")
    a("v_lshrrev_b32 v9, 1, v1")
    a("v_lshlrev_b32 v9, 12, v9")
    a("v_and_b32 v2, 1, v1")
    a("v_lshl_add_u32 v9, v2, 4, v9")
    a(f"s_lshl_b32 s{sT0}, s{sT3}, 12")
    a(f"s_lshl_b32 s{sT1}, s{sST}, 7")
    a(f"s_add_u32 s{sT0}, s{sT0}, s{sT1}")
    a(f"s_lshl_b32 s{sT1}, s3, 5")
    a(f"s_add_u32 s{sT0}, s{sT0}, s{sT1}")
    a(f"s_add_u32 s{sT0}, s{sT0}, {YA_OFF}")
    a(f"v_add_u32 v9, s{sT0}, v9")
    a("v_cmp_lt_u32 vcc, 31, v1")
    a("v_add_u32 v10, 0x20000, v9")
    a("v_add_u32 v11, 0x40000, v9")
    a(f"v_mov_b32 v2, {BIG}")
    a("v_cndmask_b32 v11, v11, v2, vcc")
    a(f"s_mul_i32 s{sT0}, s3, 2560")
    a(f"s_add_u32 s{sT0}, s{sT0}, {PT_LDS}")
    a(f"v_lshl_add_u32 v12, v1, 4, s{sT0}")
    a(f"v_lshl_add_u32 v13, v1, 3, s{sT0}")
    a("s_setprio 0")
    lds_wait("PK_YW", 9, n=4 * (CNT + 36), sleep=4)
    a("s_setprio 3")
    spin("PK_SPIN_Y", [(7, 26), (8, 27)], sleep=E("YPOLL_SLEEP", 0))
    pstamp(a, 9)
    YL, ST_, XF, XN, T2, YR, YF = 28, 40, 44, 64, 84, 94, 104
    for t in range(3):
        vm.op(f"buffer_load_dwordx4 v[{YL+4*t}:{YL+4*t+3}], v{9+t}, {R(S_WS)}, 0 offen sc1", "ya")
    vm.op(f"buffer_load_dwordx2 v[{ST_}:{ST_+1}], v6, {R(S_WS)}, 0 offen sc1", "st")
    for i in range(10):
        a(f"v_lshlrev_b32 v{XF+2*i}, 16, v{XR+i}")
        a(f"v_and_b32 v{XF+2*i+1}, 0xffff0000, v{XR+i}")
    vm.wait("ya")
    a(f"ds_write_b128 v12, v[{YL}:{YL+3}]")
    a(f"ds_write_b128 v12, v[{YL+4}:{YL+7}] offset:1024")
    a("s_mov_b32 exec_hi, 0")
    a(f"ds_write_b128 v12, v[{YL+8}:{YL+11}] offset:2048")
    a("s_mov_b64 exec, -1")
    vm.wait("st", "lgkmcnt(0)")
    for m in range(5):
        a(f"ds_read_b64_tr_b16 v[{YR+2*m}:{YR+2*m+1}], v13 offset:{m*512}")
    a(f"v_mul_f32 v42, v{ST_}, v{ST_+1}")
    a(f"v_mul_f32 v43, v{ST_}, v{ST_+1}")
    a(f"v_mov_b32 v{ST_}, v{ST_+1}")
    for i in range(0, 20, 2):
        a(f"v_pk_fma_f32 {pk(XN+i)}, {pk(XF+i)}, {pk(ST_)}, v[42:43] neg_lo:[0,0,1] neg_hi:[0,0,1]")
    for i in range(0, 20, 2): a(f"v_cvt_pk_bf16_f32 v{T2+i//2}, v{XN+i}, v{XN+i+1}")
    for i in range(0, 20, 2):
        a(f"v_lshlrev_b32 v{XN+i}, 16, v{T2+i//2}")
        a(f"v_and_b32 v{XN+i+1}, 0xffff0000, v{T2+i//2}")
    a("s_waitcnt lgkmcnt(0)")
    for i in range(10):
        a(f"v_lshlrev_b32 v{YF+2*i}, 16, v{YR+i}")
        a(f"v_and_b32 v{YF+2*i+1}, 0xffff0000, v{YR+i}")
    for i in range(0, 20, 2): a(f"v_pk_fma_f32 {pk(XN+i)}, {pk(XN+i)}, {pk(YF+i)}, {pk(XF+i)}")
    for m in range(5):
        a(f"v_cvt_pk_bf16_f32 v{T2+2*m}, v{XN+4*m}, v{XN+4*m+1}")
        a(f"v_cvt_pk_bf16_f32 v{T2+2*m+1}, v{XN+4*m+2}, v{XN+4*m+3}")
        if m < GM: a(f"ds_write_b64 v13, v[{T2+2*m}:{T2+2*m+1}] offset:{m*512}")
    lds_arrive(15)
    pstamp(a, 10)
    if GM < 5:
        HM = list(range(GM, 5)); NH = 4 * len(HM)
        for k, m in enumerate(HM):
            for h in range(2):
                a(f"v_lshlrev_b32 v{XN+4*k+2*h}, 16, v{T2+2*m+h}")
                a(f"v_and_b32 v{XN+4*k+2*h+1}, 0xffff0000, v{T2+2*m+h}")
        a("v_lshlrev_b32 v125, 16, v124")
        a("v_lshlrev_b32 v124, 16, v124")
        a(f"s_mul_i32 s{sT0}, s3, 5120")
        a(f"v_lshl_add_u32 v12, v1, 4, s{sT0}")
        a(f"v_add_u32 v13, {2*RINGB}, v12")
        lds_wait("PK_HFW", 11)
        HP = 16; HF = 100
        for o in range(4):
            for k, m in enumerate(HM):
                r = HP + NH * o + 4 * k
                a(f"ds_read_b128 v[{r}:{r+3}], v{12+o//2} offset:{(o&1)*RINGB + m*1024}")
        for o in range(4):
            a(f"s_waitcnt lgkmcnt({len(HM)*(3-o)})")
            for i in range(0, NH, 2):
                src = "v[124:125]" if o == 0 else pk(HF + i)
                a(f"v_pk_add_f32 {pk(HF+i)}, {src}, {pk(HP+NH*o+i)}")
        for i in range(0, NH, 2): a(f"v_cvt_pk_bf16_f32 v{HP+i//2}, v{HF+i}, v{HF+i+1}")
        for i in range(0, NH, 2):
            a(f"v_lshlrev_b32 v{HF+i}, 16, v{HP+i//2}")
            a(f"v_and_b32 v{HF+i+1}, 0xffff0000, v{HP+i//2}")
        for i in range(0, NH, 2): a(f"v_pk_add_f32 {pk(HF+i)}, {pk(HF+i)}, {pk(XN+i)}")
        for k, m in enumerate(HM):
            a(f"v_cvt_pk_bf16_f32 v{HP+2*k}, v{HF+4*k}, v{HF+4*k+1}")
            a(f"v_cvt_pk_bf16_f32 v{HP+2*k+1}, v{HF+4*k+2}, v{HF+4*k+3}")
            a(f"buffer_store_dwordx2 v[{HP+2*k}:{HP+2*k+1}], v5, {R(S_OUT)}, 0 offen offset:{32*m}")
    pstamp(a, 11)
    finish_stamps("H")
    a.label("PK_END")
    a("s_endpgm")
    return a

def build():
    ref = open(f"cdna_kernels/{NAME}.s.ref").read().splitlines()
    head = []
    for l in ref:
        if l.startswith("; Override"): break
        head.append(l)
    body = gen()
    out = "\n".join(head) + "\n"
    if os.environ.get("AMP"):
        out += f"; @launch kernel={NAME}_kernel grid=({GRID},1,1) block=({BLOCK},1,1) lds={LDS_BYTES}\n"
        out += f"; @launch kernel=amp_kernel grid=(1,1,1) block=(64,1,1) lds=0\n"
        b = Asm()
        kernel_begin(b, "amp_kernel")
        b("s_cmp_ge_u32 s2, 1")
        b("s_cbranch_scc1 AMP_END")
        b("s_load_dwordx2 s[4:5], s[0:1], 96")
        b("s_waitcnt lgkmcnt(0)")
        b("s_sub_u32 s8, s4, 512")
        b("s_subb_u32 s9, s5, 0")
        b("s_mov_b32 s10, 256")
        b("s_mov_b32 s11, 0x00020000")
        b("v_mov_b32 v1, 0")
        b("buffer_load_dword v2, v1, s[8:11], 0 offen sc1")
        b("buffer_load_dword v3, v1, s[8:11], 0 offen offset:128 sc1")
        b("s_waitcnt vmcnt(0)")
        b("v_readfirstlane_b32 s12, v2")
        b("v_readfirstlane_b32 s13, v3")
        b("s_nop 3")
        b("s_not_b32 s13, s13")
        b("s_sub_u32 s12, s12, s13")
        b("s_min_u32 s12, s12, 10000")
        b(f"s_mul_i32 s12, s12, {int(os.environ['AMP'])}")
        b("s_memrealtime s[14:15]")
        b("s_waitcnt lgkmcnt(0)")
        b.label("AMP_L")
        b("s_memrealtime s[16:17]")
        b("s_waitcnt lgkmcnt(0)")
        b("s_sub_u32 s18, s16, s14")
        b("s_cmp_lt_u32 s18, s12")
        b("s_cbranch_scc1 AMP_L")
        b.label("AMP_END")
        b("s_endpgm")
    else:
        out += f"; @launch grid=({GRID},1,1) block=({BLOCK},1,1) lds={LDS_BYTES}\n"
    out += '.amdgcn_target "amdgcn-amd-amdhsa--gfx950"\n.text\n'
    out += body.text()
    if os.environ.get("AMP"): out += b.text()
    out += '.section .rodata,"a"\n' + kernel_desc(NAME + "_kernel", 256, 102, 128)
    if os.environ.get("AMP"): out += kernel_desc("amp_kernel", 8, 32)
    return out
if __name__ == "__main__":
    import sys
    out = sys.argv[1] if len(sys.argv) > 1 else f"cdna_kernels/{NAME}.s"
    open(out, "w").write(build())
    print("wrote", out)
```

```python
import os, math
from asmlib import *
from layout import *

NAME = "parallel_sum__ssm_conv_h3__mixer_token_mlp__prompt"
GRID, BLOCK, LDS_BYTES = 256, 512, 163840
NT = os.environ.get("NT", "")
BIG = 0x40000000
SPIN_MAX = 20000
E = lambda k, d: int(os.environ.get(k, d))

S_X, S_K, S_V, S_SHK, S_SSMK, S_SSMD, S_W1, S_B1, S_W2, S_B2, S_OUT, S_WS = [32 + 4 * i for i in range(12)]
def R(b): return f"s[{b}:{b+3}]"
sEP, sDT, sFT, sDT2, sST, sRING, sPOS, sWOFF, sHOFF, sKB = range(80, 90)
sT0, sT1, sT2, sT3, sCH, sCVB, sG1BIG, sKVBIG, sC1, sSPIN, sROT, sT4 = range(90, 102)
sROT2, sKB2 = sCH, sCVB

FS = E("FS", 4)
NSLOT = 7
NR1 = E("NR1", 7)
NR2 = 5
RINGB = NSLOT * 4096
AUX = 4 * RINGB
LNX = AUX
HROW = 1344
KVX = LNX + 8 * HROW
CV_K0, CV_K1, CONV_SZ = 4608, 8768, 12928
PT_LDS = AUX + 3 * CONV_SZ
CNT = PT_LDS + 4 * 2560
assert KVX + 16384 <= PT_LDS and CNT + 64 <= LDS_BYTES and KVX % 128 == 0

class VM:
    def __init__(self, a): self.a = a; self.q = []
    def op(self, ins, tag): self.a(ins); self.q.append(tag)
    def count(self, tag):
        idx = [i for i, t in enumerate(self.q) if t == tag]
        return len(self.q) - 1 - idx[-1] if idx else None
    def wait(self, tag, extra=""):
        n = self.count(tag)
        if n is None:
            if extra: self.a(f"s_waitcnt {extra}")
            return
        self.a(f"s_waitcnt vmcnt({min(n, 63)}) {extra}")
        self.q = self.q[len(self.q) - n:] if n else []
    def reset(self): self.q = []

TIMER = "s_memtime" if os.environ.get("CYC") else "s_memrealtime"
MUTE = [False]
def pstamp(a, i, force=False):
    if STAMP and (force or not MUTE[0]): a(f"{TIMER} s[{4+2*i}:{5+2*i}]")
def pk(r): return f"v[{r}:{r+1}]"

def gen():
    a = Asm()
    vm = VM(a)
    def emit(items):
        for it in items:
            if isinstance(it, list): emit(it)
            elif isinstance(it, tuple): vm.op(it[0], it[1])
            else: a(it)
    def flag_store(soff, tmp=2):
        a(f"v_mov_b32 v{tmp}, s{sEP}")
        a(f"v_mov_b32 v{tmp+1}, s{soff}")
        a("s_mov_b64 exec, 1")
        vm.op(f"buffer_store_dword v{tmp}, v{tmp+1}, {R(S_WS)}, 0 offen sc1", "flag")
        a("s_mov_b64 exec, -1")
    def spin(label, pairs, first_tag=None, sleep=0):
        def check():
            a(f"v_cmp_ne_u32 vcc, s{sEP}, v{pairs[0][1]}")
            for _, d in pairs[1:]:
                a(f"v_cmp_ne_u32 s[28:29], s{sEP}, v{d}")
                a("s_or_b64 vcc, vcc, s[28:29]")
        if first_tag:
            vm.wait(first_tag)
            check()
            a(f"s_cbranch_vccz {label}_OK")
        a(f"s_mov_b32 s{sSPIN}, 0")
        a.label(label)
        if sleep: a(f"s_sleep {sleep}", "poll back-off")
        for ad, d in pairs:
            a(f"buffer_load_dword v{d}, v{ad}, {R(S_WS)}, 0 offen sc1")
        a(f"s_add_u32 s{sSPIN}, s{sSPIN}, 1")
        a("s_waitcnt vmcnt(0)")
        check()
        a(f"s_cmp_gt_u32 s{sSPIN}, {SPIN_MAX}")
        a(f"s_cbranch_scc1 {label}_OK")
        a(f"s_cbranch_vccnz {label}")
        a.label(label + "_OK")
        if not first_tag: vm.reset()
    def lds_arrive(idx, t=2):
        a(f"v_mov_b32 v{t}, {CNT + 4*idx}")
        a(f"v_mov_b32 v{t+1}, 1")
        a("s_waitcnt lgkmcnt(0)")
        a("s_mov_b64 exec, 1")
        a(f"ds_add_u32 v{t}, v{t+1}")
        a("s_mov_b64 exec, -1")
    def lds_wait(label, idx, n=4, t=2, sleep=0):
        a(f"v_mov_b32 v{t}, {CNT + 4*idx}")
        a(f"s_mov_b32 s{sSPIN}, 0")
        a.label(label)
        if sleep: a(f"s_sleep {sleep}", "poll back-off")
        a(f"ds_read_b32 v{t+1}, v{t}")
        a(f"s_add_u32 s{sSPIN}, s{sSPIN}, 1")
        a(f"s_cmp_gt_u32 s{sSPIN}, {1 << 21}")
        a("s_waitcnt lgkmcnt(0)")
        a(f"v_cmp_gt_u32 vcc, {n}, v{t+1}")
        a(f"s_cbranch_scc1 {label}_OK")
        a(f"s_cbranch_vccnz {label}")
        a.label(label + "_OK")
    def sbar(label, idx, t=2):
        lds_arrive(idx, t); lds_wait(label, idx, 4, t)
    def read_epoch(vdata):
        vm.wait("ep")
        a(f"v_readfirstlane_b32 s{sEP}, v{vdata}")
        a("s_nop 3")
        a(f"s_mul_i32 s{sEP}, s{sEP}, 1664525")
        a(f"s_add_u32 s{sEP}, s{sEP}, 1013904223")
    def finish_stamps(role='X'):
        if not STAMP: return
        a("s_waitcnt vmcnt(0)")
        a(f"{TIMER} s[28:29]")
        a("s_waitcnt lgkmcnt(0)")
        if os.environ.get("AMP") and role == os.environ.get("AMPROLE", "G"):
            a("s_load_dwordx2 s[30:31], s[0:1], 96")
            a("s_waitcnt lgkmcnt(0)")
            srd(a, S_K, 30, 256)
            a("s_cmp_lg_u32 s3, 0")
            a(f"s_cbranch_scc1 AMPSKIP{role}")
            a("v_mov_b32 v1, 0")
            a("s_mov_b64 exec, 1")
            a(f"v_mov_b32 v2, s{4+2*int(os.environ['AMPIDX'])}")
            a(f"buffer_atomic_umax v2, v1, {R(S_K)}, 0 offen")
            a("s_not_b32 s4, s4")
            a("v_mov_b32 v2, s4")
            a(f"buffer_atomic_umax v2, v1, {R(S_K)}, 0 offen offset:128")
            a("s_not_b32 s4, s4")
            a("s_mov_b64 exec, -1")
            a.label(f"AMPSKIP{role}")
        a("s_load_dwordx2 s[30:31], s[0:1], 104")
        a("s_waitcnt lgkmcnt(0)")
        srd(a, S_X, 30, 1 << 20, 16 << 20)
        a(f"s_lshl_b32 s{sT0}, s2, 9")
        a("v_lshrrev_b32 v1, 6, v0")
        a(f"v_lshl_add_u32 v1, v1, 6, s{sT0}")
        a("s_mov_b64 exec, 1")
        for i in range(13):
            a(f"v_mov_b32 v2, s{4+2*i}")
            a(f"buffer_store_dword v2, v1, {R(S_X)}, 0 offen offset:{4*i}")

    kernel_begin(a, NAME + "_kernel")
    a(f"s_cmp_ge_u32 s2, {GRID}")
    a("s_cbranch_scc1 PK_END")
    a("s_load_dwordx8 s[4:11], s[0:1], 0", "x k v shift_k")
    a("s_load_dwordx2 s[26:27], s[0:1], 104", "ws")
    a("s_load_dwordx8 s[16:23], s[0:1], 56", "w1 b1 w2 b2")
    a("s_load_dwordx4 s[12:15], s[0:1], 32", "ssm_k ssm_D")
    a("s_load_dwordx2 s[24:25], s[0:1], 88", "out")
    if STAMP: a(f"{TIMER} s[30:31]")
    a("v_lshrrev_b32 v2, 6, v0")
    a("v_and_b32 v1, 63, v0", "lane")
    a(f"v_readfirstlane_b32 s{sT4}, v2", "wave 0..7")
    a("v_lshlrev_b32 v3, 2, v1", "lane*4")
    a(f"v_and_b32 v4, 60, v3")
    a(f"v_add_u32 v4, {CNT}, v4")
    a("v_mov_b32 v5, 0")
    a("ds_write_b32 v4, v5", "zero the 16 lds counters")
    a(f"s_and_b32 s3, s{sT4}, 3", "w within the role")
    a(f"s_and_b32 s{sT0}, s2, 7", "x")
    a(f"s_lshr_b32 s{sT1}, s2, 3", "j")
    a(f"s_and_b32 s{sT2}, s{sT0}, 1")
    a(f"s_lshl_b32 s{sDT2}, s{sT2}, 2")
    a(f"s_and_b32 s{sT3}, s{sT1}, 3")
    a(f"s_add_u32 s{sDT2}, s{sDT2}, s{sT3}", "dt2")
    a(f"s_lshr_b32 s{sT0}, s{sT0}, 1")
    a(f"s_lshl_b32 s{sST}, s{sT0}, 3")
    a(f"s_lshr_b32 s{sT3}, s{sT1}, 2")
    a(f"s_add_u32 s{sST}, s{sST}, s{sT3}", "st")
    a(f"v_mov_b32 v8, {EPOCH_OFF}")
    a(f"s_cmp_lt_u32 s{sT4}, 4")
    a("s_cbranch_scc1 PK_G")
    a("s_setprio 3")
    a(f"s_lshl_b32 s{sT0}, s2, 2")
    a(f"s_add_u32 s{sT0}, s{sT0}, s3")
    a(f"s_mul_i32 s{sT4}, s{sT0}, 2560", "x soffset")
    a("s_waitcnt lgkmcnt(0)")
    srd(a, S_X, 4, SD_BYTES)
    for r in range(2):
        for i in range(5):
            a(f"buffer_load_dword v{16+5*r+i}, v3, {R(S_X)}, s{sT4} offen offset:{r*1280+i*256} {NT}")
    a("s_barrier", "lds counters zeroed")
    a("s_branch PK_H")
    a.label("PK_G")
    a("s_getpc_b64 s[28:29]")
    a.label("PK_PC")
    a(f"s_sub_u32 s28, s28, PK_PC-{NAME}_kernel")
    a("s_subb_u32 s29, s29, 0")
    a("v_and_b32 v9, 7, v0")
    a(f"s_andn2_b32 s{sT3}, s2, 7")
    a(f"v_add_lshl_u32 v9, v9, s{sT3}, 7")
    a(f"v_min_u32 v9, PK_END-{NAME}_kernel, v9")
    a("global_load_dword v127, v9, s[28:29]")

    a("s_setprio 1")
    a(f"s_mul_hi_u32 s{sFT}, s{sT1}, 0x33333334", "j/5")
    a(f"s_mul_i32 s{sT3}, s{sFT}, 5")
    a(f"s_sub_u32 s{sDT}, s{sT1}, s{sT3}", "j%5")
    a(f"s_mul_i32 s{sROT}, s{sDT}, 13")
    a(f"s_lshr_b32 s{sROT}, s{sROT}, 2", "rot = 3.25*dt_local")
    if not E("ROT", 1): a(f"s_mov_b32 s{sROT}, 0")
    if E("ROT", 1) == 2:
        a(f"s_add_u32 s{sROT}, s{sDT}, s{sFT}")
        a(f"s_sub_u32 s{sT3}, s{sROT}, 6")
        a(f"s_min_u32 s{sROT}, s{sROT}, s{sT3}")
        a(f"s_mul_i32 s{sROT}, s{sROT}, 11")
        a(f"s_lshr_b32 s{sROT}, s{sROT}, 2", "2.75 * index")
    a(f"s_mul_i32 s{sT3}, s{sT2}, 5")
    a(f"s_add_u32 s{sDT}, s{sDT}, s{sT3}", "dt")
    a(f"s_mul_i32 s{sT3}, s{sT0}, 6")
    a(f"s_add_u32 s{sFT}, s{sFT}, s{sT3}", "ft")
    a(f"s_cmp_ge_u32 s{sT1}, 30")
    a(f"s_cselect_b32 s{sG1BIG}, {BIG}, 0")
    a(f"s_mul_i32 s{sRING}, s3, {RINGB}")
    a(f"s_lshl_b32 s{sKB}, s3, 4")
    a(f"s_mov_b32 s{sPOS}, s{sROT}")
    a("v_lshrrev_b32 v2, 3, v1")
    a("v_mul_u32_u24 v4, 3072, v2")
    a("v_bfe_u32 v2, v1, 4, 1")
    a("v_lshlrev_b32 v2, 2, v2")
    a("v_and_b32 v3, 7, v1")
    a("v_xor_b32 v2, v2, v3")
    a("v_lshl_add_u32 v4, v2, 4, v4")
    a(f"s_lshl_b32 s{sT1}, s{sFT}, 7")
    a(f"s_add_u32 s{sT1}, s{sT1}, s{sG1BIG}")
    a(f"v_add_u32 v4, s{sT1}, v4")
    for q in range(1, 4):
        a(f"v_add_u32 v{4+q}, {q*(24576-1024)}, v4")
    a("s_waitcnt lgkmcnt(0)")
    srd(a, S_W1, 16, S * F * 2)
    a("s_barrier", "lds counters zeroed")
    def w1_stage(i):
        items = [f"s_add_u32 s{sWOFF}, s{sKB}, s{sPOS}", f"s_mul_i32 s{sWOFF}, s{sWOFF}, 98304",
                 f"s_add_u32 m0, s{sRING}, {(i % NSLOT)*4096}", f"s_add_u32 s{sPOS}, s{sPOS}, 1", f"s_and_b32 s{sPOS}, s{sPOS}, 15"]
        for q in range(4):
            items.append((f"buffer_load_dwordx4 v{4+q}, {R(S_W1)}, s{sWOFF} offen offset:{q*1024} lds", f"w1_{i}"))
        return items
    def w1_tr(i):
        out = []
        for kh in range(2):
            for mt in range(2):
                for h in range(2):
                    r = 16 * (i % NR1) + 4 * (2 * kh + mt) + 2 * h
                    out.append(f"ds_read_b64_tr_b16 a[{r}:{r+1}], v{10+mt} offset:{(i % NSLOT)*4096 + kh*2048 + h*512}")
        return out
    WD = E("WD", 2)
    for i in range(WD): emit(w1_stage(i))
    srd(a, S_WS, 26, WS_USED, E("WSMB", 0) << 20)
    vm.op(f"buffer_load_dword v9, v8, {R(S_WS)}, 0 offen sc1", "ep")
    srd(a, S_W2, 20, S * F * 2)
    srd(a, S_B2, 22, S * 2)
    srd(a, S_OUT, 24, SD_BYTES)
    if STAMP:
        a("s_mov_b32 s4, s30"); a("s_mov_b32 s5, s31")
    pstamp(a, 1)
    a("v_lshrrev_b32 v2, 5, v1")
    a("v_lshlrev_b32 v10, 10, v2")
    a("v_mul_u32_u24 v12, 10240, v2")
    a("v_bfe_u32 v2, v1, 2, 2")
    a("v_lshl_add_u32 v10, v2, 7, v10")
    a("v_bfe_u32 v2, v1, 3, 1")
    a("v_lshl_add_u32 v10, v2, 6, v10")
    a("v_bfe_u32 v2, v1, 4, 1")
    a("v_lshl_add_u32 v10, v2, 5, v10")
    a("v_and_b32 v2, 3, v1")
    a("v_lshl_add_u32 v10, v2, 3, v10")
    a(f"v_add_u32 v10, s{sRING}, v10")
    a("v_xor_b32 v11, 64, v10")
    a("v_and_b32 v2, 31, v1")
    a("v_lshl_add_u32 v12, v2, 4, v12")
    a(f"s_lshl_b32 s{sT0}, s{sDT}, 10")
    a(f"s_add_u32 s{sT0}, s{sT0}, s{sG1BIG}")
    if HBLK_OFF: a(f"s_add_u32 s{sT0}, s{sT0}, {HBLK_OFF}")
    a(f"v_add_u32 v12, s{sT0}, v12")
    a("v_add_u32 v13, 20480, v12")
    a(f"s_and_b32 s{sT0}, s{sDT}, 3")
    a(f"s_lshl_b32 s{sT0}, s{sT0}, {8+FS}")
    a(f"s_add_u32 s{sT0}, s{sT0}, {FH_OFF}")
    a(f"v_lshl_add_u32 v14, v0, {FS}, s{sT0}")
    a(f"s_and_b32 s{sROT2}, s{sDT2}, 3")
    a(f"s_mul_i32 s{sROT2}, s{sROT2}, 3")
    if E("ROT2", 1) == 2:
        a(f"s_and_b32 s{sT0}, s{sST}, 7")
        a(f"s_mul_i32 s{sT0}, s{sT0}, 3")
        a(f"s_lshr_b32 s{sT0}, s{sT0}, 1")
        a(f"s_add_u32 s{sROT2}, s{sROT2}, s{sT0}")
        a(f"s_sub_u32 s{sT0}, s{sROT2}, 12")
        a(f"s_min_u32 s{sROT2}, s{sROT2}, s{sT0}")
    a(f"s_mul_i32 s{sKB2}, s3, 12")
    c0 = -2.0 * math.sqrt(2.0 / math.pi) * math.log2(math.e)
    a(f"s_mov_b32 s{sC1}, {f32(c0*0.044715)}")
    if E("W2PF", 1):
        a(f"s_cmp_lg_u32 s{sG1BIG}, 0")
        a("s_cbranch_scc1 PK_G_PF")
    NPRE = NR1 + NSLOT
    BURST = E("BURST", 1)
    last = NR1 if BURST else NPRE - WD + 1
    for i in range(last):
        vm.wait(f"w1_{i}")
        if i < NR1: emit(w1_tr(i))
        nx = i + WD
        if nx < NPRE:
            if nx >= NSLOT:
                later = sum(1 for k in range(nx - NSLOT + 1, i + 1) if k < NR1)
                a(f"s_waitcnt lgkmcnt({8 if later else 0})")
            emit(w1_stage(nx))
        if i == WD:
            read_epoch(9); lds_arrive(6)
    EARLY = E("EARLY", 0); NP0 = E("NP0", 10)
    sLATE = 31
    if BURST:
        a("s_waitcnt lgkmcnt(0)")
        if EARLY:
            assert NR1 == 7
            vm.op(f"buffer_load_dword v15, v14, {R(S_WS)}, 0 offen sc1", "hpoll0")
            for nx in range(NR1 - 1 + WD + 1, NP0): emit(w1_stage(nx))
            lds_wait("PK_B1W", 1)
            vm.wait("hpoll0")
            a(f"v_cmp_ne_u32 vcc, s{sEP}, v15")
            a(f"s_mov_b32 s{sLATE}, 1")
            pstamp(a, 2)
            a("s_cbranch_vccz PK_SPIN_H_OK")
            a(f"s_mov_b32 s{sLATE}, 0")
            keep = list(vm.q)
            for nx in range(NP0, NPRE): emit(w1_stage(nx))
            vm.q = keep
        else:
            for nx in range(NR1 - 1 + WD + 1, NPRE): emit(w1_stage(nx))
    if E("W1ONLY", 0):
        a("s_waitcnt vmcnt(0)")
        for i in range(2, 12): pstamp(a, i)
        finish_stamps()
        a("s_endpgm")
    if EARLY:
        keep = list(vm.q)
        spin("PK_SPIN_H", [(14, 15)])
        vm.q = keep
    else:
        vm.op(f"buffer_load_dword v15, v14, {R(S_WS)}, 0 offen sc1", "hpoll")
        lds_wait("PK_B1W", 1)
        pstamp(a, 2)
        spin("PK_SPIN_H", [(14, 15)], "hpoll")
    if E("GBAR1", 0): sbar("PK_GB1", 13)
    pstamp(a, 3)
    a("s_setprio 2")
    ACC = 64
    HB = [("v", 16), ("v", 32), ("v", 48)] + [("a", 16 * k) for k in range(NR1, 8)]
    HD = len(HB)
    HB = HB[-((16 - 0) % HD or HD):] + HB[:-((16 - 0) % HD or HD)] if False else HB
    def hreg(i, kh, nt):
        f, b = HB[(i + HSH) % HD]
        r = b + 4 * (2 * kh + nt)
        return f"{f}[{r}:{r+3}]"
    HSH = (1 - 13) % HD
    sHP = sKVBIG
    a(f"s_mov_b32 s{sHP}, s{sROT}")
    def h_adv():
        return [f"s_add_u32 s{sHOFF}, s{sKB}, s{sHP}", f"s_mul_i32 s{sHOFF}, s{sHOFF}, 40960",
                f"s_add_u32 s{sHP}, s{sHP}, 1", f"s_and_b32 s{sHP}, s{sHP}, 15"]
    def hload(i, nt, kh):
        return (f"buffer_load_dwordx4 {hreg(i, kh, nt)}, v{12+kh}, {R(S_WS)}, s{sHOFF} offen offset:{nt*512} {os.environ.get('HFLAG', 'sc1')}", f"h{i}_{kh}{nt}")
    HPRE = E("HPRE", HD)
    for i in range(HPRE):
        emit(h_adv())
        for kh in range(2):
            for nt in range(2): emit([hload(i, nt, kh)])
    a("s_waitcnt lgkmcnt(0)")
    def pos2(i):
        return [f"s_add_u32 s{sT0}, s{sROT2}, {i}", f"s_sub_u32 s{sT1}, s{sT0}, 12", f"s_min_u32 s{sT0}, s{sT0}, s{sT1}",
                f"s_add_u32 s{sT0}, s{sT0}, s{sKB2}"]
    def w2_slot(i): return i % NSLOT
    def w2_dma(i):
        items = pos2(i) + [f"s_add_u32 m0, s{sRING}, {w2_slot(i)*4096}", f"s_lshl_b32 s{sWOFF}, s{sT0}, 17"]
        for q in range(4):
            items.append((f"buffer_load_dwordx4 v{4+q}, {R(S_W2)}, s{sWOFF} offen offset:{q*1024} lds", f"w2_{i}"))
        return items
    BB = 16
    for i in range(16):
        nx = i + HPRE
        if E("G1STEPS", 0):
            MUTE[0] = True
            if i in (1, 3, 5, 7, 9, 11, 13): pstamp(a, 4 + i // 2, True)
        if nx < 16: emit(h_adv())
        side = []
        if EARLY:
            if 4 <= i <= 12:
                if i + 3 < NP0: vm.wait(f"w1_{i+3}")
                side = w1_tr(i + 3)
            if i >= 6: a("s_waitcnt lgkmcnt(8)" if i <= 13 else "s_waitcnt lgkmcnt(0)")
            if NP0 + i <= 13:
                a(f"s_cmp_eq_u32 s{sLATE}, 0")
                a(f"s_cbranch_scc1 PK_NOLATE{i}")
                keep = list(vm.q); emit(w1_stage(NP0 + i)); vm.q = keep
                a.label(f"PK_NOLATE{i}")
            if i in (6, 7): emit(w1_stage(8 + i))
        else:
            st_tr = NR1 - 1 + i
            if i >= 1 and st_tr < 16:
                vm.wait(f"w1_{st_tr}")
                side = w1_tr(st_tr)
            st_ld = NPRE + i - 3
            if i >= 3 and st_ld < 16:
                a("s_waitcnt lgkmcnt(8)")
                emit(w1_stage(st_ld))
            elif i >= NR1:
                a("s_waitcnt lgkmcnt(8)" if NR1 - 1 + i - 1 < 16 else "s_waitcnt lgkmcnt(0)")
        if E("KV_LATE", 0) and i == E("KV_LATE", 0):
            a(f"v_mov_b32 v2, {CNT + 48}")
            a("s_mov_b64 exec, 1")
            a("ds_add_u32 v2, v2")
            a("s_mov_b64 exec, -1")
        if i == 12:
            side = side + ["v_lshrrev_b32 v2, 3, v1", "v_lshlrev_b32 v4, 12, v2", "v_bfe_u32 v2, v1, 4, 1", "v_lshlrev_b32 v2, 1, v2",
                    "v_and_b32 v3, 7, v1", "v_xor_b32 v2, v2, v3", "v_lshl_add_u32 v4, v2, 4, v4", f"s_lshl_b32 s{sT0}, s{sST}, 7",
                    f"v_add_u32 v4, s{sT0}, v4", "v_xor_b32 v2, 64, v4", f"v_add_u32 v5, {1*(32768-1024)}, v2",
                    f"v_add_u32 v6, {2*(32768-1024)}, v4", f"v_add_u32 v7, {3*(32768-1024)}, v2",
                    ]
        if i == E("KGO", 11): lds_arrive(10)
        if i == 13:
            side = [f"s_add_u32 s{sT2}, s{sRING}, {3*4096}", f"v_lshl_add_u32 v9, v1, 4, s{sT2}",
                    f"s_lshl_b32 s{sT2}, s3, 12", f"s_add_u32 s{sT2}, s{sT2}, {3*4096}", f"v_lshl_add_u32 v10, v1, 4, s{sT2}",
                    f"v_add_u32 v11, {2*RINGB}, v10",
                    f"s_lshr_b32 s{sT0}, s3, 1", f"s_lshl_b32 s{sT0}, s{sT0}, 6", f"s_add_u32 s{sT0}, s{sT0}, {PT_LDS}",
                    "v_lshrrev_b32 v8, 5, v1", f"v_lshl_add_u32 v8, v8, 3, s{sT0}",
                    f"s_lshr_b32 s{sT0}, s3, 1", f"s_lshl_b32 s{sT0}, s{sT0}, 2", f"s_lshl_b32 s{sT1}, s{sFT}, 3",
                    f"s_add_u32 s{sT0}, s{sT0}, s{sT1}", f"s_mul_i32 s{sT0}, s{sT0}, 10240", f"s_and_b32 s{sT1}, s3, 1",
                    f"s_lshl_b32 s{sT1}, s{sT1}, 9", f"s_add_u32 s{sT0}, s{sT0}, s{sT1}",
                    f"s_add_u32 s{sT0}, s{sT0}, {UBLK_OFF - HBLK_OFF - 20480}", f"v_add_u32 v14, s{sT0}, v13", "v_add_u32 v15, 20480, v14",
                    f"v_mov_b32 v13, {f32(c0)}", "s_mov_b32 s28, 1.0", "s_mov_b32 s29, 1.0"]
        if i == 14:
            side = [f"ds_read_b64 v[{32+2*q}:{33+2*q}], v8 offset:{16*q}" for q in range(4)]
        if i == 15:
            for kh in range(2):
                for nt in range(2): vm.wait(f"h{i}_{kh}{nt}")
            def mf(t_):
                mt, nt = t_ >> 1, t_ & 1
                t = ACC + 16 * t_
                for kh in range(2):
                    wr = 16 * (i % NR1) + 4 * (2 * kh + mt)
                    a(f"v_mfma_f32_32x32x16_bf16 v[{t}:{t+15}], a[{wr}:{wr+3}], {hreg(i, kh, nt)}, v[{t}:{t+15}]")
            def wr_(t_):
                for q in range(4):
                    r = ACC + 16 * t_ + 4 * q
                    a(f"ds_write_b128 v9, v[{r}:{r+3}] offset:{t_*4096 + q*1024}")
            FIN = 48
            mf(0); mf(1)
            a("s_waitcnt lgkmcnt(0)")
            for q in range(0, 10, 2):
                a(f"v_lshlrev_b32 v{FIN+q}, 16, v{32+q//2}")
                a(f"v_and_b32 v{FIN+q+1}, 0xffff0000, v{32+q//2}")
            wr_(0); mf(2); wr_(1); mf(3)
            for q in range(10, 16, 2):
                a(f"v_lshlrev_b32 v{FIN+q}, 16, v{32+q//2}")
                a(f"v_and_b32 v{FIN+q+1}, 0xffff0000, v{32+q//2}")
            wr_(2)
            a("s_nop 1")
            wr_(3)
            continue
        k = 0; si = 0
        for kh in range(2):
            for nt in range(2):
                vm.wait(f"h{i}_{kh}{nt}")
                for mt in range(2):
                    t = ACC + 16 * (2 * mt + nt)
                    wr = 16 * (i % NR1) + 4 * (2 * kh + mt)
                    c = "0" if (i == 0 and kh == 0) else f"v[{t}:{t+15}]"
                    if not E("NOMF1", 0): a(f"v_mfma_f32_32x32x16_bf16 v[{t}:{t+15}], a[{wr}:{wr+3}], {hreg(i, kh, nt)}, {c}")
                    k += 1
                    while si < (len(side) * k + 7) // 8:
                        emit([side[si]]); si += 1
                if nx < 16: emit([hload(nx, nt, kh)])
    pstamp(a, 4)
    if E("G1STEPS", 0): pstamp(a, 11, True)
    lds_arrive(4)
    H3L = E("H3L", 0)
    W2AF = E("W2AF", 0)
    if not H3L and not W2AF: emit(w2_dma(0)); emit(w2_dma(1))
    lds_wait("PK_XW1", 4)
    PT = 64
    for o in range(4):
        for q in range(4):
            r = PT + 16 * o + 4 * q
            a(f"ds_read_b128 v[{r}:{r+3}], v{10+o//2} offset:{(o&1)*RINGB + q*1024}")
    for o in range(4):
        a(f"s_waitcnt lgkmcnt({12-4*o})")
        for i in range(0, 16, 2):
            a(f"v_pk_add_f32 {pk(FIN+i)}, {pk(FIN+i)}, {pk(PT+16*o+i)}")
    lds_arrive(5)
    T = 64
    for i in range(0, 16, 2): a(f"v_pk_mul_f32 {pk(T+i)}, {pk(FIN+i)}, {pk(FIN+i)}")
    for i in range(16): a(f"v_fma_f32 v{T+i}, v{T+i}, s{sC1}, v13")
    for i in range(0, 16, 2): a(f"v_pk_mul_f32 {pk(T+i)}, {pk(T+i)}, {pk(FIN+i)}")
    for i in range(16): a(f"v_exp_f32 v{T+i}, v{T+i}")
    if E("W2MID", 0): emit(w2_dma(2))
    for i in range(0, 16, 2): a(f"v_pk_add_f32 {pk(T+i)}, {pk(T+i)}, s[28:29]")
    for i in range(16): a(f"v_rcp_f32 v{T+i}, v{T+i}")
    for i in range(0, 16, 2): a(f"v_pk_mul_f32 {pk(FIN+i)}, {pk(FIN+i)}, {pk(T+i)}")
    P = T + 16
    for i in range(0, 16, 2): a(f"v_cvt_pk_bf16_f32 v{P+i//2}, v{FIN+i}, v{FIN+i+1}")
    a("s_nop 1")
    for qp in range(2):
        r = P + 4 * qp
        a(f"v_permlane32_swap_b32 v{r}, v{r+2}")
        a(f"v_permlane32_swap_b32 v{r+1}, v{r+3}")
        vm.op(f"buffer_store_dwordx4 v[{r}:{r+3}], v{14+qp}, {R(S_WS)}, 0 offen sc1", "ust")
    a.label("PK_G_W2")
    pstamp(a, 5)
    lds_arrive(8)
    a(f"s_lshl_b32 s{sT0}, s{sDT}, 1")
    a(f"s_and_b32 s{sT1}, s3, 1")
    a(f"s_add_u32 s{sT0}, s{sT0}, s{sT1}")
    a(f"s_mul_i32 s{sT0}, s{sT0}, 48")
    a(f"s_lshl_b32 s{sT1}, s{sFT}, 1")
    a(f"s_add_u32 s{sT0}, s{sT0}, s{sT1}")
    a(f"s_lshr_b32 s{sT1}, s3, 1")
    a(f"s_add_u32 s{sT0}, s{sT0}, s{sT1}")
    a(f"s_lshl_b32 s{sT0}, s{sT0}, {FS}")
    a(f"s_add_u32 s{sT0}, s{sT0}, {FU_OFF}")
    a(f"s_add_u32 s{sT4}, s{sT0}, s{sG1BIG}")
    TR2 = 100
    a("v_lshrrev_b32 v106, 4, v1", "g")
    a("v_and_b32 v107, 15, v1", "n")
    a(f"v_lshlrev_b32 v{TR2}, 10, v106")
    a("v_bfe_u32 v2, v1, 2, 2")
    a(f"v_lshl_add_u32 v{TR2}, v2, 7, v{TR2}")
    a("v_bfe_u32 v2, v1, 3, 2")
    a(f"v_lshl_add_u32 v{TR2}, v2, 5, v{TR2}")
    a("v_and_b32 v2, 3, v1")
    a(f"v_lshl_add_u32 v{TR2}, v2, 3, v{TR2}")
    a(f"v_add_u32 v{TR2}, s{sRING}, v{TR2}")
    for j in range(1, 4): a(f"v_xor_b32 v{TR2+j}, {32*j}, v{TR2}")
    a("v_min_u32 v2, 35, v1")
    a("v_mul_u32_u24 v3, 43, v2")
    a("v_lshrrev_b32 v3, 9, v3")
    a("v_mul_u32_u24 v104, 36, v3")
    a("v_add_u32 v104, v104, v2")
    a(f"s_mul_i32 s{sT3}, s{sDT2}, 80", "d0")
    a(f"s_lshr_b32 s{sT0}, s{sT3}, 5")
    a(f"s_mul_i32 s{sT0}, s{sT0}, 48")
    a(f"s_add_u32 s{sT0}, s{sT0}, s{sKB2}")
    a(f"s_lshl_b32 s{sT0}, s{sT0}, {FS}")
    a(f"s_add_u32 s{sT0}, s{sT0}, {FU_OFF}")
    a(f"v_lshl_add_u32 v104, v104, {FS}, s{sT0}")
    a("v_mul_u32_u24 v105, 10240, v106")
    a("v_lshl_add_u32 v105, v107, 4, v105")
    a(f"s_lshl_b32 s{sT0}, s{sT3}, 4")
    a(f"s_add_u32 s{sT0}, s{sT0}, {UBLK_OFF}")
    a(f"v_add_u32 v105, s{sT0}, v105")
    def w2_tr(i, tr):
        out = []
        for j in range(4):
            for h in range(2):
                r = 16 * (i % NR2) + 4 * j + 2 * h
                out.append(f"ds_read_b64_tr_b16 a[{r}:{r+1}], v{tr+j} offset:{w2_slot(i)*4096 + h*512}")
        return out
    if H3L:
        lds_wait("PK_XW2", 5, n=5)
        for k in range(3): emit(w2_tr(k, TR2))
        vm.wait("ust")
        flag_store(sT4)
        pstamp(a, 6)
        emit(w2_dma(3)); emit(w2_dma(4))
        a("s_waitcnt lgkmcnt(0)")
    else:
        if not W2AF:
            vm.wait("w2_1")
            for k in range(2): emit(w2_tr(k, TR2))
        lds_wait("PK_XW2", 5)
        vm.wait("ust")
        flag_store(sT4)
        pstamp(a, 6)
        if W2AF: emit(w2_dma(0)); emit(w2_dma(1))
        if not E("W2MID", 0): emit(w2_dma(2))
        emit(w2_dma(3)); emit(w2_dma(4))
        vm.wait("w2_2")
        if W2AF:
            for k in range(2): emit(w2_tr(k, TR2))
        emit(w2_tr(2, TR2))
        a("s_waitcnt lgkmcnt(0)")
    if E("BURST2", 1):
        for nx in range(5, 10): emit(w2_dma(nx))
        for i in (3, 4):
            vm.wait(f"w2_{i}"); emit(w2_tr(i, TR2))
        a("s_waitcnt lgkmcnt(0)")
        emit(w2_dma(10)); emit(w2_dma(11))
        vm.op(f"buffer_load_dword v108, v104, {R(S_WS)}, 0 offen sc1", "upoll")
    else:
      for i in range(3, 12):
        nx = i + 2
        if nx < 12:
            if nx >= 9: a("s_waitcnt lgkmcnt(0)")
            emit(w2_dma(nx))
        vm.wait(f"w2_{i}")
        if i < NR2: emit(w2_tr(i, TR2))
        if i == E("UPOLL_AT", 10):
            vm.op(f"buffer_load_dword v108, v104, {R(S_WS)}, 0 offen sc1", "upoll")
    for j in range(4): a(f"v_mov_b32 v{4+j}, v{TR2+j}")
    a("v_mul_u32_u24 v109, 26, v1")
    a("v_lshrrev_b32 v109, 8, v109", "L/10")
    a("v_mul_u32_u24 v110, 10, v109")
    a("v_sub_u32 v110, v1, v110", "L%10")
    a("v_min_u32 v109, 5, v109")
    a("v_mul_u32_u24 v109, 10240, v109")
    a("v_lshl_add_u32 v109, v110, 7, v109")
    a(f"s_and_b32 s{sT0}, s{sST}, 7")
    a(f"s_mul_i32 s{sT0}, s{sT0}, 6")
    a(f"s_mul_i32 s{sT1}, s3, 48")
    a(f"s_add_u32 s{sT0}, s{sT0}, s{sT1}")
    a(f"s_mul_i32 s{sT0}, s{sT0}, 10240")
    a(f"s_mul_i32 s{sT1}, s{sDT2}, 1280")
    a(f"s_add_u32 s{sT0}, s{sT0}, s{sT1}")
    a(f"s_add_u32 s{sT0}, s{sT0}, {UBLK_OFF}")
    a(f"v_add_u32 v109, s{sT0}, v109")
    a("v_mov_b32 v3, v105")
    pstamp(a, 7)
    spin("PK_SPIN_U", [(104, 108)], "upoll" if vm.count("upoll") is not None else "x")
    if E("GBAR2", 0): sbar("PK_GB2", 14, t=110)
    pstamp(a, 8)
    if E("G2STEPS", 0): pstamp(a, 1, True)
    ACC2 = 48
    UB = [("a", 100), ("v", 8), ("v", 28), ("a", 80)]; UD = 4
    def ureg(i, m):
        f, b = UB[i % UD]
        return f"{f}[{b+4*m}:{b+4*m+3}]"
    def u_adv(i): return pos2(i) + [f"s_mul_i32 s{sHOFF}, s{sT0}, 40960"]
    def uload(i, m):
        return (f"buffer_load_dwordx4 {ureg(i, m)}, v3, {R(S_WS)}, s{sHOFF} offen offset:{m*256} sc1", f"u{i}_{m}")
    UPRE = E("UPRE", UD)
    for i in range(UPRE):
        emit(u_adv(i))
        for m in range(5): emit([uload(i, m)])
        if i == 0 and E("TOUCH", 0):
            vm.op(f"buffer_load_dword a127, v109, {R(S_WS)}, 0 offen sc1", "touch")
    a("s_waitcnt lgkmcnt(0)")
    for i in range(12):
        nx = i + UPRE
        if E("G2STEPS", 0):
            MUTE[0] = True
            if i in (0, 1, 3, 5, 7, 9, 11): pstamp(a, 2 + (i + 1) // 2, True)
        if nx < 12: emit(u_adv(nx))
        side = w2_tr(NR2 - 1 + i, 4) if (i >= 1 and NR2 - 1 + i < 12) else []
        if NR2 <= i <= 8: a("s_waitcnt lgkmcnt(8)")
        if i == 9: a("s_waitcnt lgkmcnt(0)")
        if i == E("YGO", 7):
            a(f"v_mov_b32 v2, {CNT + 36}")
            a("s_mov_b64 exec, 1")
            a("ds_add_u32 v2, v2", "counter 9 += its own address")
            a("s_mov_b64 exec, -1")
        if i == 10:
            side = ["v_lshrrev_b32 v8, 4, v1", "v_and_b32 v9, 15, v1",
                    f"s_lshl_b32 s{sT0}, s{sST}, 6", f"s_lshl_b32 s{sT1}, s3, 4", f"s_add_u32 s{sT0}, s{sT0}, s{sT1}",
                    f"v_add_u32 v9, s{sT0}, v9", "v_mul_u32_u24 v10, 1280, v9", "v_lshl_add_u32 v10, v8, 3, v10",
                    f"s_mul_i32 s{sT0}, s{sDT2}, 160", f"v_add_u32 v10, s{sT0}, v10", "v_lshlrev_b32 v9, 1, v9",
                    (f"buffer_load_ushort v16, v9, {R(S_B2)}, 0 offen", "b2"),
                    f"v_lshl_add_u32 v11, v1, 4, s{sRING}",
                    f"s_mul_i32 s{sT0}, s3, 2560", f"s_add_u32 s{sT0}, s{sT0}, {PT_LDS}", f"v_lshl_add_u32 v15, v1, 3, s{sT0}",
                    f"s_mul_i32 s{sT0}, s3, 5120", f"v_lshl_add_u32 v12, v1, 4, s{sT0}", f"v_add_u32 v13, {2*RINGB}, v12"]
        TL2 = E("TL2", 2)
        if i > 12 - TL2: continue
        if i == 12 - TL2:
            assert nx >= 12
            emit(side)
            vm.wait("u11_4")
            pend = []
            for j in range(4):
                for ii in range(i, 12):
                    for m in range(5):
                        t = ACC2 + 4 * (5 * j + m); wr = 16 * (ii % NR2) + 4 * j
                        a(f"v_mfma_f32_16x16x32_bf16 v[{t}:{t+3}], {ureg(ii, m)}, a[{wr}:{wr+3}], v[{t}:{t+3}]")
                        for p in pend: p[0] += 1
                        if pend and pend[0][0] >= 9:
                            a(pend.pop(0)[1])
                            for p in pend: p[0] += 1
                        if ii == 11:
                            pend.append([0, f"ds_write_b128 v11, v[{t}:{t+3}] offset:{j*5120 + m*1024}"])
            while pend:
                if pend[0][0] < 9:
                    n = 9 - pend[0][0]
                    a(f"s_nop {n-1}")
                    for p in pend: p[0] += n
                a(pend.pop(0)[1])
                for p in pend: p[0] += 1
            continue
        k = 0; si = 0
        for m in range(5):
            vm.wait(f"u{i}_{m}")
            for j in range(4):
                t = ACC2 + 4 * (5 * j + m)
                wr = 16 * (i % NR2) + 4 * j
                c = "0" if i == 0 else f"v[{t}:{t+3}]"
                a(f"v_mfma_f32_16x16x32_bf16 v[{t}:{t+3}], {ureg(i, m)}, a[{wr}:{wr+3}], {c}")
                k += 1
                while si < (len(side) * k + 19) // 20:
                    emit([side[si]]); si += 1
            if nx < 12: emit([uload(nx, m)])
    pstamp(a, 9, True)
    MUTE[0] = False
    FIN2 = 28
    lds_arrive(11)
    vm.wait("b2")
    a("v_lshlrev_b32 v17, 16, v16")
    a("v_lshlrev_b32 v16, 16, v16")
    lds_wait("PK_GB3", 11)
    PT2 = 48; PR = 18; PF = 108
    GM = E("GM", 3)
    NG = 4 * GM
    for o in range(4):
        for m in range(GM):
            r = PT2 + 20 * o + 4 * m
            a(f"ds_read_b128 v[{r}:{r+3}], v{12+o//2} offset:{(o&1)*RINGB + m*1024}")
    for o in range(4):
        a(f"s_waitcnt lgkmcnt({min(10, GM*(3-o))})")
        for i in range(0, NG, 2):
            src = "v[16:17]" if o == 0 else pk(FIN2 + i)
            a(f"v_pk_add_f32 {pk(FIN2+i)}, {src}, {pk(PT2+20*o+i)}")
    T2 = 48
    for i in range(0, NG, 2): a(f"v_cvt_pk_bf16_f32 v{T2+i//2}, v{FIN2+i}, v{FIN2+i+1}")
    for i in range(0, NG, 2):
        a(f"v_lshlrev_b32 v{FIN2+i}, 16, v{T2+i//2}")
        a(f"v_and_b32 v{FIN2+i+1}, 0xffff0000, v{T2+i//2}")
    lds_wait("PK_PW", 15)
    pstamp(a, 10)
    for m in range(GM):
        a(f"ds_read_b64 v[{PR+2*m}:{PR+2*m+1}], v15 offset:{m*512}")
    a("s_waitcnt lgkmcnt(0)")
    for m in range(GM):
        for h in range(2):
            i = 4 * m + 2 * h
            a(f"v_lshlrev_b32 v{PF+i}, 16, v{PR+i//2}")
            a(f"v_and_b32 v{PF+i+1}, 0xffff0000, v{PR+i//2}")
            a(f"v_pk_add_f32 {pk(FIN2+i)}, {pk(FIN2+i)}, {pk(PF+i)}")
            a(f"v_cvt_pk_bf16_f32 v{60+i//2}, v{FIN2+i}, v{FIN2+i+1}")
        a(f"buffer_store_dwordx2 v[{60+2*m}:{61+2*m}], v10, {R(S_OUT)}, 0 offen offset:{32*m}")
    a(f"s_or_b32 s{sT0}, s2, s3")
    a(f"s_cmp_lg_u32 s{sT0}, 0")
    a("s_cbranch_scc1 PK_NOEP")
    a(f"s_mov_b32 s{sT0}, {EPOCH_OFF}")
    flag_store(sT0)
    a.label("PK_NOEP")
    pstamp(a, 11)
    finish_stamps("G")
    a("s_endpgm")

    if E("W2PF", 1):
        a.label("PK_G_PF")
        vm.reset(); vm.q.append("ep")
        read_epoch(9); lds_arrive(6)
        a(f"s_lshr_b32 s{sT2}, s2, 3")
        a(f"s_sub_u32 s{sT2}, s{sT2}, 30")
        a(f"s_lshl_b32 s{sT2}, s{sT2}, 2")
        a(f"s_add_u32 s{sT2}, s{sT2}, s3")
        a(f"s_and_b32 s{sT1}, s2, 1")
        a(f"s_lshl_b32 s{sT1}, s{sT1}, 3")
        a(f"s_add_u32 s{sT2}, s{sT2}, s{sT1}")
        a(f"s_mul_i32 s{sT2}, s{sT2}, {96*4096}")
        a(f"s_bfe_u32 s{sT1}, s2, 0x20001")
        a(f"s_lshl_b32 s{sT1}, s{sT1}, 10")
        a(f"s_add_u32 s{sT2}, s{sT2}, s{sT1}")
        a("v_lshrrev_b32 v8, 3, v1")
        a("v_lshlrev_b32 v8, 12, v8")
        a("v_and_b32 v3, 7, v1")
        a("v_lshl_add_u32 v8, v3, 7, v8")
        emit(["v_lshrrev_b32 v2, 3, v1", "v_lshlrev_b32 v4, 12, v2", "v_bfe_u32 v2, v1, 4, 1", "v_lshlrev_b32 v2, 1, v2",
              "v_and_b32 v3, 7, v1", "v_xor_b32 v2, v2, v3", "v_lshl_add_u32 v4, v2, 4, v4", f"s_lshl_b32 s{sT0}, s{sST}, 7",
              f"v_add_u32 v4, s{sT0}, v4", "v_xor_b32 v2, 64, v4", f"v_add_u32 v5, {1*(32768-1024)}, v2",
              f"v_add_u32 v6, {2*(32768-1024)}, v4", f"v_add_u32 v7, {3*(32768-1024)}, v2"])
        lds_wait("PK_PFW", E("PFGO", 3), sleep=4)
        for i in range(2, 5): pstamp(a, i)
        for t in range(E("PFN", 12)):
            a(f"buffer_load_dword v{16+t}, v8, {R(S_W2)}, s{sT2} offen")
            a(f"s_add_u32 s{sT2}, s{sT2}, 32768")
        a("s_waitcnt vmcnt(0)")
        lds_arrive(10); lds_arrive(4); lds_arrive(5)
        emit(w2_dma(0)); emit(w2_dma(1))
        a("s_waitcnt vmcnt(0)")
        a("s_setprio 2")
        a("s_branch PK_G_W2")

    a.label("PK_H")
    MUTE[0] = False
    vm.reset()
    for r in range(2):
        for i in range(5): vm.q.append(f"x{r}{i}")
    a("s_cmp_ge_u32 s2, 160")
    a(f"s_cselect_b32 s{sKVBIG}, {BIG}, 0")
    if E("NOKV", 0): a(f"s_mov_b32 s{sKVBIG}, {BIG}")
    sTT, sCW = sDT, sFT
    a(f"s_mul_hi_u32 s{sTT}, s2, 0x33333334", "T")
    a(f"s_mul_i32 s{sCW}, s{sTT}, 5")
    a(f"s_sub_u32 s{sCW}, s2, s{sCW}", "cw")
    a(f"s_lshl_b32 s{sT0}, s{sTT}, 2")
    a(f"s_add_u32 s{sT0}, s{sT0}, s3")
    a(f"s_mul_i32 s{sT0}, s{sT0}, 20480")
    a(f"s_lshl_b32 s{sT1}, s{sCW}, 8")
    a(f"s_add_u32 s{sT0}, s{sT0}, s{sT1}")
    a(f"s_add_u32 s{sT0}, s{sT0}, s{sKVBIG}")
    VKV = 10
    a(f"v_add_u32 v{VKV+1}, s{sT0}, v3")
    a(f"v_subrev_u32 v{VKV}, 3840, v{VKV+1}")
    for i in range(1, 4): a(f"v_add_u32 v{VKV+1+i}, {5120*i}, v{VKV+1}")
    a(f"s_lshl_b32 s{sT1}, s{sCW}, 10")
    a(f"v_lshl_add_u32 v15, v1, 4, s{sT1}")
    XRAW = 16
    if E("W1ONLY", 0):
        if STAMP:
            a("s_mov_b32 s4, s30"); a("s_mov_b32 s5, s31")
        for i in range(1, 12): pstamp(a, i)
        finish_stamps()
        a("s_endpgm")
    srd(a, S_WS, 26, WS_USED, E("WSMB", 0) << 20)
    vm.op(f"buffer_load_dword v9, v8, {R(S_WS)}, 0 offen sc1", "ep")
    srd(a, S_K, 6, SD_BYTES)
    srd(a, S_V, 8, SD_BYTES)
    srd(a, S_SHK, 10, D * 8)
    srd(a, S_SSMK, 12, SD_BYTES)
    srd(a, S_SSMD, 14, D * 2)
    srd(a, S_W2, 20, S * F * 2)
    srd(a, S_B2, 22, S * 2)
    srd(a, S_OUT, 24, SD_BYTES)
    if STAMP:
        a("s_mov_b32 s4, s30"); a("s_mov_b32 s5, s31")
    def kv_loads():
        vm.op(f"buffer_load_dwordx4 a[36:39], v15, {R(S_SHK)}, 0 offen", "shk")
        for r in range(3):
            vm.op(f"buffer_load_dword a{r}, v{VKV}, {R(S_K)}, 0 offen offset:{r*1280} {NT}", "k")
        for r in range(16):
            vm.op(f"buffer_load_dword a{3+r}, v{VKV+1+r//4}, {R(S_K)}, 0 offen offset:{(r%4)*1280} {NT}", "k")
        for r in range(16):
            vm.op(f"buffer_load_dword a{19+r}, v{VKV+1+r//4}, {R(S_V)}, 0 offen offset:{(r%4)*1280} {NT}", "v")
    KV_EARLY = E("KV_EARLY", 0)
    if KV_EARLY: kv_loads()
    srd(a, S_B1, 18, F * 2)
    a(f"s_lshr_b32 s{sT0}, s2, 3")
    a(f"s_mul_hi_u32 s{sT0}, s{sT0}, 0x33333334")
    a(f"s_bfe_u32 s{sT1}, s2, 0x20001")
    a(f"s_mul_i32 s{sT1}, s{sT1}, 6")
    a(f"s_add_u32 s{sT0}, s{sT0}, s{sT1}")
    a(f"s_lshl_b32 s{sT0}, s{sT0}, 7")
    a("v_and_b32 v125, 124, v3")
    vm.op(f"buffer_load_dword v126, v125, {R(S_B1)}, s{sT0} offen", "b1")
    a(f"v_add_u32 v125, {PT_LDS}, v125")
    pstamp(a, 1)
    a(f"s_mul_i32 s{sT0}, s3, {2*HROW}")
    a(f"s_add_u32 s{sT0}, s{sT0}, {LNX}")
    a(f"v_add_u32 v4, s{sT0}, v3")
    a("v_lshrrev_b32 v5, 4, v1")
    a("v_lshlrev_b32 v5, 5, v5")
    a("v_and_b32 v2, 3, v1")
    a("v_lshl_add_u32 v5, v2, 3, v5")
    a("v_bfe_u32 v2, v1, 2, 2")
    a(f"v_mul_u32_u24 v2, {HROW}, v2")
    a("v_add_u32 v5, v5, v2")
    a(f"s_lshl_b32 s{sT0}, s3, 7")
    a(f"s_add_u32 s{sT0}, s{sT0}, {LNX}")
    a(f"v_add_u32 v5, s{sT0}, v5")
    a(f"s_mul_i32 s{sT0}, s2, 10240")
    a(f"s_lshl_b32 s{sT1}, s3, 10")
    a(f"s_add_u32 s{sT0}, s{sT0}, s{sT1}")
    if HBLK_OFF: a(f"s_add_u32 s{sT0}, s{sT0}, {HBLK_OFF}")
    a(f"v_lshl_add_u32 v6, v1, 4, s{sT0}")
    a("v_add_u32 v7, 4096, v6")
    a("s_cmp_ge_u32 s3, 2")
    a(f"s_cselect_b32 s{sT1}, {BIG}, 8192")
    a(f"v_add_u32 v8, s{sT1}, v6")
    a(f"s_lshl_b32 s{sT0}, s2, 2")
    a(f"s_add_u32 s{sT0}, s{sT0}, s3")
    a(f"s_lshl_b32 s{sT0}, s{sT0}, 4")
    a(f"s_add_u32 s{sT0}, s{sT0}, {STAT_OFF}")
    a(f"v_mov_b32 v90, s{sT0}")
    a(f"s_lshl_b32 s{sT0}, s3, 8")
    a(f"s_add_u32 s{sT0}, s{sT0}, s2")
    a(f"s_lshl_b32 s{sT0}, s{sT0}, {FS}")
    a(f"s_add_u32 s{sRING}, s{sT0}, {FH_OFF}", "h flag offset")
    X = [26, 36]; A = [46, 56]; SUM = [66, 70]; TMP = [74, 82]
    PIV = [28, 30]; SS = [(sT0, sT1), (sT2, sT3)]
    for r in range(2):
        for i in range(5):
            vm.wait(f"x{r}{i}")
            a(f"v_lshlrev_b32 v{X[r]+2*i}, 16, v{XRAW+5*r+i}")
            a(f"v_and_b32 v{X[r]+2*i+1}, 0xffff0000, v{XRAW+5*r+i}")
            if i == 0: a(f"v_readfirstlane_b32 s{PIV[r]}, v{X[r]}")
            if i == 2: a(f"s_mov_b32 s{PIV[r]+1}, s{PIV[r]}")
    pstamp(a, 2)
    def zip2(f):
        out = []
        for p, q in zip(f(0), f(1)): out += [p, q]
        return out
    def sums(src):
        def f(r):
            Sr = SUM[r]; B = src[r]
            l = [f"v_pk_mul_f32 {pk(Sr+2)}, {pk(B)}, {pk(B)}", f"v_pk_add_f32 {pk(Sr)}, {pk(B)}, {pk(B+2)}"]
            for i in range(1, 5):
                l.append(f"v_pk_fma_f32 {pk(Sr+2)}, {pk(B+2*i)}, {pk(B+2*i)}, {pk(Sr+2)}")
                if i >= 2: l.append(f"v_pk_add_f32 {pk(Sr)}, {pk(Sr)}, {pk(B+2*i)}")
            l += [f"v_add_f32 v{Sr}, v{Sr}, v{Sr+1}", f"v_add_f32 v{Sr+1}, v{Sr+2}, v{Sr+3}"]
            return l
        l = zip2(f)
        steps = ["row_shr:1 row_mask:0xf bank_mask:0xf bound_ctrl:0", "row_shr:2 row_mask:0xf bank_mask:0xf bound_ctrl:0",
                 "row_shr:4 row_mask:0xf bank_mask:0xf bound_ctrl:0", "row_shr:8 row_mask:0xf bank_mask:0xf bound_ctrl:0",
                 "row_bcast:15 row_mask:0xa bank_mask:0xf", "row_bcast:31 row_mask:0xc bank_mask:0xf"]
        regs = [SUM[0], SUM[1], SUM[0] + 1, SUM[1] + 1]
        for st in steps:
            for v in regs: l.append(f"v_add_f32_dpp v{v}, v{v}, v{v} {st}")
        l += [f"v_readlane_b32 s{SS[0][0]}, v{SUM[0]}, 63", f"v_readlane_b32 s{SS[1][0]}, v{SUM[1]}, 63",
              f"v_readlane_b32 s{SS[0][1]}, v{SUM[0]+1}, 63", f"v_readlane_b32 s{SS[1][1]}, v{SUM[1]+1}, 63"]
        return l
    def statsl(piv):
        inv = f32(1.0 / D)
        def f(r):
            t0, t1 = TMP[r] + 6, TMP[r] + 7; m = TMP[r]; rr = TMP[r] + 1
            l = [f"v_mul_f32 v{t0}, s{SS[r][0]}, v91", f"v_mul_f32 v{t1}, s{SS[r][1]}, v91",
                 f"v_fma_f32 v{t1}, -v{t0}, v{t0}, v{t1}", f"v_max_f32 v{t1}, 0, v{t1}"]
            if piv: l.append(f"v_add_f32 v{t0}, s{PIV[r]}, v{t0}")
            l += [f"v_cvt_pk_bf16_f32 v{t0}, v{t0}, v{t1}", f"v_lshlrev_b32 v{m}, 16, v{t0}",
                  f"v_and_b32 v{t1}, 0xffff0000, v{t0}", f"v_add_f32 v{t1}, {f32(1e-5)}, v{t1}",
                  f"v_cvt_pk_bf16_f32 v{t1}, v{t1}, v{t1}", f"v_lshlrev_b32 v{t1}, 16, v{t1}",
                  f"v_sqrt_f32 v{t1}, v{t1}", f"v_cvt_pk_bf16_f32 v{t1}, v{t1}, v{t1}",
                  f"v_lshlrev_b32 v{t1}, 16, v{t1}", f"v_rcp_f32 v{rr}, v{t1}",
                  f"v_mul_f32 v{TMP[r]+4}, v{m}, v{rr}", f"v_mov_b32 v{TMP[r]+2}, v{rr}",
                  f"v_mul_f32 v{TMP[r]+5}, v{m}, v{rr}", f"v_mov_b32 v{TMP[r]+3}, v{rr}"]
            return l
        return zip2(f)
    def norm(dst, src):
        return zip2(lambda r: [f"v_pk_fma_f32 {pk(dst[r]+2*i)}, {pk(src[r]+2*i)}, {pk(TMP[r]+2)}, {pk(TMP[r]+4)} neg_lo:[0,0,1] neg_hi:[0,0,1]" for i in range(5)])
    a(f"v_mov_b32 v91, {f32(1.0/D)}")
    emit(zip2(lambda r: [f"v_pk_add_f32 {pk(A[r]+2*i)}, {pk(X[r]+2*i)}, s[{PIV[r]}:{PIV[r]+1}] neg_lo:[0,1] neg_hi:[0,1]" for i in range(5)]))
    emit(sums(A)); emit(statsl(True))
    emit(["s_mov_b64 exec, 1",
          (f"buffer_store_dwordx2 {pk(TMP[0])}, v90, {R(S_WS)}, 0 offen sc1", "hst"),
          (f"buffer_store_dwordx2 {pk(TMP[1])}, v90, {R(S_WS)}, 0 offen offset:8 sc1", "hst"),
          "s_mov_b64 exec, -1"])
    emit(norm(A, X))
    emit(zip2(lambda r: [f"v_cvt_pk_bf16_f32 v{XRAW+5*r+i}, v{A[r]+2*i}, v{A[r]+2*i+1}" for i in range(5)]))
    emit(zip2(lambda r: sum([[f"v_lshlrev_b32 v{X[r]+2*i}, 16, v{XRAW+5*r+i}", f"v_and_b32 v{X[r]+2*i+1}, 0xffff0000, v{XRAW+5*r+i}"] for i in range(5)], [])))
    emit(sums(X)); emit(statsl(False)); emit(norm(A, X))
    emit(zip2(lambda r: sum([[f"v_cvt_pk_bf16_f32 v{XRAW+5*r+i}, v{A[r]+2*i}, v{A[r]+2*i+1}", f"ds_write_b32 v4, v{XRAW+5*r+i} offset:{r*HROW+i*256}"] for i in range(5)], [])))
    vm.wait("b1")
    a("ds_write_b32 v125, v126")
    read_epoch(9)
    sbar("PK_HB1", 1)
    HT = 26
    for t in range(3):
        a(f"ds_read_b64_tr_b16 v[{HT+4*t}:{HT+4*t+1}], v5 offset:{512*t}")
        a(f"ds_read_b64_tr_b16 v[{HT+4*t+2}:{HT+4*t+3}], v5 offset:{512*t+4*HROW}")
    for t in range(3):
        a(f"s_waitcnt lgkmcnt({4-2*t})")
        vm.op(f"buffer_store_dwordx4 v[{HT+4*t}:{HT+4*t+3}], v{6+t}, {R(S_WS)}, 0 offen sc1", "hst")
    pstamp(a, 3)
    a("v_and_b32 v2, 7, v1")
    a(f"s_lshl_b32 s{sT0}, s3, 1")
    a(f"v_xor_b32 v4, s{sT0}, v2")
    a("v_lshlrev_b32 v4, 4, v4")
    a("v_lshl_add_u32 v4, v1, 8, v4")
    a(f"v_add_u32 v4, {KVX}, v4")
    a("v_xor_b32 v5, 16, v4")
    a("v_lshrrev_b32 v8, 3, v1")
    a("v_lshrrev_b32 v6, 4, v1")
    a("v_xor_b32 v6, v6, v2")
    a("v_lshlrev_b32 v6, 4, v6")
    a("v_lshl_add_u32 v6, v8, 7, v6")
    a(f"s_lshl_b32 s{sT0}, s3, 12")
    a(f"s_add_u32 s{sT0}, s{sT0}, {KVX}")
    a(f"v_add_u32 v6, s{sT0}, v6")
    a("v_xor_b32 v7, 64, v6")
    a("v_lshlrev_b32 v8, 12, v8")
    a("v_lshl_add_u32 v8, v2, 4, v8")
    a(f"s_lshl_b32 s{sT0}, s{sCW}, 19")
    a(f"s_lshl_b32 s{sT1}, s3, 17")
    a(f"s_add_u32 s{sT0}, s{sT0}, s{sT1}")
    a(f"s_lshl_b32 s{sT1}, s{sTT}, 7")
    a(f"s_add_u32 s{sT0}, s{sT0}, s{sT1}")
    a(f"s_add_u32 s{sT0}, s{sT0}, {KVB_OFF}")
    a(f"s_add_u32 s{sT0}, s{sT0}, s{sKVBIG}")
    a(f"v_add_u32 v8, s{sT0}, v8")
    lds_wait("PK_EPW", 6)
    vm.wait("hst")
    flag_store(sRING)
    pstamp(a, 4)
    if E("KV_LATE", 0):
        a("s_setprio 0")
        lds_wait("PK_KVL", 12, n=4 * (CNT + 48), sleep=4)
        a("s_setprio 3")
    if not KV_EARLY: kv_loads()
    a("s_setprio 0")
    a(f"s_lshl_b32 s{sT0}, s{sCW}, 2")
    a(f"s_add_u32 s{sT0}, s{sT0}, s3")
    a(f"s_lshl_b32 s{sT0}, s{sT0}, 5")
    a(f"s_add_u32 s{sT0}, s{sT0}, s{sTT}")
    a(f"s_lshl_b32 s{sT0}, s{sT0}, {FS}")
    a(f"s_add_u32 s{sT0}, s{sT0}, {FKV_OFF}")
    a(f"s_add_u32 s{sRING}, s{sT0}, s{sKVBIG}", "kv flag offset")
    WP, KP, KS, KO = 16, 24, 62, 94
    vm.wait("k")
    for i in range(4): a(f"v_accvgpr_read_b32 v{110+i}, a{36+i}")
    for r in range(19): a(f"v_accvgpr_read_b32 v{KP+2*r+1}, a{r}")
    for t in range(4):
        for ch in range(2):
            src = 110 + 2 * ch + t // 2
            a(f"v_lshlrev_b32 v{WP+2*t+ch}, 16, v{src}" if t % 2 == 0 else f"v_and_b32 v{WP+2*t+ch}, 0xffff0000, v{src}")
    for r in range(19):
        a(f"v_lshlrev_b32 v{KP+2*r}, 16, v{KP+2*r+1}")
        a(f"v_and_b32 v{KP+2*r+1}, 0xffff0000, v{KP+2*r+1}")
    for r in range(16): a(f"v_pk_mul_f32 {pk(KS+2*r)}, {pk(KP+2*r)}, {pk(WP+6)}")
    for t in (2, 1, 0):
        for r in range(16):
            a(f"v_pk_fma_f32 {pk(KS+2*r)}, {pk(KP+2*(r+3-t))}, {pk(WP+2*t)}, {pk(KS+2*r)}")
    vm.wait("v")
    for r in range(16): a(f"v_accvgpr_read_b32 v{KP+2*r+1}, a{19+r}")
    for r in range(16):
        a(f"v_lshlrev_b32 v{KP+2*r}, 16, v{KP+2*r+1}")
        a(f"v_and_b32 v{KP+2*r+1}, 0xffff0000, v{KP+2*r+1}")
    for r in range(16): a(f"v_pk_mul_f32 {pk(KS+2*r)}, {pk(KS+2*r)}, {pk(KP+2*r)}")
    for c2 in range(2):
        for ch in range(2):
            for q in range(4):
                a(f"v_cvt_pk_bf16_f32 v{KO+8*c2+4*ch+q}, v{KS+2*(8*c2+7-2*q)+ch}, v{KS+2*(8*c2+6-2*q)+ch}")
            a(f"ds_write_b128 v{4+c2}, v[{KO+8*c2+4*ch}:{KO+8*c2+4*ch+3}] offset:{128*ch}")
    sbar("PK_HB2", 2)
    for i in range(4):
        a(f"ds_read_b128 v[{KO+4*i}:{KO+4*i+3}], v{6+(i&1)} offset:{1024*i}")
    a("s_setprio 3")
    for i in range(4):
        a(f"s_mov_b32 s{sT0}, {32768*i}")
        a(f"s_waitcnt lgkmcnt({3-i})")
        vm.op(f"buffer_store_dwordx4 v[{KO+4*i}:{KO+4*i+3}], v8, {R(S_WS)}, s{sT0} offen sc1", "kvst")
    lds_arrive(3)
    pstamp(a, 5)
    a("v_lshrrev_b32 v14, 4, v1", "g")
    a("v_and_b32 v15, 15, v1", "n")
    a(f"s_lshl_b32 s{sCH}, s2, 1")
    a(f"s_mul_i32 s{sT0}, s2, 3")
    a(f"s_sub_u32 s{sT0}, s{sT0}, 128")
    a("s_cmp_ge_u32 s2, 128")
    a(f"s_cselect_b32 s{sCH}, s{sT0}, s{sCH}")
    a(f"s_cselect_b32 s{sT0}, 3, 2")
    a(f"s_add_u32 s{sCH}, s{sCH}, s3")
    a(f"s_cmp_lt_u32 s3, s{sT0}")
    a(f"s_cselect_b32 s{sCH}, s{sCH}, {1 << 16}", "ch (65536 = none)")
    a(f"s_mul_i32 s{sCVB}, s3, {CONV_SZ}")
    a(f"s_add_u32 s{sCVB}, s{sCVB}, {AUX}")
    a(f"s_lshr_b32 s{sT0}, s{sCH}, 5")
    a(f"s_lshl_b32 s{sT0}, s{sT0}, {5+FS}")
    a(f"s_add_u32 s{sT0}, s{sT0}, {FKV_OFF}")
    a("v_and_b32 v29, 31, v1")
    a(f"v_lshl_add_u32 v29, v29, {FS}, s{sT0}", "kv poll address")
    a(f"s_lshl_b32 s{sT0}, s{sCH}, 12")
    a(f"v_lshl_add_u32 v31, v1, 4, s{sT0}")
    a("v_add_u32 v32, 2, v31")
    a(f"v_add_u32 v33, {KVB_OFF}, v31")
    a(f"v_mov_b32 v34, s{sT0}")
    a(f"s_lshl_b32 s{sT1}, s{sCH}, 1")
    a(f"v_mov_b32 v36, s{sT1}")
    VA, VB, VE, VS = 38, 42, 43, 44
    a("v_lshlrev_b32 v2, 5, v15")
    a(f"v_lshl_add_u32 v{VS}, v14, 3, v2")
    a(f"s_add_u32 s{sT0}, s{sT0}, {YA_OFF}")
    a(f"v_add_u32 v{VS}, s{sT0}, v{VS}")
    a("v_lshlrev_b32 v45, 4, v1")
    a(f"v_add_u32 v46, s{sCVB}, v45")
    a(f"v_add_u32 v2, {CV_K0-512}, v45")
    a(f"v_add_u32 v3, {CV_K1-544}, v45")
    a("v_cmp_lt_u32 vcc, 31, v1")
    a(f"v_lshl_add_u32 v{VA}, v14, 3, v15")
    a(f"v_lshlrev_b32 v{VA}, 1, v{VA}")
    a("v_cndmask_b32 v45, v45, v2, vcc")
    a("v_cmp_lt_u32 vcc, 33, v1")
    a("v_and_b32 v2, 1, v1")
    a(f"v_mul_u32_u24 v2, {CV_K1 - CV_K0 - 2}, v2")
    a("v_cndmask_b32 v45, v45, v3, vcc")
    a("v_cmp_lt_u32 vcc, 35, v1")
    a(f"v_sub_u32 v{VA}, v{VA}, v2")
    a(f"v_add_u32 v{VA}, {CV_K1}, v{VA}")
    a("v_cndmask_b32 v45, v45, 0, vcc")
    a(f"v_add_u32 v45, s{sCVB}, v45")
    a(f"v_add_u32 v{VA}, s{sCVB}, v{VA}")
    for p in range(1, 4): a(f"v_add_u32 v{VA+p}, {1024*p}, v{VA}")
    a("v_lshlrev_b32 v2, 1, v15")
    a("v_sub_u32 v2, v2, v14")
    a("v_lshlrev_b32 v2, 4, v2")
    a(f"v_add_u32 v2, {528-448}, v2")
    a(f"v_add_u32 v{VB}, s{sCVB}, v2")
    a("v_lshrrev_b32 v2, 1, v14")
    a("v_lshl_add_u32 v2, v15, 1, v2")
    a("v_lshlrev_b32 v2, 4, v2")
    a("v_and_b32 v3, 1, v14")
    a("v_lshlrev_b32 v3, 3, v3")
    a("v_sub_u32 v2, v2, v3")
    a("v_add_u32 v2, 520, v2")
    a(f"v_add_u32 v{VE}, s{sCVB}, v2")
    vm.wait("kvst")
    flag_store(sRING)
    a(f"s_cmp_ge_u32 s{sCH}, 640")
    a("s_cbranch_scc1 PK_NOCONV")
    lds_wait("PK_HB3", 3)
    if E("KERN_LATE", 0):
        a("s_setprio 0")
        lds_wait("PK_KW0", 10, n=4, sleep=4)
        a("s_setprio 3")
    vm.reset()
    a(f"s_add_u32 m0, s{sCVB}, {CV_K0+32}")
    a(f"buffer_load_ushort v35, v34, {R(S_SSMK)}, 0 offen")
    for q in range(4): a(f"buffer_load_dwordx4 v31, {R(S_SSMK)}, 0 offen offset:{q*1024} lds")
    a(f"s_add_u32 m0, s{sCVB}, {CV_K1+32}")
    a(f"buffer_load_ushort v37, v36, {R(S_SSMD)}, 0 offen")
    for q in range(4): a(f"buffer_load_dwordx4 v32, {R(S_SSMK)}, 0 offen offset:{q*1024} lds")
    a("s_setprio 0")
    lds_wait("PK_KW", 10, n=4, sleep=4)
    a("s_setprio 3")
    if not E("NOKV", 0): spin("PK_SPIN_KV", [(29, 30)], sleep=E("KVPOLL_SLEEP", 0))
    KVR = 48
    for q in range(4):
        vm.op(f"buffer_load_dwordx4 v[{KVR+4*q}:{KVR+4*q+3}], v33, {R(S_WS)}, 0 offen offset:{q*1024} sc1", "cfill")
    a("s_setprio 0")
    a("v_mov_b32 v96, 0"); a("v_mov_b32 v97, 0"); a("v_mov_b32 v98, 0")
    a("v_cmp_eq_u32 vcc, 35, v1")
    a("v_lshlrev_b32 v35, 16, v35")
    a("v_lshlrev_b32 v37, 16, v37", "D")
    a("v_cndmask_b32 v99, 0, v35, vcc")
    a("ds_write_b128 v45, v[96:99]")
    vm.wait("cfill")
    for q in range(4):
        a(f"ds_write_b128 v46, v[{KVR+4*q}:{KVR+4*q+3}] offset:{512+1024*q}")
    a("s_waitcnt lgkmcnt(0)")
    CACC = 64; BUF = [(0, 32), (64, 96)]
    def frag_loads(buf, rr):
        A_, B_ = BUF[buf]
        out = []
        for t in range(8):
            o = (t & 1) * 128 + rr * 16
            out.append(f"ds_read_b128 a[{B_+4*t}:{B_+4*t+3}], v{VB} offset:{512*t + 64*(1-rr)}")
            out.append(f"ds_read2_b32 a[{A_+4*t}:{A_+4*t+1}], v{VA + t//2} offset0:{o} offset1:{o+1}")
            out.append(f"ds_read2_b32 a[{A_+4*t+2}:{A_+4*t+3}], v{VA + t//2} offset0:{o+2} offset1:{o+3}")
        return out
    for i in range(32): a(f"v_mov_b32 v{CACC+i}, 0")
    a(f"v_add_u32 v{VB}, {448-64}, v{VB}", "64 below the r-even address")
    emit(frag_loads(0, 0))
    pstamp(a, 6)
    lds_wait("PK_CW", 8, n=E("CONV_WAIT_N", 4), sleep=2)
    a(f"s_setprio {E('CONV_PRIO', 3)}")
    pstamp(a, 7)
    a(f"s_mov_b32 s{sT0}, 0")
    a.label("PK_CV_LOOP")
    for half in range(2):
        a("s_waitcnt lgkmcnt(0)")
        if half == 0: side = frag_loads(1, 1)
        else:
            for p in range(4): a(f"v_add_u32 v{VA+p}, 128, v{VA+p}")
            a(f"v_subrev_u32 v{VB}, 128, v{VB}")
            side = frag_loads(0, 0)
        A_, B_ = BUF[half]
        i = 0
        for c in range(8):
            for t in range(c + 1):
                u = c - t
                a(f"v_mfma_f32_16x16x32_bf16 v[{CACC+4*c}:{CACC+4*c+3}], a[{A_+4*t}:{A_+4*t+3}], a[{B_+4*u}:{B_+4*u+3}], v[{CACC+4*c}:{CACC+4*c+3}]")
                if i < len(side): a(side[i])
                i += 1
    a(f"s_add_u32 s{sT0}, s{sT0}, 1")
    a(f"s_cmp_lt_u32 s{sT0}, 4")
    a("s_cbranch_scc1 PK_CV_LOOP")
    a("s_setprio 3")
    for c in range(8): a(f"ds_read_b64 v[{100+2*c}:{101+2*c}], v{VE} offset:{512*c}")
    a("s_waitcnt lgkmcnt(0)")
    TT = 116
    for c in range(8):
        d0, d1 = 100 + 2 * c, 101 + 2 * c
        emit([f"v_and_b32 v{TT}, 0xffff0000, v{d1}", f"v_lshlrev_b32 v{TT+1}, 16, v{d1}",
              f"v_and_b32 v{TT+2}, 0xffff0000, v{d0}", f"v_lshlrev_b32 v{TT+3}, 16, v{d0}"])
        for i in range(4): a(f"v_fmac_f32 v{CACC+4*c+i}, v{TT+i}, v37")
        a(f"v_cvt_pk_bf16_f32 v{d0}, v{CACC+4*c}, v{CACC+4*c+1}")
        a(f"v_cvt_pk_bf16_f32 v{d1}, v{CACC+4*c+2}, v{CACC+4*c+3}")
        a(f"buffer_store_dwordx2 v[{d0}:{d1}], v{VS}, {R(S_WS)}, 0 offen offset:{512*c} sc1")
    pstamp(a, 8)
    a(f"s_lshl_b32 s{sT0}, s{sCH}, {FS}")
    a(f"s_add_u32 s{sT0}, s{sT0}, {FY_OFF}")
    a("s_waitcnt vmcnt(0)")
    flag_store(sT0)
    a("s_branch PK_PCOMP")
    a.label("PK_NOCONV")
    if E("H3L", 0):
        a("s_cmp_lg_u32 s3, 3")
        a("s_cbranch_scc1 PK_NOLOAD")
        emit(["v_lshrrev_b32 v2, 3, v1", "v_lshlrev_b32 v4, 12, v2", "v_bfe_u32 v2, v1, 4, 1", "v_lshlrev_b32 v2, 1, v2",
              "v_and_b32 v3, 7, v1", "v_xor_b32 v2, v2, v3", "v_lshl_add_u32 v4, v2, 4, v4", f"s_lshl_b32 s{sT0}, s{sST}, 7",
              f"v_add_u32 v4, s{sT0}, v4", "v_xor_b32 v2, 64, v4", f"v_add_u32 v5, {1*(32768-1024)}, v2",
              f"v_add_u32 v6, {2*(32768-1024)}, v4", f"v_add_u32 v7, {3*(32768-1024)}, v2",
              f"s_and_b32 s{sT2}, s{sDT2}, 3", f"s_mul_i32 s{sT2}, s{sT2}, {3 << 17}"])
        a("s_setprio 0")
        lds_wait("PK_LW", 10, n=4, sleep=4)
        a(f"s_setprio {E('H3PRIO', 1)}")
        for k in range(3):
            for w in range(4):
                a(f"s_mov_b32 m0, {w*RINGB + k*4096}")
                a(f"s_add_u32 s{sT3}, s{sT2}, {(12*w + k) << 17}")
                for q in range(4):
                    a(f"buffer_load_dwordx4 v{4+q}, {R(S_W2)}, s{sT3} offen offset:{q*1024} lds")
        a("s_waitcnt vmcnt(0)")
        lds_arrive(5)
        a.label("PK_NOLOAD")
    a("s_setprio 0")
    lds_wait("PK_NCW", 8, n=4, sleep=16)
    a("s_setprio 3")
    a.label("PK_PCOMP")
    vm.reset()
    a(f"s_mul_i32 s{sT3}, s{sDT2}, 80", "d0")
    a(f"s_lshl_b32 s{sT0}, s{sST}, 6")
    a(f"s_lshl_b32 s{sT1}, s3, 4")
    a(f"s_add_u32 s{sT0}, s{sT0}, s{sT1}")
    a(f"v_add_u32 v4, s{sT0}, v15", "s")
    a("v_mul_u32_u24 v5, 1280, v4")
    a("v_lshl_add_u32 v5, v14, 3, v5")
    a(f"s_lshl_b32 s{sT0}, s{sT3}, 1")
    a(f"v_add_u32 v5, s{sT0}, v5", "x offset")
    XR = 16
    for m in range(5):
        a(f"buffer_load_dwordx2 v[{XR+2*m}:{XR+2*m+1}], v5, {R(S_X)}, 0 offen offset:{32*m}")
    a("v_lshlrev_b32 v6, 1, v4")
    a(f"buffer_load_ushort v124, v6, {R(S_B2)}, 0 offen")
    a("v_lshlrev_b32 v6, 3, v4")
    a(f"v_add_u32 v6, {STAT_OFF}, v6")
    a(f"s_lshl_b32 s{sT0}, s{sT3}, {FS}")
    a(f"s_add_u32 s{sT0}, s{sT0}, {FY_OFF}")
    a(f"v_lshl_add_u32 v7, v1, {FS}, s{sT0}")
    a(f"v_add_u32 v8, {64 << FS}, v7")
    a("v_bfe_u32 v2, v4, 1, 2")
    a("v_lshlrev_b32 v2, 8, v2")
    a("v_lshrrev_b32 v3, 3, v4")
    a("v_add_u32 v2, v2, v3")
    a("v_cmp_lt_u32 vcc, 15, v1")
    a(f"v_lshlrev_b32 v2, {FS}, v2")
    a(f"v_add_u32 v2, {FH_OFF}, v2")
    a("v_cndmask_b32 v8, v8, v2, vcc")
    a("v_lshrrev_b32 v9, 1, v1")
    a("v_lshlrev_b32 v9, 12, v9")
    a("v_and_b32 v2, 1, v1")
    a("v_lshl_add_u32 v9, v2, 4, v9")
    a(f"s_lshl_b32 s{sT0}, s{sT3}, 12")
    a(f"s_lshl_b32 s{sT1}, s{sST}, 7")
    a(f"s_add_u32 s{sT0}, s{sT0}, s{sT1}")
    a(f"s_lshl_b32 s{sT1}, s3, 5")
    a(f"s_add_u32 s{sT0}, s{sT0}, s{sT1}")
    a(f"s_add_u32 s{sT0}, s{sT0}, {YA_OFF}")
    a(f"v_add_u32 v9, s{sT0}, v9")
    a("v_cmp_lt_u32 vcc, 31, v1")
    a("v_add_u32 v10, 0x20000, v9")
    a("v_add_u32 v11, 0x40000, v9")
    a(f"v_mov_b32 v2, {BIG}")
    a("v_cndmask_b32 v11, v11, v2, vcc")
    a(f"s_mul_i32 s{sT0}, s3, 2560")
    a(f"s_add_u32 s{sT0}, s{sT0}, {PT_LDS}")
    a(f"v_lshl_add_u32 v12, v1, 4, s{sT0}")
    a(f"v_lshl_add_u32 v13, v1, 3, s{sT0}")
    a("s_setprio 0")
    lds_wait("PK_YW", 9, n=4 * (CNT + 36), sleep=4)
    a("s_setprio 3")
    spin("PK_SPIN_Y", [(7, 26), (8, 27)], sleep=E("YPOLL_SLEEP", 0))
    pstamp(a, 9)
    YL, ST_, XF, XN, T2, YR, YF = 28, 40, 44, 64, 84, 94, 104
    for t in range(3):
        vm.op(f"buffer_load_dwordx4 v[{YL+4*t}:{YL+4*t+3}], v{9+t}, {R(S_WS)}, 0 offen sc1", "ya")
    vm.op(f"buffer_load_dwordx2 v[{ST_}:{ST_+1}], v6, {R(S_WS)}, 0 offen sc1", "st")
    for i in range(10):
        a(f"v_lshlrev_b32 v{XF+2*i}, 16, v{XR+i}")
        a(f"v_and_b32 v{XF+2*i+1}, 0xffff0000, v{XR+i}")
    vm.wait("ya")
    a(f"ds_write_b128 v12, v[{YL}:{YL+3}]")
    a(f"ds_write_b128 v12, v[{YL+4}:{YL+7}] offset:1024")
    a("s_mov_b32 exec_hi, 0")
    a(f"ds_write_b128 v12, v[{YL+8}:{YL+11}] offset:2048")
    a("s_mov_b64 exec, -1")
    vm.wait("st", "lgkmcnt(0)")
    for m in range(5):
        a(f"ds_read_b64_tr_b16 v[{YR+2*m}:{YR+2*m+1}], v13 offset:{m*512}")
    a(f"v_mul_f32 v42, v{ST_}, v{ST_+1}")
    a(f"v_mul_f32 v43, v{ST_}, v{ST_+1}")
    a(f"v_mov_b32 v{ST_}, v{ST_+1}")
    for i in range(0, 20, 2):
        a(f"v_pk_fma_f32 {pk(XN+i)}, {pk(XF+i)}, {pk(ST_)}, v[42:43] neg_lo:[0,0,1] neg_hi:[0,0,1]")
    for i in range(0, 20, 2): a(f"v_cvt_pk_bf16_f32 v{T2+i//2}, v{XN+i}, v{XN+i+1}")
    for i in range(0, 20, 2):
        a(f"v_lshlrev_b32 v{XN+i}, 16, v{T2+i//2}")
        a(f"v_and_b32 v{XN+i+1}, 0xffff0000, v{T2+i//2}")
    a("s_waitcnt lgkmcnt(0)")
    for i in range(10):
        a(f"v_lshlrev_b32 v{YF+2*i}, 16, v{YR+i}")
        a(f"v_and_b32 v{YF+2*i+1}, 0xffff0000, v{YR+i}")
    for i in range(0, 20, 2): a(f"v_pk_fma_f32 {pk(XN+i)}, {pk(XN+i)}, {pk(YF+i)}, {pk(XF+i)}")
    for m in range(5):
        a(f"v_cvt_pk_bf16_f32 v{T2+2*m}, v{XN+4*m}, v{XN+4*m+1}")
        a(f"v_cvt_pk_bf16_f32 v{T2+2*m+1}, v{XN+4*m+2}, v{XN+4*m+3}")
        if m < GM: a(f"ds_write_b64 v13, v[{T2+2*m}:{T2+2*m+1}] offset:{m*512}")
    lds_arrive(15)
    pstamp(a, 10)
    if GM < 5:
        HM = list(range(GM, 5)); NH = 4 * len(HM)
        for k, m in enumerate(HM):
            for h in range(2):
                a(f"v_lshlrev_b32 v{XN+4*k+2*h}, 16, v{T2+2*m+h}")
                a(f"v_and_b32 v{XN+4*k+2*h+1}, 0xffff0000, v{T2+2*m+h}")
        a("v_lshlrev_b32 v125, 16, v124")
        a("v_lshlrev_b32 v124, 16, v124")
        a(f"s_mul_i32 s{sT0}, s3, 5120")
        a(f"v_lshl_add_u32 v12, v1, 4, s{sT0}")
        a(f"v_add_u32 v13, {2*RINGB}, v12")
        lds_wait("PK_HFW", 11)
        HP = 16; HF = 100
        for o in range(4):
            for k, m in enumerate(HM):
                r = HP + NH * o + 4 * k
                a(f"ds_read_b128 v[{r}:{r+3}], v{12+o//2} offset:{(o&1)*RINGB + m*1024}")
        for o in range(4):
            a(f"s_waitcnt lgkmcnt({len(HM)*(3-o)})")
            for i in range(0, NH, 2):
                src = "v[124:125]" if o == 0 else pk(HF + i)
                a(f"v_pk_add_f32 {pk(HF+i)}, {src}, {pk(HP+NH*o+i)}")
        for i in range(0, NH, 2): a(f"v_cvt_pk_bf16_f32 v{HP+i//2}, v{HF+i}, v{HF+i+1}")
        for i in range(0, NH, 2):
            a(f"v_lshlrev_b32 v{HF+i}, 16, v{HP+i//2}")
            a(f"v_and_b32 v{HF+i+1}, 0xffff0000, v{HP+i//2}")
        for i in range(0, NH, 2): a(f"v_pk_add_f32 {pk(HF+i)}, {pk(HF+i)}, {pk(XN+i)}")
        for k, m in enumerate(HM):
            a(f"v_cvt_pk_bf16_f32 v{HP+2*k}, v{HF+4*k}, v{HF+4*k+1}")
            a(f"v_cvt_pk_bf16_f32 v{HP+2*k+1}, v{HF+4*k+2}, v{HF+4*k+3}")
            a(f"buffer_store_dwordx2 v[{HP+2*k}:{HP+2*k+1}], v5, {R(S_OUT)}, 0 offen offset:{32*m}")
    pstamp(a, 11)
    finish_stamps("H")
    a.label("PK_END")
    a("s_endpgm")
    return a

def build():
    ref = open(f"cdna_kernels/{NAME}.s.ref").read().splitlines()
    head = []
    for l in ref:
        if l.startswith("; Override"): break
        head.append(l)
    body = gen()
    out = "\n".join(head) + "\n"
    if os.environ.get("AMP"):
        out += f"; @launch kernel={NAME}_kernel grid=({GRID},1,1) block=({BLOCK},1,1) lds={LDS_BYTES}\n"
        out += f"; @launch kernel=amp_kernel grid=(1,1,1) block=(64,1,1) lds=0\n"
        b = Asm()
        kernel_begin(b, "amp_kernel")
        b("s_cmp_ge_u32 s2, 1")
        b("s_cbranch_scc1 AMP_END")
        b("s_load_dwordx2 s[4:5], s[0:1], 96")
        b("s_waitcnt lgkmcnt(0)")
        b("s_sub_u32 s8, s4, 512")
        b("s_subb_u32 s9, s5, 0")
        b("s_mov_b32 s10, 256")
        b("s_mov_b32 s11, 0x00020000")
        b("v_mov_b32 v1, 0")
        b("buffer_load_dword v2, v1, s[8:11], 0 offen sc1")
        b("buffer_load_dword v3, v1, s[8:11], 0 offen offset:128 sc1")
        b("s_waitcnt vmcnt(0)")
        b("v_readfirstlane_b32 s12, v2")
        b("v_readfirstlane_b32 s13, v3")
        b("s_nop 3")
        b("s_not_b32 s13, s13")
        b("s_sub_u32 s12, s12, s13")
        b("s_min_u32 s12, s12, 10000")
        b(f"s_mul_i32 s12, s12, {int(os.environ['AMP'])}")
        b("s_memrealtime s[14:15]")
        b("s_waitcnt lgkmcnt(0)")
        b.label("AMP_L")
        b("s_memrealtime s[16:17]")
        b("s_waitcnt lgkmcnt(0)")
        b("s_sub_u32 s18, s16, s14")
        b("s_cmp_lt_u32 s18, s12")
        b("s_cbranch_scc1 AMP_L")
        b.label("AMP_END")
        b("s_endpgm")
    else:
        out += f"; @launch grid=({GRID},1,1) block=({BLOCK},1,1) lds={LDS_BYTES}\n"
    out += '.amdgcn_target "amdgcn-amd-amdhsa--gfx950"\n.text\n'
    out += body.text()
    if os.environ.get("AMP"): out += b.text()
    out += '.section .rodata,"a"\n' + kernel_desc(NAME + "_kernel", 256, 102, 128)
    if os.environ.get("AMP"): out += kernel_desc("amp_kernel", 8, 32)
    return out
if __name__ == "__main__":
    import sys
    out = sys.argv[1] if len(sys.argv) > 1 else f"cdna_kernels/{NAME}.s"
    open(out, "w").write(build())
    print("wrote", out)
```

```python
import os, math
from asmlib import *
from layout import *

NAME = "parallel_sum__ssm_conv_h3__mixer_token_mlp__prompt"
GRID, BLOCK, LDS_BYTES = 256, 512, 163840
NT = os.environ.get("NT", "")
BIG = 0x40000000
SPIN_MAX = 20000
E = lambda k, d: int(os.environ.get(k, d))

S_X, S_K, S_V, S_SHK, S_SSMK, S_SSMD, S_W1, S_B1, S_W2, S_B2, S_OUT, S_WS = [32 + 4 * i for i in range(12)]
def R(b): return f"s[{b}:{b+3}]"
sEP, sDT, sFT, sDT2, sST, sRING, sPOS, sWOFF, sHOFF, sKB = range(80, 90)
sT0, sT1, sT2, sT3, sCH, sCVB, sG1BIG, sKVBIG, sC1, sSPIN, sROT, sT4 = range(90, 102)
sROT2, sKB2 = sCH, sCVB

FS = E("FS", 4)
NSLOT = 7
NR1 = E("NR1", 7)
NR2 = 5
RINGB = NSLOT * 4096
AUX = 4 * RINGB
LNX = AUX
HROW = 1344
KVX = LNX + 8 * HROW
CV_K0, CV_K1, CONV_SZ = 4608, 8768, 12928
PT_LDS = AUX + 3 * CONV_SZ
CNT = PT_LDS + 4 * 2560
assert KVX + 16384 <= PT_LDS and CNT + 64 <= LDS_BYTES and KVX % 128 == 0

class VM:
    def __init__(self, a): self.a = a; self.q = []
    def op(self, ins, tag): self.a(ins); self.q.append(tag)
    def count(self, tag):
        idx = [i for i, t in enumerate(self.q) if t == tag]
        return len(self.q) - 1 - idx[-1] if idx else None
    def wait(self, tag, extra=""):
        n = self.count(tag)
        if n is None:
            if extra: self.a(f"s_waitcnt {extra}")
            return
        self.a(f"s_waitcnt vmcnt({min(n, 63)}) {extra}")
        self.q = self.q[len(self.q) - n:] if n else []
    def reset(self): self.q = []

TIMER = "s_memtime" if os.environ.get("CYC") else "s_memrealtime"
MUTE = [False]
def pstamp(a, i, force=False):
    if STAMP and (force or not MUTE[0]): a(f"{TIMER} s[{4+2*i}:{5+2*i}]")
def pk(r): return f"v[{r}:{r+1}]"

def gen():
    a = Asm()
    vm = VM(a)
    def emit(items):
        for it in items:
            if isinstance(it, list): emit(it)
            elif isinstance(it, tuple): vm.op(it[0], it[1])
            else: a(it)
    def flag_store(soff, tmp=2):
        a(f"v_mov_b32 v{tmp}, s{sEP}")
        a(f"v_mov_b32 v{tmp+1}, s{soff}")
        a("s_mov_b64 exec, 1")
        vm.op(f"buffer_store_dword v{tmp}, v{tmp+1}, {R(S_WS)}, 0 offen sc1", "flag")
        a("s_mov_b64 exec, -1")
    def spin(label, pairs, first_tag=None, sleep=0):
        def check():
            a(f"v_cmp_ne_u32 vcc, s{sEP}, v{pairs[0][1]}")
            for _, d in pairs[1:]:
                a(f"v_cmp_ne_u32 s[28:29], s{sEP}, v{d}")
                a("s_or_b64 vcc, vcc, s[28:29]")
        if first_tag:
            vm.wait(first_tag)
            check()
            a(f"s_cbranch_vccz {label}_OK")
        a(f"s_mov_b32 s{sSPIN}, 0")
        a.label(label)
        if sleep: a(f"s_sleep {sleep}", "poll back-off")
        for ad, d in pairs:
            a(f"buffer_load_dword v{d}, v{ad}, {R(S_WS)}, 0 offen sc1")
        a(f"s_add_u32 s{sSPIN}, s{sSPIN}, 1")
        a("s_waitcnt vmcnt(0)")
        check()
        a(f"s_cmp_gt_u32 s{sSPIN}, {SPIN_MAX}")
        a(f"s_cbranch_scc1 {label}_OK")
        a(f"s_cbranch_vccnz {label}")
        a.label(label + "_OK")
        if not first_tag: vm.reset()
    def lds_arrive(idx, t=2):
        a(f"v_mov_b32 v{t}, {CNT + 4*idx}")
        a(f"v_mov_b32 v{t+1}, 1")
        a("s_waitcnt lgkmcnt(0)")
        a("s_mov_b64 exec, 1")
        a(f"ds_add_u32 v{t}, v{t+1}")
        a("s_mov_b64 exec, -1")
    def lds_wait(label, idx, n=4, t=2, sleep=0):
        a(f"v_mov_b32 v{t}, {CNT + 4*idx}")
        a(f"s_mov_b32 s{sSPIN}, 0")
        a.label(label)
        if sleep: a(f"s_sleep {sleep}", "poll back-off")
        a(f"ds_read_b32 v{t+1}, v{t}")
        a(f"s_add_u32 s{sSPIN}, s{sSPIN}, 1")
        a(f"s_cmp_gt_u32 s{sSPIN}, {1 << 21}")
        a("s_waitcnt lgkmcnt(0)")
        a(f"v_cmp_gt_u32 vcc, {n}, v{t+1}")
        a(f"s_cbranch_scc1 {label}_OK")
        a(f"s_cbranch_vccnz {label}")
        a.label(label + "_OK")
    def sbar(label, idx, t=2):
        lds_arrive(idx, t); lds_wait(label, idx, 4, t)
    def read_epoch(vdata):
        vm.wait("ep")
        a(f"v_readfirstlane_b32 s{sEP}, v{vdata}")
        a("s_nop 3")
        a(f"s_mul_i32 s{sEP}, s{sEP}, 1664525")
        a(f"s_add_u32 s{sEP}, s{sEP}, 1013904223")
    def finish_stamps(role='X'):
        if not STAMP: return
        a("s_waitcnt vmcnt(0)")
        a(f"{TIMER} s[28:29]")
        a("s_waitcnt lgkmcnt(0)")
        if os.environ.get("AMP") and role == os.environ.get("AMPROLE", "G"):
            a("s_load_dwordx2 s[30:31], s[0:1], 96")
            a("s_waitcnt lgkmcnt(0)")
            srd(a, S_K, 30, 256)
            a("s_cmp_lg_u32 s3, 0")
            a(f"s_cbranch_scc1 AMPSKIP{role}")
            a("v_mov_b32 v1, 0")
            a("s_mov_b64 exec, 1")
            a(f"v_mov_b32 v2, s{4+2*int(os.environ['AMPIDX'])}")
            a(f"buffer_atomic_umax v2, v1, {R(S_K)}, 0 offen")
            a("s_not_b32 s4, s4")
            a("v_mov_b32 v2, s4")
            a(f"buffer_atomic_umax v2, v1, {R(S_K)}, 0 offen offset:128")
            a("s_not_b32 s4, s4")
            a("s_mov_b64 exec, -1")
            a.label(f"AMPSKIP{role}")
        a("s_load_dwordx2 s[30:31], s[0:1], 104")
        a("s_waitcnt lgkmcnt(0)")
        srd(a, S_X, 30, 1 << 20, 16 << 20)
        a(f"s_lshl_b32 s{sT0}, s2, 9")
        a("v_lshrrev_b32 v1, 6, v0")
        a(f"v_lshl_add_u32 v1, v1, 6, s{sT0}")
        a("s_mov_b64 exec, 1")
        for i in range(13):
            a(f"v_mov_b32 v2, s{4+2*i}")
            a(f"buffer_store_dword v2, v1, {R(S_X)}, 0 offen offset:{4*i}")

    kernel_begin(a, NAME + "_kernel")
    a(f"s_cmp_ge_u32 s2, {GRID}")
    a("s_cbranch_scc1 PK_END")
    a("s_load_dwordx8 s[4:11], s[0:1], 0", "x k v shift_k")
    a("s_load_dwordx2 s[26:27], s[0:1], 104", "ws")
    a("s_load_dwordx8 s[16:23], s[0:1], 56", "w1 b1 w2 b2")
    a("s_load_dwordx4 s[12:15], s[0:1], 32", "ssm_k ssm_D")
    a("s_load_dwordx2 s[24:25], s[0:1], 88", "out")
    if STAMP: a(f"{TIMER} s[30:31]")
    a("v_lshrrev_b32 v2, 6, v0")
    a("v_and_b32 v1, 63, v0", "lane")
    a(f"v_readfirstlane_b32 s{sT4}, v2", "wave 0..7")
    a("v_lshlrev_b32 v3, 2, v1", "lane*4")
    a(f"v_and_b32 v4, 60, v3")
    a(f"v_add_u32 v4, {CNT}, v4")
    a("v_mov_b32 v5, 0")
    a("ds_write_b32 v4, v5", "zero the 16 lds counters")
    a(f"s_and_b32 s3, s{sT4}, 3", "w within the role")
    a(f"s_and_b32 s{sT0}, s2, 7", "x")
    a(f"s_lshr_b32 s{sT1}, s2, 3", "j")
    a(f"s_and_b32 s{sT2}, s{sT0}, 1")
    a(f"s_lshl_b32 s{sDT2}, s{sT2}, 2")
    a(f"s_and_b32 s{sT3}, s{sT1}, 3")
    a(f"s_add_u32 s{sDT2}, s{sDT2}, s{sT3}", "dt2")
    a(f"s_lshr_b32 s{sT0}, s{sT0}, 1")
    a(f"s_lshl_b32 s{sST}, s{sT0}, 3")
    a(f"s_lshr_b32 s{sT3}, s{sT1}, 2")
    a(f"s_add_u32 s{sST}, s{sST}, s{sT3}", "st")
    a(f"v_mov_b32 v8, {EPOCH_OFF}")
    a(f"s_cmp_lt_u32 s{sT4}, 4")
    a("s_cbranch_scc1 PK_G")
    a("s_setprio 3")
    a(f"s_lshl_b32 s{sT0}, s2, 2")
    a(f"s_add_u32 s{sT0}, s{sT0}, s3")
    a(f"s_mul_i32 s{sT4}, s{sT0}, 2560", "x soffset")
    a("s_waitcnt lgkmcnt(0)")
    srd(a, S_X, 4, SD_BYTES)
    for r in range(2):
        for i in range(5):
            a(f"buffer_load_dword v{16+5*r+i}, v3, {R(S_X)}, s{sT4} offen offset:{r*1280+i*256} {NT}")
    a("s_barrier", "lds counters zeroed")
    a("s_branch PK_H")
    a.label("PK_G")
    a("s_getpc_b64 s[28:29]")
    a.label("PK_PC")
    a(f"s_sub_u32 s28, s28, PK_PC-{NAME}_kernel")
    a("s_subb_u32 s29, s29, 0")
    a("v_and_b32 v9, 7, v0")
    a(f"s_andn2_b32 s{sT3}, s2, 7")
    a(f"v_add_lshl_u32 v9, v9, s{sT3}, 7")
    a(f"v_min_u32 v9, PK_END-{NAME}_kernel, v9")
    a("global_load_dword v127, v9, s[28:29]")

    a("s_setprio 1")
    a(f"s_mul_hi_u32 s{sFT}, s{sT1}, 0x33333334", "j/5")
    a(f"s_mul_i32 s{sT3}, s{sFT}, 5")
    a(f"s_sub_u32 s{sDT}, s{sT1}, s{sT3}", "j%5")
    a(f"s_mul_i32 s{sROT}, s{sDT}, 13")
    a(f"s_lshr_b32 s{sROT}, s{sROT}, 2", "rot = 3.25*dt_local")
    if not E("ROT", 1): a(f"s_mov_b32 s{sROT}, 0")
    if E("ROT", 1) == 2:
        a(f"s_add_u32 s{sROT}, s{sDT}, s{sFT}")
        a(f"s_sub_u32 s{sT3}, s{sROT}, 6")
        a(f"s_min_u32 s{sROT}, s{sROT}, s{sT3}")
        a(f"s_mul_i32 s{sROT}, s{sROT}, 11")
        a(f"s_lshr_b32 s{sROT}, s{sROT}, 2", "2.75 * index")
    a(f"s_mul_i32 s{sT3}, s{sT2}, 5")
    a(f"s_add_u32 s{sDT}, s{sDT}, s{sT3}", "dt")
    a(f"s_mul_i32 s{sT3}, s{sT0}, 6")
    a(f"s_add_u32 s{sFT}, s{sFT}, s{sT3}", "ft")
    a(f"s_cmp_ge_u32 s{sT1}, 30")
    a(f"s_cselect_b32 s{sG1BIG}, {BIG}, 0")
    a(f"s_mul_i32 s{sRING}, s3, {RINGB}")
    a(f"s_lshl_b32 s{sKB}, s3, 4")
    a(f"s_mov_b32 s{sPOS}, s{sROT}")
    a("v_lshrrev_b32 v2, 3, v1")
    a("v_mul_u32_u24 v4, 3072, v2")
    a("v_bfe_u32 v2, v1, 4, 1")
    a("v_lshlrev_b32 v2, 2, v2")
    a("v_and_b32 v3, 7, v1")
    a("v_xor_b32 v2, v2, v3")
    a("v_lshl_add_u32 v4, v2, 4, v4")
    a(f"s_lshl_b32 s{sT1}, s{sFT}, 7")
    a(f"s_add_u32 s{sT1}, s{sT1}, s{sG1BIG}")
    a(f"v_add_u32 v4, s{sT1}, v4")
    for q in range(1, 4):
        a(f"v_add_u32 v{4+q}, {q*(24576-1024)}, v4")
    a("s_waitcnt lgkmcnt(0)")
    srd(a, S_W1, 16, S * F * 2)
    a("s_barrier", "lds counters zeroed")
    def w1_stage(i):
        items = [f"s_add_u32 s{sWOFF}, s{sKB}, s{sPOS}", f"s_mul_i32 s{sWOFF}, s{sWOFF}, 98304",
                 f"s_add_u32 m0, s{sRING}, {(i % NSLOT)*4096}", f"s_add_u32 s{sPOS}, s{sPOS}, 1", f"s_and_b32 s{sPOS}, s{sPOS}, 15"]
        for q in range(4):
            items.append((f"buffer_load_dwordx4 v{4+q}, {R(S_W1)}, s{sWOFF} offen offset:{q*1024} lds", f"w1_{i}"))
        return items
    def w1_tr(i):
        out = []
        for kh in range(2):
            for mt in range(2):
                for h in range(2):
                    r = 16 * (i % NR1) + 4 * (2 * kh + mt) + 2 * h
                    out.append(f"ds_read_b64_tr_b16 a[{r}:{r+1}], v{10+mt} offset:{(i % NSLOT)*4096 + kh*2048 + h*512}")
        return out
    WD = E("WD", 2)
    for i in range(WD): emit(w1_stage(i))
    srd(a, S_WS, 26, WS_USED, E("WSMB", 0) << 20)
    vm.op(f"buffer_load_dword v9, v8, {R(S_WS)}, 0 offen sc1", "ep")
    srd(a, S_W2, 20, S * F * 2)
    srd(a, S_B2, 22, S * 2)
    srd(a, S_OUT, 24, SD_BYTES)
    if STAMP:
        a("s_mov_b32 s4, s30"); a("s_mov_b32 s5, s31")
    pstamp(a, 1)
    a("v_lshrrev_b32 v2, 5, v1")
    a("v_lshlrev_b32 v10, 10, v2")
    a("v_mul_u32_u24 v12, 10240, v2")
    a("v_bfe_u32 v2, v1, 2, 2")
    a("v_lshl_add_u32 v10, v2, 7, v10")
    a("v_bfe_u32 v2, v1, 3, 1")
    a("v_lshl_add_u32 v10, v2, 6, v10")
    a("v_bfe_u32 v2, v1, 4, 1")
    a("v_lshl_add_u32 v10, v2, 5, v10")
    a("v_and_b32 v2, 3, v1")
    a("v_lshl_add_u32 v10, v2, 3, v10")
    a(f"v_add_u32 v10, s{sRING}, v10")
    a("v_xor_b32 v11, 64, v10")
    a("v_and_b32 v2, 31, v1")
    a("v_lshl_add_u32 v12, v2, 4, v12")
    a(f"s_lshl_b32 s{sT0}, s{sDT}, 10")
    a(f"s_add_u32 s{sT0}, s{sT0}, s{sG1BIG}")
    if HBLK_OFF: a(f"s_add_u32 s{sT0}, s{sT0}, {HBLK_OFF}")
    a(f"v_add_u32 v12, s{sT0}, v12")
    a("v_add_u32 v13, 20480, v12")
    a(f"s_and_b32 s{sT0}, s{sDT}, 3")
    a(f"s_lshl_b32 s{sT0}, s{sT0}, {8+FS}")
    a(f"s_add_u32 s{sT0}, s{sT0}, {FH_OFF}")
    a(f"v_lshl_add_u32 v14, v0, {FS}, s{sT0}")
    a(f"s_and_b32 s{sROT2}, s{sDT2}, 3")
    a(f"s_mul_i32 s{sROT2}, s{sROT2}, 3")
    if E("ROT2", 1) == 2:
        a(f"s_and_b32 s{sT0}, s{sST}, 7")
        a(f"s_mul_i32 s{sT0}, s{sT0}, 3")
        a(f"s_lshr_b32 s{sT0}, s{sT0}, 1")
        a(f"s_add_u32 s{sROT2}, s{sROT2}, s{sT0}")
        a(f"s_sub_u32 s{sT0}, s{sROT2}, 12")
        a(f"s_min_u32 s{sROT2}, s{sROT2}, s{sT0}")
    a(f"s_mul_i32 s{sKB2}, s3, 12")
    c0 = -2.0 * math.sqrt(2.0 / math.pi) * math.log2(math.e)
    a(f"s_mov_b32 s{sC1}, {f32(c0*0.044715)}")
    if E("W2PF", 0):
        a(f"s_cmp_lg_u32 s{sG1BIG}, 0")
        a("s_cbranch_scc1 PK_G_PF")
    NPRE = NR1 + NSLOT
    BURST = E("BURST", 1)
    last = NR1 if BURST else NPRE - WD + 1
    for i in range(last):
        vm.wait(f"w1_{i}")
        if i < NR1: emit(w1_tr(i))
        nx = i + WD
        if nx < NPRE:
            if nx >= NSLOT:
                later = sum(1 for k in range(nx - NSLOT + 1, i + 1) if k < NR1)
                a(f"s_waitcnt lgkmcnt({8 if later else 0})")
            emit(w1_stage(nx))
        if i == WD:
            read_epoch(9); lds_arrive(6)
    EARLY = E("EARLY", 0); NP0 = E("NP0", 10)
    sLATE = 31
    if BURST:
        a("s_waitcnt lgkmcnt(0)")
        if EARLY:
            assert NR1 == 7
            vm.op(f"buffer_load_dword v15, v14, {R(S_WS)}, 0 offen sc1", "hpoll0")
            for nx in range(NR1 - 1 + WD + 1, NP0): emit(w1_stage(nx))
            lds_wait("PK_B1W", 1)
            vm.wait("hpoll0")
            a(f"v_cmp_ne_u32 vcc, s{sEP}, v15")
            a(f"s_mov_b32 s{sLATE}, 1")
            pstamp(a, 2)
            a("s_cbranch_vccz PK_SPIN_H_OK")
            a(f"s_mov_b32 s{sLATE}, 0")
            keep = list(vm.q)
            for nx in range(NP0, NPRE): emit(w1_stage(nx))
            vm.q = keep
        else:
            for nx in range(NR1 - 1 + WD + 1, NPRE): emit(w1_stage(nx))
    if E("W1ONLY", 0):
        a("s_waitcnt vmcnt(0)")
        for i in range(2, 12): pstamp(a, i)
        finish_stamps()
        a("s_endpgm")
    if EARLY:
        keep = list(vm.q)
        spin("PK_SPIN_H", [(14, 15)])
        vm.q = keep
    else:
        vm.op(f"buffer_load_dword v15, v14, {R(S_WS)}, 0 offen sc1", "hpoll")
        lds_wait("PK_B1W", 1)
        pstamp(a, 2)
        spin("PK_SPIN_H", [(14, 15)], "hpoll", sleep=E("HPOLL_SLEEP", 4))
    if E("GBAR1", 0): sbar("PK_GB1", 13)
    pstamp(a, 3)
    a("s_setprio 2")
    ACC = 64
    HB = [("v", 16), ("v", 32), ("v", 48)] + [("a", 16 * k) for k in range(NR1, 8)]
    HD = len(HB)
    HB = HB[-((16 - 0) % HD or HD):] + HB[:-((16 - 0) % HD or HD)] if False else HB
    def hreg(i, kh, nt):
        f, b = HB[(i + HSH) % HD]
        r = b + 4 * (2 * kh + nt)
        return f"{f}[{r}:{r+3}]"
    HSH = (1 - 13) % HD
    sHP = sKVBIG
    a(f"s_mov_b32 s{sHP}, s{sROT}")
    def h_adv():
        return [f"s_add_u32 s{sHOFF}, s{sKB}, s{sHP}", f"s_mul_i32 s{sHOFF}, s{sHOFF}, 40960",
                f"s_add_u32 s{sHP}, s{sHP}, 1", f"s_and_b32 s{sHP}, s{sHP}, 15"]
    def hload(i, nt, kh):
        return (f"buffer_load_dwordx4 {hreg(i, kh, nt)}, v{12+kh}, {R(S_WS)}, s{sHOFF} offen offset:{nt*512} {os.environ.get('HFLAG', 'sc1')}", f"h{i}_{kh}{nt}")
    HPRE = E("HPRE", HD)
    for i in range(HPRE):
        emit(h_adv())
        for kh in range(2):
            for nt in range(2): emit([hload(i, nt, kh)])
    a("s_waitcnt lgkmcnt(0)")
    def pos2(i):
        return [f"s_add_u32 s{sT0}, s{sROT2}, {i}", f"s_sub_u32 s{sT1}, s{sT0}, 12", f"s_min_u32 s{sT0}, s{sT0}, s{sT1}",
                f"s_add_u32 s{sT0}, s{sT0}, s{sKB2}"]
    def w2_slot(i): return i % NSLOT
    def w2_dma(i):
        items = pos2(i) + [f"s_add_u32 m0, s{sRING}, {w2_slot(i)*4096}", f"s_lshl_b32 s{sWOFF}, s{sT0}, 17"]
        for q in range(4):
            items.append((f"buffer_load_dwordx4 v{4+q}, {R(S_W2)}, s{sWOFF} offen offset:{q*1024} lds", f"w2_{i}"))
        return items
    BB = 16
    for i in range(16):
        nx = i + HPRE
        if E("G1STEPS", 0):
            MUTE[0] = True
            if i in (1, 3, 5, 7, 9, 11, 13): pstamp(a, 4 + i // 2, True)
        if nx < 16: emit(h_adv())
        side = []
        if EARLY:
            if 4 <= i <= 12:
                if i + 3 < NP0: vm.wait(f"w1_{i+3}")
                side = w1_tr(i + 3)
            if i >= 6: a("s_waitcnt lgkmcnt(8)" if i <= 13 else "s_waitcnt lgkmcnt(0)")
            if NP0 + i <= 13:
                a(f"s_cmp_eq_u32 s{sLATE}, 0")
                a(f"s_cbranch_scc1 PK_NOLATE{i}")
                keep = list(vm.q); emit(w1_stage(NP0 + i)); vm.q = keep
                a.label(f"PK_NOLATE{i}")
            if i in (6, 7): emit(w1_stage(8 + i))
        else:
            st_tr = NR1 - 1 + i
            if i >= 1 and st_tr < 16:
                vm.wait(f"w1_{st_tr}")
                side = w1_tr(st_tr)
            st_ld = NPRE + i - 3
            if i >= 3 and st_ld < 16:
                a("s_waitcnt lgkmcnt(8)")
                emit(w1_stage(st_ld))
            elif i >= NR1:
                a("s_waitcnt lgkmcnt(8)" if NR1 - 1 + i - 1 < 16 else "s_waitcnt lgkmcnt(0)")
        if E("KV_LATE", 0) and i == E("KV_LATE", 0):
            a(f"v_mov_b32 v2, {CNT + 48}")
            a("s_mov_b64 exec, 1")
            a("ds_add_u32 v2, v2")
            a("s_mov_b64 exec, -1")
        if i == 12:
            side = side + ["v_lshrrev_b32 v2, 3, v1", "v_lshlrev_b32 v4, 12, v2", "v_bfe_u32 v2, v1, 4, 1", "v_lshlrev_b32 v2, 1, v2",
                    "v_and_b32 v3, 7, v1", "v_xor_b32 v2, v2, v3", "v_lshl_add_u32 v4, v2, 4, v4", f"s_lshl_b32 s{sT0}, s{sST}, 7",
                    f"v_add_u32 v4, s{sT0}, v4", "v_xor_b32 v2, 64, v4", f"v_add_u32 v5, {1*(32768-1024)}, v2",
                    f"v_add_u32 v6, {2*(32768-1024)}, v4", f"v_add_u32 v7, {3*(32768-1024)}, v2",
                    ]
        if i == E("KGO", 11): lds_arrive(10)
        if i == 13:
            side = [f"s_add_u32 s{sT2}, s{sRING}, {3*4096}", f"v_lshl_add_u32 v9, v1, 4, s{sT2}",
                    f"s_lshl_b32 s{sT2}, s3, 12", f"s_add_u32 s{sT2}, s{sT2}, {3*4096}", f"v_lshl_add_u32 v10, v1, 4, s{sT2}",
                    f"v_add_u32 v11, {2*RINGB}, v10",
                    f"s_lshr_b32 s{sT0}, s3, 1", f"s_lshl_b32 s{sT0}, s{sT0}, 6", f"s_add_u32 s{sT0}, s{sT0}, {PT_LDS}",
                    "v_lshrrev_b32 v8, 5, v1", f"v_lshl_add_u32 v8, v8, 3, s{sT0}",
                    f"s_lshr_b32 s{sT0}, s3, 1", f"s_lshl_b32 s{sT0}, s{sT0}, 2", f"s_lshl_b32 s{sT1}, s{sFT}, 3",
                    f"s_add_u32 s{sT0}, s{sT0}, s{sT1}", f"s_mul_i32 s{sT0}, s{sT0}, 10240", f"s_and_b32 s{sT1}, s3, 1",
                    f"s_lshl_b32 s{sT1}, s{sT1}, 9", f"s_add_u32 s{sT0}, s{sT0}, s{sT1}",
                    f"s_add_u32 s{sT0}, s{sT0}, {UBLK_OFF - HBLK_OFF - 20480}", f"v_add_u32 v14, s{sT0}, v13", "v_add_u32 v15, 20480, v14",
                    f"v_mov_b32 v13, {f32(c0)}", "s_mov_b32 s28, 1.0", "s_mov_b32 s29, 1.0"]
        if i == 14:
            side = [f"ds_read_b64 v[{32+2*q}:{33+2*q}], v8 offset:{16*q}" for q in range(4)]
        if i == 15:
            for kh in range(2):
                for nt in range(2): vm.wait(f"h{i}_{kh}{nt}")
            def mf(t_):
                mt, nt = t_ >> 1, t_ & 1
                t = ACC + 16 * t_
                for kh in range(2):
                    wr = 16 * (i % NR1) + 4 * (2 * kh + mt)
                    a(f"v_mfma_f32_32x32x16_bf16 v[{t}:{t+15}], a[{wr}:{wr+3}], {hreg(i, kh, nt)}, v[{t}:{t+15}]")
            def wr_(t_):
                for q in range(4):
                    r = ACC + 16 * t_ + 4 * q
                    a(f"ds_write_b128 v9, v[{r}:{r+3}] offset:{t_*4096 + q*1024}")
            FIN = 48
            mf(0); mf(1)
            a("s_waitcnt lgkmcnt(0)")
            for q in range(0, 10, 2):
                a(f"v_lshlrev_b32 v{FIN+q}, 16, v{32+q//2}")
                a(f"v_and_b32 v{FIN+q+1}, 0xffff0000, v{32+q//2}")
            wr_(0); mf(2); wr_(1); mf(3)
            for q in range(10, 16, 2):
                a(f"v_lshlrev_b32 v{FIN+q}, 16, v{32+q//2}")
                a(f"v_and_b32 v{FIN+q+1}, 0xffff0000, v{32+q//2}")
            wr_(2)
            a("s_nop 1")
            wr_(3)
            continue
        k = 0; si = 0
        for kh in range(2):
            for nt in range(2):
                vm.wait(f"h{i}_{kh}{nt}")
                for mt in range(2):
                    t = ACC + 16 * (2 * mt + nt)
                    wr = 16 * (i % NR1) + 4 * (2 * kh + mt)
                    c = "0" if (i == 0 and kh == 0) else f"v[{t}:{t+15}]"
                    if not E("NOMF1", 0): a(f"v_mfma_f32_32x32x16_bf16 v[{t}:{t+15}], a[{wr}:{wr+3}], {hreg(i, kh, nt)}, {c}")
                    k += 1
                    while si < (len(side) * k + 7) // 8:
                        emit([side[si]]); si += 1
                if nx < 16: emit([hload(nx, nt, kh)])
    pstamp(a, 4)
    if E("G1STEPS", 0): pstamp(a, 11, True)
    lds_arrive(4)
    H3L = E("H3L", 0)
    W2AF = E("W2AF", 0)
    if not H3L and not W2AF: emit(w2_dma(0)); emit(w2_dma(1))
    lds_wait("PK_XW1", 4)
    PT = 64
    for o in range(4):
        for q in range(4):
            r = PT + 16 * o + 4 * q
            a(f"ds_read_b128 v[{r}:{r+3}], v{10+o//2} offset:{(o&1)*RINGB + q*1024}")
    for o in range(4):
        a(f"s_waitcnt lgkmcnt({12-4*o})")
        for i in range(0, 16, 2):
            a(f"v_pk_add_f32 {pk(FIN+i)}, {pk(FIN+i)}, {pk(PT+16*o+i)}")
    lds_arrive(5)
    T = 64
    for i in range(0, 16, 2): a(f"v_pk_mul_f32 {pk(T+i)}, {pk(FIN+i)}, {pk(FIN+i)}")
    for i in range(16): a(f"v_fma_f32 v{T+i}, v{T+i}, s{sC1}, v13")
    for i in range(0, 16, 2): a(f"v_pk_mul_f32 {pk(T+i)}, {pk(T+i)}, {pk(FIN+i)}")
    for i in range(16): a(f"v_exp_f32 v{T+i}, v{T+i}")
    if E("W2MID", 0): emit(w2_dma(2))
    for i in range(0, 16, 2): a(f"v_pk_add_f32 {pk(T+i)}, {pk(T+i)}, s[28:29]")
    for i in range(16): a(f"v_rcp_f32 v{T+i}, v{T+i}")
    for i in range(0, 16, 2): a(f"v_pk_mul_f32 {pk(FIN+i)}, {pk(FIN+i)}, {pk(T+i)}")
    P = T + 16
    for i in range(0, 16, 2): a(f"v_cvt_pk_bf16_f32 v{P+i//2}, v{FIN+i}, v{FIN+i+1}")
    a("s_nop 1")
    for qp in range(2):
        r = P + 4 * qp
        a(f"v_permlane32_swap_b32 v{r}, v{r+2}")
        a(f"v_permlane32_swap_b32 v{r+1}, v{r+3}")
        vm.op(f"buffer_store_dwordx4 v[{r}:{r+3}], v{14+qp}, {R(S_WS)}, 0 offen sc1", "ust")
    a.label("PK_G_W2")
    pstamp(a, 5)
    lds_arrive(8)
    a(f"s_lshl_b32 s{sT0}, s{sDT}, 1")
    a(f"s_and_b32 s{sT1}, s3, 1")
    a(f"s_add_u32 s{sT0}, s{sT0}, s{sT1}")
    a(f"s_mul_i32 s{sT0}, s{sT0}, 48")
    a(f"s_lshl_b32 s{sT1}, s{sFT}, 1")
    a(f"s_add_u32 s{sT0}, s{sT0}, s{sT1}")
    a(f"s_lshr_b32 s{sT1}, s3, 1")
    a(f"s_add_u32 s{sT0}, s{sT0}, s{sT1}")
    a(f"s_lshl_b32 s{sT0}, s{sT0}, {FS}")
    a(f"s_add_u32 s{sT0}, s{sT0}, {FU_OFF}")
    a(f"s_add_u32 s{sT4}, s{sT0}, s{sG1BIG}")
    TR2 = 100
    a("v_lshrrev_b32 v106, 4, v1", "g")
    a("v_and_b32 v107, 15, v1", "n")
    a(f"v_lshlrev_b32 v{TR2}, 10, v106")
    a("v_bfe_u32 v2, v1, 2, 2")
    a(f"v_lshl_add_u32 v{TR2}, v2, 7, v{TR2}")
    a("v_bfe_u32 v2, v1, 3, 2")
    a(f"v_lshl_add_u32 v{TR2}, v2, 5, v{TR2}")
    a("v_and_b32 v2, 3, v1")
    a(f"v_lshl_add_u32 v{TR2}, v2, 3, v{TR2}")
    a(f"v_add_u32 v{TR2}, s{sRING}, v{TR2}")
    for j in range(1, 4): a(f"v_xor_b32 v{TR2+j}, {32*j}, v{TR2}")
    a("v_min_u32 v2, 35, v1")
    a("v_mul_u32_u24 v3, 43, v2")
    a("v_lshrrev_b32 v3, 9, v3")
    a("v_mul_u32_u24 v104, 36, v3")
    a("v_add_u32 v104, v104, v2")
    a(f"s_mul_i32 s{sT3}, s{sDT2}, 80", "d0")
    a(f"s_lshr_b32 s{sT0}, s{sT3}, 5")
    a(f"s_mul_i32 s{sT0}, s{sT0}, 48")
    a(f"s_add_u32 s{sT0}, s{sT0}, s{sKB2}")
    a(f"s_lshl_b32 s{sT0}, s{sT0}, {FS}")
    a(f"s_add_u32 s{sT0}, s{sT0}, {FU_OFF}")
    a(f"v_lshl_add_u32 v104, v104, {FS}, s{sT0}")
    a("v_mul_u32_u24 v105, 10240, v106")
    a("v_lshl_add_u32 v105, v107, 4, v105")
    a(f"s_lshl_b32 s{sT0}, s{sT3}, 4")
    a(f"s_add_u32 s{sT0}, s{sT0}, {UBLK_OFF}")
    a(f"v_add_u32 v105, s{sT0}, v105")
    def w2_tr(i, tr):
        out = []
        for j in range(4):
            for h in range(2):
                r = 16 * (i % NR2) + 4 * j + 2 * h
                out.append(f"ds_read_b64_tr_b16 a[{r}:{r+1}], v{tr+j} offset:{w2_slot(i)*4096 + h*512}")
        return out
    if H3L:
        lds_wait("PK_XW2", 5, n=5)
        for k in range(3): emit(w2_tr(k, TR2))
        vm.wait("ust")
        flag_store(sT4)
        pstamp(a, 6)
        emit(w2_dma(3)); emit(w2_dma(4))
        a("s_waitcnt lgkmcnt(0)")
    else:
        if not W2AF:
            vm.wait("w2_1")
            for k in range(2): emit(w2_tr(k, TR2))
        lds_wait("PK_XW2", 5)
        vm.wait("ust")
        flag_store(sT4)
        pstamp(a, 6)
        if W2AF: emit(w2_dma(0)); emit(w2_dma(1))
        if not E("W2MID", 0): emit(w2_dma(2))
        emit(w2_dma(3)); emit(w2_dma(4))
        vm.wait("w2_2")
        if W2AF:
            for k in range(2): emit(w2_tr(k, TR2))
        emit(w2_tr(2, TR2))
        a("s_waitcnt lgkmcnt(0)")
    if E("BURST2", 1):
        for nx in range(5, 10): emit(w2_dma(nx))
        for i in (3, 4):
            vm.wait(f"w2_{i}"); emit(w2_tr(i, TR2))
        a("s_waitcnt lgkmcnt(0)")
        emit(w2_dma(10)); emit(w2_dma(11))
        vm.op(f"buffer_load_dword v108, v104, {R(S_WS)}, 0 offen sc1", "upoll")
    else:
      for i in range(3, 12):
        nx = i + 2
        if nx < 12:
            if nx >= 9: a("s_waitcnt lgkmcnt(0)")
            emit(w2_dma(nx))
        vm.wait(f"w2_{i}")
        if i < NR2: emit(w2_tr(i, TR2))
        if i == E("UPOLL_AT", 10):
            vm.op(f"buffer_load_dword v108, v104, {R(S_WS)}, 0 offen sc1", "upoll")
    for j in range(4): a(f"v_mov_b32 v{4+j}, v{TR2+j}")
    a("v_mul_u32_u24 v109, 26, v1")
    a("v_lshrrev_b32 v109, 8, v109", "L/10")
    a("v_mul_u32_u24 v110, 10, v109")
    a("v_sub_u32 v110, v1, v110", "L%10")
    a("v_min_u32 v109, 5, v109")
    a("v_mul_u32_u24 v109, 10240, v109")
    a("v_lshl_add_u32 v109, v110, 7, v109")
    a(f"s_and_b32 s{sT0}, s{sST}, 7")
    a(f"s_mul_i32 s{sT0}, s{sT0}, 6")
    a(f"s_mul_i32 s{sT1}, s3, 48")
    a(f"s_add_u32 s{sT0}, s{sT0}, s{sT1}")
    a(f"s_mul_i32 s{sT0}, s{sT0}, 10240")
    a(f"s_mul_i32 s{sT1}, s{sDT2}, 1280")
    a(f"s_add_u32 s{sT0}, s{sT0}, s{sT1}")
    a(f"s_add_u32 s{sT0}, s{sT0}, {UBLK_OFF}")
    a(f"v_add_u32 v109, s{sT0}, v109")
    a("v_mov_b32 v3, v105")
    pstamp(a, 7)
    spin("PK_SPIN_U", [(104, 108)], "upoll" if vm.count("upoll") is not None else "x", sleep=E("UPOLL_SLEEP", 4))
    if E("GBAR2", 0): sbar("PK_GB2", 14, t=110)
    pstamp(a, 8)
    if E("G2STEPS", 0): pstamp(a, 1, True)
    ACC2 = 48
    UB = [("a", 100), ("v", 8), ("v", 28), ("a", 80)]; UD = 4
    def ureg(i, m):
        f, b = UB[i % UD]
        return f"{f}[{b+4*m}:{b+4*m+3}]"
    def u_adv(i): return pos2(i) + [f"s_mul_i32 s{sHOFF}, s{sT0}, 40960"]
    def uload(i, m):
        return (f"buffer_load_dwordx4 {ureg(i, m)}, v3, {R(S_WS)}, s{sHOFF} offen offset:{m*256} sc1", f"u{i}_{m}")
    UPRE = E("UPRE", UD)
    for i in range(UPRE):
        emit(u_adv(i))
        for m in range(5): emit([uload(i, m)])
        if i == 0 and E("TOUCH", 0):
            vm.op(f"buffer_load_dword a127, v109, {R(S_WS)}, 0 offen sc1", "touch")
    a("s_waitcnt lgkmcnt(0)")
    for i in range(12):
        nx = i + UPRE
        if E("G2STEPS", 0):
            MUTE[0] = True
            if i in (0, 1, 3, 5, 7, 9, 11): pstamp(a, 2 + (i + 1) // 2, True)
        if nx < 12: emit(u_adv(nx))
        side = w2_tr(NR2 - 1 + i, 4) if (i >= 1 and NR2 - 1 + i < 12) else []
        if NR2 <= i <= 8: a("s_waitcnt lgkmcnt(8)")
        if i == 9: a("s_waitcnt lgkmcnt(0)")
        if i == E("YGO", 7):
            a(f"v_mov_b32 v2, {CNT + 36}")
            a("s_mov_b64 exec, 1")
            a("ds_add_u32 v2, v2", "counter 9 += its own address")
            a("s_mov_b64 exec, -1")
        if i == 10:
            side = ["v_lshrrev_b32 v8, 4, v1", "v_and_b32 v9, 15, v1",
                    f"s_lshl_b32 s{sT0}, s{sST}, 6", f"s_lshl_b32 s{sT1}, s3, 4", f"s_add_u32 s{sT0}, s{sT0}, s{sT1}",
                    f"v_add_u32 v9, s{sT0}, v9", "v_mul_u32_u24 v10, 1280, v9", "v_lshl_add_u32 v10, v8, 3, v10",
                    f"s_mul_i32 s{sT0}, s{sDT2}, 160", f"v_add_u32 v10, s{sT0}, v10", "v_lshlrev_b32 v9, 1, v9",
                    (f"buffer_load_ushort v16, v9, {R(S_B2)}, 0 offen", "b2"),
                    f"v_lshl_add_u32 v11, v1, 4, s{sRING}",
                    f"s_mul_i32 s{sT0}, s3, 2560", f"s_add_u32 s{sT0}, s{sT0}, {PT_LDS}", f"v_lshl_add_u32 v15, v1, 3, s{sT0}",
                    f"s_mul_i32 s{sT0}, s3, 5120", f"v_lshl_add_u32 v12, v1, 4, s{sT0}", f"v_add_u32 v13, {2*RINGB}, v12"]
        TL2 = E("TL2", 2)
        if i > 12 - TL2: continue
        if i == 12 - TL2:
            assert nx >= 12
            emit(side)
            vm.wait("u11_4")
            pend = []
            for j in range(4):
                for ii in range(i, 12):
                    for m in range(5):
                        t = ACC2 + 4 * (5 * j + m); wr = 16 * (ii % NR2) + 4 * j
                        a(f"v_mfma_f32_16x16x32_bf16 v[{t}:{t+3}], {ureg(ii, m)}, a[{wr}:{wr+3}], v[{t}:{t+3}]")
                        for p in pend: p[0] += 1
                        if pend and pend[0][0] >= 9:
                            a(pend.pop(0)[1])
                            for p in pend: p[0] += 1
                        if ii == 11:
                            pend.append([0, f"ds_write_b128 v11, v[{t}:{t+3}] offset:{j*5120 + m*1024}"])
            while pend:
                if pend[0][0] < 9:
                    n = 9 - pend[0][0]
                    a(f"s_nop {n-1}")
                    for p in pend: p[0] += n
                a(pend.pop(0)[1])
                for p in pend: p[0] += 1
            continue
        k = 0; si = 0
        for m in range(5):
            vm.wait(f"u{i}_{m}")
            for j in range(4):
                t = ACC2 + 4 * (5 * j + m)
                wr = 16 * (i % NR2) + 4 * j
                c = "0" if i == 0 else f"v[{t}:{t+3}]"
                a(f"v_mfma_f32_16x16x32_bf16 v[{t}:{t+3}], {ureg(i, m)}, a[{wr}:{wr+3}], {c}")
                k += 1
                while si < (len(side) * k + 19) // 20:
                    emit([side[si]]); si += 1
            if nx < 12: emit([uload(nx, m)])
    pstamp(a, 9, True)
    MUTE[0] = False
    FIN2 = 28
    lds_arrive(11)
    vm.wait("b2")
    a("v_lshlrev_b32 v17, 16, v16")
    a("v_lshlrev_b32 v16, 16, v16")
    lds_wait("PK_GB3", 11)
    PT2 = 48; PR = 18; PF = 108
    GM = E("GM", 3)
    NG = 4 * GM
    for o in range(4):
        for m in range(GM):
            r = PT2 + 20 * o + 4 * m
            a(f"ds_read_b128 v[{r}:{r+3}], v{12+o//2} offset:{(o&1)*RINGB + m*1024}")
    for o in range(4):
        a(f"s_waitcnt lgkmcnt({min(10, GM*(3-o))})")
        for i in range(0, NG, 2):
            src = "v[16:17]" if o == 0 else pk(FIN2 + i)
            a(f"v_pk_add_f32 {pk(FIN2+i)}, {src}, {pk(PT2+20*o+i)}")
    T2 = 48
    for i in range(0, NG, 2): a(f"v_cvt_pk_bf16_f32 v{T2+i//2}, v{FIN2+i}, v{FIN2+i+1}")
    for i in range(0, NG, 2):
        a(f"v_lshlrev_b32 v{FIN2+i}, 16, v{T2+i//2}")
        a(f"v_and_b32 v{FIN2+i+1}, 0xffff0000, v{T2+i//2}")
    lds_wait("PK_PW", 15)
    pstamp(a, 10)
    for m in range(GM):
        a(f"ds_read_b64 v[{PR+2*m}:{PR+2*m+1}], v15 offset:{m*512}")
    a("s_waitcnt lgkmcnt(0)")
    for m in range(GM):
        for h in range(2):
            i = 4 * m + 2 * h
            a(f"v_lshlrev_b32 v{PF+i}, 16, v{PR+i//2}")
            a(f"v_and_b32 v{PF+i+1}, 0xffff0000, v{PR+i//2}")
            a(f"v_pk_add_f32 {pk(FIN2+i)}, {pk(FIN2+i)}, {pk(PF+i)}")
            a(f"v_cvt_pk_bf16_f32 v{60+i//2}, v{FIN2+i}, v{FIN2+i+1}")
        a(f"buffer_store_dwordx2 v[{60+2*m}:{61+2*m}], v10, {R(S_OUT)}, 0 offen offset:{32*m}")
    a(f"s_or_b32 s{sT0}, s2, s3")
    a(f"s_cmp_lg_u32 s{sT0}, 0")
    a("s_cbranch_scc1 PK_NOEP")
    a(f"s_mov_b32 s{sT0}, {EPOCH_OFF}")
    flag_store(sT0)
    a.label("PK_NOEP")
    pstamp(a, 11)
    finish_stamps("G")
    a("s_endpgm")

    if E("W2PF", 0):
        a.label("PK_G_PF")
        vm.reset(); vm.q.append("ep")
        read_epoch(9); lds_arrive(6)
        a(f"s_lshr_b32 s{sT2}, s2, 3")
        a(f"s_sub_u32 s{sT2}, s{sT2}, 30")
        a(f"s_lshl_b32 s{sT2}, s{sT2}, 2")
        a(f"s_add_u32 s{sT2}, s{sT2}, s3")
        a(f"s_and_b32 s{sT1}, s2, 1")
        a(f"s_lshl_b32 s{sT1}, s{sT1}, 3")
        a(f"s_add_u32 s{sT2}, s{sT2}, s{sT1}")
        a(f"s_mul_i32 s{sT2}, s{sT2}, {96*4096}")
        a(f"s_bfe_u32 s{sT1}, s2, 0x20001")
        a(f"s_lshl_b32 s{sT1}, s{sT1}, 10")
        a(f"s_add_u32 s{sT2}, s{sT2}, s{sT1}")
        a("v_lshrrev_b32 v8, 3, v1")
        a("v_lshlrev_b32 v8, 12, v8")
        a("v_and_b32 v3, 7, v1")
        a("v_lshl_add_u32 v8, v3, 7, v8")
        emit(["v_lshrrev_b32 v2, 3, v1", "v_lshlrev_b32 v4, 12, v2", "v_bfe_u32 v2, v1, 4, 1", "v_lshlrev_b32 v2, 1, v2",
              "v_and_b32 v3, 7, v1", "v_xor_b32 v2, v2, v3", "v_lshl_add_u32 v4, v2, 4, v4", f"s_lshl_b32 s{sT0}, s{sST}, 7",
              f"v_add_u32 v4, s{sT0}, v4", "v_xor_b32 v2, 64, v4", f"v_add_u32 v5, {1*(32768-1024)}, v2",
              f"v_add_u32 v6, {2*(32768-1024)}, v4", f"v_add_u32 v7, {3*(32768-1024)}, v2"])
        lds_wait("PK_PFW", E("PFGO", 3), sleep=4)
        for i in range(2, 5): pstamp(a, i)
        for t in range(E("PFN", 12)):
            a(f"buffer_load_dword v{16+t}, v8, {R(S_W2)}, s{sT2} offen")
            a(f"s_add_u32 s{sT2}, s{sT2}, 32768")
        a("s_waitcnt vmcnt(0)")
        lds_arrive(10); lds_arrive(4); lds_arrive(5)
        emit(w2_dma(0)); emit(w2_dma(1))
        a("s_waitcnt vmcnt(0)")
        a("s_setprio 2")
        a("s_branch PK_G_W2")

    a.label("PK_H")
    MUTE[0] = False
    vm.reset()
    for r in range(2):
        for i in range(5): vm.q.append(f"x{r}{i}")
    a("s_cmp_ge_u32 s2, 160")
    a(f"s_cselect_b32 s{sKVBIG}, {BIG}, 0")
    if E("NOKV", 0): a(f"s_mov_b32 s{sKVBIG}, {BIG}")
    sTT, sCW = sDT, sFT
    a(f"s_mul_hi_u32 s{sTT}, s2, 0x33333334", "T")
    a(f"s_mul_i32 s{sCW}, s{sTT}, 5")
    a(f"s_sub_u32 s{sCW}, s2, s{sCW}", "cw")
    a(f"s_lshl_b32 s{sT0}, s{sTT}, 2")
    a(f"s_add_u32 s{sT0}, s{sT0}, s3")
    a(f"s_mul_i32 s{sT0}, s{sT0}, 20480")
    a(f"s_lshl_b32 s{sT1}, s{sCW}, 8")
    a(f"s_add_u32 s{sT0}, s{sT0}, s{sT1}")
    a(f"s_add_u32 s{sT0}, s{sT0}, s{sKVBIG}")
    VKV = 10
    a(f"v_add_u32 v{VKV+1}, s{sT0}, v3")
    a(f"v_subrev_u32 v{VKV}, 3840, v{VKV+1}")
    for i in range(1, 4): a(f"v_add_u32 v{VKV+1+i}, {5120*i}, v{VKV+1}")
    a(f"s_lshl_b32 s{sT1}, s{sCW}, 10")
    a(f"v_lshl_add_u32 v15, v1, 4, s{sT1}")
    XRAW = 16
    if E("W1ONLY", 0):
        if STAMP:
            a("s_mov_b32 s4, s30"); a("s_mov_b32 s5, s31")
        for i in range(1, 12): pstamp(a, i)
        finish_stamps()
        a("s_endpgm")
    srd(a, S_WS, 26, WS_USED, E("WSMB", 0) << 20)
    vm.op(f"buffer_load_dword v9, v8, {R(S_WS)}, 0 offen sc1", "ep")
    srd(a, S_K, 6, SD_BYTES)
    srd(a, S_V, 8, SD_BYTES)
    srd(a, S_SHK, 10, D * 8)
    srd(a, S_SSMK, 12, SD_BYTES)
    srd(a, S_SSMD, 14, D * 2)
    srd(a, S_W2, 20, S * F * 2)
    srd(a, S_B2, 22, S * 2)
    srd(a, S_OUT, 24, SD_BYTES)
    if STAMP:
        a("s_mov_b32 s4, s30"); a("s_mov_b32 s5, s31")
    def kv_loads():
        vm.op(f"buffer_load_dwordx4 a[36:39], v15, {R(S_SHK)}, 0 offen", "shk")
        for r in range(3):
            vm.op(f"buffer_load_dword a{r}, v{VKV}, {R(S_K)}, 0 offen offset:{r*1280} {NT}", "k")
        for r in range(16):
            vm.op(f"buffer_load_dword a{3+r}, v{VKV+1+r//4}, {R(S_K)}, 0 offen offset:{(r%4)*1280} {NT}", "k")
        for r in range(16):
            vm.op(f"buffer_load_dword a{19+r}, v{VKV+1+r//4}, {R(S_V)}, 0 offen offset:{(r%4)*1280} {NT}", "v")
    KV_EARLY = E("KV_EARLY", 0)
    if KV_EARLY: kv_loads()
    srd(a, S_B1, 18, F * 2)
    a(f"s_lshr_b32 s{sT0}, s2, 3")
    a(f"s_mul_hi_u32 s{sT0}, s{sT0}, 0x33333334")
    a(f"s_bfe_u32 s{sT1}, s2, 0x20001")
    a(f"s_mul_i32 s{sT1}, s{sT1}, 6")
    a(f"s_add_u32 s{sT0}, s{sT0}, s{sT1}")
    a(f"s_lshl_b32 s{sT0}, s{sT0}, 7")
    a("v_and_b32 v125, 124, v3")
    vm.op(f"buffer_load_dword v126, v125, {R(S_B1)}, s{sT0} offen", "b1")
    a(f"v_add_u32 v125, {PT_LDS}, v125")
    pstamp(a, 1)
    a(f"s_mul_i32 s{sT0}, s3, {2*HROW}")
    a(f"s_add_u32 s{sT0}, s{sT0}, {LNX}")
    a(f"v_add_u32 v4, s{sT0}, v3")
    a("v_lshrrev_b32 v5, 4, v1")
    a("v_lshlrev_b32 v5, 5, v5")
    a("v_and_b32 v2, 3, v1")
    a("v_lshl_add_u32 v5, v2, 3, v5")
    a("v_bfe_u32 v2, v1, 2, 2")
    a(f"v_mul_u32_u24 v2, {HROW}, v2")
    a("v_add_u32 v5, v5, v2")
    a(f"s_lshl_b32 s{sT0}, s3, 7")
    a(f"s_add_u32 s{sT0}, s{sT0}, {LNX}")
    a(f"v_add_u32 v5, s{sT0}, v5")
    a(f"s_mul_i32 s{sT0}, s2, 10240")
    a(f"s_lshl_b32 s{sT1}, s3, 10")
    a(f"s_add_u32 s{sT0}, s{sT0}, s{sT1}")
    if HBLK_OFF: a(f"s_add_u32 s{sT0}, s{sT0}, {HBLK_OFF}")
    a(f"v_lshl_add_u32 v6, v1, 4, s{sT0}")
    a("v_add_u32 v7, 4096, v6")
    a("s_cmp_ge_u32 s3, 2")
    a(f"s_cselect_b32 s{sT1}, {BIG}, 8192")
    a(f"v_add_u32 v8, s{sT1}, v6")
    a(f"s_lshl_b32 s{sT0}, s2, 2")
    a(f"s_add_u32 s{sT0}, s{sT0}, s3")
    a(f"s_lshl_b32 s{sT0}, s{sT0}, 4")
    a(f"s_add_u32 s{sT0}, s{sT0}, {STAT_OFF}")
    a(f"v_mov_b32 v90, s{sT0}")
    a(f"s_lshl_b32 s{sT0}, s3, 8")
    a(f"s_add_u32 s{sT0}, s{sT0}, s2")
    a(f"s_lshl_b32 s{sT0}, s{sT0}, {FS}")
    a(f"s_add_u32 s{sRING}, s{sT0}, {FH_OFF}", "h flag offset")
    X = [26, 36]; A = [46, 56]; SUM = [66, 70]; TMP = [74, 82]
    PIV = [28, 30]; SS = [(sT0, sT1), (sT2, sT3)]
    for r in range(2):
        for i in range(5):
            vm.wait(f"x{r}{i}")
            a(f"v_lshlrev_b32 v{X[r]+2*i}, 16, v{XRAW+5*r+i}")
            a(f"v_and_b32 v{X[r]+2*i+1}, 0xffff0000, v{XRAW+5*r+i}")
            if i == 0: a(f"v_readfirstlane_b32 s{PIV[r]}, v{X[r]}")
            if i == 2: a(f"s_mov_b32 s{PIV[r]+1}, s{PIV[r]}")
    pstamp(a, 2)
    def zip2(f):
        out = []
        for p, q in zip(f(0), f(1)): out += [p, q]
        return out
    def sums(src):
        def f(r):
            Sr = SUM[r]; B = src[r]
            l = [f"v_pk_mul_f32 {pk(Sr+2)}, {pk(B)}, {pk(B)}", f"v_pk_add_f32 {pk(Sr)}, {pk(B)}, {pk(B+2)}"]
            for i in range(1, 5):
                l.append(f"v_pk_fma_f32 {pk(Sr+2)}, {pk(B+2*i)}, {pk(B+2*i)}, {pk(Sr+2)}")
                if i >= 2: l.append(f"v_pk_add_f32 {pk(Sr)}, {pk(Sr)}, {pk(B+2*i)}")
            l += [f"v_add_f32 v{Sr}, v{Sr}, v{Sr+1}", f"v_add_f32 v{Sr+1}, v{Sr+2}, v{Sr+3}"]
            return l
        l = zip2(f)
        steps = ["row_shr:1 row_mask:0xf bank_mask:0xf bound_ctrl:0", "row_shr:2 row_mask:0xf bank_mask:0xf bound_ctrl:0",
                 "row_shr:4 row_mask:0xf bank_mask:0xf bound_ctrl:0", "row_shr:8 row_mask:0xf bank_mask:0xf bound_ctrl:0",
                 "row_bcast:15 row_mask:0xa bank_mask:0xf", "row_bcast:31 row_mask:0xc bank_mask:0xf"]
        regs = [SUM[0], SUM[1], SUM[0] + 1, SUM[1] + 1]
        for st in steps:
            for v in regs: l.append(f"v_add_f32_dpp v{v}, v{v}, v{v} {st}")
        l += [f"v_readlane_b32 s{SS[0][0]}, v{SUM[0]}, 63", f"v_readlane_b32 s{SS[1][0]}, v{SUM[1]}, 63",
              f"v_readlane_b32 s{SS[0][1]}, v{SUM[0]+1}, 63", f"v_readlane_b32 s{SS[1][1]}, v{SUM[1]+1}, 63"]
        return l
    def statsl(piv):
        inv = f32(1.0 / D)
        def f(r):
            t0, t1 = TMP[r] + 6, TMP[r] + 7; m = TMP[r]; rr = TMP[r] + 1
            l = [f"v_mul_f32 v{t0}, s{SS[r][0]}, v91", f"v_mul_f32 v{t1}, s{SS[r][1]}, v91",
                 f"v_fma_f32 v{t1}, -v{t0}, v{t0}, v{t1}", f"v_max_f32 v{t1}, 0, v{t1}"]
            if piv: l.append(f"v_add_f32 v{t0}, s{PIV[r]}, v{t0}")
            l += [f"v_cvt_pk_bf16_f32 v{t0}, v{t0}, v{t1}", f"v_lshlrev_b32 v{m}, 16, v{t0}",
                  f"v_and_b32 v{t1}, 0xffff0000, v{t0}", f"v_add_f32 v{t1}, {f32(1e-5)}, v{t1}",
                  f"v_cvt_pk_bf16_f32 v{t1}, v{t1}, v{t1}", f"v_lshlrev_b32 v{t1}, 16, v{t1}",
                  f"v_sqrt_f32 v{t1}, v{t1}", f"v_cvt_pk_bf16_f32 v{t1}, v{t1}, v{t1}",
                  f"v_lshlrev_b32 v{t1}, 16, v{t1}", f"v_rcp_f32 v{rr}, v{t1}",
                  f"v_mul_f32 v{TMP[r]+4}, v{m}, v{rr}", f"v_mov_b32 v{TMP[r]+2}, v{rr}",
                  f"v_mul_f32 v{TMP[r]+5}, v{m}, v{rr}", f"v_mov_b32 v{TMP[r]+3}, v{rr}"]
            return l
        return zip2(f)
    def norm(dst, src):
        return zip2(lambda r: [f"v_pk_fma_f32 {pk(dst[r]+2*i)}, {pk(src[r]+2*i)}, {pk(TMP[r]+2)}, {pk(TMP[r]+4)} neg_lo:[0,0,1] neg_hi:[0,0,1]" for i in range(5)])
    a(f"v_mov_b32 v91, {f32(1.0/D)}")
    emit(zip2(lambda r: [f"v_pk_add_f32 {pk(A[r]+2*i)}, {pk(X[r]+2*i)}, s[{PIV[r]}:{PIV[r]+1}] neg_lo:[0,1] neg_hi:[0,1]" for i in range(5)]))
    emit(sums(A)); emit(statsl(True))
    emit(["s_mov_b64 exec, 1",
          (f"buffer_store_dwordx2 {pk(TMP[0])}, v90, {R(S_WS)}, 0 offen sc1", "hst"),
          (f"buffer_store_dwordx2 {pk(TMP[1])}, v90, {R(S_WS)}, 0 offen offset:8 sc1", "hst"),
          "s_mov_b64 exec, -1"])
    emit(norm(A, X))
    emit(zip2(lambda r: [f"v_cvt_pk_bf16_f32 v{XRAW+5*r+i}, v{A[r]+2*i}, v{A[r]+2*i+1}" for i in range(5)]))
    emit(zip2(lambda r: sum([[f"v_lshlrev_b32 v{X[r]+2*i}, 16, v{XRAW+5*r+i}", f"v_and_b32 v{X[r]+2*i+1}, 0xffff0000, v{XRAW+5*r+i}"] for i in range(5)], [])))
    emit(sums(X)); emit(statsl(False)); emit(norm(A, X))
    emit(zip2(lambda r: sum([[f"v_cvt_pk_bf16_f32 v{XRAW+5*r+i}, v{A[r]+2*i}, v{A[r]+2*i+1}", f"ds_write_b32 v4, v{XRAW+5*r+i} offset:{r*HROW+i*256}"] for i in range(5)], [])))
    vm.wait("b1")
    a("ds_write_b32 v125, v126")
    read_epoch(9)
    sbar("PK_HB1", 1)
    HT = 26
    for t in range(3):
        a(f"ds_read_b64_tr_b16 v[{HT+4*t}:{HT+4*t+1}], v5 offset:{512*t}")
        a(f"ds_read_b64_tr_b16 v[{HT+4*t+2}:{HT+4*t+3}], v5 offset:{512*t+4*HROW}")
    for t in range(3):
        a(f"s_waitcnt lgkmcnt({4-2*t})")
        vm.op(f"buffer_store_dwordx4 v[{HT+4*t}:{HT+4*t+3}], v{6+t}, {R(S_WS)}, 0 offen sc1", "hst")
    pstamp(a, 3)
    a("v_and_b32 v2, 7, v1")
    a(f"s_lshl_b32 s{sT0}, s3, 1")
    a(f"v_xor_b32 v4, s{sT0}, v2")
    a("v_lshlrev_b32 v4, 4, v4")
    a("v_lshl_add_u32 v4, v1, 8, v4")
    a(f"v_add_u32 v4, {KVX}, v4")
    a("v_xor_b32 v5, 16, v4")
    a("v_lshrrev_b32 v8, 3, v1")
    a("v_lshrrev_b32 v6, 4, v1")
    a("v_xor_b32 v6, v6, v2")
    a("v_lshlrev_b32 v6, 4, v6")
    a("v_lshl_add_u32 v6, v8, 7, v6")
    a(f"s_lshl_b32 s{sT0}, s3, 12")
    a(f"s_add_u32 s{sT0}, s{sT0}, {KVX}")
    a(f"v_add_u32 v6, s{sT0}, v6")
    a("v_xor_b32 v7, 64, v6")
    a("v_lshlrev_b32 v8, 12, v8")
    a("v_lshl_add_u32 v8, v2, 4, v8")
    a(f"s_lshl_b32 s{sT0}, s{sCW}, 19")
    a(f"s_lshl_b32 s{sT1}, s3, 17")
    a(f"s_add_u32 s{sT0}, s{sT0}, s{sT1}")
    a(f"s_lshl_b32 s{sT1}, s{sTT}, 7")
    a(f"s_add_u32 s{sT0}, s{sT0}, s{sT1}")
    a(f"s_add_u32 s{sT0}, s{sT0}, {KVB_OFF}")
    a(f"s_add_u32 s{sT0}, s{sT0}, s{sKVBIG}")
    a(f"v_add_u32 v8, s{sT0}, v8")
    lds_wait("PK_EPW", 6)
    vm.wait("hst")
    flag_store(sRING)
    pstamp(a, 4)
    if E("KV_LATE", 0):
        a("s_setprio 0")
        lds_wait("PK_KVL", 12, n=4 * (CNT + 48), sleep=4)
        a("s_setprio 3")
    if not KV_EARLY: kv_loads()
    a("s_setprio 0")
    a(f"s_lshl_b32 s{sT0}, s{sCW}, 2")
    a(f"s_add_u32 s{sT0}, s{sT0}, s3")
    a(f"s_lshl_b32 s{sT0}, s{sT0}, 5")
    a(f"s_add_u32 s{sT0}, s{sT0}, s{sTT}")
    a(f"s_lshl_b32 s{sT0}, s{sT0}, {FS}")
    a(f"s_add_u32 s{sT0}, s{sT0}, {FKV_OFF}")
    a(f"s_add_u32 s{sRING}, s{sT0}, s{sKVBIG}", "kv flag offset")
    WP, KP, KS, KO = 16, 24, 62, 94
    vm.wait("k")
    for i in range(4): a(f"v_accvgpr_read_b32 v{110+i}, a{36+i}")
    for r in range(19): a(f"v_accvgpr_read_b32 v{KP+2*r+1}, a{r}")
    for t in range(4):
        for ch in range(2):
            src = 110 + 2 * ch + t // 2
            a(f"v_lshlrev_b32 v{WP+2*t+ch}, 16, v{src}" if t % 2 == 0 else f"v_and_b32 v{WP+2*t+ch}, 0xffff0000, v{src}")
    for r in range(19):
        a(f"v_lshlrev_b32 v{KP+2*r}, 16, v{KP+2*r+1}")
        a(f"v_and_b32 v{KP+2*r+1}, 0xffff0000, v{KP+2*r+1}")
    for r in range(16): a(f"v_pk_mul_f32 {pk(KS+2*r)}, {pk(KP+2*r)}, {pk(WP+6)}")
    for t in (2, 1, 0):
        for r in range(16):
            a(f"v_pk_fma_f32 {pk(KS+2*r)}, {pk(KP+2*(r+3-t))}, {pk(WP+2*t)}, {pk(KS+2*r)}")
    vm.wait("v")
    for r in range(16): a(f"v_accvgpr_read_b32 v{KP+2*r+1}, a{19+r}")
    for r in range(16):
        a(f"v_lshlrev_b32 v{KP+2*r}, 16, v{KP+2*r+1}")
        a(f"v_and_b32 v{KP+2*r+1}, 0xffff0000, v{KP+2*r+1}")
    for r in range(16): a(f"v_pk_mul_f32 {pk(KS+2*r)}, {pk(KS+2*r)}, {pk(KP+2*r)}")
    for c2 in range(2):
        for ch in range(2):
            for q in range(4):
                a(f"v_cvt_pk_bf16_f32 v{KO+8*c2+4*ch+q}, v{KS+2*(8*c2+7-2*q)+ch}, v{KS+2*(8*c2+6-2*q)+ch}")
            a(f"ds_write_b128 v{4+c2}, v[{KO+8*c2+4*ch}:{KO+8*c2+4*ch+3}] offset:{128*ch}")
    sbar("PK_HB2", 2)
    for i in range(4):
        a(f"ds_read_b128 v[{KO+4*i}:{KO+4*i+3}], v{6+(i&1)} offset:{1024*i}")
    a("s_setprio 3")
    for i in range(4):
        a(f"s_mov_b32 s{sT0}, {32768*i}")
        a(f"s_waitcnt lgkmcnt({3-i})")
        vm.op(f"buffer_store_dwordx4 v[{KO+4*i}:{KO+4*i+3}], v8, {R(S_WS)}, s{sT0} offen sc1", "kvst")
    lds_arrive(3)
    pstamp(a, 5)
    a("v_lshrrev_b32 v14, 4, v1", "g")
    a("v_and_b32 v15, 15, v1", "n")
    a(f"s_lshl_b32 s{sCH}, s2, 1")
    a(f"s_mul_i32 s{sT0}, s2, 3")
    a(f"s_sub_u32 s{sT0}, s{sT0}, 128")
    a("s_cmp_ge_u32 s2, 128")
    a(f"s_cselect_b32 s{sCH}, s{sT0}, s{sCH}")
    a(f"s_cselect_b32 s{sT0}, 3, 2")
    a(f"s_add_u32 s{sCH}, s{sCH}, s3")
    a(f"s_cmp_lt_u32 s3, s{sT0}")
    a(f"s_cselect_b32 s{sCH}, s{sCH}, {1 << 16}", "ch (65536 = none)")
    a(f"s_mul_i32 s{sCVB}, s3, {CONV_SZ}")
    a(f"s_add_u32 s{sCVB}, s{sCVB}, {AUX}")
    a(f"s_lshr_b32 s{sT0}, s{sCH}, 5")
    a(f"s_lshl_b32 s{sT0}, s{sT0}, {5+FS}")
    a(f"s_add_u32 s{sT0}, s{sT0}, {FKV_OFF}")
    a("v_and_b32 v29, 31, v1")
    a(f"v_lshl_add_u32 v29, v29, {FS}, s{sT0}", "kv poll address")
    a(f"s_lshl_b32 s{sT0}, s{sCH}, 12")
    a(f"v_lshl_add_u32 v31, v1, 4, s{sT0}")
    a("v_add_u32 v32, 2, v31")
    a(f"v_add_u32 v33, {KVB_OFF}, v31")
    a(f"v_mov_b32 v34, s{sT0}")
    a(f"s_lshl_b32 s{sT1}, s{sCH}, 1")
    a(f"v_mov_b32 v36, s{sT1}")
    VA, VB, VE, VS = 38, 42, 43, 44
    a("v_lshlrev_b32 v2, 5, v15")
    a(f"v_lshl_add_u32 v{VS}, v14, 3, v2")
    a(f"s_add_u32 s{sT0}, s{sT0}, {YA_OFF}")
    a(f"v_add_u32 v{VS}, s{sT0}, v{VS}")
    a("v_lshlrev_b32 v45, 4, v1")
    a(f"v_add_u32 v46, s{sCVB}, v45")
    a(f"v_add_u32 v2, {CV_K0-512}, v45")
    a(f"v_add_u32 v3, {CV_K1-544}, v45")
    a("v_cmp_lt_u32 vcc, 31, v1")
    a(f"v_lshl_add_u32 v{VA}, v14, 3, v15")
    a(f"v_lshlrev_b32 v{VA}, 1, v{VA}")
    a("v_cndmask_b32 v45, v45, v2, vcc")
    a("v_cmp_lt_u32 vcc, 33, v1")
    a("v_and_b32 v2, 1, v1")
    a(f"v_mul_u32_u24 v2, {CV_K1 - CV_K0 - 2}, v2")
    a("v_cndmask_b32 v45, v45, v3, vcc")
    a("v_cmp_lt_u32 vcc, 35, v1")
    a(f"v_sub_u32 v{VA}, v{VA}, v2")
    a(f"v_add_u32 v{VA}, {CV_K1}, v{VA}")
    a("v_cndmask_b32 v45, v45, 0, vcc")
    a(f"v_add_u32 v45, s{sCVB}, v45")
    a(f"v_add_u32 v{VA}, s{sCVB}, v{VA}")
    for p in range(1, 4): a(f"v_add_u32 v{VA+p}, {1024*p}, v{VA}")
    a("v_lshlrev_b32 v2, 1, v15")
    a("v_sub_u32 v2, v2, v14")
    a("v_lshlrev_b32 v2, 4, v2")
    a(f"v_add_u32 v2, {528-448}, v2")
    a(f"v_add_u32 v{VB}, s{sCVB}, v2")
    a("v_lshrrev_b32 v2, 1, v14")
    a("v_lshl_add_u32 v2, v15, 1, v2")
    a("v_lshlrev_b32 v2, 4, v2")
    a("v_and_b32 v3, 1, v14")
    a("v_lshlrev_b32 v3, 3, v3")
    a("v_sub_u32 v2, v2, v3")
    a("v_add_u32 v2, 520, v2")
    a(f"v_add_u32 v{VE}, s{sCVB}, v2")
    vm.wait("kvst")
    flag_store(sRING)
    a(f"s_cmp_ge_u32 s{sCH}, 640")
    a("s_cbranch_scc1 PK_NOCONV")
    lds_wait("PK_HB3", 3)
    if E("KERN_LATE", 0):
        a("s_setprio 0")
        lds_wait("PK_KW0", 10, n=4, sleep=4)
        a("s_setprio 3")
    vm.reset()
    a(f"s_add_u32 m0, s{sCVB}, {CV_K0+32}")
    a(f"buffer_load_ushort v35, v34, {R(S_SSMK)}, 0 offen")
    for q in range(4): a(f"buffer_load_dwordx4 v31, {R(S_SSMK)}, 0 offen offset:{q*1024} lds")
    a(f"s_add_u32 m0, s{sCVB}, {CV_K1+32}")
    a(f"buffer_load_ushort v37, v36, {R(S_SSMD)}, 0 offen")
    for q in range(4): a(f"buffer_load_dwordx4 v32, {R(S_SSMK)}, 0 offen offset:{q*1024} lds")
    a("s_setprio 0")
    lds_wait("PK_KW", 10, n=4, sleep=4)
    a("s_setprio 3")
    if not E("NOKV", 0): spin("PK_SPIN_KV", [(29, 30)], sleep=E("KVPOLL_SLEEP", 0))
    KVR = 48
    for q in range(4):
        vm.op(f"buffer_load_dwordx4 v[{KVR+4*q}:{KVR+4*q+3}], v33, {R(S_WS)}, 0 offen offset:{q*1024} sc1", "cfill")
    a("s_setprio 0")
    a("v_mov_b32 v96, 0"); a("v_mov_b32 v97, 0"); a("v_mov_b32 v98, 0")
    a("v_cmp_eq_u32 vcc, 35, v1")
    a("v_lshlrev_b32 v35, 16, v35")
    a("v_lshlrev_b32 v37, 16, v37", "D")
    a("v_cndmask_b32 v99, 0, v35, vcc")
    a("ds_write_b128 v45, v[96:99]")
    vm.wait("cfill")
    for q in range(4):
        a(f"ds_write_b128 v46, v[{KVR+4*q}:{KVR+4*q+3}] offset:{512+1024*q}")
    a("s_waitcnt lgkmcnt(0)")
    CACC = 64; BUF = [(0, 32), (64, 96)]
    def frag_loads(buf, rr):
        A_, B_ = BUF[buf]
        out = []
        for t in range(8):
            o = (t & 1) * 128 + rr * 16
            out.append(f"ds_read_b128 a[{B_+4*t}:{B_+4*t+3}], v{VB} offset:{512*t + 64*(1-rr)}")
            out.append(f"ds_read2_b32 a[{A_+4*t}:{A_+4*t+1}], v{VA + t//2} offset0:{o} offset1:{o+1}")
            out.append(f"ds_read2_b32 a[{A_+4*t+2}:{A_+4*t+3}], v{VA + t//2} offset0:{o+2} offset1:{o+3}")
        return out
    for i in range(32): a(f"v_mov_b32 v{CACC+i}, 0")
    a(f"v_add_u32 v{VB}, {448-64}, v{VB}", "64 below the r-even address")
    emit(frag_loads(0, 0))
    pstamp(a, 6)
    lds_wait("PK_CW", 8, n=E("CONV_WAIT_N", 4), sleep=2)
    a(f"s_setprio {E('CONV_PRIO', 3)}")
    pstamp(a, 7)
    a(f"s_mov_b32 s{sT0}, 0")
    a.label("PK_CV_LOOP")
    for half in range(2):
        a("s_waitcnt lgkmcnt(0)")
        if half == 0: side = frag_loads(1, 1)
        else:
            for p in range(4): a(f"v_add_u32 v{VA+p}, 128, v{VA+p}")
            a(f"v_subrev_u32 v{VB}, 128, v{VB}")
            side = frag_loads(0, 0)
        A_, B_ = BUF[half]
        i = 0
        for c in range(8):
            for t in range(c + 1):
                u = c - t
                a(f"v_mfma_f32_16x16x32_bf16 v[{CACC+4*c}:{CACC+4*c+3}], a[{A_+4*t}:{A_+4*t+3}], a[{B_+4*u}:{B_+4*u+3}], v[{CACC+4*c}:{CACC+4*c+3}]")
                if i < len(side): a(side[i])
                i += 1
    a(f"s_add_u32 s{sT0}, s{sT0}, 1")
    a(f"s_cmp_lt_u32 s{sT0}, 4")
    a("s_cbranch_scc1 PK_CV_LOOP")
    a("s_setprio 3")
    for c in range(8): a(f"ds_read_b64 v[{100+2*c}:{101+2*c}], v{VE} offset:{512*c}")
    a("s_waitcnt lgkmcnt(0)")
    TT = 116
    for c in range(8):
        d0, d1 = 100 + 2 * c, 101 + 2 * c
        emit([f"v_and_b32 v{TT}, 0xffff0000, v{d1}", f"v_lshlrev_b32 v{TT+1}, 16, v{d1}",
              f"v_and_b32 v{TT+2}, 0xffff0000, v{d0}", f"v_lshlrev_b32 v{TT+3}, 16, v{d0}"])
        for i in range(4): a(f"v_fmac_f32 v{CACC+4*c+i}, v{TT+i}, v37")
        a(f"v_cvt_pk_bf16_f32 v{d0}, v{CACC+4*c}, v{CACC+4*c+1}")
        a(f"v_cvt_pk_bf16_f32 v{d1}, v{CACC+4*c+2}, v{CACC+4*c+3}")
        a(f"buffer_store_dwordx2 v[{d0}:{d1}], v{VS}, {R(S_WS)}, 0 offen offset:{512*c} sc1")
    pstamp(a, 8)
    a(f"s_lshl_b32 s{sT0}, s{sCH}, {FS}")
    a(f"s_add_u32 s{sT0}, s{sT0}, {FY_OFF}")
    a("s_waitcnt vmcnt(0)")
    flag_store(sT0)
    a("s_branch PK_PCOMP")
    a.label("PK_NOCONV")
    if E("H3L", 0):
        a("s_cmp_lg_u32 s3, 3")
        a("s_cbranch_scc1 PK_NOLOAD")
        emit(["v_lshrrev_b32 v2, 3, v1", "v_lshlrev_b32 v4, 12, v2", "v_bfe_u32 v2, v1, 4, 1", "v_lshlrev_b32 v2, 1, v2",
              "v_and_b32 v3, 7, v1", "v_xor_b32 v2, v2, v3", "v_lshl_add_u32 v4, v2, 4, v4", f"s_lshl_b32 s{sT0}, s{sST}, 7",
              f"v_add_u32 v4, s{sT0}, v4", "v_xor_b32 v2, 64, v4", f"v_add_u32 v5, {1*(32768-1024)}, v2",
              f"v_add_u32 v6, {2*(32768-1024)}, v4", f"v_add_u32 v7, {3*(32768-1024)}, v2",
              f"s_and_b32 s{sT2}, s{sDT2}, 3", f"s_mul_i32 s{sT2}, s{sT2}, {3 << 17}"])
        a("s_setprio 0")
        lds_wait("PK_LW", 10, n=4, sleep=4)
        a(f"s_setprio {E('H3PRIO', 1)}")
        for k in range(3):
            for w in range(4):
                a(f"s_mov_b32 m0, {w*RINGB + k*4096}")
                a(f"s_add_u32 s{sT3}, s{sT2}, {(12*w + k) << 17}")
                for q in range(4):
                    a(f"buffer_load_dwordx4 v{4+q}, {R(S_W2)}, s{sT3} offen offset:{q*1024} lds")
        a("s_waitcnt vmcnt(0)")
        lds_arrive(5)
        a.label("PK_NOLOAD")
    a("s_setprio 0")
    lds_wait("PK_NCW", 8, n=4, sleep=16)
    a("s_setprio 3")
    a.label("PK_PCOMP")
    vm.reset()
    a(f"s_mul_i32 s{sT3}, s{sDT2}, 80", "d0")
    a(f"s_lshl_b32 s{sT0}, s{sST}, 6")
    a(f"s_lshl_b32 s{sT1}, s3, 4")
    a(f"s_add_u32 s{sT0}, s{sT0}, s{sT1}")
    a(f"v_add_u32 v4, s{sT0}, v15", "s")
    a("v_mul_u32_u24 v5, 1280, v4")
    a("v_lshl_add_u32 v5, v14, 3, v5")
    a(f"s_lshl_b32 s{sT0}, s{sT3}, 1")
    a(f"v_add_u32 v5, s{sT0}, v5", "x offset")
    XR = 16
    for m in range(5):
        a(f"buffer_load_dwordx2 v[{XR+2*m}:{XR+2*m+1}], v5, {R(S_X)}, 0 offen offset:{32*m}")
    a("v_lshlrev_b32 v6, 1, v4")
    a(f"buffer_load_ushort v124, v6, {R(S_B2)}, 0 offen")
    a("v_lshlrev_b32 v6, 3, v4")
    a(f"v_add_u32 v6, {STAT_OFF}, v6")
    a(f"s_lshl_b32 s{sT0}, s{sT3}, {FS}")
    a(f"s_add_u32 s{sT0}, s{sT0}, {FY_OFF}")
    a(f"v_lshl_add_u32 v7, v1, {FS}, s{sT0}")
    a(f"v_add_u32 v8, {64 << FS}, v7")
    a("v_bfe_u32 v2, v4, 1, 2")
    a("v_lshlrev_b32 v2, 8, v2")
    a("v_lshrrev_b32 v3, 3, v4")
    a("v_add_u32 v2, v2, v3")
    a("v_cmp_lt_u32 vcc, 15, v1")
    a(f"v_lshlrev_b32 v2, {FS}, v2")
    a(f"v_add_u32 v2, {FH_OFF}, v2")
    a("v_cndmask_b32 v8, v8, v2, vcc")
    a("v_lshrrev_b32 v9, 1, v1")
    a("v_lshlrev_b32 v9, 12, v9")
    a("v_and_b32 v2, 1, v1")
    a("v_lshl_add_u32 v9, v2, 4, v9")
    a(f"s_lshl_b32 s{sT0}, s{sT3}, 12")
    a(f"s_lshl_b32 s{sT1}, s{sST}, 7")
    a(f"s_add_u32 s{sT0}, s{sT0}, s{sT1}")
    a(f"s_lshl_b32 s{sT1}, s3, 5")
    a(f"s_add_u32 s{sT0}, s{sT0}, s{sT1}")
    a(f"s_add_u32 s{sT0}, s{sT0}, {YA_OFF}")
    a(f"v_add_u32 v9, s{sT0}, v9")
    a("v_cmp_lt_u32 vcc, 31, v1")
    a("v_add_u32 v10, 0x20000, v9")
    a("v_add_u32 v11, 0x40000, v9")
    a(f"v_mov_b32 v2, {BIG}")
    a("v_cndmask_b32 v11, v11, v2, vcc")
    a(f"s_mul_i32 s{sT0}, s3, 2560")
    a(f"s_add_u32 s{sT0}, s{sT0}, {PT_LDS}")
    a(f"v_lshl_add_u32 v12, v1, 4, s{sT0}")
    a(f"v_lshl_add_u32 v13, v1, 3, s{sT0}")
    a("s_setprio 0")
    lds_wait("PK_YW", 9, n=4 * (CNT + 36), sleep=4)
    a("s_setprio 3")
    spin("PK_SPIN_Y", [(7, 26), (8, 27)], sleep=E("YPOLL_SLEEP", 0))
    pstamp(a, 9)
    YL, ST_, XF, XN, T2, YR, YF = 28, 40, 44, 64, 84, 94, 104
    for t in range(3):
        vm.op(f"buffer_load_dwordx4 v[{YL+4*t}:{YL+4*t+3}], v{9+t}, {R(S_WS)}, 0 offen sc1", "ya")
    vm.op(f"buffer_load_dwordx2 v[{ST_}:{ST_+1}], v6, {R(S_WS)}, 0 offen sc1", "st")
    for i in range(10):
        a(f"v_lshlrev_b32 v{XF+2*i}, 16, v{XR+i}")
        a(f"v_and_b32 v{XF+2*i+1}, 0xffff0000, v{XR+i}")
    vm.wait("ya")
    a(f"ds_write_b128 v12, v[{YL}:{YL+3}]")
    a(f"ds_write_b128 v12, v[{YL+4}:{YL+7}] offset:1024")
    a("s_mov_b32 exec_hi, 0")
    a(f"ds_write_b128 v12, v[{YL+8}:{YL+11}] offset:2048")
    a("s_mov_b64 exec, -1")
    vm.wait("st", "lgkmcnt(0)")
    for m in range(5):
        a(f"ds_read_b64_tr_b16 v[{YR+2*m}:{YR+2*m+1}], v13 offset:{m*512}")
    a(f"v_mul_f32 v42, v{ST_}, v{ST_+1}")
    a(f"v_mul_f32 v43, v{ST_}, v{ST_+1}")
    a(f"v_mov_b32 v{ST_}, v{ST_+1}")
    for i in range(0, 20, 2):
        a(f"v_pk_fma_f32 {pk(XN+i)}, {pk(XF+i)}, {pk(ST_)}, v[42:43] neg_lo:[0,0,1] neg_hi:[0,0,1]")
    for i in range(0, 20, 2): a(f"v_cvt_pk_bf16_f32 v{T2+i//2}, v{XN+i}, v{XN+i+1}")
    for i in range(0, 20, 2):
        a(f"v_lshlrev_b32 v{XN+i}, 16, v{T2+i//2}")
        a(f"v_and_b32 v{XN+i+1}, 0xffff0000, v{T2+i//2}")
    a("s_waitcnt lgkmcnt(0)")
    for i in range(10):
        a(f"v_lshlrev_b32 v{YF+2*i}, 16, v{YR+i}")
        a(f"v_and_b32 v{YF+2*i+1}, 0xffff0000, v{YR+i}")
    for i in range(0, 20, 2): a(f"v_pk_fma_f32 {pk(XN+i)}, {pk(XN+i)}, {pk(YF+i)}, {pk(XF+i)}")
    for m in range(5):
        a(f"v_cvt_pk_bf16_f32 v{T2+2*m}, v{XN+4*m}, v{XN+4*m+1}")
        a(f"v_cvt_pk_bf16_f32 v{T2+2*m+1}, v{XN+4*m+2}, v{XN+4*m+3}")
        if m < GM: a(f"ds_write_b64 v13, v[{T2+2*m}:{T2+2*m+1}] offset:{m*512}")
    lds_arrive(15)
    pstamp(a, 10)
    if GM < 5:
        HM = list(range(GM, 5)); NH = 4 * len(HM)
        for k, m in enumerate(HM):
            for h in range(2):
                a(f"v_lshlrev_b32 v{XN+4*k+2*h}, 16, v{T2+2*m+h}")
                a(f"v_and_b32 v{XN+4*k+2*h+1}, 0xffff0000, v{T2+2*m+h}")
        a("v_lshlrev_b32 v125, 16, v124")
        a("v_lshlrev_b32 v124, 16, v124")
        a(f"s_mul_i32 s{sT0}, s3, 5120")
        a(f"v_lshl_add_u32 v12, v1, 4, s{sT0}")
        a(f"v_add_u32 v13, {2*RINGB}, v12")
        lds_wait("PK_HFW", 11)
        HP = 16; HF = 100
        for o in range(4):
            for k, m in enumerate(HM):
                r = HP + NH * o + 4 * k
                a(f"ds_read_b128 v[{r}:{r+3}], v{12+o//2} offset:{(o&1)*RINGB + m*1024}")
        for o in range(4):
            a(f"s_waitcnt lgkmcnt({len(HM)*(3-o)})")
            for i in range(0, NH, 2):
                src = "v[124:125]" if o == 0 else pk(HF + i)
                a(f"v_pk_add_f32 {pk(HF+i)}, {src}, {pk(HP+NH*o+i)}")
        for i in range(0, NH, 2): a(f"v_cvt_pk_bf16_f32 v{HP+i//2}, v{HF+i}, v{HF+i+1}")
        for i in range(0, NH, 2):
            a(f"v_lshlrev_b32 v{HF+i}, 16, v{HP+i//2}")
            a(f"v_and_b32 v{HF+i+1}, 0xffff0000, v{HP+i//2}")
        for i in range(0, NH, 2): a(f"v_pk_add_f32 {pk(HF+i)}, {pk(HF+i)}, {pk(XN+i)}")
        for k, m in enumerate(HM):
            a(f"v_cvt_pk_bf16_f32 v{HP+2*k}, v{HF+4*k}, v{HF+4*k+1}")
            a(f"v_cvt_pk_bf16_f32 v{HP+2*k+1}, v{HF+4*k+2}, v{HF+4*k+3}")
            a(f"buffer_store_dwordx2 v[{HP+2*k}:{HP+2*k+1}], v5, {R(S_OUT)}, 0 offen offset:{32*m}")
    pstamp(a, 11)
    finish_stamps("H")
    a.label("PK_END")
    a("s_endpgm")
    return a

def build():
    ref = open(f"cdna_kernels/{NAME}.s.ref").read().splitlines()
    head = []
    for l in ref:
        if l.startswith("; Override"): break
        head.append(l)
    body = gen()
    out = "\n".join(head) + "\n"
    if os.environ.get("AMP"):
        out += f"; @launch kernel={NAME}_kernel grid=({GRID},1,1) block=({BLOCK},1,1) lds={LDS_BYTES}\n"
        out += f"; @launch kernel=amp_kernel grid=(1,1,1) block=(64,1,1) lds=0\n"
        b = Asm()
        kernel_begin(b, "amp_kernel")
        b("s_cmp_ge_u32 s2, 1")
        b("s_cbranch_scc1 AMP_END")
        b("s_load_dwordx2 s[4:5], s[0:1], 96")
        b("s_waitcnt lgkmcnt(0)")
        b("s_sub_u32 s8, s4, 512")
        b("s_subb_u32 s9, s5, 0")
        b("s_mov_b32 s10, 256")
        b("s_mov_b32 s11, 0x00020000")
        b("v_mov_b32 v1, 0")
        b("buffer_load_dword v2, v1, s[8:11], 0 offen sc1")
        b("buffer_load_dword v3, v1, s[8:11], 0 offen offset:128 sc1")
        b("s_waitcnt vmcnt(0)")
        b("v_readfirstlane_b32 s12, v2")
        b("v_readfirstlane_b32 s13, v3")
        b("s_nop 3")
        b("s_not_b32 s13, s13")
        b("s_sub_u32 s12, s12, s13")
        b("s_min_u32 s12, s12, 10000")
        b(f"s_mul_i32 s12, s12, {int(os.environ['AMP'])}")
        b("s_memrealtime s[14:15]")
        b("s_waitcnt lgkmcnt(0)")
        b.label("AMP_L")
        b("s_memrealtime s[16:17]")
        b("s_waitcnt lgkmcnt(0)")
        b("s_sub_u32 s18, s16, s14")
        b("s_cmp_lt_u32 s18, s12")
        b("s_cbranch_scc1 AMP_L")
        b.label("AMP_END")
        b("s_endpgm")
    else:
        out += f"; @launch grid=({GRID},1,1) block=({BLOCK},1,1) lds={LDS_BYTES}\n"
    out += '.amdgcn_target "amdgcn-amd-amdhsa--gfx950"\n.text\n'
    out += body.text()
    if os.environ.get("AMP"): out += b.text()
    out += '.section .rodata,"a"\n' + kernel_desc(NAME + "_kernel", 256, 102, 128)
    if os.environ.get("AMP"): out += kernel_desc("amp_kernel", 8, 32)
    return out
if __name__ == "__main__":
    import sys
    out = sys.argv[1] if len(sys.argv) > 1 else f"cdna_kernels/{NAME}.s"
    open(out, "w").write(build())
    print("wrote", out)
```

```python
import os, math
from asmlib import *
from layout import *

NAME = "parallel_sum__ssm_conv_h3__mixer_token_mlp__prompt"
GRID, BLOCK, LDS_BYTES = 256, 512, 163840
NT = os.environ.get("NT", "")
BIG = 0x40000000
SPIN_MAX = 20000
E = lambda k, d: int(os.environ.get(k, d))

S_X, S_K, S_V, S_SHK, S_SSMK, S_SSMD, S_W1, S_B1, S_W2, S_B2, S_OUT, S_WS = [32 + 4 * i for i in range(12)]
def R(b): return f"s[{b}:{b+3}]"
sEP, sDT, sFT, sDT2, sST, sRING, sPOS, sWOFF, sHOFF, sKB = range(80, 90)
sT0, sT1, sT2, sT3, sCH, sCVB, sG1BIG, sKVBIG, sC1, sSPIN, sROT, sT4 = range(90, 102)
sROT2, sKB2 = sCH, sCVB

FS = E("FS", 4)
NSLOT = 7
NR1 = E("NR1", 7)
NR2 = 5
RINGB = NSLOT * 4096
AUX = 4 * RINGB
LNX = AUX
HROW = 1344
KVX = LNX + 8 * HROW
CV_K0, CV_K1, CONV_SZ = 4608, 8768, 12928
PT_LDS = AUX + 3 * CONV_SZ
CNT = PT_LDS + 4 * 2560
assert KVX + 16384 <= PT_LDS and CNT + 128 <= LDS_BYTES and KVX % 128 == 0

class VM:
    def __init__(self, a): self.a = a; self.q = []
    def op(self, ins, tag): self.a(ins); self.q.append(tag)
    def count(self, tag):
        idx = [i for i, t in enumerate(self.q) if t == tag]
        return len(self.q) - 1 - idx[-1] if idx else None
    def wait(self, tag, extra=""):
        n = self.count(tag)
        if n is None:
            if extra: self.a(f"s_waitcnt {extra}")
            return
        self.a(f"s_waitcnt vmcnt({min(n, 63)}) {extra}")
        self.q = self.q[len(self.q) - n:] if n else []
    def reset(self): self.q = []

TIMER = "s_memtime" if os.environ.get("CYC") else "s_memrealtime"
MUTE = [False]
def pstamp(a, i, force=False):
    if STAMP and (force or not MUTE[0]): a(f"{TIMER} s[{4+2*i}:{5+2*i}]")
def pk(r): return f"v[{r}:{r+1}]"

def gen():
    a = Asm()
    vm = VM(a)
    def emit(items):
        for it in items:
            if isinstance(it, list): emit(it)
            elif isinstance(it, tuple): vm.op(it[0], it[1])
            else: a(it)
    def flag_store(soff, tmp=2):
        a(f"v_mov_b32 v{tmp}, s{sEP}")
        a(f"v_mov_b32 v{tmp+1}, s{soff}")
        a("s_mov_b64 exec, 1")
        vm.op(f"buffer_store_dword v{tmp}, v{tmp+1}, {R(S_WS)}, 0 offen sc1", "flag")
        a("s_mov_b64 exec, -1")
    def spin(label, pairs, first_tag=None, sleep=0):
        def check():
            a(f"v_cmp_ne_u32 vcc, s{sEP}, v{pairs[0][1]}")
            for _, d in pairs[1:]:
                a(f"v_cmp_ne_u32 s[28:29], s{sEP}, v{d}")
                a("s_or_b64 vcc, vcc, s[28:29]")
        if first_tag:
            vm.wait(first_tag)
            check()
            a(f"s_cbranch_vccz {label}_OK")
        a(f"s_mov_b32 s{sSPIN}, 0")
        a.label(label)
        if sleep: a(f"s_sleep {sleep}", "poll back-off")
        for ad, d in pairs:
            a(f"buffer_load_dword v{d}, v{ad}, {R(S_WS)}, 0 offen sc1")
        a(f"s_add_u32 s{sSPIN}, s{sSPIN}, 1")
        a("s_waitcnt vmcnt(0)")
        check()
        a(f"s_cmp_gt_u32 s{sSPIN}, {SPIN_MAX}")
        a(f"s_cbranch_scc1 {label}_OK")
        a(f"s_cbranch_vccnz {label}")
        a.label(label + "_OK")
        if not first_tag: vm.reset()
    def lds_arrive(idx, t=2):
        a(f"v_mov_b32 v{t}, {CNT + 4*idx}")
        a(f"v_mov_b32 v{t+1}, 1")
        a("s_waitcnt lgkmcnt(0)")
        a("s_mov_b64 exec, 1")
        a(f"ds_add_u32 v{t}, v{t+1}")
        a("s_mov_b64 exec, -1")
    def own_word_add(t=2):
        a(f"s_lshl_b32 s{sT0}, s3, 2")
        a(f"s_add_u32 s{sT0}, s{sT0}, {CNT + 64}")
        a(f"v_mov_b32 v{t}, s{sT0}")
        a(f"v_mov_b32 v{t+1}, 1")
        a("s_mov_b64 exec, 1")
        a(f"ds_add_u32 v{t}, v{t+1}")
        a("s_mov_b64 exec, -1")
    def lds_wait(label, idx, n=4, t=2, sleep=0):
        a(f"v_mov_b32 v{t}, {CNT + 4*idx}")
        a(f"s_mov_b32 s{sSPIN}, 0")
        a.label(label)
        if sleep: a(f"s_sleep {sleep}", "poll back-off")
        a(f"ds_read_b32 v{t+1}, v{t}")
        a(f"s_add_u32 s{sSPIN}, s{sSPIN}, 1")
        a(f"s_cmp_gt_u32 s{sSPIN}, {1 << 21}")
        a("s_waitcnt lgkmcnt(0)")
        a(f"v_cmp_gt_u32 vcc, {n}, v{t+1}")
        a(f"s_cbranch_scc1 {label}_OK")
        a(f"s_cbranch_vccnz {label}")
        a.label(label + "_OK")
    def sbar(label, idx, t=2):
        lds_arrive(idx, t); lds_wait(label, idx, 4, t)
    def w2_scalar_prefetch(tag):
        if not E("SPF", 0): return
        a(f"s_lshr_b32 s{sT0}, s2, 3")
        a(f"s_lshl_b32 s{sT0}, s{sT0}, 2")
        a(f"s_add_u32 s{sT0}, s{sT0}, s3")
        a(f"s_mul_i32 s{sT0}, s{sT0}, {12*4096}")
        a(f"s_bfe_u32 s{sT1}, s2, 0x20001")
        a(f"s_lshl_b32 s{sT1}, s{sT1}, 10")
        a(f"s_add_u32 s{sT0}, s{sT0}, s{sT1}")
        a(f"s_add_u32 s30, s{S_W2}, s{sT0}")
        a(f"s_addc_u32 s31, s{S_W2+1}, 0")
        a(f"s_mov_b32 s{sT0}, 0")
        a.label(f"PK_SPF{tag}")
        for c in range(8):
            a(f"s_load_dword s29, s[30:31], {128*c}")
        a("s_add_u32 s30, s30, 4096")
        a("s_addc_u32 s31, s31, 0")
        a(f"s_add_u32 s{sT0}, s{sT0}, 1")
        a(f"s_cmp_lt_u32 s{sT0}, 12")
        a(f"s_cbranch_scc1 PK_SPF{tag}")
        a("s_waitcnt lgkmcnt(0)")
    def read_epoch(vdata):
        vm.wait("ep")
        a(f"v_readfirstlane_b32 s{sEP}, v{vdata}")
        a("s_nop 3")
        a(f"s_mul_i32 s{sEP}, s{sEP}, 1664525")
        a(f"s_add_u32 s{sEP}, s{sEP}, 1013904223")
    def finish_stamps(role='X'):
        if not STAMP: return
        a("s_waitcnt vmcnt(0)")
        a(f"{TIMER} s[28:29]")
        a("s_waitcnt lgkmcnt(0)")
        if os.environ.get("AMP") and role == os.environ.get("AMPROLE", "G"):
            a("s_load_dwordx2 s[30:31], s[0:1], 96")
            a("s_waitcnt lgkmcnt(0)")
            srd(a, S_K, 30, 256)
            a("s_cmp_lg_u32 s3, 0")
            a(f"s_cbranch_scc1 AMPSKIP{role}")
            a("v_mov_b32 v1, 0")
            a("s_mov_b64 exec, 1")
            a(f"v_mov_b32 v2, s{4+2*int(os.environ['AMPIDX'])}")
            a(f"buffer_atomic_umax v2, v1, {R(S_K)}, 0 offen")
            a("s_not_b32 s4, s4")
            a("v_mov_b32 v2, s4")
            a(f"buffer_atomic_umax v2, v1, {R(S_K)}, 0 offen offset:128")
            a("s_not_b32 s4, s4")
            a("s_mov_b64 exec, -1")
            a.label(f"AMPSKIP{role}")
        a("s_load_dwordx2 s[30:31], s[0:1], 104")
        a("s_waitcnt lgkmcnt(0)")
        srd(a, S_X, 30, 1 << 20, 16 << 20)
        a(f"s_lshl_b32 s{sT0}, s2, 9")
        a("v_lshrrev_b32 v1, 6, v0")
        a(f"v_lshl_add_u32 v1, v1, 6, s{sT0}")
        a("s_mov_b64 exec, 1")
        for i in range(13):
            a(f"v_mov_b32 v2, s{4+2*i}")
            a(f"buffer_store_dword v2, v1, {R(S_X)}, 0 offen offset:{4*i}")

    kernel_begin(a, NAME + "_kernel")
    a(f"s_cmp_ge_u32 s2, {GRID}")
    a("s_cbranch_scc1 PK_END")
    a("s_load_dwordx8 s[4:11], s[0:1], 0", "x k v shift_k")
    a("s_load_dwordx2 s[26:27], s[0:1], 104", "ws")
    a("s_load_dwordx8 s[16:23], s[0:1], 56", "w1 b1 w2 b2")
    a("s_load_dwordx4 s[12:15], s[0:1], 32", "ssm_k ssm_D")
    a("s_load_dwordx2 s[24:25], s[0:1], 88", "out")
    if STAMP: a(f"{TIMER} s[30:31]")
    a("v_lshrrev_b32 v2, 6, v0")
    a("v_and_b32 v1, 63, v0", "lane")
    a(f"v_readfirstlane_b32 s{sT4}, v2", "wave 0..7")
    a("v_lshlrev_b32 v3, 2, v1", "lane*4")
    a(f"v_and_b32 v4, 124, v3")
    a(f"v_add_u32 v4, {CNT}, v4")
    a("v_mov_b32 v5, 0")
    a("ds_write_b32 v4, v5", "zero the 16 lds counters")
    a(f"s_and_b32 s3, s{sT4}, 3", "w within the role")
    a(f"s_and_b32 s{sT0}, s2, 7", "x")
    a(f"s_lshr_b32 s{sT1}, s2, 3", "j")
    a(f"s_and_b32 s{sT2}, s{sT0}, 1")
    a(f"s_lshl_b32 s{sDT2}, s{sT2}, 2")
    a(f"s_and_b32 s{sT3}, s{sT1}, 3")
    a(f"s_add_u32 s{sDT2}, s{sDT2}, s{sT3}", "dt2")
    a(f"s_lshr_b32 s{sT0}, s{sT0}, 1")
    a(f"s_lshl_b32 s{sST}, s{sT0}, 3")
    a(f"s_lshr_b32 s{sT3}, s{sT1}, 2")
    a(f"s_add_u32 s{sST}, s{sST}, s{sT3}", "st")
    if E("MAP2", 0):
        a(f"s_and_b32 s{sDT2}, s{sT1}, 7")
        a(f"s_and_b32 s{sST}, s2, 7")
        a(f"s_lshl_b32 s{sST}, s{sST}, 2")
        a(f"s_lshr_b32 s{sT3}, s{sT1}, 3")
        a(f"s_add_u32 s{sST}, s{sST}, s{sT3}")
    a(f"v_mov_b32 v8, {EPOCH_OFF}")
    a(f"s_cmp_lt_u32 s{sT4}, 4")
    a("s_cbranch_scc1 PK_G")
    a("s_setprio 3")
    a(f"s_lshl_b32 s{sT0}, s2, 2")
    a(f"s_add_u32 s{sT0}, s{sT0}, s3")
    a(f"s_mul_i32 s{sT4}, s{sT0}, 2560", "x soffset")
    a("s_waitcnt lgkmcnt(0)")
    srd(a, S_X, 4, SD_BYTES)
    for r in range(2):
        for i in range(5):
            a(f"buffer_load_dword v{16+5*r+i}, v3, {R(S_X)}, s{sT4} offen offset:{r*1280+i*256} {NT}")
    a("s_barrier", "lds counters zeroed")
    a("s_branch PK_H")
    a.label("PK_G")
    a("s_getpc_b64 s[28:29]")
    a.label("PK_PC")
    a(f"s_sub_u32 s28, s28, PK_PC-{NAME}_kernel")
    a("s_subb_u32 s29, s29, 0")
    a("v_and_b32 v9, 7, v0")
    a(f"s_andn2_b32 s{sT3}, s2, 7")
    a(f"v_add_lshl_u32 v9, v9, s{sT3}, 7")
    a(f"v_min_u32 v9, PK_END-{NAME}_kernel, v9")
    a("global_load_dword v127, v9, s[28:29]")

    a("s_setprio 1")
    a(f"s_mul_hi_u32 s{sFT}, s{sT1}, 0x33333334", "j/5")
    a(f"s_mul_i32 s{sT3}, s{sFT}, 5")
    a(f"s_sub_u32 s{sDT}, s{sT1}, s{sT3}", "j%5")
    a(f"s_mul_i32 s{sROT}, s{sDT}, 13")
    a(f"s_lshr_b32 s{sROT}, s{sROT}, 2", "rot = 3.25*dt_local")
    if not E("ROT", 1): a(f"s_mov_b32 s{sROT}, 0")
    if E("ROT", 1) == 2:
        a(f"s_add_u32 s{sROT}, s{sDT}, s{sFT}")
        a(f"s_sub_u32 s{sT3}, s{sROT}, 6")
        a(f"s_min_u32 s{sROT}, s{sROT}, s{sT3}")
        a(f"s_mul_i32 s{sROT}, s{sROT}, 11")
        a(f"s_lshr_b32 s{sROT}, s{sROT}, 2", "2.75 * index")
    a(f"s_mul_i32 s{sT3}, s{sT2}, 5")
    a(f"s_add_u32 s{sDT}, s{sDT}, s{sT3}", "dt")
    a(f"s_mul_i32 s{sT3}, s{sT0}, 6")
    a(f"s_add_u32 s{sFT}, s{sFT}, s{sT3}", "ft")
    if E("MAP1", 1):
        a(f"s_mul_hi_u32 s{sFT}, s{sT1}, 0x1999999a", "j/10")
        a(f"s_mul_i32 s{sT3}, s{sFT}, 10")
        a(f"s_sub_u32 s{sDT}, s{sT1}, s{sT3}")
        a(f"s_and_b32 s{sT3}, s2, 7")
        a(f"s_mul_i32 s{sT3}, s{sT3}, 3")
        a(f"s_add_u32 s{sFT}, s{sFT}, s{sT3}")
        a(f"s_mul_i32 s{sROT}, s{sDT}, 13")
        a(f"s_lshr_b32 s{sROT}, s{sROT}, 3", "1.625*dt")
    a(f"s_cmp_ge_u32 s{sT1}, 30")
    a(f"s_cselect_b32 s{sG1BIG}, {BIG}, 0")
    a(f"s_mul_i32 s{sRING}, s3, {RINGB}")
    a(f"s_lshl_b32 s{sKB}, s3, 4")
    a(f"s_mov_b32 s{sPOS}, s{sROT}")
    a("v_lshrrev_b32 v2, 3, v1")
    a("v_mul_u32_u24 v4, 3072, v2")
    a("v_bfe_u32 v2, v1, 4, 1")
    a("v_lshlrev_b32 v2, 2, v2")
    a("v_and_b32 v3, 7, v1")
    a("v_xor_b32 v2, v2, v3")
    a("v_lshl_add_u32 v4, v2, 4, v4")
    a(f"s_lshl_b32 s{sT1}, s{sFT}, 7")
    a(f"s_add_u32 s{sT1}, s{sT1}, s{sG1BIG}")
    a(f"v_add_u32 v4, s{sT1}, v4")
    for q in range(1, 4):
        a(f"v_add_u32 v{4+q}, {q*(24576-1024)}, v4")
    a("s_waitcnt lgkmcnt(0)")
    srd(a, S_W1, 16, S * F * 2)
    a("s_barrier", "lds counters zeroed")
    def w1_stage(i):
        items = [f"s_add_u32 s{sWOFF}, s{sKB}, s{sPOS}", f"s_mul_i32 s{sWOFF}, s{sWOFF}, 98304",
                 f"s_add_u32 m0, s{sRING}, {(i % NSLOT)*4096}", f"s_add_u32 s{sPOS}, s{sPOS}, 1", f"s_and_b32 s{sPOS}, s{sPOS}, 15"]
        for q in range(4):
            items.append((f"buffer_load_dwordx4 v{4+q}, {R(S_W1)}, s{sWOFF} offen offset:{q*1024} lds", f"w1_{i}"))
        return items
    def w1_tr(i):
        out = []
        for kh in range(2):
            for mt in range(2):
                for h in range(2):
                    r = 16 * (i % NR1) + 4 * (2 * kh + mt) + 2 * h
                    out.append(f"ds_read_b64_tr_b16 a[{r}:{r+1}], v{10+mt} offset:{(i % NSLOT)*4096 + kh*2048 + h*512}")
        return out
    WD = E("WD", 2)
    for i in range(WD): emit(w1_stage(i))
    srd(a, S_WS, 26, WS_USED, E("WSMB", 0) << 20)
    vm.op(f"buffer_load_dword v9, v8, {R(S_WS)}, 0 offen sc1", "ep")
    srd(a, S_W2, 20, S * F * 2)
    srd(a, S_B2, 22, S * 2)
    srd(a, S_OUT, 24, SD_BYTES)
    if STAMP:
        a("s_mov_b32 s4, s30"); a("s_mov_b32 s5, s31")
    pstamp(a, 1)
    a("v_lshrrev_b32 v2, 5, v1")
    a("v_lshlrev_b32 v10, 10, v2")
    a("v_mul_u32_u24 v12, 10240, v2")
    a("v_bfe_u32 v2, v1, 2, 2")
    a("v_lshl_add_u32 v10, v2, 7, v10")
    a("v_bfe_u32 v2, v1, 3, 1")
    a("v_lshl_add_u32 v10, v2, 6, v10")
    a("v_bfe_u32 v2, v1, 4, 1")
    a("v_lshl_add_u32 v10, v2, 5, v10")
    a("v_and_b32 v2, 3, v1")
    a("v_lshl_add_u32 v10, v2, 3, v10")
    a(f"v_add_u32 v10, s{sRING}, v10")
    a("v_xor_b32 v11, 64, v10")
    a("v_and_b32 v2, 31, v1")
    a("v_lshl_add_u32 v12, v2, 4, v12")
    a(f"s_lshl_b32 s{sT0}, s{sDT}, 10")
    a(f"s_add_u32 s{sT0}, s{sT0}, s{sG1BIG}")
    if HBLK_OFF: a(f"s_add_u32 s{sT0}, s{sT0}, {HBLK_OFF}")
    a(f"v_add_u32 v12, s{sT0}, v12")
    a("v_add_u32 v13, 20480, v12")
    a(f"s_and_b32 s{sT0}, s{sDT}, 3")
    a(f"s_lshl_b32 s{sT0}, s{sT0}, {8+FS}")
    a(f"s_add_u32 s{sT0}, s{sT0}, {FH_OFF}")
    a(f"v_lshl_add_u32 v14, v0, {FS}, s{sT0}")
    a(f"s_and_b32 s{sROT2}, s{sDT2}, 3")
    a(f"s_mul_i32 s{sROT2}, s{sROT2}, 3")
    if E("MAP2", 0):
        a(f"s_mul_i32 s{sROT2}, s{sDT2}, 3")
        a(f"s_lshr_b32 s{sROT2}, s{sROT2}, 1")
    if E("ROT2", 1) == 2:
        a(f"s_and_b32 s{sT0}, s{sST}, 7")
        a(f"s_mul_i32 s{sT0}, s{sT0}, 3")
        a(f"s_lshr_b32 s{sT0}, s{sT0}, 1")
        a(f"s_add_u32 s{sROT2}, s{sROT2}, s{sT0}")
        a(f"s_sub_u32 s{sT0}, s{sROT2}, 12")
        a(f"s_min_u32 s{sROT2}, s{sROT2}, s{sT0}")
    a(f"s_mul_i32 s{sKB2}, s3, 12")
    c0 = -2.0 * math.sqrt(2.0 / math.pi) * math.log2(math.e)
    a(f"s_mov_b32 s{sC1}, {f32(c0*0.044715)}")
    if E("W2PF", 0):
        a(f"s_cmp_lg_u32 s{sG1BIG}, 0")
        a("s_cbranch_scc1 PK_G_PF")
    NPRE = NR1 + NSLOT
    BURST = E("BURST", 1)
    last = NR1 if BURST else NPRE - WD + 1
    for i in range(last):
        vm.wait(f"w1_{i}")
        if i < NR1: emit(w1_tr(i))
        nx = i + WD
        if nx < NPRE:
            if nx >= NSLOT:
                later = sum(1 for k in range(nx - NSLOT + 1, i + 1) if k < NR1)
                a(f"s_waitcnt lgkmcnt({8 if later else 0})")
            emit(w1_stage(nx))
        if i == WD:
            read_epoch(9); lds_arrive(6)
    EARLY = E("EARLY", 0); NP0 = E("NP0", 10)
    sLATE = 31
    if BURST:
        a("s_waitcnt lgkmcnt(0)")
        if EARLY:
            assert NR1 == 7
            vm.op(f"buffer_load_dword v15, v14, {R(S_WS)}, 0 offen sc1", "hpoll0")
            for nx in range(NR1 - 1 + WD + 1, NP0): emit(w1_stage(nx))
            lds_wait("PK_B1W", 1)
            vm.wait("hpoll0")
            a(f"v_cmp_ne_u32 vcc, s{sEP}, v15")
            a(f"s_mov_b32 s{sLATE}, 1")
            pstamp(a, 2)
            a("s_cbranch_vccz PK_SPIN_H_OK")
            a(f"s_mov_b32 s{sLATE}, 0")
            keep = list(vm.q)
            for nx in range(NP0, NPRE): emit(w1_stage(nx))
            vm.q = keep
        else:
            for nx in range(NR1 - 1 + WD + 1, NPRE): emit(w1_stage(nx))
    if E("W1ONLY", 0):
        a("s_waitcnt vmcnt(0)")
        for i in range(2, 12): pstamp(a, i)
        finish_stamps()
        a("s_endpgm")
    if EARLY:
        keep = list(vm.q)
        spin("PK_SPIN_H", [(14, 15)])
        vm.q = keep
    else:
        vm.op(f"buffer_load_dword v15, v14, {R(S_WS)}, 0 offen sc1", "hpoll")
        lds_wait("PK_B1W", 1)
        pstamp(a, 2)
        spin("PK_SPIN_H", [(14, 15)], "hpoll", sleep=E("HPOLL_SLEEP", 4))
    if E("GBAR1", 0): sbar("PK_GB1", 13)
    pstamp(a, 3)
    a("s_setprio 2")
    ACC = 64
    HB = [("v", 16), ("v", 32), ("v", 48)] + [("a", 16 * k) for k in range(NR1, 8)]
    HD = len(HB)
    HB = HB[-((16 - 0) % HD or HD):] + HB[:-((16 - 0) % HD or HD)] if False else HB
    def hreg(i, kh, nt):
        f, b = HB[(i + HSH) % HD]
        r = b + 4 * (2 * kh + nt)
        return f"{f}[{r}:{r+3}]"
    HSH = (1 - 13) % HD
    sHP = sKVBIG
    a(f"s_mov_b32 s{sHP}, s{sROT}")
    def h_adv():
        return [f"s_add_u32 s{sHOFF}, s{sKB}, s{sHP}", f"s_mul_i32 s{sHOFF}, s{sHOFF}, 40960",
                f"s_add_u32 s{sHP}, s{sHP}, 1", f"s_and_b32 s{sHP}, s{sHP}, 15"]
    def hload(i, nt, kh):
        return (f"buffer_load_dwordx4 {hreg(i, kh, nt)}, v{12+kh}, {R(S_WS)}, s{sHOFF} offen offset:{nt*512} {os.environ.get('HFLAG', 'sc1')}", f"h{i}_{kh}{nt}")
    HPRE = E("HPRE", HD)
    for i in range(HPRE):
        emit(h_adv())
        for kh in range(2):
            for nt in range(2): emit([hload(i, nt, kh)])
    a("s_waitcnt lgkmcnt(0)")
    def pos2(i):
        return [f"s_add_u32 s{sT0}, s{sROT2}, {i}", f"s_sub_u32 s{sT1}, s{sT0}, 12", f"s_min_u32 s{sT0}, s{sT0}, s{sT1}",
                f"s_add_u32 s{sT0}, s{sT0}, s{sKB2}"]
    def w2_slot(i): return i % NSLOT
    def w2_dma(i):
        items = pos2(i) + [f"s_add_u32 m0, s{sRING}, {w2_slot(i)*4096}", f"s_lshl_b32 s{sWOFF}, s{sT0}, 17"]
        for q in range(4):
            items.append((f"buffer_load_dwordx4 v{4+q}, {R(S_W2)}, s{sWOFF} offen offset:{q*1024} lds", f"w2_{i}"))
        return items
    BB = 16
    for i in range(16):
        nx = i + HPRE
        if E("G1STEPS", 0):
            MUTE[0] = True
            if i in (1, 3, 5, 7, 9, 11, 13): pstamp(a, 4 + i // 2, True)
        if nx < 16: emit(h_adv())
        side = []
        if EARLY:
            if 4 <= i <= 12:
                if i + 3 < NP0: vm.wait(f"w1_{i+3}")
                side = w1_tr(i + 3)
            if i >= 6: a("s_waitcnt lgkmcnt(8)" if i <= 13 else "s_waitcnt lgkmcnt(0)")
            if NP0 + i <= 13:
                a(f"s_cmp_eq_u32 s{sLATE}, 0")
                a(f"s_cbranch_scc1 PK_NOLATE{i}")
                keep = list(vm.q); emit(w1_stage(NP0 + i)); vm.q = keep
                a.label(f"PK_NOLATE{i}")
            if i in (6, 7): emit(w1_stage(8 + i))
        else:
            st_tr = NR1 - 1 + i
            if i >= 1 and st_tr < 16:
                vm.wait(f"w1_{st_tr}")
                side = w1_tr(st_tr)
            st_ld = NPRE + i - 3
            if i >= 3 and st_ld < 16:
                a("s_waitcnt lgkmcnt(8)")
                emit(w1_stage(st_ld))
            elif i >= NR1:
                a("s_waitcnt lgkmcnt(8)" if NR1 - 1 + i - 1 < 16 else "s_waitcnt lgkmcnt(0)")
        if E("KV_LATE", 0) and i == E("KV_LATE", 0):
            a(f"v_mov_b32 v2, {CNT + 48}")
            a("s_mov_b64 exec, 1")
            a("ds_add_u32 v2, v2")
            a("s_mov_b64 exec, -1")
        if i == 12:
            side = side + ["v_lshrrev_b32 v2, 3, v1", "v_lshlrev_b32 v4, 12, v2", "v_bfe_u32 v2, v1, 4, 1", "v_lshlrev_b32 v2, 1, v2",
                    "v_and_b32 v3, 7, v1", "v_xor_b32 v2, v2, v3", "v_lshl_add_u32 v4, v2, 4, v4", f"s_lshl_b32 s{sT0}, s{sST}, 7",
                    f"v_add_u32 v4, s{sT0}, v4", "v_xor_b32 v2, 64, v4", f"v_add_u32 v5, {1*(32768-1024)}, v2",
                    f"v_add_u32 v6, {2*(32768-1024)}, v4", f"v_add_u32 v7, {3*(32768-1024)}, v2",
                    ]
        if i == E("KGO", 11): lds_arrive(10)
        if E("CEARLY", 0) and i == E("PAUSE_AT", 14): own_word_add()
        if i == 13:
            side = [f"s_add_u32 s{sT2}, s{sRING}, {3*4096}", f"v_lshl_add_u32 v9, v1, 4, s{sT2}",
                    f"s_lshl_b32 s{sT2}, s3, 12", f"s_add_u32 s{sT2}, s{sT2}, {3*4096}", f"v_lshl_add_u32 v10, v1, 4, s{sT2}",
                    f"v_add_u32 v11, {2*RINGB}, v10",
                    f"s_lshr_b32 s{sT0}, s3, 1", f"s_lshl_b32 s{sT0}, s{sT0}, 6", f"s_add_u32 s{sT0}, s{sT0}, {PT_LDS}",
                    "v_lshrrev_b32 v8, 5, v1", f"v_lshl_add_u32 v8, v8, 3, s{sT0}",
                    f"s_lshr_b32 s{sT0}, s3, 1", f"s_lshl_b32 s{sT0}, s{sT0}, 2", f"s_lshl_b32 s{sT1}, s{sFT}, 3",
                    f"s_add_u32 s{sT0}, s{sT0}, s{sT1}", f"s_mul_i32 s{sT0}, s{sT0}, 10240", f"s_and_b32 s{sT1}, s3, 1",
                    f"s_lshl_b32 s{sT1}, s{sT1}, 9", f"s_add_u32 s{sT0}, s{sT0}, s{sT1}",
                    f"s_add_u32 s{sT0}, s{sT0}, {UBLK_OFF - HBLK_OFF - 20480}", f"v_add_u32 v14, s{sT0}, v13", "v_add_u32 v15, 20480, v14",
                    f"v_mov_b32 v13, {f32(c0)}", "s_mov_b32 s28, 1.0", "s_mov_b32 s29, 1.0"]
        if i == 14:
            side = [f"ds_read_b64 v[{32+2*q}:{33+2*q}], v8 offset:{16*q}" for q in range(4)]
        if i == 15:
            for kh in range(2):
                for nt in range(2): vm.wait(f"h{i}_{kh}{nt}")
            def mf(t_):
                mt, nt = t_ >> 1, t_ & 1
                t = ACC + 16 * t_
                for kh in range(2):
                    wr = 16 * (i % NR1) + 4 * (2 * kh + mt)
                    a(f"v_mfma_f32_32x32x16_bf16 v[{t}:{t+15}], a[{wr}:{wr+3}], {hreg(i, kh, nt)}, v[{t}:{t+15}]")
            def wr_(t_):
                for q in range(4):
                    r = ACC + 16 * t_ + 4 * q
                    a(f"ds_write_b128 v9, v[{r}:{r+3}] offset:{t_*4096 + q*1024}")
            FIN = 48
            mf(0); mf(1)
            a("s_waitcnt lgkmcnt(0)")
            for q in range(0, 10, 2):
                a(f"v_lshlrev_b32 v{FIN+q}, 16, v{32+q//2}")
                a(f"v_and_b32 v{FIN+q+1}, 0xffff0000, v{32+q//2}")
            wr_(0); mf(2); wr_(1); mf(3)
            for q in range(10, 16, 2):
                a(f"v_lshlrev_b32 v{FIN+q}, 16, v{32+q//2}")
                a(f"v_and_b32 v{FIN+q+1}, 0xffff0000, v{32+q//2}")
            wr_(2)
            a("s_nop 1")
            wr_(3)
            continue
        k = 0; si = 0
        for kh in range(2):
            for nt in range(2):
                vm.wait(f"h{i}_{kh}{nt}")
                for mt in range(2):
                    t = ACC + 16 * (2 * mt + nt)
                    wr = 16 * (i % NR1) + 4 * (2 * kh + mt)
                    c = "0" if (i == 0 and kh == 0) else f"v[{t}:{t+15}]"
                    if not E("NOMF1", 0): a(f"v_mfma_f32_32x32x16_bf16 v[{t}:{t+15}], a[{wr}:{wr+3}], {hreg(i, kh, nt)}, {c}")
                    k += 1
                    while si < (len(side) * k + 7) // 8:
                        emit([side[si]]); si += 1
                if nx < 16: emit([hload(nx, nt, kh)])
    pstamp(a, 4)
    if E("G1STEPS", 0): pstamp(a, 11, True)
    lds_arrive(4)
    H3L = E("H3L", 0)
    W2AF = E("W2AF", 0)
    if not H3L and not W2AF: emit(w2_dma(0)); emit(w2_dma(1))
    lds_wait("PK_XW1", 4)
    PT = 64
    for o in range(4):
        for q in range(4):
            r = PT + 16 * o + 4 * q
            a(f"ds_read_b128 v[{r}:{r+3}], v{10+o//2} offset:{(o&1)*RINGB + q*1024}")
    for o in range(4):
        a(f"s_waitcnt lgkmcnt({12-4*o})")
        for i in range(0, 16, 2):
            a(f"v_pk_add_f32 {pk(FIN+i)}, {pk(FIN+i)}, {pk(PT+16*o+i)}")
    lds_arrive(5)
    T = 64
    for i in range(0, 16, 2): a(f"v_pk_mul_f32 {pk(T+i)}, {pk(FIN+i)}, {pk(FIN+i)}")
    for i in range(16): a(f"v_fma_f32 v{T+i}, v{T+i}, s{sC1}, v13")
    for i in range(0, 16, 2): a(f"v_pk_mul_f32 {pk(T+i)}, {pk(T+i)}, {pk(FIN+i)}")
    for i in range(16): a(f"v_exp_f32 v{T+i}, v{T+i}")
    if E("W2MID", 0): emit(w2_dma(2))
    for i in range(0, 16, 2): a(f"v_pk_add_f32 {pk(T+i)}, {pk(T+i)}, s[28:29]")
    for i in range(16): a(f"v_rcp_f32 v{T+i}, v{T+i}")
    for i in range(0, 16, 2): a(f"v_pk_mul_f32 {pk(FIN+i)}, {pk(FIN+i)}, {pk(T+i)}")
    P = T + 16
    for i in range(0, 16, 2): a(f"v_cvt_pk_bf16_f32 v{P+i//2}, v{FIN+i}, v{FIN+i+1}")
    a("s_nop 1")
    for qp in range(2):
        r = P + 4 * qp
        a(f"v_permlane32_swap_b32 v{r}, v{r+2}")
        a(f"v_permlane32_swap_b32 v{r+1}, v{r+3}")
        vm.op(f"buffer_store_dwordx4 v[{r}:{r+3}], v{14+qp}, {R(S_WS)}, 0 offen sc1", "ust")
    a.label("PK_G_W2")
    pstamp(a, 5)
    if E("CEARLY", 0): own_word_add()
    lds_arrive(8)
    a(f"s_lshl_b32 s{sT0}, s{sDT}, 1")
    a(f"s_and_b32 s{sT1}, s3, 1")
    a(f"s_add_u32 s{sT0}, s{sT0}, s{sT1}")
    a(f"s_mul_i32 s{sT0}, s{sT0}, 48")
    a(f"s_lshl_b32 s{sT1}, s{sFT}, 1")
    a(f"s_add_u32 s{sT0}, s{sT0}, s{sT1}")
    a(f"s_lshr_b32 s{sT1}, s3, 1")
    a(f"s_add_u32 s{sT0}, s{sT0}, s{sT1}")
    a(f"s_lshl_b32 s{sT0}, s{sT0}, {FS}")
    a(f"s_add_u32 s{sT0}, s{sT0}, {FU_OFF}")
    a(f"s_add_u32 s{sT4}, s{sT0}, s{sG1BIG}")
    TR2 = 100
    a("v_lshrrev_b32 v106, 4, v1", "g")
    a("v_and_b32 v107, 15, v1", "n")
    a(f"v_lshlrev_b32 v{TR2}, 10, v106")
    a("v_bfe_u32 v2, v1, 2, 2")
    a(f"v_lshl_add_u32 v{TR2}, v2, 7, v{TR2}")
    a("v_bfe_u32 v2, v1, 3, 2")
    a(f"v_lshl_add_u32 v{TR2}, v2, 5, v{TR2}")
    a("v_and_b32 v2, 3, v1")
    a(f"v_lshl_add_u32 v{TR2}, v2, 3, v{TR2}")
    a(f"v_add_u32 v{TR2}, s{sRING}, v{TR2}")
    for j in range(1, 4): a(f"v_xor_b32 v{TR2+j}, {32*j}, v{TR2}")
    a("v_min_u32 v2, 35, v1")
    a("v_mul_u32_u24 v3, 43, v2")
    a("v_lshrrev_b32 v3, 9, v3")
    a("v_mul_u32_u24 v104, 36, v3")
    a("v_add_u32 v104, v104, v2")
    a(f"s_mul_i32 s{sT3}, s{sDT2}, 80", "d0")
    a(f"s_lshr_b32 s{sT0}, s{sT3}, 5")
    a(f"s_mul_i32 s{sT0}, s{sT0}, 48")
    a(f"s_add_u32 s{sT0}, s{sT0}, s{sKB2}")
    a(f"s_lshl_b32 s{sT0}, s{sT0}, {FS}")
    a(f"s_add_u32 s{sT0}, s{sT0}, {FU_OFF}")
    a(f"v_lshl_add_u32 v104, v104, {FS}, s{sT0}")
    a("v_mul_u32_u24 v105, 10240, v106")
    a("v_lshl_add_u32 v105, v107, 4, v105")
    a(f"s_lshl_b32 s{sT0}, s{sT3}, 4")
    a(f"s_add_u32 s{sT0}, s{sT0}, {UBLK_OFF}")
    a(f"v_add_u32 v105, s{sT0}, v105")
    def w2_tr(i, tr):
        out = []
        for j in range(4):
            for h in range(2):
                r = 16 * (i % NR2) + 4 * j + 2 * h
                out.append(f"ds_read_b64_tr_b16 a[{r}:{r+1}], v{tr+j} offset:{w2_slot(i)*4096 + h*512}")
        return out
    if H3L:
        lds_wait("PK_XW2", 5, n=5)
        for k in range(3): emit(w2_tr(k, TR2))
        vm.wait("ust")
        flag_store(sT4)
        pstamp(a, 6)
        emit(w2_dma(3)); emit(w2_dma(4))
        a("s_waitcnt lgkmcnt(0)")
    else:
        if not W2AF:
            vm.wait("w2_1")
            for k in range(2): emit(w2_tr(k, TR2))
        lds_wait("PK_XW2", 5)
        vm.wait("ust")
        flag_store(sT4)
        pstamp(a, 6)
        if W2AF: emit(w2_dma(0)); emit(w2_dma(1))
        if not E("W2MID", 0): emit(w2_dma(2))
        emit(w2_dma(3)); emit(w2_dma(4))
        vm.wait("w2_2")
        if W2AF:
            for k in range(2): emit(w2_tr(k, TR2))
        emit(w2_tr(2, TR2))
        a("s_waitcnt lgkmcnt(0)")
    if E("BURST2", 1):
        for nx in range(5, 10): emit(w2_dma(nx))
        for i in (3, 4):
            vm.wait(f"w2_{i}"); emit(w2_tr(i, TR2))
        a("s_waitcnt lgkmcnt(0)")
        emit(w2_dma(10)); emit(w2_dma(11))
        vm.op(f"buffer_load_dword v108, v104, {R(S_WS)}, 0 offen sc1", "upoll")
    else:
      for i in range(3, 12):
        nx = i + 2
        if nx < 12:
            if nx >= 9: a("s_waitcnt lgkmcnt(0)")
            emit(w2_dma(nx))
        vm.wait(f"w2_{i}")
        if i < NR2: emit(w2_tr(i, TR2))
        if i == E("UPOLL_AT", 10):
            vm.op(f"buffer_load_dword v108, v104, {R(S_WS)}, 0 offen sc1", "upoll")
    for j in range(4): a(f"v_mov_b32 v{4+j}, v{TR2+j}")
    a("v_mul_u32_u24 v109, 26, v1")
    a("v_lshrrev_b32 v109, 8, v109", "L/10")
    a("v_mul_u32_u24 v110, 10, v109")
    a("v_sub_u32 v110, v1, v110", "L%10")
    a("v_min_u32 v109, 5, v109")
    a("v_mul_u32_u24 v109, 10240, v109")
    a("v_lshl_add_u32 v109, v110, 7, v109")
    a(f"s_and_b32 s{sT0}, s{sST}, 7")
    a(f"s_mul_i32 s{sT0}, s{sT0}, 6")
    a(f"s_mul_i32 s{sT1}, s3, 48")
    a(f"s_add_u32 s{sT0}, s{sT0}, s{sT1}")
    a(f"s_mul_i32 s{sT0}, s{sT0}, 10240")
    a(f"s_mul_i32 s{sT1}, s{sDT2}, 1280")
    a(f"s_add_u32 s{sT0}, s{sT0}, s{sT1}")
    a(f"s_add_u32 s{sT0}, s{sT0}, {UBLK_OFF}")
    a(f"v_add_u32 v109, s{sT0}, v109")
    a("v_mov_b32 v3, v105")
    pstamp(a, 7)
    spin("PK_SPIN_U", [(104, 108)], "upoll" if vm.count("upoll") is not None else "x", sleep=E("UPOLL_SLEEP", 4))
    if E("GBAR2", 0): sbar("PK_GB2", 14, t=110)
    pstamp(a, 8)
    if E("G2STEPS", 0): pstamp(a, 1, True)
    ACC2 = 48
    UB = [("a", 100), ("v", 8), ("v", 28), ("a", 80)]; UD = 4
    def ureg(i, m):
        f, b = UB[i % UD]
        return f"{f}[{b+4*m}:{b+4*m+3}]"
    def u_adv(i): return pos2(i) + [f"s_mul_i32 s{sHOFF}, s{sT0}, 40960"]
    def uload(i, m):
        return (f"buffer_load_dwordx4 {ureg(i, m)}, v3, {R(S_WS)}, s{sHOFF} offen offset:{m*256} sc1", f"u{i}_{m}")
    UPRE = E("UPRE", UD)
    for i in range(UPRE):
        emit(u_adv(i))
        for m in range(5): emit([uload(i, m)])
        if i == 0 and E("TOUCH", 0):
            vm.op(f"buffer_load_dword a127, v109, {R(S_WS)}, 0 offen sc1", "touch")
    a("s_waitcnt lgkmcnt(0)")
    for i in range(12):
        nx = i + UPRE
        if E("G2STEPS", 0):
            MUTE[0] = True
            if i in (0, 1, 3, 5, 7, 9, 11): pstamp(a, 2 + (i + 1) // 2, True)
        if nx < 12: emit(u_adv(nx))
        side = w2_tr(NR2 - 1 + i, 4) if (i >= 1 and NR2 - 1 + i < 12) else []
        if NR2 <= i <= 8: a("s_waitcnt lgkmcnt(8)")
        if i == 9: a("s_waitcnt lgkmcnt(0)")
        if i == E("YGO", 7):
            a(f"v_mov_b32 v2, {CNT + 36}")
            a("s_mov_b64 exec, 1")
            a("ds_add_u32 v2, v2", "counter 9 += its own address")
            a("s_mov_b64 exec, -1")
        if i == 10:
            side = ["v_lshrrev_b32 v8, 4, v1", "v_and_b32 v9, 15, v1",
                    f"s_lshl_b32 s{sT0}, s{sST}, 6", f"s_lshl_b32 s{sT1}, s3, 4", f"s_add_u32 s{sT0}, s{sT0}, s{sT1}",
                    f"v_add_u32 v9, s{sT0}, v9", "v_mul_u32_u24 v10, 1280, v9", "v_lshl_add_u32 v10, v8, 3, v10",
                    f"s_mul_i32 s{sT0}, s{sDT2}, 160", f"v_add_u32 v10, s{sT0}, v10", "v_lshlrev_b32 v9, 1, v9",
                    (f"buffer_load_ushort v16, v9, {R(S_B2)}, 0 offen", "b2"),
                    f"v_lshl_add_u32 v11, v1, 4, s{sRING}",
                    f"s_mul_i32 s{sT0}, s3, 2560", f"s_add_u32 s{sT0}, s{sT0}, {PT_LDS}", f"v_lshl_add_u32 v15, v1, 3, s{sT0}",
                    f"s_mul_i32 s{sT0}, s3, 5120", f"v_lshl_add_u32 v12, v1, 4, s{sT0}", f"v_add_u32 v13, {2*RINGB}, v12"]
        TL2 = E("TL2", 2)
        if i > 12 - TL2: continue
        if i == 12 - TL2:
            assert nx >= 12
            emit(side)
            vm.wait("u11_4")
            pend = []
            for j in range(4):
                for ii in range(i, 12):
                    for m in range(5):
                        t = ACC2 + 4 * (5 * j + m); wr = 16 * (ii % NR2) + 4 * j
                        a(f"v_mfma_f32_16x16x32_bf16 v[{t}:{t+3}], {ureg(ii, m)}, a[{wr}:{wr+3}], v[{t}:{t+3}]")
                        for p in pend: p[0] += 1
                        if pend and pend[0][0] >= 9:
                            a(pend.pop(0)[1])
                            for p in pend: p[0] += 1
                        if ii == 11:
                            pend.append([0, f"ds_write_b128 v11, v[{t}:{t+3}] offset:{j*5120 + m*1024}"])
            while pend:
                if pend[0][0] < 9:
                    n = 9 - pend[0][0]
                    a(f"s_nop {n-1}")
                    for p in pend: p[0] += n
                a(pend.pop(0)[1])
                for p in pend: p[0] += 1
            continue
        k = 0; si = 0
        for m in range(5):
            vm.wait(f"u{i}_{m}")
            for j in range(4):
                t = ACC2 + 4 * (5 * j + m)
                wr = 16 * (i % NR2) + 4 * j
                c = "0" if i == 0 else f"v[{t}:{t+3}]"
                a(f"v_mfma_f32_16x16x32_bf16 v[{t}:{t+3}], {ureg(i, m)}, a[{wr}:{wr+3}], {c}")
                k += 1
                while si < (len(side) * k + 19) // 20:
                    emit([side[si]]); si += 1
            if nx < 12: emit([uload(nx, m)])
    pstamp(a, 9, True)
    MUTE[0] = False
    FIN2 = 28
    lds_arrive(11)
    vm.wait("b2")
    a("v_lshlrev_b32 v17, 16, v16")
    a("v_lshlrev_b32 v16, 16, v16")
    lds_wait("PK_GB3", 11)
    PT2 = 48; PR = 18; PF = 108
    GM = E("GM", 3)
    NG = 4 * GM
    for o in range(4):
        for m in range(GM):
            r = PT2 + 20 * o + 4 * m
            a(f"ds_read_b128 v[{r}:{r+3}], v{12+o//2} offset:{(o&1)*RINGB + m*1024}")
    for o in range(4):
        a(f"s_waitcnt lgkmcnt({min(10, GM*(3-o))})")
        for i in range(0, NG, 2):
            src = "v[16:17]" if o == 0 else pk(FIN2 + i)
            a(f"v_pk_add_f32 {pk(FIN2+i)}, {src}, {pk(PT2+20*o+i)}")
    T2 = 48
    for i in range(0, NG, 2): a(f"v_cvt_pk_bf16_f32 v{T2+i//2}, v{FIN2+i}, v{FIN2+i+1}")
    for i in range(0, NG, 2):
        a(f"v_lshlrev_b32 v{FIN2+i}, 16, v{T2+i//2}")
        a(f"v_and_b32 v{FIN2+i+1}, 0xffff0000, v{T2+i//2}")
    lds_wait("PK_PW", 15)
    pstamp(a, 10)
    for m in range(GM):
        a(f"ds_read_b64 v[{PR+2*m}:{PR+2*m+1}], v15 offset:{m*512}")
    a("s_waitcnt lgkmcnt(0)")
    for m in range(GM):
        for h in range(2):
            i = 4 * m + 2 * h
            a(f"v_lshlrev_b32 v{PF+i}, 16, v{PR+i//2}")
            a(f"v_and_b32 v{PF+i+1}, 0xffff0000, v{PR+i//2}")
            a(f"v_pk_add_f32 {pk(FIN2+i)}, {pk(FIN2+i)}, {pk(PF+i)}")
            a(f"v_cvt_pk_bf16_f32 v{60+i//2}, v{FIN2+i}, v{FIN2+i+1}")
        a(f"buffer_store_dwordx2 v[{60+2*m}:{61+2*m}], v10, {R(S_OUT)}, 0 offen offset:{32*m}")
    a(f"s_or_b32 s{sT0}, s2, s3")
    a(f"s_cmp_lg_u32 s{sT0}, 0")
    a("s_cbranch_scc1 PK_NOEP")
    a(f"s_mov_b32 s{sT0}, {EPOCH_OFF}")
    flag_store(sT0)
    a.label("PK_NOEP")
    pstamp(a, 11)
    finish_stamps("G")
    a("s_endpgm")

    if E("W2PF", 0):
        a.label("PK_G_PF")
        vm.reset(); vm.q.append("ep")
        read_epoch(9); lds_arrive(6)
        a(f"s_lshr_b32 s{sT2}, s2, 3")
        a(f"s_sub_u32 s{sT2}, s{sT2}, 30")
        a(f"s_lshl_b32 s{sT2}, s{sT2}, 2")
        a(f"s_add_u32 s{sT2}, s{sT2}, s3")
        a(f"s_and_b32 s{sT1}, s2, 1")
        a(f"s_lshl_b32 s{sT1}, s{sT1}, 3")
        a(f"s_add_u32 s{sT2}, s{sT2}, s{sT1}")
        a(f"s_mul_i32 s{sT2}, s{sT2}, {96*4096}")
        a(f"s_bfe_u32 s{sT1}, s2, 0x20001")
        a(f"s_lshl_b32 s{sT1}, s{sT1}, 10")
        a(f"s_add_u32 s{sT2}, s{sT2}, s{sT1}")
        a("v_lshrrev_b32 v8, 3, v1")
        a("v_lshlrev_b32 v8, 12, v8")
        a("v_and_b32 v3, 7, v1")
        a("v_lshl_add_u32 v8, v3, 7, v8")
        emit(["v_lshrrev_b32 v2, 3, v1", "v_lshlrev_b32 v4, 12, v2", "v_bfe_u32 v2, v1, 4, 1", "v_lshlrev_b32 v2, 1, v2",
              "v_and_b32 v3, 7, v1", "v_xor_b32 v2, v2, v3", "v_lshl_add_u32 v4, v2, 4, v4", f"s_lshl_b32 s{sT0}, s{sST}, 7",
              f"v_add_u32 v4, s{sT0}, v4", "v_xor_b32 v2, 64, v4", f"v_add_u32 v5, {1*(32768-1024)}, v2",
              f"v_add_u32 v6, {2*(32768-1024)}, v4", f"v_add_u32 v7, {3*(32768-1024)}, v2"])
        lds_wait("PK_PFW", E("PFGO", 3), sleep=4)
        for i in range(2, 5): pstamp(a, i)
        for t in range(E("PFN", 12)):
            a(f"buffer_load_dword v{16+t}, v8, {R(S_W2)}, s{sT2} offen")
            a(f"s_add_u32 s{sT2}, s{sT2}, 32768")
        a("s_waitcnt vmcnt(0)")
        lds_arrive(10); lds_arrive(4); lds_arrive(5)
        emit(w2_dma(0)); emit(w2_dma(1))
        a("s_waitcnt vmcnt(0)")
        a("s_setprio 2")
        a("s_branch PK_G_W2")

    a.label("PK_H")
    MUTE[0] = False
    vm.reset()
    for r in range(2):
        for i in range(5): vm.q.append(f"x{r}{i}")
    a("s_cmp_ge_u32 s2, 160")
    a(f"s_cselect_b32 s{sKVBIG}, {BIG}, 0")
    if E("NOKV", 0): a(f"s_mov_b32 s{sKVBIG}, {BIG}")
    sTT, sCW = sDT, sFT
    a(f"s_mul_hi_u32 s{sTT}, s2, 0x33333334", "T")
    a(f"s_mul_i32 s{sCW}, s{sTT}, 5")
    a(f"s_sub_u32 s{sCW}, s2, s{sCW}", "cw")
    a(f"s_lshl_b32 s{sT0}, s{sTT}, 2")
    a(f"s_add_u32 s{sT0}, s{sT0}, s3")
    a(f"s_mul_i32 s{sT0}, s{sT0}, 20480")
    a(f"s_lshl_b32 s{sT1}, s{sCW}, 8")
    a(f"s_add_u32 s{sT0}, s{sT0}, s{sT1}")
    a(f"s_add_u32 s{sT0}, s{sT0}, s{sKVBIG}")
    VKV = 10
    a(f"v_add_u32 v{VKV+1}, s{sT0}, v3")
    a(f"v_subrev_u32 v{VKV}, 3840, v{VKV+1}")
    for i in range(1, 4): a(f"v_add_u32 v{VKV+1+i}, {5120*i}, v{VKV+1}")
    a(f"s_lshl_b32 s{sT1}, s{sCW}, 10")
    a(f"v_lshl_add_u32 v15, v1, 4, s{sT1}")
    XRAW = 16
    if E("W1ONLY", 0):
        if STAMP:
            a("s_mov_b32 s4, s30"); a("s_mov_b32 s5, s31")
        for i in range(1, 12): pstamp(a, i)
        finish_stamps()
        a("s_endpgm")
    srd(a, S_WS, 26, WS_USED, E("WSMB", 0) << 20)
    vm.op(f"buffer_load_dword v9, v8, {R(S_WS)}, 0 offen sc1", "ep")
    srd(a, S_K, 6, SD_BYTES)
    srd(a, S_V, 8, SD_BYTES)
    srd(a, S_SHK, 10, D * 8)
    srd(a, S_SSMK, 12, SD_BYTES)
    srd(a, S_SSMD, 14, D * 2)
    srd(a, S_W2, 20, S * F * 2)
    srd(a, S_B2, 22, S * 2)
    srd(a, S_OUT, 24, SD_BYTES)
    if STAMP:
        a("s_mov_b32 s4, s30"); a("s_mov_b32 s5, s31")
    def kv_loads():
        vm.op(f"buffer_load_dwordx4 a[36:39], v15, {R(S_SHK)}, 0 offen", "shk")
        for r in range(3):
            vm.op(f"buffer_load_dword a{r}, v{VKV}, {R(S_K)}, 0 offen offset:{r*1280} {NT}", "k")
        for r in range(16):
            vm.op(f"buffer_load_dword a{3+r}, v{VKV+1+r//4}, {R(S_K)}, 0 offen offset:{(r%4)*1280} {NT}", "k")
        for r in range(16):
            vm.op(f"buffer_load_dword a{19+r}, v{VKV+1+r//4}, {R(S_V)}, 0 offen offset:{(r%4)*1280} {NT}", "v")
    KV_EARLY = E("KV_EARLY", 0)
    if KV_EARLY == 1: kv_loads()
    srd(a, S_B1, 18, F * 2)
    a(f"s_lshr_b32 s{sT0}, s2, 3")
    a(f"s_mul_hi_u32 s{sT0}, s{sT0}, 0x33333334")
    a(f"s_bfe_u32 s{sT1}, s2, 0x20001")
    a(f"s_mul_i32 s{sT1}, s{sT1}, 6")
    a(f"s_add_u32 s{sT0}, s{sT0}, s{sT1}")
    if E("MAP1", 1):
        a(f"s_lshr_b32 s{sT0}, s2, 3")
        a(f"s_mul_hi_u32 s{sT0}, s{sT0}, 0x1999999a")
        a(f"s_and_b32 s{sT1}, s2, 7")
        a(f"s_mul_i32 s{sT1}, s{sT1}, 3")
        a(f"s_add_u32 s{sT0}, s{sT0}, s{sT1}")
    a(f"s_lshl_b32 s{sT0}, s{sT0}, 7")
    a("v_and_b32 v125, 124, v3")
    vm.op(f"buffer_load_dword v126, v125, {R(S_B1)}, s{sT0} offen", "b1")
    a(f"v_add_u32 v125, {PT_LDS}, v125")
    pstamp(a, 1)
    a(f"s_mul_i32 s{sT0}, s3, {2*HROW}")
    a(f"s_add_u32 s{sT0}, s{sT0}, {LNX}")
    a(f"v_add_u32 v4, s{sT0}, v3")
    a("v_lshrrev_b32 v5, 4, v1")
    a("v_lshlrev_b32 v5, 5, v5")
    a("v_and_b32 v2, 3, v1")
    a("v_lshl_add_u32 v5, v2, 3, v5")
    a("v_bfe_u32 v2, v1, 2, 2")
    a(f"v_mul_u32_u24 v2, {HROW}, v2")
    a("v_add_u32 v5, v5, v2")
    a(f"s_lshl_b32 s{sT0}, s3, 7")
    a(f"s_add_u32 s{sT0}, s{sT0}, {LNX}")
    a(f"v_add_u32 v5, s{sT0}, v5")
    a(f"s_mul_i32 s{sT0}, s2, 10240")
    a(f"s_lshl_b32 s{sT1}, s3, 10")
    a(f"s_add_u32 s{sT0}, s{sT0}, s{sT1}")
    if HBLK_OFF: a(f"s_add_u32 s{sT0}, s{sT0}, {HBLK_OFF}")
    a(f"v_lshl_add_u32 v6, v1, 4, s{sT0}")
    a("v_add_u32 v7, 4096, v6")
    a("s_cmp_ge_u32 s3, 2")
    a(f"s_cselect_b32 s{sT1}, {BIG}, 8192")
    a(f"v_add_u32 v8, s{sT1}, v6")
    a(f"s_lshl_b32 s{sT0}, s2, 2")
    a(f"s_add_u32 s{sT0}, s{sT0}, s3")
    a(f"s_lshl_b32 s{sT0}, s{sT0}, 4")
    a(f"s_add_u32 s{sT0}, s{sT0}, {STAT_OFF}")
    a(f"v_mov_b32 v90, s{sT0}")
    a(f"s_lshl_b32 s{sT0}, s3, 8")
    a(f"s_add_u32 s{sT0}, s{sT0}, s2")
    a(f"s_lshl_b32 s{sT0}, s{sT0}, {FS}")
    a(f"s_add_u32 s{sRING}, s{sT0}, {FH_OFF}", "h flag offset")
    X = [26, 36]; A = [46, 56]; SUM = [66, 70]; TMP = [74, 82]
    PIV = [28, 30]; SS = [(sT0, sT1), (sT2, sT3)]
    for r in range(2):
        for i in range(5):
            vm.wait(f"x{r}{i}")
            a(f"v_lshlrev_b32 v{X[r]+2*i}, 16, v{XRAW+5*r+i}")
            a(f"v_and_b32 v{X[r]+2*i+1}, 0xffff0000, v{XRAW+5*r+i}")
            if i == 0: a(f"v_readfirstlane_b32 s{PIV[r]}, v{X[r]}")
            if i == 2: a(f"s_mov_b32 s{PIV[r]+1}, s{PIV[r]}")
    pstamp(a, 2)
    if KV_EARLY == 2: kv_loads()
    def zip2(f):
        out = []
        for p, q in zip(f(0), f(1)): out += [p, q]
        return out
    def sums(src):
        def f(r):
            Sr = SUM[r]; B = src[r]
            l = [f"v_pk_mul_f32 {pk(Sr+2)}, {pk(B)}, {pk(B)}", f"v_pk_add_f32 {pk(Sr)}, {pk(B)}, {pk(B+2)}"]
            for i in range(1, 5):
                l.append(f"v_pk_fma_f32 {pk(Sr+2)}, {pk(B+2*i)}, {pk(B+2*i)}, {pk(Sr+2)}")
                if i >= 2: l.append(f"v_pk_add_f32 {pk(Sr)}, {pk(Sr)}, {pk(B+2*i)}")
            l += [f"v_add_f32 v{Sr}, v{Sr}, v{Sr+1}", f"v_add_f32 v{Sr+1}, v{Sr+2}, v{Sr+3}"]
            return l
        l = zip2(f)
        steps = ["row_shr:1 row_mask:0xf bank_mask:0xf bound_ctrl:0", "row_shr:2 row_mask:0xf bank_mask:0xf bound_ctrl:0",
                 "row_shr:4 row_mask:0xf bank_mask:0xf bound_ctrl:0", "row_shr:8 row_mask:0xf bank_mask:0xf bound_ctrl:0",
                 "row_bcast:15 row_mask:0xa bank_mask:0xf", "row_bcast:31 row_mask:0xc bank_mask:0xf"]
        regs = [SUM[0], SUM[1], SUM[0] + 1, SUM[1] + 1]
        for st in steps:
            for v in regs: l.append(f"v_add_f32_dpp v{v}, v{v}, v{v} {st}")
        l += [f"v_readlane_b32 s{SS[0][0]}, v{SUM[0]}, 63", f"v_readlane_b32 s{SS[1][0]}, v{SUM[1]}, 63",
              f"v_readlane_b32 s{SS[0][1]}, v{SUM[0]+1}, 63", f"v_readlane_b32 s{SS[1][1]}, v{SUM[1]+1}, 63"]
        return l
    def statsl(piv):
        inv = f32(1.0 / D)
        def f(r):
            t0, t1 = TMP[r] + 6, TMP[r] + 7; m = TMP[r]; rr = TMP[r] + 1
            l = [f"v_mul_f32 v{t0}, s{SS[r][0]}, v91", f"v_mul_f32 v{t1}, s{SS[r][1]}, v91",
                 f"v_fma_f32 v{t1}, -v{t0}, v{t0}, v{t1}", f"v_max_f32 v{t1}, 0, v{t1}"]
            if piv: l.append(f"v_add_f32 v{t0}, s{PIV[r]}, v{t0}")
            l += [f"v_cvt_pk_bf16_f32 v{t0}, v{t0}, v{t1}", f"v_lshlrev_b32 v{m}, 16, v{t0}",
                  f"v_and_b32 v{t1}, 0xffff0000, v{t0}", f"v_add_f32 v{t1}, {f32(1e-5)}, v{t1}",
                  f"v_cvt_pk_bf16_f32 v{t1}, v{t1}, v{t1}", f"v_lshlrev_b32 v{t1}, 16, v{t1}",
                  f"v_sqrt_f32 v{t1}, v{t1}", f"v_cvt_pk_bf16_f32 v{t1}, v{t1}, v{t1}",
                  f"v_lshlrev_b32 v{t1}, 16, v{t1}", f"v_rcp_f32 v{rr}, v{t1}",
                  f"v_mul_f32 v{TMP[r]+4}, v{m}, v{rr}", f"v_mov_b32 v{TMP[r]+2}, v{rr}",
                  f"v_mul_f32 v{TMP[r]+5}, v{m}, v{rr}", f"v_mov_b32 v{TMP[r]+3}, v{rr}"]
            return l
        return zip2(f)
    def norm(dst, src):
        return zip2(lambda r: [f"v_pk_fma_f32 {pk(dst[r]+2*i)}, {pk(src[r]+2*i)}, {pk(TMP[r]+2)}, {pk(TMP[r]+4)} neg_lo:[0,0,1] neg_hi:[0,0,1]" for i in range(5)])
    a(f"v_mov_b32 v91, {f32(1.0/D)}")
    emit(zip2(lambda r: [f"v_pk_add_f32 {pk(A[r]+2*i)}, {pk(X[r]+2*i)}, s[{PIV[r]}:{PIV[r]+1}] neg_lo:[0,1] neg_hi:[0,1]" for i in range(5)]))
    emit(sums(A)); emit(statsl(True))
    emit(["s_mov_b64 exec, 1",
          (f"buffer_store_dwordx2 {pk(TMP[0])}, v90, {R(S_WS)}, 0 offen sc1", "hst"),
          (f"buffer_store_dwordx2 {pk(TMP[1])}, v90, {R(S_WS)}, 0 offen offset:8 sc1", "hst"),
          "s_mov_b64 exec, -1"])
    emit(norm(A, X))
    emit(zip2(lambda r: [f"v_cvt_pk_bf16_f32 v{XRAW+5*r+i}, v{A[r]+2*i}, v{A[r]+2*i+1}" for i in range(5)]))
    emit(zip2(lambda r: sum([[f"v_lshlrev_b32 v{X[r]+2*i}, 16, v{XRAW+5*r+i}", f"v_and_b32 v{X[r]+2*i+1}, 0xffff0000, v{XRAW+5*r+i}"] for i in range(5)], [])))
    emit(sums(X)); emit(statsl(False)); emit(norm(A, X))
    emit(zip2(lambda r: sum([[f"v_cvt_pk_bf16_f32 v{XRAW+5*r+i}, v{A[r]+2*i}, v{A[r]+2*i+1}", f"ds_write_b32 v4, v{XRAW+5*r+i} offset:{r*HROW+i*256}"] for i in range(5)], [])))
    vm.wait("b1")
    a("ds_write_b32 v125, v126")
    read_epoch(9)
    sbar("PK_HB1", 1)
    HT = 26
    for t in range(3):
        a(f"ds_read_b64_tr_b16 v[{HT+4*t}:{HT+4*t+1}], v5 offset:{512*t}")
        a(f"ds_read_b64_tr_b16 v[{HT+4*t+2}:{HT+4*t+3}], v5 offset:{512*t+4*HROW}")
    for t in range(3):
        a(f"s_waitcnt lgkmcnt({4-2*t})")
        vm.op(f"buffer_store_dwordx4 v[{HT+4*t}:{HT+4*t+3}], v{6+t}, {R(S_WS)}, 0 offen sc1", "hst")
    pstamp(a, 3)
    if KV_EARLY == 3: kv_loads()
    a("v_and_b32 v2, 7, v1")
    a(f"s_lshl_b32 s{sT0}, s3, 1")
    a(f"v_xor_b32 v4, s{sT0}, v2")
    a("v_lshlrev_b32 v4, 4, v4")
    a("v_lshl_add_u32 v4, v1, 8, v4")
    a(f"v_add_u32 v4, {KVX}, v4")
    a("v_xor_b32 v5, 16, v4")
    a("v_lshrrev_b32 v8, 3, v1")
    a("v_lshrrev_b32 v6, 4, v1")
    a("v_xor_b32 v6, v6, v2")
    a("v_lshlrev_b32 v6, 4, v6")
    a("v_lshl_add_u32 v6, v8, 7, v6")
    a(f"s_lshl_b32 s{sT0}, s3, 12")
    a(f"s_add_u32 s{sT0}, s{sT0}, {KVX}")
    a(f"v_add_u32 v6, s{sT0}, v6")
    a("v_xor_b32 v7, 64, v6")
    a("v_lshlrev_b32 v8, 12, v8")
    a("v_lshl_add_u32 v8, v2, 4, v8")
    a(f"s_lshl_b32 s{sT0}, s{sCW}, 19")
    a(f"s_lshl_b32 s{sT1}, s3, 17")
    a(f"s_add_u32 s{sT0}, s{sT0}, s{sT1}")
    a(f"s_lshl_b32 s{sT1}, s{sTT}, 7")
    a(f"s_add_u32 s{sT0}, s{sT0}, s{sT1}")
    a(f"s_add_u32 s{sT0}, s{sT0}, {KVB_OFF}")
    a(f"s_add_u32 s{sT0}, s{sT0}, s{sKVBIG}")
    a(f"v_add_u32 v8, s{sT0}, v8")
    lds_wait("PK_EPW", 6)
    vm.wait("hst")
    flag_store(sRING)
    pstamp(a, 4)
    if E("KV_LATE", 0):
        a("s_setprio 0")
        lds_wait("PK_KVL", 12, n=4 * (CNT + 48), sleep=4)
        a("s_setprio 3")
    if not KV_EARLY: kv_loads()
    a("s_setprio 0")
    a(f"s_lshl_b32 s{sT0}, s{sCW}, 2")
    a(f"s_add_u32 s{sT0}, s{sT0}, s3")
    a(f"s_lshl_b32 s{sT0}, s{sT0}, 5")
    a(f"s_add_u32 s{sT0}, s{sT0}, s{sTT}")
    a(f"s_lshl_b32 s{sT0}, s{sT0}, {FS}")
    a(f"s_add_u32 s{sT0}, s{sT0}, {FKV_OFF}")
    a(f"s_add_u32 s{sRING}, s{sT0}, s{sKVBIG}", "kv flag offset")
    a(f"s_lshl_b32 s{sCH}, s2, 1")
    a(f"s_mul_i32 s{sT0}, s2, 3")
    a(f"s_sub_u32 s{sT0}, s{sT0}, 128")
    a("s_cmp_ge_u32 s2, 128")
    a(f"s_cselect_b32 s{sCH}, s{sT0}, s{sCH}")
    a(f"s_cselect_b32 s{sT0}, 3, 2")
    a(f"s_add_u32 s{sCH}, s{sCH}, s3")
    a(f"s_cmp_lt_u32 s3, s{sT0}")
    a(f"s_cselect_b32 s{sCH}, s{sCH}, {1 << 16}", "ch (65536 = none)")
    if E("KPF", 1):
        a(f"s_min_u32 s{sT0}, s{sCH}, 639")
        a(f"s_lshl_b32 s{sT0}, s{sT0}, 12")
        a(f"s_add_u32 s30, s{S_SSMK}, s{sT0}")
        a(f"s_addc_u32 s31, s{S_SSMK+1}, 0")
        for c in range(32): a(f"s_load_dword s29, s[30:31], {128*c}")
    WP, KP, KS, KO = 16, 24, 62, 94
    vm.wait("k")
    for i in range(4): a(f"v_accvgpr_read_b32 v{110+i}, a{36+i}")
    for r in range(19): a(f"v_accvgpr_read_b32 v{KP+2*r+1}, a{r}")
    for t in range(4):
        for ch in range(2):
            src = 110 + 2 * ch + t // 2
            a(f"v_lshlrev_b32 v{WP+2*t+ch}, 16, v{src}" if t % 2 == 0 else f"v_and_b32 v{WP+2*t+ch}, 0xffff0000, v{src}")
    for r in range(19):
        a(f"v_lshlrev_b32 v{KP+2*r}, 16, v{KP+2*r+1}")
        a(f"v_and_b32 v{KP+2*r+1}, 0xffff0000, v{KP+2*r+1}")
    for r in range(16): a(f"v_pk_mul_f32 {pk(KS+2*r)}, {pk(KP+2*r)}, {pk(WP+6)}")
    for t in (2, 1, 0):
        for r in range(16):
            a(f"v_pk_fma_f32 {pk(KS+2*r)}, {pk(KP+2*(r+3-t))}, {pk(WP+2*t)}, {pk(KS+2*r)}")
    vm.wait("v")
    for r in range(16): a(f"v_accvgpr_read_b32 v{KP+2*r+1}, a{19+r}")
    for r in range(16):
        a(f"v_lshlrev_b32 v{KP+2*r}, 16, v{KP+2*r+1}")
        a(f"v_and_b32 v{KP+2*r+1}, 0xffff0000, v{KP+2*r+1}")
    for r in range(16): a(f"v_pk_mul_f32 {pk(KS+2*r)}, {pk(KS+2*r)}, {pk(KP+2*r)}")
    for c2 in range(2):
        for ch in range(2):
            for q in range(4):
                a(f"v_cvt_pk_bf16_f32 v{KO+8*c2+4*ch+q}, v{KS+2*(8*c2+7-2*q)+ch}, v{KS+2*(8*c2+6-2*q)+ch}")
            a(f"ds_write_b128 v{4+c2}, v[{KO+8*c2+4*ch}:{KO+8*c2+4*ch+3}] offset:{128*ch}")
    sbar("PK_HB2", 2)
    for i in range(4):
        a(f"ds_read_b128 v[{KO+4*i}:{KO+4*i+3}], v{6+(i&1)} offset:{1024*i}")
    a("s_setprio 3")
    for i in range(4):
        a(f"s_mov_b32 s{sT0}, {32768*i}")
        a(f"s_waitcnt lgkmcnt({3-i})")
        vm.op(f"buffer_store_dwordx4 v[{KO+4*i}:{KO+4*i+3}], v8, {R(S_WS)}, s{sT0} offen sc1", "kvst")
    lds_arrive(3)
    pstamp(a, 5)
    a("v_lshrrev_b32 v14, 4, v1", "g")
    a("v_and_b32 v15, 15, v1", "n")
    a(f"s_mul_i32 s{sCVB}, s3, {CONV_SZ}")
    a(f"s_add_u32 s{sCVB}, s{sCVB}, {AUX}")
    a(f"s_lshr_b32 s{sT0}, s{sCH}, 5")
    a(f"s_lshl_b32 s{sT0}, s{sT0}, {5+FS}")
    a(f"s_add_u32 s{sT0}, s{sT0}, {FKV_OFF}")
    a("v_and_b32 v29, 31, v1")
    a(f"v_lshl_add_u32 v29, v29, {FS}, s{sT0}", "kv poll address")
    a(f"s_lshl_b32 s{sT0}, s{sCH}, 12")
    a(f"v_lshl_add_u32 v31, v1, 4, s{sT0}")
    a("v_add_u32 v32, 2, v31")
    a(f"v_add_u32 v33, {KVB_OFF}, v31")
    a(f"v_mov_b32 v34, s{sT0}")
    a(f"s_lshl_b32 s{sT1}, s{sCH}, 1")
    a(f"v_mov_b32 v36, s{sT1}")
    VA, VB, VE, VS = 38, 42, 43, 44
    a("v_lshlrev_b32 v2, 5, v15")
    a(f"v_lshl_add_u32 v{VS}, v14, 3, v2")
    a(f"s_add_u32 s{sT0}, s{sT0}, {YA_OFF}")
    a(f"v_add_u32 v{VS}, s{sT0}, v{VS}")
    a("v_lshlrev_b32 v45, 4, v1")
    a(f"v_add_u32 v46, s{sCVB}, v45")
    a(f"v_add_u32 v2, {CV_K0-512}, v45")
    a(f"v_add_u32 v3, {CV_K1-544}, v45")
    a("v_cmp_lt_u32 vcc, 31, v1")
    a(f"v_lshl_add_u32 v{VA}, v14, 3, v15")
    a(f"v_lshlrev_b32 v{VA}, 1, v{VA}")
    a("v_cndmask_b32 v45, v45, v2, vcc")
    a("v_cmp_lt_u32 vcc, 33, v1")
    a("v_and_b32 v2, 1, v1")
    a(f"v_mul_u32_u24 v2, {CV_K1 - CV_K0 - 2}, v2")
    a("v_cndmask_b32 v45, v45, v3, vcc")
    a("v_cmp_lt_u32 vcc, 35, v1")
    a(f"v_sub_u32 v{VA}, v{VA}, v2")
    a(f"v_add_u32 v{VA}, {CV_K1}, v{VA}")
    a("v_cndmask_b32 v45, v45, 0, vcc")
    a(f"v_add_u32 v45, s{sCVB}, v45")
    a(f"v_add_u32 v{VA}, s{sCVB}, v{VA}")
    for p in range(1, 4): a(f"v_add_u32 v{VA+p}, {1024*p}, v{VA}")
    a("v_lshlrev_b32 v2, 1, v15")
    a("v_sub_u32 v2, v2, v14")
    a("v_lshlrev_b32 v2, 4, v2")
    a(f"v_add_u32 v2, {528-448}, v2")
    a(f"v_add_u32 v{VB}, s{sCVB}, v2")
    a("v_lshrrev_b32 v2, 1, v14")
    a("v_lshl_add_u32 v2, v15, 1, v2")
    a("v_lshlrev_b32 v2, 4, v2")
    a("v_and_b32 v3, 1, v14")
    a("v_lshlrev_b32 v3, 3, v3")
    a("v_sub_u32 v2, v2, v3")
    a("v_add_u32 v2, 520, v2")
    a(f"v_add_u32 v{VE}, s{sCVB}, v2")
    vm.wait("kvst")
    flag_store(sRING)
    a(f"s_cmp_ge_u32 s{sCH}, 640")
    a("s_cbranch_scc1 PK_NOCONV")
    lds_wait("PK_HB3", 3)
    if E("KERN_LATE", 0):
        a("s_setprio 0")
        lds_wait("PK_KW0", 10, n=4, sleep=4)
        a("s_setprio 3")
    vm.reset()
    a(f"s_add_u32 m0, s{sCVB}, {CV_K0+32}")
    a(f"buffer_load_ushort v35, v34, {R(S_SSMK)}, 0 offen")
    for q in range(4): a(f"buffer_load_dwordx4 v31, {R(S_SSMK)}, 0 offen offset:{q*1024} lds")
    if E("K1LDS", 1):
        a(f"buffer_load_ushort v37, v36, {R(S_SSMD)}, 0 offen")
        a("s_setprio 0")
        a("s_waitcnt vmcnt(1)")
        for q in range(4):
            a(f"ds_read_b128 v[{64+8*q}:{67+8*q}], v46 offset:{CV_K0+32+1024*q}")
            a(f"ds_read_b32 v{68+8*q}, v46 offset:{CV_K0+48+1024*q}")
        for q in range(4):
            a(f"s_waitcnt lgkmcnt({6-2*q+q})")
            for i in range(4):
                a(f"v_alignbit_b32 v{64+8*q+i}, v{65+8*q+i}, v{64+8*q+i}, 16")
            a(f"ds_write_b128 v46, v[{64+8*q}:{67+8*q}] offset:{CV_K1+32+1024*q}")
    else:
        a(f"s_add_u32 m0, s{sCVB}, {CV_K1+32}")
        a(f"buffer_load_ushort v37, v36, {R(S_SSMD)}, 0 offen")
        for q in range(4): a(f"buffer_load_dwordx4 v32, {R(S_SSMK)}, 0 offen offset:{q*1024} lds")
    a("s_setprio 0")
    w2_scalar_prefetch("A")
    lds_wait("PK_KW", 10, n=4, sleep=4)
    a("s_setprio 3")
    if not E("NOKV", 0): spin("PK_SPIN_KV", [(29, 30)], sleep=E("KVPOLL_SLEEP", 0))
    KVR = 48
    for q in range(4):
        vm.op(f"buffer_load_dwordx4 v[{KVR+4*q}:{KVR+4*q+3}], v33, {R(S_WS)}, 0 offen offset:{q*1024} sc1", "cfill")
    a("s_setprio 0")
    a("v_mov_b32 v96, 0"); a("v_mov_b32 v97, 0"); a("v_mov_b32 v98, 0")
    a("v_cmp_eq_u32 vcc, 35, v1")
    a("v_lshlrev_b32 v35, 16, v35")
    a("v_lshlrev_b32 v37, 16, v37", "D")
    a("v_cndmask_b32 v99, 0, v35, vcc")
    a("ds_write_b128 v45, v[96:99]")
    vm.wait("cfill")
    for q in range(4):
        a(f"ds_write_b128 v46, v[{KVR+4*q}:{KVR+4*q+3}] offset:{512+1024*q}")
    a("s_waitcnt lgkmcnt(0)")
    CACC = 64; BUF = [(0, 32), (64, 96)]
    def frag_loads(buf, rr):
        A_, B_ = BUF[buf]
        out = []
        for t in range(8):
            o = (t & 1) * 128 + rr * 16
            out.append(f"ds_read_b128 a[{B_+4*t}:{B_+4*t+3}], v{VB} offset:{512*t + 64*(1-rr)}")
            out.append(f"ds_read2_b32 a[{A_+4*t}:{A_+4*t+1}], v{VA + t//2} offset0:{o} offset1:{o+1}")
            out.append(f"ds_read2_b32 a[{A_+4*t+2}:{A_+4*t+3}], v{VA + t//2} offset0:{o+2} offset1:{o+3}")
        return out
    for i in range(32): a(f"v_mov_b32 v{CACC+i}, 0")
    a(f"v_add_u32 v{VB}, {448-64}, v{VB}", "64 below the r-even address")
    emit(frag_loads(0, 0))
    pstamp(a, 6)
    if not E("CEARLY", 0):
        lds_wait("PK_CW", E("CONV_IDX", 8), n=E("CONV_WAIT_N", 4), sleep=2)
        a(f"s_setprio {E('CONV_PRIO', 3)}")
    pstamp(a, 7)
    a(f"s_lshl_b32 s{sT1}, s3, 2")
    a(f"s_add_u32 s{sT1}, s{sT1}, {CNT + 64}")
    a(f"v_mov_b32 v4, s{sT1}", "partner G wave's phase word")
    a(f"s_mov_b32 s{sT0}, 0")
    a(f"s_mov_b32 s{sT2}, 0")
    a.label("PK_CV_LOOP")
    for half in range(2):
        if E("CEARLY", 0):
            a(f"s_cmp_lg_u32 s{sT2}, 0")
            a(f"s_cbranch_scc1 PK_CVP{half}_GO")
            a(f"s_mov_b32 s{sSPIN}, 0")
            a.label(f"PK_CVP{half}")
            a("ds_read_b32 v5, v4")
            a(f"s_add_u32 s{sSPIN}, s{sSPIN}, 1")
            a("s_waitcnt lgkmcnt(0)")
            a(f"v_readfirstlane_b32 s{sT3}, v5")
            a(f"s_cmp_gt_u32 s{sSPIN}, {1 << 20}")
            a(f"s_cbranch_scc1 PK_CVP{half}_GO")
            a(f"s_cmp_eq_u32 s{sT3}, 0")
            a(f"s_cbranch_scc1 PK_CVP{half}_GO")
            a(f"s_cmp_eq_u32 s{sT3}, 1")
            a(f"s_cbranch_scc0 PK_CVP{half}_FREE")
            a("s_sleep 2", "poll back-off")
            a(f"s_branch PK_CVP{half}")
            a.label(f"PK_CVP{half}_FREE")
            a(f"s_mov_b32 s{sT2}, 1")
            a(f"s_setprio {E('CONV_PRIO', 3)}")
            a.label(f"PK_CVP{half}_GO")
        a("s_waitcnt lgkmcnt(0)")
        if half == 0: side = frag_loads(1, 1)
        else:
            for p in range(4): a(f"v_add_u32 v{VA+p}, 128, v{VA+p}")
            a(f"v_subrev_u32 v{VB}, 128, v{VB}")
            side = frag_loads(0, 0)
        A_, B_ = BUF[half]
        i = 0
        for c in range(8):
            for t in range(c + 1):
                u = c - t
                a(f"v_mfma_f32_16x16x32_bf16 v[{CACC+4*c}:{CACC+4*c+3}], a[{A_+4*t}:{A_+4*t+3}], a[{B_+4*u}:{B_+4*u+3}], v[{CACC+4*c}:{CACC+4*c+3}]")
                if i < len(side): a(side[i])
                i += 1
    a(f"s_add_u32 s{sT0}, s{sT0}, 1")
    a(f"s_cmp_lt_u32 s{sT0}, 4")
    a("s_cbranch_scc1 PK_CV_LOOP")
    a(f"s_setprio {E('CEPI_PRIO', 3)}")
    for c in range(8): a(f"ds_read_b64 v[{100+2*c}:{101+2*c}], v{VE} offset:{512*c}")
    a("s_waitcnt lgkmcnt(0)")
    TT = 116
    for c in range(8):
        d0, d1 = 100 + 2 * c, 101 + 2 * c
        emit([f"v_and_b32 v{TT}, 0xffff0000, v{d1}", f"v_lshlrev_b32 v{TT+1}, 16, v{d1}",
              f"v_and_b32 v{TT+2}, 0xffff0000, v{d0}", f"v_lshlrev_b32 v{TT+3}, 16, v{d0}"])
        for i in range(4): a(f"v_fmac_f32 v{CACC+4*c+i}, v{TT+i}, v37")
        a(f"v_cvt_pk_bf16_f32 v{d0}, v{CACC+4*c}, v{CACC+4*c+1}")
        a(f"v_cvt_pk_bf16_f32 v{d1}, v{CACC+4*c+2}, v{CACC+4*c+3}")
        a(f"buffer_store_dwordx2 v[{d0}:{d1}], v{VS}, {R(S_WS)}, 0 offen offset:{512*c} sc1")
    pstamp(a, 8)
    a(f"s_lshl_b32 s{sT0}, s{sCH}, {FS}")
    a(f"s_add_u32 s{sT0}, s{sT0}, {FY_OFF}")
    a("s_waitcnt vmcnt(0)")
    flag_store(sT0)
    a("s_branch PK_PCOMP")
    a.label("PK_NOCONV")
    if E("H3L", 0):
        a("s_cmp_lg_u32 s3, 3")
        a("s_cbranch_scc1 PK_NOLOAD")
        emit(["v_lshrrev_b32 v2, 3, v1", "v_lshlrev_b32 v4, 12, v2", "v_bfe_u32 v2, v1, 4, 1", "v_lshlrev_b32 v2, 1, v2",
              "v_and_b32 v3, 7, v1", "v_xor_b32 v2, v2, v3", "v_lshl_add_u32 v4, v2, 4, v4", f"s_lshl_b32 s{sT0}, s{sST}, 7",
              f"v_add_u32 v4, s{sT0}, v4", "v_xor_b32 v2, 64, v4", f"v_add_u32 v5, {1*(32768-1024)}, v2",
              f"v_add_u32 v6, {2*(32768-1024)}, v4", f"v_add_u32 v7, {3*(32768-1024)}, v2",
              f"s_and_b32 s{sT2}, s{sDT2}, 3", f"s_mul_i32 s{sT2}, s{sT2}, {3 << 17}"])
        a("s_setprio 0")
        lds_wait("PK_LW", 10, n=4, sleep=4)
        a(f"s_setprio {E('H3PRIO', 1)}")
        for k in range(3):
            for w in range(4):
                a(f"s_mov_b32 m0, {w*RINGB + k*4096}")
                a(f"s_add_u32 s{sT3}, s{sT2}, {(12*w + k) << 17}")
                for q in range(4):
                    a(f"buffer_load_dwordx4 v{4+q}, {R(S_W2)}, s{sT3} offen offset:{q*1024} lds")
        a("s_waitcnt vmcnt(0)")
        lds_arrive(5)
        a.label("PK_NOLOAD")
    a("s_setprio 0")
    w2_scalar_prefetch("B")
    lds_wait("PK_NCW", 8, n=4, sleep=16)
    a("s_setprio 3")
    a.label("PK_PCOMP")
    vm.reset()
    a(f"s_mul_i32 s{sT3}, s{sDT2}, 80", "d0")
    a(f"s_lshl_b32 s{sT0}, s{sST}, 6")
    a(f"s_lshl_b32 s{sT1}, s3, 4")
    a(f"s_add_u32 s{sT0}, s{sT0}, s{sT1}")
    a(f"v_add_u32 v4, s{sT0}, v15", "s")
    a("v_mul_u32_u24 v5, 1280, v4")
    a("v_lshl_add_u32 v5, v14, 3, v5")
    a(f"s_lshl_b32 s{sT0}, s{sT3}, 1")
    a(f"v_add_u32 v5, s{sT0}, v5", "x offset")
    XR = 16
    for m in range(5):
        a(f"buffer_load_dwordx2 v[{XR+2*m}:{XR+2*m+1}], v5, {R(S_X)}, 0 offen offset:{32*m}")
    a("v_lshlrev_b32 v6, 1, v4")
    a(f"buffer_load_ushort v124, v6, {R(S_B2)}, 0 offen")
    a("v_lshlrev_b32 v6, 3, v4")
    a(f"v_add_u32 v6, {STAT_OFF}, v6")
    a(f"s_lshl_b32 s{sT0}, s{sT3}, {FS}")
    a(f"s_add_u32 s{sT0}, s{sT0}, {FY_OFF}")
    a(f"v_lshl_add_u32 v7, v1, {FS}, s{sT0}")
    a(f"v_add_u32 v8, {64 << FS}, v7")
    a("v_bfe_u32 v2, v4, 1, 2")
    a("v_lshlrev_b32 v2, 8, v2")
    a("v_lshrrev_b32 v3, 3, v4")
    a("v_add_u32 v2, v2, v3")
    a("v_cmp_lt_u32 vcc, 15, v1")
    a(f"v_lshlrev_b32 v2, {FS}, v2")
    a(f"v_add_u32 v2, {FH_OFF}, v2")
    a("v_cndmask_b32 v8, v8, v2, vcc")
    a("v_lshrrev_b32 v9, 1, v1")
    a("v_lshlrev_b32 v9, 12, v9")
    a("v_and_b32 v2, 1, v1")
    a("v_lshl_add_u32 v9, v2, 4, v9")
    a(f"s_lshl_b32 s{sT0}, s{sT3}, 12")
    a(f"s_lshl_b32 s{sT1}, s{sST}, 7")
    a(f"s_add_u32 s{sT0}, s{sT0}, s{sT1}")
    a(f"s_lshl_b32 s{sT1}, s3, 5")
    a(f"s_add_u32 s{sT0}, s{sT0}, s{sT1}")
    a(f"s_add_u32 s{sT0}, s{sT0}, {YA_OFF}")
    a(f"v_add_u32 v9, s{sT0}, v9")
    a("v_cmp_lt_u32 vcc, 31, v1")
    a("v_add_u32 v10, 0x20000, v9")
    a("v_add_u32 v11, 0x40000, v9")
    a(f"v_mov_b32 v2, {BIG}")
    a("v_cndmask_b32 v11, v11, v2, vcc")
    a(f"s_mul_i32 s{sT0}, s3, 2560")
    a(f"s_add_u32 s{sT0}, s{sT0}, {PT_LDS}")
    a(f"v_lshl_add_u32 v12, v1, 4, s{sT0}")
    a(f"v_lshl_add_u32 v13, v1, 3, s{sT0}")
    a("s_setprio 0")
    lds_wait("PK_YW", 9, n=4 * (CNT + 36), sleep=4)
    a("s_setprio 3")
    spin("PK_SPIN_Y", [(7, 26), (8, 27)], sleep=E("YPOLL_SLEEP", 0))
    pstamp(a, 9)
    YL, ST_, XF, XN, T2, YR, YF = 28, 40, 44, 64, 84, 94, 104
    for t in range(3):
        vm.op(f"buffer_load_dwordx4 v[{YL+4*t}:{YL+4*t+3}], v{9+t}, {R(S_WS)}, 0 offen sc1", "ya")
    vm.op(f"buffer_load_dwordx2 v[{ST_}:{ST_+1}], v6, {R(S_WS)}, 0 offen sc1", "st")
    for i in range(10):
        a(f"v_lshlrev_b32 v{XF+2*i}, 16, v{XR+i}")
        a(f"v_and_b32 v{XF+2*i+1}, 0xffff0000, v{XR+i}")
    vm.wait("ya")
    a(f"ds_write_b128 v12, v[{YL}:{YL+3}]")
    a(f"ds_write_b128 v12, v[{YL+4}:{YL+7}] offset:1024")
    a("s_mov_b32 exec_hi, 0")
    a(f"ds_write_b128 v12, v[{YL+8}:{YL+11}] offset:2048")
    a("s_mov_b64 exec, -1")
    vm.wait("st", "lgkmcnt(0)")
    for m in range(5):
        a(f"ds_read_b64_tr_b16 v[{YR+2*m}:{YR+2*m+1}], v13 offset:{m*512}")
    a(f"v_mul_f32 v42, v{ST_}, v{ST_+1}")
    a(f"v_mul_f32 v43, v{ST_}, v{ST_+1}")
    a(f"v_mov_b32 v{ST_}, v{ST_+1}")
    for i in range(0, 20, 2):
        a(f"v_pk_fma_f32 {pk(XN+i)}, {pk(XF+i)}, {pk(ST_)}, v[42:43] neg_lo:[0,0,1] neg_hi:[0,0,1]")
    for i in range(0, 20, 2): a(f"v_cvt_pk_bf16_f32 v{T2+i//2}, v{XN+i}, v{XN+i+1}")
    for i in range(0, 20, 2):
        a(f"v_lshlrev_b32 v{XN+i}, 16, v{T2+i//2}")
        a(f"v_and_b32 v{XN+i+1}, 0xffff0000, v{T2+i//2}")
    a("s_waitcnt lgkmcnt(0)")
    for i in range(10):
        a(f"v_lshlrev_b32 v{YF+2*i}, 16, v{YR+i}")
        a(f"v_and_b32 v{YF+2*i+1}, 0xffff0000, v{YR+i}")
    for i in range(0, 20, 2): a(f"v_pk_fma_f32 {pk(XN+i)}, {pk(XN+i)}, {pk(YF+i)}, {pk(XF+i)}")
    for m in range(5):
        a(f"v_cvt_pk_bf16_f32 v{T2+2*m}, v{XN+4*m}, v{XN+4*m+1}")
        a(f"v_cvt_pk_bf16_f32 v{T2+2*m+1}, v{XN+4*m+2}, v{XN+4*m+3}")
        if m < GM: a(f"ds_write_b64 v13, v[{T2+2*m}:{T2+2*m+1}] offset:{m*512}")
    lds_arrive(15)
    pstamp(a, 10)
    if GM < 5:
        HM = list(range(GM, 5)); NH = 4 * len(HM)
        for k, m in enumerate(HM):
            for h in range(2):
                a(f"v_lshlrev_b32 v{XN+4*k+2*h}, 16, v{T2+2*m+h}")
                a(f"v_and_b32 v{XN+4*k+2*h+1}, 0xffff0000, v{T2+2*m+h}")
        a("v_lshlrev_b32 v125, 16, v124")
        a("v_lshlrev_b32 v124, 16, v124")
        a(f"s_mul_i32 s{sT0}, s3, 5120")
        a(f"v_lshl_add_u32 v12, v1, 4, s{sT0}")
        a(f"v_add_u32 v13, {2*RINGB}, v12")
        lds_wait("PK_HFW", 11)
        HP = 16; HF = 100
        for o in range(4):
            for k, m in enumerate(HM):
                r = HP + NH * o + 4 * k
                a(f"ds_read_b128 v[{r}:{r+3}], v{12+o//2} offset:{(o&1)*RINGB + m*1024}")
        for o in range(4):
            a(f"s_waitcnt lgkmcnt({len(HM)*(3-o)})")
            for i in range(0, NH, 2):
                src = "v[124:125]" if o == 0 else pk(HF + i)
                a(f"v_pk_add_f32 {pk(HF+i)}, {src}, {pk(HP+NH*o+i)}")
        for i in range(0, NH, 2): a(f"v_cvt_pk_bf16_f32 v{HP+i//2}, v{HF+i}, v{HF+i+1}")
        for i in range(0, NH, 2):
            a(f"v_lshlrev_b32 v{HF+i}, 16, v{HP+i//2}")
            a(f"v_and_b32 v{HF+i+1}, 0xffff0000, v{HP+i//2}")
        for i in range(0, NH, 2): a(f"v_pk_add_f32 {pk(HF+i)}, {pk(HF+i)}, {pk(XN+i)}")
        for k, m in enumerate(HM):
            a(f"v_cvt_pk_bf16_f32 v{HP+2*k}, v{HF+4*k}, v{HF+4*k+1}")
            a(f"v_cvt_pk_bf16_f32 v{HP+2*k+1}, v{HF+4*k+2}, v{HF+4*k+3}")
            a(f"buffer_store_dwordx2 v[{HP+2*k}:{HP+2*k+1}], v5, {R(S_OUT)}, 0 offen offset:{32*m}")
    pstamp(a, 11)
    finish_stamps("H")
    a.label("PK_END")
    a("s_endpgm")
    return a

def build():
    ref = open(f"cdna_kernels/{NAME}.s.ref").read().splitlines()
    head = []
    for l in ref:
        if l.startswith("; Override"): break
        head.append(l)
    body = gen()
    out = "\n".join(head) + "\n"
    if os.environ.get("AMP"):
        out += f"; @launch kernel={NAME}_kernel grid=({GRID},1,1) block=({BLOCK},1,1) lds={LDS_BYTES}\n"
        out += f"; @launch kernel=amp_kernel grid=(1,1,1) block=(64,1,1) lds=0\n"
        b = Asm()
        kernel_begin(b, "amp_kernel")
        b("s_cmp_ge_u32 s2, 1")
        b("s_cbranch_scc1 AMP_END")
        b("s_load_dwordx2 s[4:5], s[0:1], 96")
        b("s_waitcnt lgkmcnt(0)")
        b("s_sub_u32 s8, s4, 512")
        b("s_subb_u32 s9, s5, 0")
        b("s_mov_b32 s10, 256")
        b("s_mov_b32 s11, 0x00020000")
        b("v_mov_b32 v1, 0")
        b("buffer_load_dword v2, v1, s[8:11], 0 offen sc1")
        b("buffer_load_dword v3, v1, s[8:11], 0 offen offset:128 sc1")
        b("s_waitcnt vmcnt(0)")
        b("v_readfirstlane_b32 s12, v2")
        b("v_readfirstlane_b32 s13, v3")
        b("s_nop 3")
        b("s_not_b32 s13, s13")
        b("s_sub_u32 s12, s12, s13")
        b("s_min_u32 s12, s12, 10000")
        b(f"s_mul_i32 s12, s12, {int(os.environ['AMP'])}")
        b("s_memrealtime s[14:15]")
        b("s_waitcnt lgkmcnt(0)")
        b.label("AMP_L")
        b("s_memrealtime s[16:17]")
        b("s_waitcnt lgkmcnt(0)")
        b("s_sub_u32 s18, s16, s14")
        b("s_cmp_lt_u32 s18, s12")
        b("s_cbranch_scc1 AMP_L")
        b.label("AMP_END")
        b("s_endpgm")
    else:
        out += f"; @launch grid=({GRID},1,1) block=({BLOCK},1,1) lds={LDS_BYTES}\n"
    out += '.amdgcn_target "amdgcn-amd-amdhsa--gfx950"\n.text\n'
    out += body.text()
    if os.environ.get("AMP"): out += b.text()
    out += '.section .rodata,"a"\n' + kernel_desc(NAME + "_kernel", 256, 102, 128)
    if os.environ.get("AMP"): out += kernel_desc("amp_kernel", 8, 32)
    return out
if __name__ == "__main__":
    import sys
    out = sys.argv[1] if len(sys.argv) > 1 else f"cdna_kernels/{NAME}.s"
    open(out, "w").write(build())
    print("wrote", out)
```

```python
import os, math
from asmlib import *
from layout import *

NAME = "parallel_sum__ssm_conv_h3__mixer_token_mlp__prompt"
GRID, BLOCK, LDS_BYTES = 256, 512, 163840
NT = os.environ.get("NT", "")
BIG = 0x40000000
SPIN_MAX = 20000
E = lambda k, d: int(os.environ.get(k, d))

S_X, S_K, S_V, S_SHK, S_SSMK, S_SSMD, S_W1, S_B1, S_W2, S_B2, S_OUT, S_WS = [32 + 4 * i for i in range(12)]
def R(b): return f"s[{b}:{b+3}]"
sEP, sDT, sFT, sDT2, sST, sRING, sPOS, sWOFF, sHOFF, sKB = range(80, 90)
sT0, sT1, sT2, sT3, sCH, sCVB, sG1BIG, sKVBIG, sC1, sSPIN, sROT, sT4 = range(90, 102)
sROT2, sKB2 = sCH, sCVB

FS = E("FS", 4)
NSLOT = 7
NR1 = E("NR1", 7)
NR2 = 5
RINGB = NSLOT * 4096
AUX = 4 * RINGB
LNX = AUX
HROW = 1344
KVX = LNX + 8 * HROW
CV_K0, CV_K1, CONV_SZ = 4608, 8768, 12928
PT_LDS = AUX + 3 * CONV_SZ
CNT = PT_LDS + 4 * 2560
assert KVX + 16384 <= PT_LDS and CNT + 128 <= LDS_BYTES and KVX % 128 == 0

class VM:
    def __init__(self, a): self.a = a; self.q = []
    def op(self, ins, tag): self.a(ins); self.q.append(tag)
    def count(self, tag):
        idx = [i for i, t in enumerate(self.q) if t == tag]
        return len(self.q) - 1 - idx[-1] if idx else None
    def wait(self, tag, extra=""):
        n = self.count(tag)
        if n is None:
            if extra: self.a(f"s_waitcnt {extra}")
            return
        self.a(f"s_waitcnt vmcnt({min(n, 63)}) {extra}")
        self.q = self.q[len(self.q) - n:] if n else []
    def reset(self): self.q = []

TIMER = "s_memtime" if os.environ.get("CYC") else "s_memrealtime"
MUTE = [False]
def pstamp(a, i, force=False):
    if STAMP and (force or not MUTE[0]): a(f"{TIMER} s[{4+2*i}:{5+2*i}]")
def pk(r): return f"v[{r}:{r+1}]"

def gen():
    a = Asm()
    vm = VM(a)
    def emit(items):
        for it in items:
            if isinstance(it, list): emit(it)
            elif isinstance(it, tuple): vm.op(it[0], it[1])
            else: a(it)
    def flag_store(soff, tmp=2):
        a(f"v_mov_b32 v{tmp}, s{sEP}")
        a(f"v_mov_b32 v{tmp+1}, s{soff}")
        a("s_mov_b64 exec, 1")
        vm.op(f"buffer_store_dword v{tmp}, v{tmp+1}, {R(S_WS)}, 0 offen sc1", "flag")
        a("s_mov_b64 exec, -1")
    def spin(label, pairs, first_tag=None, sleep=0):
        def check():
            a(f"v_cmp_ne_u32 vcc, s{sEP}, v{pairs[0][1]}")
            for _, d in pairs[1:]:
                a(f"v_cmp_ne_u32 s[28:29], s{sEP}, v{d}")
                a("s_or_b64 vcc, vcc, s[28:29]")
        if first_tag:
            vm.wait(first_tag)
            check()
            a(f"s_cbranch_vccz {label}_OK")
        a(f"s_mov_b32 s{sSPIN}, 0")
        a.label(label)
        if sleep: a(f"s_sleep {sleep}", "poll back-off")
        for ad, d in pairs:
            a(f"buffer_load_dword v{d}, v{ad}, {R(S_WS)}, 0 offen sc1")
        a(f"s_add_u32 s{sSPIN}, s{sSPIN}, 1")
        a("s_waitcnt vmcnt(0)")
        check()
        a(f"s_cmp_gt_u32 s{sSPIN}, {SPIN_MAX}")
        a(f"s_cbranch_scc1 {label}_OK")
        a(f"s_cbranch_vccnz {label}")
        a.label(label + "_OK")
        if not first_tag: vm.reset()
    def lds_arrive(idx, t=2):
        a(f"v_mov_b32 v{t}, {CNT + 4*idx}")
        a(f"v_mov_b32 v{t+1}, 1")
        a("s_waitcnt lgkmcnt(0)")
        a("s_mov_b64 exec, 1")
        a(f"ds_add_u32 v{t}, v{t+1}")
        a("s_mov_b64 exec, -1")
    def own_word_add(t=2):
        a(f"s_lshl_b32 s{sT0}, s3, 2")
        a(f"s_add_u32 s{sT0}, s{sT0}, {CNT + 64}")
        a(f"v_mov_b32 v{t}, s{sT0}")
        a(f"v_mov_b32 v{t+1}, 1")
        a("s_mov_b64 exec, 1")
        a(f"ds_add_u32 v{t}, v{t+1}")
        a("s_mov_b64 exec, -1")
    def lds_wait(label, idx, n=4, t=2, sleep=0):
        a(f"v_mov_b32 v{t}, {CNT + 4*idx}")
        a(f"s_mov_b32 s{sSPIN}, 0")
        a.label(label)
        if sleep: a(f"s_sleep {sleep}", "poll back-off")
        a(f"ds_read_b32 v{t+1}, v{t}")
        a(f"s_add_u32 s{sSPIN}, s{sSPIN}, 1")
        a(f"s_cmp_gt_u32 s{sSPIN}, {1 << 21}")
        a("s_waitcnt lgkmcnt(0)")
        a(f"v_cmp_gt_u32 vcc, {n}, v{t+1}")
        a(f"s_cbranch_scc1 {label}_OK")
        a(f"s_cbranch_vccnz {label}")
        a.label(label + "_OK")
    def sbar(label, idx, t=2):
        lds_arrive(idx, t); lds_wait(label, idx, 4, t)
    def w2_scalar_prefetch(tag):
        if not E("SPF", 0): return
        a(f"s_lshr_b32 s{sT0}, s2, 3")
        a(f"s_lshl_b32 s{sT0}, s{sT0}, 2")
        a(f"s_add_u32 s{sT0}, s{sT0}, s3")
        a(f"s_mul_i32 s{sT0}, s{sT0}, {12*4096}")
        if E("MAP2", 0):
            a(f"s_and_b32 s{sT1}, s2, 7")
            a(f"s_lshl_b32 s{sT1}, s{sT1}, 9")
        else:
            a(f"s_bfe_u32 s{sT1}, s2, 0x20001")
            a(f"s_lshl_b32 s{sT1}, s{sT1}, 10")
        a(f"s_add_u32 s{sT0}, s{sT0}, s{sT1}")
        a(f"s_add_u32 s30, s{S_W2}, s{sT0}")
        a(f"s_addc_u32 s31, s{S_W2+1}, 0")
        a(f"s_mov_b32 s{sT0}, 0")
        a.label(f"PK_SPF{tag}")
        for c in range(4 if E("MAP2", 0) else 8):
            a(f"s_load_dword s29, s[30:31], {128*c}")
        a("s_add_u32 s30, s30, 4096")
        a("s_addc_u32 s31, s31, 0")
        a(f"s_add_u32 s{sT0}, s{sT0}, 1")
        a(f"s_cmp_lt_u32 s{sT0}, 12")
        a(f"s_cbranch_scc1 PK_SPF{tag}")
        a("s_waitcnt lgkmcnt(0)")
    def read_epoch(vdata):
        vm.wait("ep")
        a(f"v_readfirstlane_b32 s{sEP}, v{vdata}")
        a("s_nop 3")
        a(f"s_mul_i32 s{sEP}, s{sEP}, 1664525")
        a(f"s_add_u32 s{sEP}, s{sEP}, 1013904223")
    def finish_stamps(role='X'):
        if not STAMP: return
        a("s_waitcnt vmcnt(0)")
        a(f"{TIMER} s[28:29]")
        a("s_waitcnt lgkmcnt(0)")
        if os.environ.get("AMP") and role == os.environ.get("AMPROLE", "G"):
            a("s_load_dwordx2 s[30:31], s[0:1], 96")
            a("s_waitcnt lgkmcnt(0)")
            srd(a, S_K, 30, 256)
            a("s_cmp_lg_u32 s3, 0")
            a(f"s_cbranch_scc1 AMPSKIP{role}")
            a("v_mov_b32 v1, 0")
            a("s_mov_b64 exec, 1")
            a(f"v_mov_b32 v2, s{4+2*int(os.environ['AMPIDX'])}")
            a(f"buffer_atomic_umax v2, v1, {R(S_K)}, 0 offen")
            a("s_not_b32 s4, s4")
            a("v_mov_b32 v2, s4")
            a(f"buffer_atomic_umax v2, v1, {R(S_K)}, 0 offen offset:128")
            a("s_not_b32 s4, s4")
            a("s_mov_b64 exec, -1")
            a.label(f"AMPSKIP{role}")
        a("s_load_dwordx2 s[30:31], s[0:1], 104")
        a("s_waitcnt lgkmcnt(0)")
        srd(a, S_X, 30, 1 << 20, 16 << 20)
        a(f"s_lshl_b32 s{sT0}, s2, 9")
        a("v_lshrrev_b32 v1, 6, v0")
        a(f"v_lshl_add_u32 v1, v1, 6, s{sT0}")
        a("s_mov_b64 exec, 1")
        for i in range(13):
            a(f"v_mov_b32 v2, s{4+2*i}")
            a(f"buffer_store_dword v2, v1, {R(S_X)}, 0 offen offset:{4*i}")

    kernel_begin(a, NAME + "_kernel")
    a(f"s_cmp_ge_u32 s2, {GRID}")
    a("s_cbranch_scc1 PK_END")
    a("s_load_dwordx8 s[4:11], s[0:1], 0", "x k v shift_k")
    a("s_load_dwordx2 s[26:27], s[0:1], 104", "ws")
    a("s_load_dwordx8 s[16:23], s[0:1], 56", "w1 b1 w2 b2")
    a("s_load_dwordx4 s[12:15], s[0:1], 32", "ssm_k ssm_D")
    a("s_load_dwordx2 s[24:25], s[0:1], 88", "out")
    if STAMP: a(f"{TIMER} s[30:31]")
    a("v_lshrrev_b32 v2, 6, v0")
    a("v_and_b32 v1, 63, v0", "lane")
    a(f"v_readfirstlane_b32 s{sT4}, v2", "wave 0..7")
    a("v_lshlrev_b32 v3, 2, v1", "lane*4")
    a(f"v_and_b32 v4, 124, v3")
    a(f"v_add_u32 v4, {CNT}, v4")
    a("v_mov_b32 v5, 0")
    a("ds_write_b32 v4, v5", "zero the 16 lds counters")
    a(f"s_and_b32 s3, s{sT4}, 3", "w within the role")
    a(f"s_and_b32 s{sT0}, s2, 7", "x")
    a(f"s_lshr_b32 s{sT1}, s2, 3", "j")
    a(f"s_and_b32 s{sT2}, s{sT0}, 1")
    a(f"s_lshl_b32 s{sDT2}, s{sT2}, 2")
    a(f"s_and_b32 s{sT3}, s{sT1}, 3")
    a(f"s_add_u32 s{sDT2}, s{sDT2}, s{sT3}", "dt2")
    a(f"s_lshr_b32 s{sT0}, s{sT0}, 1")
    a(f"s_lshl_b32 s{sST}, s{sT0}, 3")
    a(f"s_lshr_b32 s{sT3}, s{sT1}, 2")
    a(f"s_add_u32 s{sST}, s{sST}, s{sT3}", "st")
    if E("MAP2", 0):
        a(f"s_and_b32 s{sDT2}, s{sT1}, 7")
        a(f"s_and_b32 s{sST}, s2, 7")
        a(f"s_lshl_b32 s{sST}, s{sST}, 2")
        a(f"s_lshr_b32 s{sT3}, s{sT1}, 3")
        a(f"s_add_u32 s{sST}, s{sST}, s{sT3}")
    a(f"v_mov_b32 v8, {EPOCH_OFF}")
    a(f"s_cmp_lt_u32 s{sT4}, 4")
    a("s_cbranch_scc1 PK_G")
    a("s_setprio 3")
    a(f"s_lshl_b32 s{sT0}, s2, 2")
    a(f"s_add_u32 s{sT0}, s{sT0}, s3")
    a(f"s_mul_i32 s{sT4}, s{sT0}, 2560", "x soffset")
    a("s_waitcnt lgkmcnt(0)")
    srd(a, S_X, 4, SD_BYTES)
    for r in range(2):
        for i in range(5):
            a(f"buffer_load_dword v{16+5*r+i}, v3, {R(S_X)}, s{sT4} offen offset:{r*1280+i*256} {NT}")
    a("s_barrier", "lds counters zeroed")
    a("s_branch PK_H")
    a.label("PK_G")
    a("s_getpc_b64 s[28:29]")
    a.label("PK_PC")
    a(f"s_sub_u32 s28, s28, PK_PC-{NAME}_kernel")
    a("s_subb_u32 s29, s29, 0")
    a("v_and_b32 v9, 7, v0")
    a(f"s_andn2_b32 s{sT3}, s2, 7")
    a(f"v_add_lshl_u32 v9, v9, s{sT3}, 7")
    a(f"v_min_u32 v9, PK_END-{NAME}_kernel, v9")
    a("global_load_dword v127, v9, s[28:29]")

    a("s_setprio 1")
    a(f"s_mul_hi_u32 s{sFT}, s{sT1}, 0x33333334", "j/5")
    a(f"s_mul_i32 s{sT3}, s{sFT}, 5")
    a(f"s_sub_u32 s{sDT}, s{sT1}, s{sT3}", "j%5")
    a(f"s_mul_i32 s{sROT}, s{sDT}, 13")
    a(f"s_lshr_b32 s{sROT}, s{sROT}, 2", "rot = 3.25*dt_local")
    if not E("ROT", 1): a(f"s_mov_b32 s{sROT}, 0")
    if E("ROT", 1) == 2:
        a(f"s_add_u32 s{sROT}, s{sDT}, s{sFT}")
        a(f"s_sub_u32 s{sT3}, s{sROT}, 6")
        a(f"s_min_u32 s{sROT}, s{sROT}, s{sT3}")
        a(f"s_mul_i32 s{sROT}, s{sROT}, 11")
        a(f"s_lshr_b32 s{sROT}, s{sROT}, 2", "2.75 * index")
    a(f"s_mul_i32 s{sT3}, s{sT2}, 5")
    a(f"s_add_u32 s{sDT}, s{sDT}, s{sT3}", "dt")
    a(f"s_mul_i32 s{sT3}, s{sT0}, 6")
    a(f"s_add_u32 s{sFT}, s{sFT}, s{sT3}", "ft")
    if E("MAP1", 1):
        a(f"s_mul_hi_u32 s{sFT}, s{sT1}, 0x1999999a", "j/10")
        a(f"s_mul_i32 s{sT3}, s{sFT}, 10")
        a(f"s_sub_u32 s{sDT}, s{sT1}, s{sT3}")
        a(f"s_and_b32 s{sT3}, s2, 7")
        a(f"s_mul_i32 s{sT3}, s{sT3}, 3")
        a(f"s_add_u32 s{sFT}, s{sFT}, s{sT3}")
        a(f"s_mul_i32 s{sROT}, s{sDT}, 13")
        a(f"s_lshr_b32 s{sROT}, s{sROT}, 3", "1.625*dt")
    a(f"s_cmp_ge_u32 s{sT1}, 30")
    a(f"s_cselect_b32 s{sG1BIG}, {BIG}, 0")
    a(f"s_mul_i32 s{sRING}, s3, {RINGB}")
    a(f"s_lshl_b32 s{sKB}, s3, 4")
    a(f"s_mov_b32 s{sPOS}, s{sROT}")
    a("v_lshrrev_b32 v2, 3, v1")
    a("v_mul_u32_u24 v4, 3072, v2")
    a("v_bfe_u32 v2, v1, 4, 1")
    a("v_lshlrev_b32 v2, 2, v2")
    a("v_and_b32 v3, 7, v1")
    a("v_xor_b32 v2, v2, v3")
    a("v_lshl_add_u32 v4, v2, 4, v4")
    a(f"s_lshl_b32 s{sT1}, s{sFT}, 7")
    a(f"s_add_u32 s{sT1}, s{sT1}, s{sG1BIG}")
    a(f"v_add_u32 v4, s{sT1}, v4")
    for q in range(1, 4):
        a(f"v_add_u32 v{4+q}, {q*(24576-1024)}, v4")
    a("s_waitcnt lgkmcnt(0)")
    srd(a, S_W1, 16, S * F * 2)
    a("s_barrier", "lds counters zeroed")
    def w1_stage(i):
        items = [f"s_add_u32 s{sWOFF}, s{sKB}, s{sPOS}", f"s_mul_i32 s{sWOFF}, s{sWOFF}, 98304",
                 f"s_add_u32 m0, s{sRING}, {(i % NSLOT)*4096}", f"s_add_u32 s{sPOS}, s{sPOS}, 1", f"s_and_b32 s{sPOS}, s{sPOS}, 15"]
        for q in range(4):
            items.append((f"buffer_load_dwordx4 v{4+q}, {R(S_W1)}, s{sWOFF} offen offset:{q*1024} lds", f"w1_{i}"))
        return items
    def w1_tr(i):
        out = []
        for kh in range(2):
            for mt in range(2):
                for h in range(2):
                    r = 16 * (i % NR1) + 4 * (2 * kh + mt) + 2 * h
                    out.append(f"ds_read_b64_tr_b16 a[{r}:{r+1}], v{10+mt} offset:{(i % NSLOT)*4096 + kh*2048 + h*512}")
        return out
    WD = E("WD", 2)
    for i in range(WD): emit(w1_stage(i))
    srd(a, S_WS, 26, WS_USED, E("WSMB", 0) << 20)
    vm.op(f"buffer_load_dword v9, v8, {R(S_WS)}, 0 offen sc1", "ep")
    srd(a, S_W2, 20, S * F * 2)
    srd(a, S_B2, 22, S * 2)
    srd(a, S_OUT, 24, SD_BYTES)
    if STAMP:
        a("s_mov_b32 s4, s30"); a("s_mov_b32 s5, s31")
    pstamp(a, 1)
    a("v_lshrrev_b32 v2, 5, v1")
    a("v_lshlrev_b32 v10, 10, v2")
    a("v_mul_u32_u24 v12, 10240, v2")
    a("v_bfe_u32 v2, v1, 2, 2")
    a("v_lshl_add_u32 v10, v2, 7, v10")
    a("v_bfe_u32 v2, v1, 3, 1")
    a("v_lshl_add_u32 v10, v2, 6, v10")
    a("v_bfe_u32 v2, v1, 4, 1")
    a("v_lshl_add_u32 v10, v2, 5, v10")
    a("v_and_b32 v2, 3, v1")
    a("v_lshl_add_u32 v10, v2, 3, v10")
    a(f"v_add_u32 v10, s{sRING}, v10")
    a("v_xor_b32 v11, 64, v10")
    a("v_and_b32 v2, 31, v1")
    a("v_lshl_add_u32 v12, v2, 4, v12")
    a(f"s_lshl_b32 s{sT0}, s{sDT}, 10")
    a(f"s_add_u32 s{sT0}, s{sT0}, s{sG1BIG}")
    if HBLK_OFF: a(f"s_add_u32 s{sT0}, s{sT0}, {HBLK_OFF}")
    a(f"v_add_u32 v12, s{sT0}, v12")
    a("v_add_u32 v13, 20480, v12")
    a(f"s_and_b32 s{sT0}, s{sDT}, 3")
    a(f"s_lshl_b32 s{sT0}, s{sT0}, {8+FS}")
    a(f"s_add_u32 s{sT0}, s{sT0}, {FH_OFF}")
    a(f"v_lshl_add_u32 v14, v0, {FS}, s{sT0}")
    a(f"s_and_b32 s{sROT2}, s{sDT2}, 3")
    a(f"s_mul_i32 s{sROT2}, s{sROT2}, 3")
    if E("MAP2", 0):
        a(f"s_mul_i32 s{sROT2}, s{sDT2}, 3")
        a(f"s_lshr_b32 s{sROT2}, s{sROT2}, 1")
    if E("ROT2", 1) == 2:
        a(f"s_and_b32 s{sT0}, s{sST}, 7")
        a(f"s_mul_i32 s{sT0}, s{sT0}, 3")
        a(f"s_lshr_b32 s{sT0}, s{sT0}, 1")
        a(f"s_add_u32 s{sROT2}, s{sROT2}, s{sT0}")
        a(f"s_sub_u32 s{sT0}, s{sROT2}, 12")
        a(f"s_min_u32 s{sROT2}, s{sROT2}, s{sT0}")
    a(f"s_mul_i32 s{sKB2}, s3, 12")
    c0 = -2.0 * math.sqrt(2.0 / math.pi) * math.log2(math.e)
    a(f"s_mov_b32 s{sC1}, {f32(c0*0.044715)}")
    if E("W2PF", 0):
        a(f"s_cmp_lg_u32 s{sG1BIG}, 0")
        a("s_cbranch_scc1 PK_G_PF")
    NPRE = NR1 + NSLOT
    BURST = E("BURST", 1)
    last = NR1 if BURST else NPRE - WD + 1
    for i in range(last):
        vm.wait(f"w1_{i}")
        if i < NR1: emit(w1_tr(i))
        nx = i + WD
        if nx < NPRE:
            if nx >= NSLOT:
                later = sum(1 for k in range(nx - NSLOT + 1, i + 1) if k < NR1)
                a(f"s_waitcnt lgkmcnt({8 if later else 0})")
            emit(w1_stage(nx))
        if i == WD:
            read_epoch(9); lds_arrive(6)
    EARLY = E("EARLY", 0); NP0 = E("NP0", 10)
    sLATE = 31
    if BURST:
        a("s_waitcnt lgkmcnt(0)")
        if EARLY:
            assert NR1 == 7
            vm.op(f"buffer_load_dword v15, v14, {R(S_WS)}, 0 offen sc1", "hpoll0")
            for nx in range(NR1 - 1 + WD + 1, NP0): emit(w1_stage(nx))
            lds_wait("PK_B1W", 1)
            vm.wait("hpoll0")
            a(f"v_cmp_ne_u32 vcc, s{sEP}, v15")
            a(f"s_mov_b32 s{sLATE}, 1")
            pstamp(a, 2)
            a("s_cbranch_vccz PK_SPIN_H_OK")
            a(f"s_mov_b32 s{sLATE}, 0")
            keep = list(vm.q)
            for nx in range(NP0, NPRE): emit(w1_stage(nx))
            vm.q = keep
        else:
            for nx in range(NR1 - 1 + WD + 1, NPRE): emit(w1_stage(nx))
    if E("W1ONLY", 0):
        a("s_waitcnt vmcnt(0)")
        for i in range(2, 12): pstamp(a, i)
        finish_stamps()
        a("s_endpgm")
    if EARLY:
        keep = list(vm.q)
        spin("PK_SPIN_H", [(14, 15)])
        vm.q = keep
    else:
        vm.op(f"buffer_load_dword v15, v14, {R(S_WS)}, 0 offen sc1", "hpoll")
        lds_wait("PK_B1W", 1)
        pstamp(a, 2)
        spin("PK_SPIN_H", [(14, 15)], "hpoll", sleep=E("HPOLL_SLEEP", 4))
    if E("GBAR1", 0): sbar("PK_GB1", 13)
    pstamp(a, 3)
    a("s_setprio 2")
    ACC = 64
    HB = [("v", 16), ("v", 32), ("v", 48)] + [("a", 16 * k) for k in range(NR1, 8)]
    HD = len(HB)
    HB = HB[-((16 - 0) % HD or HD):] + HB[:-((16 - 0) % HD or HD)] if False else HB
    def hreg(i, kh, nt):
        f, b = HB[(i + HSH) % HD]
        r = b + 4 * (2 * kh + nt)
        return f"{f}[{r}:{r+3}]"
    HSH = (1 - 13) % HD
    sHP = sKVBIG
    a(f"s_mov_b32 s{sHP}, s{sROT}")
    def h_adv():
        return [f"s_add_u32 s{sHOFF}, s{sKB}, s{sHP}", f"s_mul_i32 s{sHOFF}, s{sHOFF}, 40960",
                f"s_add_u32 s{sHP}, s{sHP}, 1", f"s_and_b32 s{sHP}, s{sHP}, 15"]
    def hload(i, nt, kh):
        return (f"buffer_load_dwordx4 {hreg(i, kh, nt)}, v{12+kh}, {R(S_WS)}, s{sHOFF} offen offset:{nt*512} {os.environ.get('HFLAG', 'sc1')}", f"h{i}_{kh}{nt}")
    HPRE = E("HPRE", HD)
    for i in range(HPRE):
        emit(h_adv())
        for kh in range(2):
            for nt in range(2): emit([hload(i, nt, kh)])
    a("s_waitcnt lgkmcnt(0)")
    def pos2(i):
        return [f"s_add_u32 s{sT0}, s{sROT2}, {i}", f"s_sub_u32 s{sT1}, s{sT0}, 12", f"s_min_u32 s{sT0}, s{sT0}, s{sT1}",
                f"s_add_u32 s{sT0}, s{sT0}, s{sKB2}"]
    def w2_slot(i): return i % NSLOT
    def w2_dma(i):
        items = pos2(i) + [f"s_add_u32 m0, s{sRING}, {w2_slot(i)*4096}", f"s_lshl_b32 s{sWOFF}, s{sT0}, 17"]
        for q in range(4):
            items.append((f"buffer_load_dwordx4 v{4+q}, {R(S_W2)}, s{sWOFF} offen offset:{q*1024} lds", f"w2_{i}"))
        return items
    BB = 16
    for i in range(16):
        nx = i + HPRE
        if E("G1STEPS", 0):
            MUTE[0] = True
            if i in (1, 3, 5, 7, 9, 11, 13): pstamp(a, 4 + i // 2, True)
        if nx < 16: emit(h_adv())
        side = []
        if EARLY:
            if 4 <= i <= 12:
                if i + 3 < NP0: vm.wait(f"w1_{i+3}")
                side = w1_tr(i + 3)
            if i >= 6: a("s_waitcnt lgkmcnt(8)" if i <= 13 else "s_waitcnt lgkmcnt(0)")
            if NP0 + i <= 13:
                a(f"s_cmp_eq_u32 s{sLATE}, 0")
                a(f"s_cbranch_scc1 PK_NOLATE{i}")
                keep = list(vm.q); emit(w1_stage(NP0 + i)); vm.q = keep
                a.label(f"PK_NOLATE{i}")
            if i in (6, 7): emit(w1_stage(8 + i))
        else:
            st_tr = NR1 - 1 + i
            if i >= 1 and st_tr < 16:
                vm.wait(f"w1_{st_tr}")
                side = w1_tr(st_tr)
            st_ld = NPRE + i - 3
            if i >= 3 and st_ld < 16:
                a("s_waitcnt lgkmcnt(8)")
                emit(w1_stage(st_ld))
            elif i >= NR1:
                a("s_waitcnt lgkmcnt(8)" if NR1 - 1 + i - 1 < 16 else "s_waitcnt lgkmcnt(0)")
        if E("KV_LATE", 0) and i == E("KV_LATE", 0):
            a(f"v_mov_b32 v2, {CNT + 48}")
            a("s_mov_b64 exec, 1")
            a("ds_add_u32 v2, v2")
            a("s_mov_b64 exec, -1")
        if i == 12:
            side = side + ["v_lshrrev_b32 v2, 3, v1", "v_lshlrev_b32 v4, 12, v2", "v_bfe_u32 v2, v1, 4, 1", "v_lshlrev_b32 v2, 1, v2",
                    "v_and_b32 v3, 7, v1", "v_xor_b32 v2, v2, v3", "v_lshl_add_u32 v4, v2, 4, v4", f"s_lshl_b32 s{sT0}, s{sST}, 7",
                    f"v_add_u32 v4, s{sT0}, v4", "v_xor_b32 v2, 64, v4", f"v_add_u32 v5, {1*(32768-1024)}, v2",
                    f"v_add_u32 v6, {2*(32768-1024)}, v4", f"v_add_u32 v7, {3*(32768-1024)}, v2",
                    ]
        if i == E("KGO", 11): lds_arrive(10)
        if E("CEARLY", 0) and i == E("PAUSE_AT", 14): own_word_add()
        if i == 13:
            side = [f"s_add_u32 s{sT2}, s{sRING}, {3*4096}", f"v_lshl_add_u32 v9, v1, 4, s{sT2}",
                    f"s_lshl_b32 s{sT2}, s3, 12", f"s_add_u32 s{sT2}, s{sT2}, {3*4096}", f"v_lshl_add_u32 v10, v1, 4, s{sT2}",
                    f"v_add_u32 v11, {2*RINGB}, v10",
                    f"s_lshr_b32 s{sT0}, s3, 1", f"s_lshl_b32 s{sT0}, s{sT0}, 6", f"s_add_u32 s{sT0}, s{sT0}, {PT_LDS}",
                    "v_lshrrev_b32 v8, 5, v1", f"v_lshl_add_u32 v8, v8, 3, s{sT0}",
                    f"s_lshr_b32 s{sT0}, s3, 1", f"s_lshl_b32 s{sT0}, s{sT0}, 2", f"s_lshl_b32 s{sT1}, s{sFT}, 3",
                    f"s_add_u32 s{sT0}, s{sT0}, s{sT1}", f"s_mul_i32 s{sT0}, s{sT0}, 10240", f"s_and_b32 s{sT1}, s3, 1",
                    f"s_lshl_b32 s{sT1}, s{sT1}, 9", f"s_add_u32 s{sT0}, s{sT0}, s{sT1}",
                    f"s_add_u32 s{sT0}, s{sT0}, {UBLK_OFF - HBLK_OFF - 20480}", f"v_add_u32 v14, s{sT0}, v13", "v_add_u32 v15, 20480, v14",
                    f"v_mov_b32 v13, {f32(c0)}", "s_mov_b32 s28, 1.0", "s_mov_b32 s29, 1.0"]
        if i == 14:
            side = [f"ds_read_b64 v[{32+2*q}:{33+2*q}], v8 offset:{16*q}" for q in range(4)]
        if i == 15:
            for kh in range(2):
                for nt in range(2): vm.wait(f"h{i}_{kh}{nt}")
            def mf(t_):
                mt, nt = t_ >> 1, t_ & 1
                t = ACC + 16 * t_
                for kh in range(2):
                    wr = 16 * (i % NR1) + 4 * (2 * kh + mt)
                    a(f"v_mfma_f32_32x32x16_bf16 v[{t}:{t+15}], a[{wr}:{wr+3}], {hreg(i, kh, nt)}, v[{t}:{t+15}]")
            def wr_(t_):
                for q in range(4):
                    r = ACC + 16 * t_ + 4 * q
                    a(f"ds_write_b128 v9, v[{r}:{r+3}] offset:{t_*4096 + q*1024}")
            FIN = 48
            mf(0); mf(1)
            a("s_waitcnt lgkmcnt(0)")
            for q in range(0, 10, 2):
                a(f"v_lshlrev_b32 v{FIN+q}, 16, v{32+q//2}")
                a(f"v_and_b32 v{FIN+q+1}, 0xffff0000, v{32+q//2}")
            wr_(0); mf(2); wr_(1); mf(3)
            for q in range(10, 16, 2):
                a(f"v_lshlrev_b32 v{FIN+q}, 16, v{32+q//2}")
                a(f"v_and_b32 v{FIN+q+1}, 0xffff0000, v{32+q//2}")
            wr_(2)
            a("s_nop 1")
            wr_(3)
            continue
        k = 0; si = 0
        for kh in range(2):
            for nt in range(2):
                vm.wait(f"h{i}_{kh}{nt}")
                for mt in range(2):
                    t = ACC + 16 * (2 * mt + nt)
                    wr = 16 * (i % NR1) + 4 * (2 * kh + mt)
                    c = "0" if (i == 0 and kh == 0) else f"v[{t}:{t+15}]"
                    if not E("NOMF1", 0): a(f"v_mfma_f32_32x32x16_bf16 v[{t}:{t+15}], a[{wr}:{wr+3}], {hreg(i, kh, nt)}, {c}")
                    k += 1
                    while si < (len(side) * k + 7) // 8:
                        emit([side[si]]); si += 1
                if nx < 16: emit([hload(nx, nt, kh)])
    pstamp(a, 4)
    if E("G1STEPS", 0): pstamp(a, 11, True)
    lds_arrive(4)
    H3L = E("H3L", 0)
    W2AF = E("W2AF", 0)
    if not H3L and not W2AF: emit(w2_dma(0)); emit(w2_dma(1))
    lds_wait("PK_XW1", 4)
    PT = 64
    for o in range(4):
        for q in range(4):
            r = PT + 16 * o + 4 * q
            a(f"ds_read_b128 v[{r}:{r+3}], v{10+o//2} offset:{(o&1)*RINGB + q*1024}")
    for o in range(4):
        a(f"s_waitcnt lgkmcnt({12-4*o})")
        for i in range(0, 16, 2):
            a(f"v_pk_add_f32 {pk(FIN+i)}, {pk(FIN+i)}, {pk(PT+16*o+i)}")
    lds_arrive(5)
    T = 64
    for i in range(0, 16, 2): a(f"v_pk_mul_f32 {pk(T+i)}, {pk(FIN+i)}, {pk(FIN+i)}")
    for i in range(16): a(f"v_fma_f32 v{T+i}, v{T+i}, s{sC1}, v13")
    for i in range(0, 16, 2): a(f"v_pk_mul_f32 {pk(T+i)}, {pk(T+i)}, {pk(FIN+i)}")
    for i in range(16): a(f"v_exp_f32 v{T+i}, v{T+i}")
    if E("W2MID", 0): emit(w2_dma(2))
    for i in range(0, 16, 2): a(f"v_pk_add_f32 {pk(T+i)}, {pk(T+i)}, s[28:29]")
    for i in range(16): a(f"v_rcp_f32 v{T+i}, v{T+i}")
    for i in range(0, 16, 2): a(f"v_pk_mul_f32 {pk(FIN+i)}, {pk(FIN+i)}, {pk(T+i)}")
    P = T + 16
    for i in range(0, 16, 2): a(f"v_cvt_pk_bf16_f32 v{P+i//2}, v{FIN+i}, v{FIN+i+1}")
    a("s_nop 1")
    for qp in range(2):
        r = P + 4 * qp
        a(f"v_permlane32_swap_b32 v{r}, v{r+2}")
        a(f"v_permlane32_swap_b32 v{r+1}, v{r+3}")
        vm.op(f"buffer_store_dwordx4 v[{r}:{r+3}], v{14+qp}, {R(S_WS)}, 0 offen sc1", "ust")
    a.label("PK_G_W2")
    pstamp(a, 5)
    if E("CEARLY", 0): own_word_add()
    lds_arrive(8)
    a(f"s_lshl_b32 s{sT0}, s{sDT}, 1")
    a(f"s_and_b32 s{sT1}, s3, 1")
    a(f"s_add_u32 s{sT0}, s{sT0}, s{sT1}")
    a(f"s_mul_i32 s{sT0}, s{sT0}, 48")
    a(f"s_lshl_b32 s{sT1}, s{sFT}, 1")
    a(f"s_add_u32 s{sT0}, s{sT0}, s{sT1}")
    a(f"s_lshr_b32 s{sT1}, s3, 1")
    a(f"s_add_u32 s{sT0}, s{sT0}, s{sT1}")
    a(f"s_lshl_b32 s{sT0}, s{sT0}, {FS}")
    a(f"s_add_u32 s{sT0}, s{sT0}, {FU_OFF}")
    a(f"s_add_u32 s{sT4}, s{sT0}, s{sG1BIG}")
    TR2 = 100
    a("v_lshrrev_b32 v106, 4, v1", "g")
    a("v_and_b32 v107, 15, v1", "n")
    a(f"v_lshlrev_b32 v{TR2}, 10, v106")
    a("v_bfe_u32 v2, v1, 2, 2")
    a(f"v_lshl_add_u32 v{TR2}, v2, 7, v{TR2}")
    a("v_bfe_u32 v2, v1, 3, 2")
    a(f"v_lshl_add_u32 v{TR2}, v2, 5, v{TR2}")
    a("v_and_b32 v2, 3, v1")
    a(f"v_lshl_add_u32 v{TR2}, v2, 3, v{TR2}")
    a(f"v_add_u32 v{TR2}, s{sRING}, v{TR2}")
    for j in range(1, 4): a(f"v_xor_b32 v{TR2+j}, {32*j}, v{TR2}")
    a("v_min_u32 v2, 35, v1")
    a("v_mul_u32_u24 v3, 43, v2")
    a("v_lshrrev_b32 v3, 9, v3")
    a("v_mul_u32_u24 v104, 36, v3")
    a("v_add_u32 v104, v104, v2")
    a(f"s_mul_i32 s{sT3}, s{sDT2}, 80", "d0")
    a(f"s_lshr_b32 s{sT0}, s{sT3}, 5")
    a(f"s_mul_i32 s{sT0}, s{sT0}, 48")
    a(f"s_add_u32 s{sT0}, s{sT0}, s{sKB2}")
    a(f"s_lshl_b32 s{sT0}, s{sT0}, {FS}")
    a(f"s_add_u32 s{sT0}, s{sT0}, {FU_OFF}")
    a(f"v_lshl_add_u32 v104, v104, {FS}, s{sT0}")
    a("v_mul_u32_u24 v105, 10240, v106")
    a("v_lshl_add_u32 v105, v107, 4, v105")
    a(f"s_lshl_b32 s{sT0}, s{sT3}, 4")
    a(f"s_add_u32 s{sT0}, s{sT0}, {UBLK_OFF}")
    a(f"v_add_u32 v105, s{sT0}, v105")
    def w2_tr(i, tr):
        out = []
        for j in range(4):
            for h in range(2):
                r = 16 * (i % NR2) + 4 * j + 2 * h
                out.append(f"ds_read_b64_tr_b16 a[{r}:{r+1}], v{tr+j} offset:{w2_slot(i)*4096 + h*512}")
        return out
    if H3L:
        lds_wait("PK_XW2", 5, n=5)
        for k in range(3): emit(w2_tr(k, TR2))
        vm.wait("ust")
        flag_store(sT4)
        pstamp(a, 6)
        emit(w2_dma(3)); emit(w2_dma(4))
        a("s_waitcnt lgkmcnt(0)")
    else:
        if not W2AF:
            vm.wait("w2_1")
            for k in range(2): emit(w2_tr(k, TR2))
        lds_wait("PK_XW2", 5)
        vm.wait("ust")
        flag_store(sT4)
        pstamp(a, 6)
        if W2AF: emit(w2_dma(0)); emit(w2_dma(1))
        if not E("W2MID", 0): emit(w2_dma(2))
        emit(w2_dma(3)); emit(w2_dma(4))
        vm.wait("w2_2")
        if W2AF:
            for k in range(2): emit(w2_tr(k, TR2))
        emit(w2_tr(2, TR2))
        a("s_waitcnt lgkmcnt(0)")
    if E("BURST2", 1):
        for nx in range(5, 10): emit(w2_dma(nx))
        for i in (3, 4):
            vm.wait(f"w2_{i}"); emit(w2_tr(i, TR2))
        a("s_waitcnt lgkmcnt(0)")
        emit(w2_dma(10)); emit(w2_dma(11))
        vm.op(f"buffer_load_dword v108, v104, {R(S_WS)}, 0 offen sc1", "upoll")
    else:
      for i in range(3, 12):
        nx = i + 2
        if nx < 12:
            if nx >= 9: a("s_waitcnt lgkmcnt(0)")
            emit(w2_dma(nx))
        vm.wait(f"w2_{i}")
        if i < NR2: emit(w2_tr(i, TR2))
        if i == E("UPOLL_AT", 10):
            vm.op(f"buffer_load_dword v108, v104, {R(S_WS)}, 0 offen sc1", "upoll")
    for j in range(4): a(f"v_mov_b32 v{4+j}, v{TR2+j}")
    a("v_mul_u32_u24 v109, 26, v1")
    a("v_lshrrev_b32 v109, 8, v109", "L/10")
    a("v_mul_u32_u24 v110, 10, v109")
    a("v_sub_u32 v110, v1, v110", "L%10")
    a("v_min_u32 v109, 5, v109")
    a("v_mul_u32_u24 v109, 10240, v109")
    a("v_lshl_add_u32 v109, v110, 7, v109")
    a(f"s_and_b32 s{sT0}, s{sST}, 7")
    a(f"s_mul_i32 s{sT0}, s{sT0}, 6")
    a(f"s_mul_i32 s{sT1}, s3, 48")
    a(f"s_add_u32 s{sT0}, s{sT0}, s{sT1}")
    a(f"s_mul_i32 s{sT0}, s{sT0}, 10240")
    a(f"s_mul_i32 s{sT1}, s{sDT2}, 1280")
    a(f"s_add_u32 s{sT0}, s{sT0}, s{sT1}")
    a(f"s_add_u32 s{sT0}, s{sT0}, {UBLK_OFF}")
    a(f"v_add_u32 v109, s{sT0}, v109")
    a("v_mov_b32 v3, v105")
    pstamp(a, 7)
    spin("PK_SPIN_U", [(104, 108)], "upoll" if vm.count("upoll") is not None else "x", sleep=E("UPOLL_SLEEP", 4))
    if E("GBAR2", 0): sbar("PK_GB2", 14, t=110)
    pstamp(a, 8)
    if E("G2STEPS", 0): pstamp(a, 1, True)
    ACC2 = 48
    UB = [("a", 100), ("v", 8), ("v", 28), ("a", 80)]; UD = 4
    def ureg(i, m):
        f, b = UB[i % UD]
        return f"{f}[{b+4*m}:{b+4*m+3}]"
    def u_adv(i): return pos2(i) + [f"s_mul_i32 s{sHOFF}, s{sT0}, 40960"]
    def uload(i, m):
        return (f"buffer_load_dwordx4 {ureg(i, m)}, v3, {R(S_WS)}, s{sHOFF} offen offset:{m*256} sc1", f"u{i}_{m}")
    UPRE = E("UPRE", UD)
    for i in range(UPRE):
        emit(u_adv(i))
        for m in range(5): emit([uload(i, m)])
        if i == 0 and E("TOUCH", 0):
            vm.op(f"buffer_load_dword a127, v109, {R(S_WS)}, 0 offen sc1", "touch")
    a("s_waitcnt lgkmcnt(0)")
    for i in range(12):
        nx = i + UPRE
        if E("G2STEPS", 0):
            MUTE[0] = True
            if i in (0, 1, 3, 5, 7, 9, 11): pstamp(a, 2 + (i + 1) // 2, True)
        if nx < 12: emit(u_adv(nx))
        side = w2_tr(NR2 - 1 + i, 4) if (i >= 1 and NR2 - 1 + i < 12) else []
        if NR2 <= i <= 8: a("s_waitcnt lgkmcnt(8)")
        if i == 9: a("s_waitcnt lgkmcnt(0)")
        if i == E("YGO", 7):
            a(f"v_mov_b32 v2, {CNT + 36}")
            a("s_mov_b64 exec, 1")
            a("ds_add_u32 v2, v2", "counter 9 += its own address")
            a("s_mov_b64 exec, -1")
        if i == 10:
            side = ["v_lshrrev_b32 v8, 4, v1", "v_and_b32 v9, 15, v1",
                    f"s_lshl_b32 s{sT0}, s{sST}, 6", f"s_lshl_b32 s{sT1}, s3, 4", f"s_add_u32 s{sT0}, s{sT0}, s{sT1}",
                    f"v_add_u32 v9, s{sT0}, v9", "v_mul_u32_u24 v10, 1280, v9", "v_lshl_add_u32 v10, v8, 3, v10",
                    f"s_mul_i32 s{sT0}, s{sDT2}, 160", f"v_add_u32 v10, s{sT0}, v10", "v_lshlrev_b32 v9, 1, v9",
                    (f"buffer_load_ushort v16, v9, {R(S_B2)}, 0 offen", "b2"),
                    f"v_lshl_add_u32 v11, v1, 4, s{sRING}",
                    f"s_mul_i32 s{sT0}, s3, 2560", f"s_add_u32 s{sT0}, s{sT0}, {PT_LDS}", f"v_lshl_add_u32 v15, v1, 3, s{sT0}",
                    f"s_mul_i32 s{sT0}, s3, 5120", f"v_lshl_add_u32 v12, v1, 4, s{sT0}", f"v_add_u32 v13, {2*RINGB}, v12"]
        TL2 = E("TL2", 2)
        if i > 12 - TL2: continue
        if i == 12 - TL2:
            assert nx >= 12
            emit(side)
            vm.wait("u11_4")
            pend = []
            for j in range(4):
                for ii in range(i, 12):
                    for m in range(5):
                        t = ACC2 + 4 * (5 * j + m); wr = 16 * (ii % NR2) + 4 * j
                        a(f"v_mfma_f32_16x16x32_bf16 v[{t}:{t+3}], {ureg(ii, m)}, a[{wr}:{wr+3}], v[{t}:{t+3}]")
                        for p in pend: p[0] += 1
                        if pend and pend[0][0] >= 9:
                            a(pend.pop(0)[1])
                            for p in pend: p[0] += 1
                        if ii == 11:
                            pend.append([0, f"ds_write_b128 v11, v[{t}:{t+3}] offset:{j*5120 + m*1024}"])
            while pend:
                if pend[0][0] < 9:
                    n = 9 - pend[0][0]
                    a(f"s_nop {n-1}")
                    for p in pend: p[0] += n
                a(pend.pop(0)[1])
                for p in pend: p[0] += 1
            continue
        k = 0; si = 0
        for m in range(5):
            vm.wait(f"u{i}_{m}")
            for j in range(4):
                t = ACC2 + 4 * (5 * j + m)
                wr = 16 * (i % NR2) + 4 * j
                c = "0" if i == 0 else f"v[{t}:{t+3}]"
                a(f"v_mfma_f32_16x16x32_bf16 v[{t}:{t+3}], {ureg(i, m)}, a[{wr}:{wr+3}], {c}")
                k += 1
                while si < (len(side) * k + 19) // 20:
                    emit([side[si]]); si += 1
            if nx < 12: emit([uload(nx, m)])
    pstamp(a, 9, True)
    MUTE[0] = False
    FIN2 = 28
    lds_arrive(11)
    vm.wait("b2")
    a("v_lshlrev_b32 v17, 16, v16")
    a("v_lshlrev_b32 v16, 16, v16")
    lds_wait("PK_GB3", 11)
    PT2 = 48; PR = 18; PF = 108
    GM = E("GM", 3)
    NG = 4 * GM
    for o in range(4):
        for m in range(GM):
            r = PT2 + 20 * o + 4 * m
            a(f"ds_read_b128 v[{r}:{r+3}], v{12+o//2} offset:{(o&1)*RINGB + m*1024}")
    for o in range(4):
        a(f"s_waitcnt lgkmcnt({min(10, GM*(3-o))})")
        for i in range(0, NG, 2):
            src = "v[16:17]" if o == 0 else pk(FIN2 + i)
            a(f"v_pk_add_f32 {pk(FIN2+i)}, {src}, {pk(PT2+20*o+i)}")
    T2 = 48
    for i in range(0, NG, 2): a(f"v_cvt_pk_bf16_f32 v{T2+i//2}, v{FIN2+i}, v{FIN2+i+1}")
    for i in range(0, NG, 2):
        a(f"v_lshlrev_b32 v{FIN2+i}, 16, v{T2+i//2}")
        a(f"v_and_b32 v{FIN2+i+1}, 0xffff0000, v{T2+i//2}")
    lds_wait("PK_PW", 15)
    pstamp(a, 10)
    for m in range(GM):
        a(f"ds_read_b64 v[{PR+2*m}:{PR+2*m+1}], v15 offset:{m*512}")
    a("s_waitcnt lgkmcnt(0)")
    for m in range(GM):
        for h in range(2):
            i = 4 * m + 2 * h
            a(f"v_lshlrev_b32 v{PF+i}, 16, v{PR+i//2}")
            a(f"v_and_b32 v{PF+i+1}, 0xffff0000, v{PR+i//2}")
            a(f"v_pk_add_f32 {pk(FIN2+i)}, {pk(FIN2+i)}, {pk(PF+i)}")
            a(f"v_cvt_pk_bf16_f32 v{60+i//2}, v{FIN2+i}, v{FIN2+i+1}")
        a(f"buffer_store_dwordx2 v[{60+2*m}:{61+2*m}], v10, {R(S_OUT)}, 0 offen offset:{32*m}")
    a(f"s_or_b32 s{sT0}, s2, s3")
    a(f"s_cmp_lg_u32 s{sT0}, 0")
    a("s_cbranch_scc1 PK_NOEP")
    a(f"s_mov_b32 s{sT0}, {EPOCH_OFF}")
    flag_store(sT0)
    a.label("PK_NOEP")
    pstamp(a, 11)
    finish_stamps("G")
    a("s_endpgm")

    if E("W2PF", 0):
        a.label("PK_G_PF")
        vm.reset(); vm.q.append("ep")
        read_epoch(9); lds_arrive(6)
        a(f"s_lshr_b32 s{sT2}, s2, 3")
        a(f"s_sub_u32 s{sT2}, s{sT2}, 30")
        a(f"s_lshl_b32 s{sT2}, s{sT2}, 2")
        a(f"s_add_u32 s{sT2}, s{sT2}, s3")
        a(f"s_and_b32 s{sT1}, s2, 1")
        a(f"s_lshl_b32 s{sT1}, s{sT1}, 3")
        a(f"s_add_u32 s{sT2}, s{sT2}, s{sT1}")
        a(f"s_mul_i32 s{sT2}, s{sT2}, {96*4096}")
        a(f"s_bfe_u32 s{sT1}, s2, 0x20001")
        a(f"s_lshl_b32 s{sT1}, s{sT1}, 10")
        a(f"s_add_u32 s{sT2}, s{sT2}, s{sT1}")
        a("v_lshrrev_b32 v8, 3, v1")
        a("v_lshlrev_b32 v8, 12, v8")
        a("v_and_b32 v3, 7, v1")
        a("v_lshl_add_u32 v8, v3, 7, v8")
        emit(["v_lshrrev_b32 v2, 3, v1", "v_lshlrev_b32 v4, 12, v2", "v_bfe_u32 v2, v1, 4, 1", "v_lshlrev_b32 v2, 1, v2",
              "v_and_b32 v3, 7, v1", "v_xor_b32 v2, v2, v3", "v_lshl_add_u32 v4, v2, 4, v4", f"s_lshl_b32 s{sT0}, s{sST}, 7",
              f"v_add_u32 v4, s{sT0}, v4", "v_xor_b32 v2, 64, v4", f"v_add_u32 v5, {1*(32768-1024)}, v2",
              f"v_add_u32 v6, {2*(32768-1024)}, v4", f"v_add_u32 v7, {3*(32768-1024)}, v2"])
        lds_wait("PK_PFW", E("PFGO", 3), sleep=4)
        for i in range(2, 5): pstamp(a, i)
        for t in range(E("PFN", 12)):
            a(f"buffer_load_dword v{16+t}, v8, {R(S_W2)}, s{sT2} offen")
            a(f"s_add_u32 s{sT2}, s{sT2}, 32768")
        a("s_waitcnt vmcnt(0)")
        lds_arrive(10); lds_arrive(4); lds_arrive(5)
        emit(w2_dma(0)); emit(w2_dma(1))
        a("s_waitcnt vmcnt(0)")
        a("s_setprio 2")
        a("s_branch PK_G_W2")

    a.label("PK_H")
    MUTE[0] = False
    vm.reset()
    for r in range(2):
        for i in range(5): vm.q.append(f"x{r}{i}")
    sTT, sCW = sDT, sFT
    KVMAP = E("KVMAP", 0)
    if KVMAP:
        a(f"s_and_b32 s{sT0}, s2, 7")
        a(f"s_lshl_b32 s{sT0}, s{sT0}, 2")
        a(f"s_lshr_b32 s{sCW}, {hex(KVMAP)}, s{sT0}")
        a(f"s_and_b32 s{sCW}, s{sCW}, 15")
        a(f"s_lshr_b32 s{sTT}, s2, 3")
        a(f"s_cmp_ge_u32 s{sCW}, 5")
        a(f"s_cselect_b32 s{sKVBIG}, {BIG}, 0")
    else:
        a("s_cmp_ge_u32 s2, 160")
        a(f"s_cselect_b32 s{sKVBIG}, {BIG}, 0")
        a(f"s_mul_hi_u32 s{sTT}, s2, 0x33333334", "T")
        a(f"s_mul_i32 s{sCW}, s{sTT}, 5")
        a(f"s_sub_u32 s{sCW}, s2, s{sCW}", "cw")
    a(f"s_lshl_b32 s{sT0}, s{sTT}, 2")
    a(f"s_add_u32 s{sT0}, s{sT0}, s3")
    a(f"s_mul_i32 s{sT0}, s{sT0}, 20480")
    a(f"s_lshl_b32 s{sT1}, s{sCW}, 8")
    a(f"s_add_u32 s{sT0}, s{sT0}, s{sT1}")
    a(f"s_add_u32 s{sT0}, s{sT0}, s{sKVBIG}")
    VKV = 10
    a(f"v_add_u32 v{VKV+1}, s{sT0}, v3")
    a(f"v_subrev_u32 v{VKV}, 3840, v{VKV+1}")
    for i in range(1, 4): a(f"v_add_u32 v{VKV+1+i}, {5120*i}, v{VKV+1}")
    a(f"s_lshl_b32 s{sT1}, s{sCW}, 10")
    a(f"v_lshl_add_u32 v15, v1, 4, s{sT1}")
    XRAW = 16
    if E("W1ONLY", 0):
        if STAMP:
            a("s_mov_b32 s4, s30"); a("s_mov_b32 s5, s31")
        for i in range(1, 12): pstamp(a, i)
        finish_stamps()
        a("s_endpgm")
    srd(a, S_WS, 26, WS_USED, E("WSMB", 0) << 20)
    vm.op(f"buffer_load_dword v9, v8, {R(S_WS)}, 0 offen sc1", "ep")
    srd(a, S_K, 6, SD_BYTES)
    srd(a, S_V, 8, SD_BYTES)
    srd(a, S_SHK, 10, D * 8)
    srd(a, S_SSMK, 12, SD_BYTES)
    srd(a, S_SSMD, 14, D * 2)
    srd(a, S_W2, 20, S * F * 2)
    srd(a, S_B2, 22, S * 2)
    srd(a, S_OUT, 24, SD_BYTES)
    if STAMP:
        a("s_mov_b32 s4, s30"); a("s_mov_b32 s5, s31")
    def kv_loads():
        vm.op(f"buffer_load_dwordx4 a[36:39], v15, {R(S_SHK)}, 0 offen", "shk")
        for r in range(3):
            vm.op(f"buffer_load_dword a{r}, v{VKV}, {R(S_K)}, 0 offen offset:{r*1280} {NT}", "k")
        for r in range(16):
            vm.op(f"buffer_load_dword a{3+r}, v{VKV+1+r//4}, {R(S_K)}, 0 offen offset:{(r%4)*1280} {NT}", "k")
        for r in range(16):
            vm.op(f"buffer_load_dword a{19+r}, v{VKV+1+r//4}, {R(S_V)}, 0 offen offset:{(r%4)*1280} {NT}", "v")
    KV_EARLY = E("KV_EARLY", 0)
    if KV_EARLY == 1: kv_loads()
    srd(a, S_B1, 18, F * 2)
    a(f"s_lshr_b32 s{sT0}, s2, 3")
    a(f"s_mul_hi_u32 s{sT0}, s{sT0}, 0x33333334")
    a(f"s_bfe_u32 s{sT1}, s2, 0x20001")
    a(f"s_mul_i32 s{sT1}, s{sT1}, 6")
    a(f"s_add_u32 s{sT0}, s{sT0}, s{sT1}")
    if E("MAP1", 1):
        a(f"s_lshr_b32 s{sT0}, s2, 3")
        a(f"s_mul_hi_u32 s{sT0}, s{sT0}, 0x1999999a")
        a(f"s_and_b32 s{sT1}, s2, 7")
        a(f"s_mul_i32 s{sT1}, s{sT1}, 3")
        a(f"s_add_u32 s{sT0}, s{sT0}, s{sT1}")
    a(f"s_lshl_b32 s{sT0}, s{sT0}, 7")
    a("v_and_b32 v125, 124, v3")
    vm.op(f"buffer_load_dword v126, v125, {R(S_B1)}, s{sT0} offen", "b1")
    a(f"v_add_u32 v125, {PT_LDS}, v125")
    pstamp(a, 1)
    a(f"s_mul_i32 s{sT0}, s3, {2*HROW}")
    a(f"s_add_u32 s{sT0}, s{sT0}, {LNX}")
    a(f"v_add_u32 v4, s{sT0}, v3")
    a("v_lshrrev_b32 v5, 4, v1")
    a("v_lshlrev_b32 v5, 5, v5")
    a("v_and_b32 v2, 3, v1")
    a("v_lshl_add_u32 v5, v2, 3, v5")
    a("v_bfe_u32 v2, v1, 2, 2")
    a(f"v_mul_u32_u24 v2, {HROW}, v2")
    a("v_add_u32 v5, v5, v2")
    a(f"s_lshl_b32 s{sT0}, s3, 7")
    a(f"s_add_u32 s{sT0}, s{sT0}, {LNX}")
    a(f"v_add_u32 v5, s{sT0}, v5")
    a(f"s_mul_i32 s{sT0}, s2, 10240")
    a(f"s_lshl_b32 s{sT1}, s3, 10")
    a(f"s_add_u32 s{sT0}, s{sT0}, s{sT1}")
    if HBLK_OFF: a(f"s_add_u32 s{sT0}, s{sT0}, {HBLK_OFF}")
    a(f"v_lshl_add_u32 v6, v1, 4, s{sT0}")
    a("v_add_u32 v7, 4096, v6")
    a("s_cmp_ge_u32 s3, 2")
    a(f"s_cselect_b32 s{sT1}, {BIG}, 8192")
    a(f"v_add_u32 v8, s{sT1}, v6")
    a(f"s_lshl_b32 s{sT0}, s2, 2")
    a(f"s_add_u32 s{sT0}, s{sT0}, s3")
    a(f"s_lshl_b32 s{sT0}, s{sT0}, 4")
    a(f"s_add_u32 s{sT0}, s{sT0}, {STAT_OFF}")
    a(f"v_mov_b32 v90, s{sT0}")
    a(f"s_lshl_b32 s{sT0}, s3, 8")
    a(f"s_add_u32 s{sT0}, s{sT0}, s2")
    a(f"s_lshl_b32 s{sT0}, s{sT0}, {FS}")
    a(f"s_add_u32 s{sRING}, s{sT0}, {FH_OFF}", "h flag offset")
    X = [26, 36]; A = [46, 56]; SUM = [66, 70]; TMP = [74, 82]
    PIV = [28, 30]; SS = [(sT0, sT1), (sT2, sT3)]
    for r in range(2):
        for i in range(5):
            vm.wait(f"x{r}{i}")
            a(f"v_lshlrev_b32 v{X[r]+2*i}, 16, v{XRAW+5*r+i}")
            a(f"v_and_b32 v{X[r]+2*i+1}, 0xffff0000, v{XRAW+5*r+i}")
            if i == 0: a(f"v_readfirstlane_b32 s{PIV[r]}, v{X[r]}")
            if i == 2: a(f"s_mov_b32 s{PIV[r]+1}, s{PIV[r]}")
    pstamp(a, 2)
    if KV_EARLY == 2: kv_loads()
    def zip2(f):
        out = []
        for p, q in zip(f(0), f(1)): out += [p, q]
        return out
    def sums(src):
        def f(r):
            Sr = SUM[r]; B = src[r]
            l = [f"v_pk_mul_f32 {pk(Sr+2)}, {pk(B)}, {pk(B)}", f"v_pk_add_f32 {pk(Sr)}, {pk(B)}, {pk(B+2)}"]
            for i in range(1, 5):
                l.append(f"v_pk_fma_f32 {pk(Sr+2)}, {pk(B+2*i)}, {pk(B+2*i)}, {pk(Sr+2)}")
                if i >= 2: l.append(f"v_pk_add_f32 {pk(Sr)}, {pk(Sr)}, {pk(B+2*i)}")
            l += [f"v_add_f32 v{Sr}, v{Sr}, v{Sr+1}", f"v_add_f32 v{Sr+1}, v{Sr+2}, v{Sr+3}"]
            return l
        l = zip2(f)
        steps = ["row_shr:1 row_mask:0xf bank_mask:0xf bound_ctrl:0", "row_shr:2 row_mask:0xf bank_mask:0xf bound_ctrl:0",
                 "row_shr:4 row_mask:0xf bank_mask:0xf bound_ctrl:0", "row_shr:8 row_mask:0xf bank_mask:0xf bound_ctrl:0",
                 "row_bcast:15 row_mask:0xa bank_mask:0xf", "row_bcast:31 row_mask:0xc bank_mask:0xf"]
        regs = [SUM[0], SUM[1], SUM[0] + 1, SUM[1] + 1]
        for st in steps:
            for v in regs: l.append(f"v_add_f32_dpp v{v}, v{v}, v{v} {st}")
        l += [f"v_readlane_b32 s{SS[0][0]}, v{SUM[0]}, 63", f"v_readlane_b32 s{SS[1][0]}, v{SUM[1]}, 63",
              f"v_readlane_b32 s{SS[0][1]}, v{SUM[0]+1}, 63", f"v_readlane_b32 s{SS[1][1]}, v{SUM[1]+1}, 63"]
        return l
    def statsl(piv):
        inv = f32(1.0 / D)
        def f(r):
            t0, t1 = TMP[r] + 6, TMP[r] + 7; m = TMP[r]; rr = TMP[r] + 1
            l = [f"v_mul_f32 v{t0}, s{SS[r][0]}, v91", f"v_mul_f32 v{t1}, s{SS[r][1]}, v91",
                 f"v_fma_f32 v{t1}, -v{t0}, v{t0}, v{t1}", f"v_max_f32 v{t1}, 0, v{t1}"]
            if piv: l.append(f"v_add_f32 v{t0}, s{PIV[r]}, v{t0}")
            l += [f"v_cvt_pk_bf16_f32 v{t0}, v{t0}, v{t1}", f"v_lshlrev_b32 v{m}, 16, v{t0}",
                  f"v_and_b32 v{t1}, 0xffff0000, v{t0}", f"v_add_f32 v{t1}, {f32(1e-5)}, v{t1}",
                  f"v_cvt_pk_bf16_f32 v{t1}, v{t1}, v{t1}", f"v_lshlrev_b32 v{t1}, 16, v{t1}",
                  f"v_sqrt_f32 v{t1}, v{t1}", f"v_cvt_pk_bf16_f32 v{t1}, v{t1}, v{t1}",
                  f"v_lshlrev_b32 v{t1}, 16, v{t1}", f"v_rcp_f32 v{rr}, v{t1}",
                  f"v_mul_f32 v{TMP[r]+4}, v{m}, v{rr}", f"v_mov_b32 v{TMP[r]+2}, v{rr}",
                  f"v_mul_f32 v{TMP[r]+5}, v{m}, v{rr}", f"v_mov_b32 v{TMP[r]+3}, v{rr}"]
            return l
        return zip2(f)
    def norm(dst, src):
        return zip2(lambda r: [f"v_pk_fma_f32 {pk(dst[r]+2*i)}, {pk(src[r]+2*i)}, {pk(TMP[r]+2)}, {pk(TMP[r]+4)} neg_lo:[0,0,1] neg_hi:[0,0,1]" for i in range(5)])
    a(f"v_mov_b32 v91, {f32(1.0/D)}")
    emit(zip2(lambda r: [f"v_pk_add_f32 {pk(A[r]+2*i)}, {pk(X[r]+2*i)}, s[{PIV[r]}:{PIV[r]+1}] neg_lo:[0,1] neg_hi:[0,1]" for i in range(5)]))
    emit(sums(A)); emit(statsl(True))
    emit(["s_mov_b64 exec, 1",
          (f"buffer_store_dwordx2 {pk(TMP[0])}, v90, {R(S_WS)}, 0 offen sc1", "hst"),
          (f"buffer_store_dwordx2 {pk(TMP[1])}, v90, {R(S_WS)}, 0 offen offset:8 sc1", "hst"),
          "s_mov_b64 exec, -1"])
    emit(norm(A, X))
    emit(zip2(lambda r: [f"v_cvt_pk_bf16_f32 v{XRAW+5*r+i}, v{A[r]+2*i}, v{A[r]+2*i+1}" for i in range(5)]))
    emit(zip2(lambda r: sum([[f"v_lshlrev_b32 v{X[r]+2*i}, 16, v{XRAW+5*r+i}", f"v_and_b32 v{X[r]+2*i+1}, 0xffff0000, v{XRAW+5*r+i}"] for i in range(5)], [])))
    emit(sums(X)); emit(statsl(False)); emit(norm(A, X))
    emit(zip2(lambda r: sum([[f"v_cvt_pk_bf16_f32 v{XRAW+5*r+i}, v{A[r]+2*i}, v{A[r]+2*i+1}", f"ds_write_b32 v4, v{XRAW+5*r+i} offset:{r*HROW+i*256}"] for i in range(5)], [])))
    vm.wait("b1")
    a("ds_write_b32 v125, v126")
    read_epoch(9)
    sbar("PK_HB1", 1)
    HT = 26
    for t in range(3):
        a(f"ds_read_b64_tr_b16 v[{HT+4*t}:{HT+4*t+1}], v5 offset:{512*t}")
        a(f"ds_read_b64_tr_b16 v[{HT+4*t+2}:{HT+4*t+3}], v5 offset:{512*t+4*HROW}")
    for t in range(3):
        a(f"s_waitcnt lgkmcnt({4-2*t})")
        vm.op(f"buffer_store_dwordx4 v[{HT+4*t}:{HT+4*t+3}], v{6+t}, {R(S_WS)}, 0 offen sc1", "hst")
    pstamp(a, 3)
    if KV_EARLY == 3: kv_loads()
    a("v_and_b32 v2, 7, v1")
    a(f"s_lshl_b32 s{sT0}, s3, 1")
    a(f"v_xor_b32 v4, s{sT0}, v2")
    a("v_lshlrev_b32 v4, 4, v4")
    a("v_lshl_add_u32 v4, v1, 8, v4")
    a(f"v_add_u32 v4, {KVX}, v4")
    a("v_xor_b32 v5, 16, v4")
    a("v_lshrrev_b32 v8, 3, v1")
    a("v_lshrrev_b32 v6, 4, v1")
    a("v_xor_b32 v6, v6, v2")
    a("v_lshlrev_b32 v6, 4, v6")
    a("v_lshl_add_u32 v6, v8, 7, v6")
    a(f"s_lshl_b32 s{sT0}, s3, 12")
    a(f"s_add_u32 s{sT0}, s{sT0}, {KVX}")
    a(f"v_add_u32 v6, s{sT0}, v6")
    a("v_xor_b32 v7, 64, v6")
    a("v_lshlrev_b32 v8, 12, v8")
    a("v_lshl_add_u32 v8, v2, 4, v8")
    a(f"s_lshl_b32 s{sT0}, s{sCW}, 19")
    a(f"s_lshl_b32 s{sT1}, s3, 17")
    a(f"s_add_u32 s{sT0}, s{sT0}, s{sT1}")
    a(f"s_lshl_b32 s{sT1}, s{sTT}, 7")
    a(f"s_add_u32 s{sT0}, s{sT0}, s{sT1}")
    a(f"s_add_u32 s{sT0}, s{sT0}, {KVB_OFF}")
    a(f"s_add_u32 s{sT0}, s{sT0}, s{sKVBIG}")
    a(f"v_add_u32 v8, s{sT0}, v8")
    lds_wait("PK_EPW", 6)
    vm.wait("hst")
    flag_store(sRING)
    pstamp(a, 4)
    if E("KV_LATE", 0):
        a("s_setprio 0")
        lds_wait("PK_KVL", 12, n=4 * (CNT + 48), sleep=4)
        a("s_setprio 3")
    if E("KVSKIP", 1):
        a(f"s_cmp_lg_u32 s{sKVBIG}, 0")
        a("s_cbranch_scc1 PK_KVL_SKIP")
    if not KV_EARLY: kv_loads()
    a.label("PK_KVL_SKIP")
    a("s_setprio 0")
    a(f"s_lshl_b32 s{sT0}, s{sCW}, 2")
    a(f"s_add_u32 s{sT0}, s{sT0}, s3")
    a(f"s_lshl_b32 s{sT0}, s{sT0}, 5")
    a(f"s_add_u32 s{sT0}, s{sT0}, s{sTT}")
    a(f"s_lshl_b32 s{sT0}, s{sT0}, {FS}")
    a(f"s_add_u32 s{sT0}, s{sT0}, {FKV_OFF}")
    a(f"s_add_u32 s{sRING}, s{sT0}, s{sKVBIG}", "kv flag offset")
    a(f"s_lshl_b32 s{sCH}, s2, 1")
    a(f"s_mul_i32 s{sT0}, s2, 3")
    a(f"s_sub_u32 s{sT0}, s{sT0}, 128")
    a("s_cmp_ge_u32 s2, 128")
    a(f"s_cselect_b32 s{sCH}, s{sT0}, s{sCH}")
    a(f"s_cselect_b32 s{sT0}, 3, 2")
    a(f"s_add_u32 s{sCH}, s{sCH}, s3")
    a(f"s_cmp_lt_u32 s3, s{sT0}")
    a(f"s_cselect_b32 s{sCH}, s{sCH}, {1 << 16}", "ch (65536 = none)")
    if E("KPF", 1):
        a(f"s_min_u32 s{sT0}, s{sCH}, 639")
        a(f"s_lshl_b32 s{sT0}, s{sT0}, 12")
        a(f"s_add_u32 s30, s{S_SSMK}, s{sT0}")
        a(f"s_addc_u32 s31, s{S_SSMK+1}, 0")
        for c in range(32): a(f"s_load_dword s29, s[30:31], {128*c}")
    WP, KP, KS, KO = 16, 24, 62, 94
    if E("KVSKIP", 1):
        a(f"s_cmp_lg_u32 s{sKVBIG}, 0")
        a("s_cbranch_scc1 PK_KV_SKIP")
    vm.wait("k")
    for i in range(4): a(f"v_accvgpr_read_b32 v{110+i}, a{36+i}")
    for r in range(19): a(f"v_accvgpr_read_b32 v{KP+2*r+1}, a{r}")
    for t in range(4):
        for ch in range(2):
            src = 110 + 2 * ch + t // 2
            a(f"v_lshlrev_b32 v{WP+2*t+ch}, 16, v{src}" if t % 2 == 0 else f"v_and_b32 v{WP+2*t+ch}, 0xffff0000, v{src}")
    for r in range(19):
        a(f"v_lshlrev_b32 v{KP+2*r}, 16, v{KP+2*r+1}")
        a(f"v_and_b32 v{KP+2*r+1}, 0xffff0000, v{KP+2*r+1}")
    for r in range(16): a(f"v_pk_mul_f32 {pk(KS+2*r)}, {pk(KP+2*r)}, {pk(WP+6)}")
    for t in (2, 1, 0):
        for r in range(16):
            a(f"v_pk_fma_f32 {pk(KS+2*r)}, {pk(KP+2*(r+3-t))}, {pk(WP+2*t)}, {pk(KS+2*r)}")
    vm.wait("v")
    for r in range(16): a(f"v_accvgpr_read_b32 v{KP+2*r+1}, a{19+r}")
    for r in range(16):
        a(f"v_lshlrev_b32 v{KP+2*r}, 16, v{KP+2*r+1}")
        a(f"v_and_b32 v{KP+2*r+1}, 0xffff0000, v{KP+2*r+1}")
    for r in range(16): a(f"v_pk_mul_f32 {pk(KS+2*r)}, {pk(KS+2*r)}, {pk(KP+2*r)}")
    for c2 in range(2):
        for ch in range(2):
            for q in range(4):
                a(f"v_cvt_pk_bf16_f32 v{KO+8*c2+4*ch+q}, v{KS+2*(8*c2+7-2*q)+ch}, v{KS+2*(8*c2+6-2*q)+ch}")
            a(f"ds_write_b128 v{4+c2}, v[{KO+8*c2+4*ch}:{KO+8*c2+4*ch+3}] offset:{128*ch}")
    sbar("PK_HB2", 2)
    for i in range(4):
        a(f"ds_read_b128 v[{KO+4*i}:{KO+4*i+3}], v{6+(i&1)} offset:{1024*i}")
    a("s_setprio 3")
    for i in range(4):
        a(f"s_mov_b32 s{sT0}, {32768*i}")
        a(f"s_waitcnt lgkmcnt({3-i})")
        vm.op(f"buffer_store_dwordx4 v[{KO+4*i}:{KO+4*i+3}], v8, {R(S_WS)}, s{sT0} offen sc1", "kvst")
    a.label("PK_KV_SKIP")
    a("s_setprio 3")
    lds_arrive(3)
    pstamp(a, 5)
    a("v_lshrrev_b32 v14, 4, v1", "g")
    a("v_and_b32 v15, 15, v1", "n")
    a(f"s_mul_i32 s{sCVB}, s3, {CONV_SZ}")
    a(f"s_add_u32 s{sCVB}, s{sCVB}, {AUX}")
    a(f"s_lshr_b32 s{sT0}, s{sCH}, 5")
    a(f"s_lshl_b32 s{sT0}, s{sT0}, {5+FS}")
    a(f"s_add_u32 s{sT0}, s{sT0}, {FKV_OFF}")
    a("v_and_b32 v29, 31, v1")
    a(f"v_lshl_add_u32 v29, v29, {FS}, s{sT0}", "kv poll address")
    a(f"s_lshl_b32 s{sT0}, s{sCH}, 12")
    a(f"v_lshl_add_u32 v31, v1, 4, s{sT0}")
    a("v_add_u32 v32, 2, v31")
    a(f"v_add_u32 v33, {KVB_OFF}, v31")
    a(f"v_mov_b32 v34, s{sT0}")
    a(f"s_lshl_b32 s{sT1}, s{sCH}, 1")
    a(f"v_mov_b32 v36, s{sT1}")
    VA, VB, VE, VS = 38, 42, 43, 44
    a("v_lshlrev_b32 v2, 5, v15")
    a(f"v_lshl_add_u32 v{VS}, v14, 3, v2")
    a(f"s_add_u32 s{sT0}, s{sT0}, {YA_OFF}")
    a(f"v_add_u32 v{VS}, s{sT0}, v{VS}")
    a("v_lshlrev_b32 v45, 4, v1")
    a(f"v_add_u32 v46, s{sCVB}, v45")
    a(f"v_add_u32 v2, {CV_K0-512}, v45")
    a(f"v_add_u32 v3, {CV_K1-544}, v45")
    a("v_cmp_lt_u32 vcc, 31, v1")
    a(f"v_lshl_add_u32 v{VA}, v14, 3, v15")
    a(f"v_lshlrev_b32 v{VA}, 1, v{VA}")
    a("v_cndmask_b32 v45, v45, v2, vcc")
    a("v_cmp_lt_u32 vcc, 33, v1")
    a("v_and_b32 v2, 1, v1")
    a(f"v_mul_u32_u24 v2, {CV_K1 - CV_K0 - 2}, v2")
    a("v_cndmask_b32 v45, v45, v3, vcc")
    a("v_cmp_lt_u32 vcc, 35, v1")
    a(f"v_sub_u32 v{VA}, v{VA}, v2")
    a(f"v_add_u32 v{VA}, {CV_K1}, v{VA}")
    a("v_cndmask_b32 v45, v45, 0, vcc")
    a(f"v_add_u32 v45, s{sCVB}, v45")
    a(f"v_add_u32 v{VA}, s{sCVB}, v{VA}")
    for p in range(1, 4): a(f"v_add_u32 v{VA+p}, {1024*p}, v{VA}")
    a("v_lshlrev_b32 v2, 1, v15")
    a("v_sub_u32 v2, v2, v14")
    a("v_lshlrev_b32 v2, 4, v2")
    a(f"v_add_u32 v2, {528-448}, v2")
    a(f"v_add_u32 v{VB}, s{sCVB}, v2")
    a("v_lshrrev_b32 v2, 1, v14")
    a("v_lshl_add_u32 v2, v15, 1, v2")
    a("v_lshlrev_b32 v2, 4, v2")
    a("v_and_b32 v3, 1, v14")
    a("v_lshlrev_b32 v3, 3, v3")
    a("v_sub_u32 v2, v2, v3")
    a("v_add_u32 v2, 520, v2")
    a(f"v_add_u32 v{VE}, s{sCVB}, v2")
    vm.wait("kvst")
    flag_store(sRING)
    a(f"s_cmp_ge_u32 s{sCH}, 640")
    a("s_cbranch_scc1 PK_NOCONV")
    lds_wait("PK_HB3", 3)
    if E("KERN_LATE", 0):
        a("s_setprio 0")
        lds_wait("PK_KW0", 10, n=4, sleep=4)
        a("s_setprio 3")
    vm.reset()
    a(f"s_add_u32 m0, s{sCVB}, {CV_K0+32}")
    a(f"buffer_load_ushort v35, v34, {R(S_SSMK)}, 0 offen")
    for q in range(4): a(f"buffer_load_dwordx4 v31, {R(S_SSMK)}, 0 offen offset:{q*1024} lds")
    if E("K1LDS", 1):
        a(f"buffer_load_ushort v37, v36, {R(S_SSMD)}, 0 offen")
        a("s_setprio 0")
        a("s_waitcnt vmcnt(1)")
        for q in range(4):
            a(f"ds_read_b128 v[{64+8*q}:{67+8*q}], v46 offset:{CV_K0+32+1024*q}")
            a(f"ds_read_b32 v{68+8*q}, v46 offset:{CV_K0+48+1024*q}")
        for q in range(4):
            a(f"s_waitcnt lgkmcnt({6-2*q+q})")
            for i in range(4):
                a(f"v_alignbit_b32 v{64+8*q+i}, v{65+8*q+i}, v{64+8*q+i}, 16")
            a(f"ds_write_b128 v46, v[{64+8*q}:{67+8*q}] offset:{CV_K1+32+1024*q}")
    else:
        a(f"s_add_u32 m0, s{sCVB}, {CV_K1+32}")
        a(f"buffer_load_ushort v37, v36, {R(S_SSMD)}, 0 offen")
        for q in range(4): a(f"buffer_load_dwordx4 v32, {R(S_SSMK)}, 0 offen offset:{q*1024} lds")
    a("s_setprio 0")
    w2_scalar_prefetch("A")
    lds_wait("PK_KW", 10, n=4, sleep=4)
    a("s_setprio 3")
    if not E("NOKV", 0): spin("PK_SPIN_KV", [(29, 30)], sleep=E("KVPOLL_SLEEP", 0))
    KVR = 48
    for q in range(4):
        vm.op(f"buffer_load_dwordx4 v[{KVR+4*q}:{KVR+4*q+3}], v33, {R(S_WS)}, 0 offen offset:{q*1024} sc1", "cfill")
    a("s_setprio 0")
    a("v_mov_b32 v96, 0"); a("v_mov_b32 v97, 0"); a("v_mov_b32 v98, 0")
    a("v_cmp_eq_u32 vcc, 35, v1")
    a("v_lshlrev_b32 v35, 16, v35")
    a("v_lshlrev_b32 v37, 16, v37", "D")
    a("v_cndmask_b32 v99, 0, v35, vcc")
    a("ds_write_b128 v45, v[96:99]")
    vm.wait("cfill")
    for q in range(4):
        a(f"ds_write_b128 v46, v[{KVR+4*q}:{KVR+4*q+3}] offset:{512+1024*q}")
    a("s_waitcnt lgkmcnt(0)")
    CACC = 64; BUF = [(0, 32), (64, 96)]
    def frag_loads(buf, rr):
        A_, B_ = BUF[buf]
        out = []
        for t in range(8):
            o = (t & 1) * 128 + rr * 16
            out.append(f"ds_read_b128 a[{B_+4*t}:{B_+4*t+3}], v{VB} offset:{512*t + 64*(1-rr)}")
            out.append(f"ds_read2_b32 a[{A_+4*t}:{A_+4*t+1}], v{VA + t//2} offset0:{o} offset1:{o+1}")
            out.append(f"ds_read2_b32 a[{A_+4*t+2}:{A_+4*t+3}], v{VA + t//2} offset0:{o+2} offset1:{o+3}")
        return out
    for i in range(32): a(f"v_mov_b32 v{CACC+i}, 0")
    a(f"v_add_u32 v{VB}, {448-64}, v{VB}", "64 below the r-even address")
    emit(frag_loads(0, 0))
    pstamp(a, 6)
    if not E("CEARLY", 0):
        lds_wait("PK_CW", E("CONV_IDX", 8), n=E("CONV_WAIT_N", 4), sleep=2)
        a(f"s_setprio {E('CONV_PRIO', 3)}")
    pstamp(a, 7)
    a(f"s_lshl_b32 s{sT1}, s3, 2")
    a(f"s_add_u32 s{sT1}, s{sT1}, {CNT + 64}")
    a(f"v_mov_b32 v4, s{sT1}", "partner G wave's phase word")
    a(f"s_mov_b32 s{sT0}, 0")
    a(f"s_mov_b32 s{sT2}, 0")
    a.label("PK_CV_LOOP")
    for half in range(2):
        if E("CEARLY", 0):
            a(f"s_cmp_lg_u32 s{sT2}, 0")
            a(f"s_cbranch_scc1 PK_CVP{half}_GO")
            a(f"s_mov_b32 s{sSPIN}, 0")
            a.label(f"PK_CVP{half}")
            a("ds_read_b32 v5, v4")
            a(f"s_add_u32 s{sSPIN}, s{sSPIN}, 1")
            a("s_waitcnt lgkmcnt(0)")
            a(f"v_readfirstlane_b32 s{sT3}, v5")
            a(f"s_cmp_gt_u32 s{sSPIN}, {1 << 20}")
            a(f"s_cbranch_scc1 PK_CVP{half}_GO")
            a(f"s_cmp_eq_u32 s{sT3}, 0")
            a(f"s_cbranch_scc1 PK_CVP{half}_GO")
            a(f"s_cmp_eq_u32 s{sT3}, 1")
            a(f"s_cbranch_scc0 PK_CVP{half}_FREE")
            a("s_sleep 2", "poll back-off")
            a(f"s_branch PK_CVP{half}")
            a.label(f"PK_CVP{half}_FREE")
            a(f"s_mov_b32 s{sT2}, 1")
            a(f"s_setprio {E('CONV_PRIO', 3)}")
            a.label(f"PK_CVP{half}_GO")
        a("s_waitcnt lgkmcnt(0)")
        if half == 0: side = frag_loads(1, 1)
        else:
            for p in range(4): a(f"v_add_u32 v{VA+p}, 128, v{VA+p}")
            a(f"v_subrev_u32 v{VB}, 128, v{VB}")
            side = frag_loads(0, 0)
        A_, B_ = BUF[half]
        i = 0
        for c in range(8):
            for t in range(c + 1):
                u = c - t
                a(f"v_mfma_f32_16x16x32_bf16 v[{CACC+4*c}:{CACC+4*c+3}], a[{A_+4*t}:{A_+4*t+3}], a[{B_+4*u}:{B_+4*u+3}], v[{CACC+4*c}:{CACC+4*c+3}]")
                if i < len(side): a(side[i])
                i += 1
    a(f"s_add_u32 s{sT0}, s{sT0}, 1")
    a(f"s_cmp_lt_u32 s{sT0}, 4")
    a("s_cbranch_scc1 PK_CV_LOOP")
    a(f"s_setprio {E('CEPI_PRIO', 3)}")
    for c in range(8): a(f"ds_read_b64 v[{100+2*c}:{101+2*c}], v{VE} offset:{512*c}")
    a("s_waitcnt lgkmcnt(0)")
    TT = 116
    for c in range(8):
        d0, d1 = 100 + 2 * c, 101 + 2 * c
        emit([f"v_and_b32 v{TT}, 0xffff0000, v{d1}", f"v_lshlrev_b32 v{TT+1}, 16, v{d1}",
              f"v_and_b32 v{TT+2}, 0xffff0000, v{d0}", f"v_lshlrev_b32 v{TT+3}, 16, v{d0}"])
        for i in range(4): a(f"v_fmac_f32 v{CACC+4*c+i}, v{TT+i}, v37")
        a(f"v_cvt_pk_bf16_f32 v{d0}, v{CACC+4*c}, v{CACC+4*c+1}")
        a(f"v_cvt_pk_bf16_f32 v{d1}, v{CACC+4*c+2}, v{CACC+4*c+3}")
        a(f"buffer_store_dwordx2 v[{d0}:{d1}], v{VS}, {R(S_WS)}, 0 offen offset:{512*c} sc1")
    pstamp(a, 8)
    a(f"s_lshl_b32 s{sT0}, s{sCH}, {FS}")
    a(f"s_add_u32 s{sT0}, s{sT0}, {FY_OFF}")
    a("s_waitcnt vmcnt(0)")
    flag_store(sT0)
    a("s_branch PK_PCOMP")
    a.label("PK_NOCONV")
    if E("H3L", 0):
        a("s_cmp_lg_u32 s3, 3")
        a("s_cbranch_scc1 PK_NOLOAD")
        emit(["v_lshrrev_b32 v2, 3, v1", "v_lshlrev_b32 v4, 12, v2", "v_bfe_u32 v2, v1, 4, 1", "v_lshlrev_b32 v2, 1, v2",
              "v_and_b32 v3, 7, v1", "v_xor_b32 v2, v2, v3", "v_lshl_add_u32 v4, v2, 4, v4", f"s_lshl_b32 s{sT0}, s{sST}, 7",
              f"v_add_u32 v4, s{sT0}, v4", "v_xor_b32 v2, 64, v4", f"v_add_u32 v5, {1*(32768-1024)}, v2",
              f"v_add_u32 v6, {2*(32768-1024)}, v4", f"v_add_u32 v7, {3*(32768-1024)}, v2",
              f"s_and_b32 s{sT2}, s{sDT2}, 3", f"s_mul_i32 s{sT2}, s{sT2}, {3 << 17}"])
        a("s_setprio 0")
        lds_wait("PK_LW", 10, n=4, sleep=4)
        a(f"s_setprio {E('H3PRIO', 1)}")
        for k in range(3):
            for w in range(4):
                a(f"s_mov_b32 m0, {w*RINGB + k*4096}")
                a(f"s_add_u32 s{sT3}, s{sT2}, {(12*w + k) << 17}")
                for q in range(4):
                    a(f"buffer_load_dwordx4 v{4+q}, {R(S_W2)}, s{sT3} offen offset:{q*1024} lds")
        a("s_waitcnt vmcnt(0)")
        lds_arrive(5)
        a.label("PK_NOLOAD")
    a("s_setprio 0")
    w2_scalar_prefetch("B")
    lds_wait("PK_NCW", 8, n=4, sleep=16)
    a("s_setprio 3")
    a.label("PK_PCOMP")
    vm.reset()
    a(f"s_mul_i32 s{sT3}, s{sDT2}, 80", "d0")
    a(f"s_lshl_b32 s{sT0}, s{sST}, 6")
    a(f"s_lshl_b32 s{sT1}, s3, 4")
    a(f"s_add_u32 s{sT0}, s{sT0}, s{sT1}")
    a(f"v_add_u32 v4, s{sT0}, v15", "s")
    a("v_mul_u32_u24 v5, 1280, v4")
    a("v_lshl_add_u32 v5, v14, 3, v5")
    a(f"s_lshl_b32 s{sT0}, s{sT3}, 1")
    a(f"v_add_u32 v5, s{sT0}, v5", "x offset")
    XR = 16
    for m in range(5):
        a(f"buffer_load_dwordx2 v[{XR+2*m}:{XR+2*m+1}], v5, {R(S_X)}, 0 offen offset:{32*m}")
    a("v_lshlrev_b32 v6, 1, v4")
    a(f"buffer_load_ushort v124, v6, {R(S_B2)}, 0 offen")
    a("v_lshlrev_b32 v6, 3, v4")
    a(f"v_add_u32 v6, {STAT_OFF}, v6")
    a(f"s_lshl_b32 s{sT0}, s{sT3}, {FS}")
    a(f"s_add_u32 s{sT0}, s{sT0}, {FY_OFF}")
    a(f"v_lshl_add_u32 v7, v1, {FS}, s{sT0}")
    a(f"v_add_u32 v8, {64 << FS}, v7")
    a("v_bfe_u32 v2, v4, 1, 2")
    a("v_lshlrev_b32 v2, 8, v2")
    a("v_lshrrev_b32 v3, 3, v4")
    a("v_add_u32 v2, v2, v3")
    a("v_cmp_lt_u32 vcc, 15, v1")
    a(f"v_lshlrev_b32 v2, {FS}, v2")
    a(f"v_add_u32 v2, {FH_OFF}, v2")
    a("v_cndmask_b32 v8, v8, v2, vcc")
    a("v_lshrrev_b32 v9, 1, v1")
    a("v_lshlrev_b32 v9, 12, v9")
    a("v_and_b32 v2, 1, v1")
    a("v_lshl_add_u32 v9, v2, 4, v9")
    a(f"s_lshl_b32 s{sT0}, s{sT3}, 12")
    a(f"s_lshl_b32 s{sT1}, s{sST}, 7")
    a(f"s_add_u32 s{sT0}, s{sT0}, s{sT1}")
    a(f"s_lshl_b32 s{sT1}, s3, 5")
    a(f"s_add_u32 s{sT0}, s{sT0}, s{sT1}")
    a(f"s_add_u32 s{sT0}, s{sT0}, {YA_OFF}")
    a(f"v_add_u32 v9, s{sT0}, v9")
    a("v_cmp_lt_u32 vcc, 31, v1")
    a("v_add_u32 v10, 0x20000, v9")
    a("v_add_u32 v11, 0x40000, v9")
    a(f"v_mov_b32 v2, {BIG}")
    a("v_cndmask_b32 v11, v11, v2, vcc")
    a(f"s_mul_i32 s{sT0}, s3, 2560")
    a(f"s_add_u32 s{sT0}, s{sT0}, {PT_LDS}")
    a(f"v_lshl_add_u32 v12, v1, 4, s{sT0}")
    a(f"v_lshl_add_u32 v13, v1, 3, s{sT0}")
    a("s_setprio 0")
    lds_wait("PK_YW", 9, n=4 * (CNT + 36), sleep=4)
    a("s_setprio 3")
    spin("PK_SPIN_Y", [(7, 26), (8, 27)], sleep=E("YPOLL_SLEEP", 0))
    pstamp(a, 9)
    YL, ST_, XF, XN, T2, YR, YF = 28, 40, 44, 64, 84, 94, 104
    for t in range(3):
        vm.op(f"buffer_load_dwordx4 v[{YL+4*t}:{YL+4*t+3}], v{9+t}, {R(S_WS)}, 0 offen sc1", "ya")
    vm.op(f"buffer_load_dwordx2 v[{ST_}:{ST_+1}], v6, {R(S_WS)}, 0 offen sc1", "st")
    for i in range(10):
        a(f"v_lshlrev_b32 v{XF+2*i}, 16, v{XR+i}")
        a(f"v_and_b32 v{XF+2*i+1}, 0xffff0000, v{XR+i}")
    vm.wait("ya")
    a(f"ds_write_b128 v12, v[{YL}:{YL+3}]")
    a(f"ds_write_b128 v12, v[{YL+4}:{YL+7}] offset:1024")
    a("s_mov_b32 exec_hi, 0")
    a(f"ds_write_b128 v12, v[{YL+8}:{YL+11}] offset:2048")
    a("s_mov_b64 exec, -1")
    vm.wait("st", "lgkmcnt(0)")
    for m in range(5):
        a(f"ds_read_b64_tr_b16 v[{YR+2*m}:{YR+2*m+1}], v13 offset:{m*512}")
    a(f"v_mul_f32 v42, v{ST_}, v{ST_+1}")
    a(f"v_mul_f32 v43, v{ST_}, v{ST_+1}")
    a(f"v_mov_b32 v{ST_}, v{ST_+1}")
    for i in range(0, 20, 2):
        a(f"v_pk_fma_f32 {pk(XN+i)}, {pk(XF+i)}, {pk(ST_)}, v[42:43] neg_lo:[0,0,1] neg_hi:[0,0,1]")
    for i in range(0, 20, 2): a(f"v_cvt_pk_bf16_f32 v{T2+i//2}, v{XN+i}, v{XN+i+1}")
    for i in range(0, 20, 2):
        a(f"v_lshlrev_b32 v{XN+i}, 16, v{T2+i//2}")
        a(f"v_and_b32 v{XN+i+1}, 0xffff0000, v{T2+i//2}")
    a("s_waitcnt lgkmcnt(0)")
    for i in range(10):
        a(f"v_lshlrev_b32 v{YF+2*i}, 16, v{YR+i}")
        a(f"v_and_b32 v{YF+2*i+1}, 0xffff0000, v{YR+i}")
    for i in range(0, 20, 2): a(f"v_pk_fma_f32 {pk(XN+i)}, {pk(XN+i)}, {pk(YF+i)}, {pk(XF+i)}")
    for m in range(5):
        a(f"v_cvt_pk_bf16_f32 v{T2+2*m}, v{XN+4*m}, v{XN+4*m+1}")
        a(f"v_cvt_pk_bf16_f32 v{T2+2*m+1}, v{XN+4*m+2}, v{XN+4*m+3}")
        if m < GM: a(f"ds_write_b64 v13, v[{T2+2*m}:{T2+2*m+1}] offset:{m*512}")
    lds_arrive(15)
    pstamp(a, 10)
    if GM < 5:
        HM = list(range(GM, 5)); NH = 4 * len(HM)
        for k, m in enumerate(HM):
            for h in range(2):
                a(f"v_lshlrev_b32 v{XN+4*k+2*h}, 16, v{T2+2*m+h}")
                a(f"v_and_b32 v{XN+4*k+2*h+1}, 0xffff0000, v{T2+2*m+h}")
        a("v_lshlrev_b32 v125, 16, v124")
        a("v_lshlrev_b32 v124, 16, v124")
        a(f"s_mul_i32 s{sT0}, s3, 5120")
        a(f"v_lshl_add_u32 v12, v1, 4, s{sT0}")
        a(f"v_add_u32 v13, {2*RINGB}, v12")
        lds_wait("PK_HFW", 11)
        HP = 16; HF = 100
        for o in range(4):
            for k, m in enumerate(HM):
                r = HP + NH * o + 4 * k
                a(f"ds_read_b128 v[{r}:{r+3}], v{12+o//2} offset:{(o&1)*RINGB + m*1024}")
        for o in range(4):
            a(f"s_waitcnt lgkmcnt({len(HM)*(3-o)})")
            for i in range(0, NH, 2):
                src = "v[124:125]" if o == 0 else pk(HF + i)
                a(f"v_pk_add_f32 {pk(HF+i)}, {src}, {pk(HP+NH*o+i)}")
        for i in range(0, NH, 2): a(f"v_cvt_pk_bf16_f32 v{HP+i//2}, v{HF+i}, v{HF+i+1}")
        for i in range(0, NH, 2):
            a(f"v_lshlrev_b32 v{HF+i}, 16, v{HP+i//2}")
            a(f"v_and_b32 v{HF+i+1}, 0xffff0000, v{HP+i//2}")
        for i in range(0, NH, 2): a(f"v_pk_add_f32 {pk(HF+i)}, {pk(HF+i)}, {pk(XN+i)}")
        for k, m in enumerate(HM):
            a(f"v_cvt_pk_bf16_f32 v{HP+2*k}, v{HF+4*k}, v{HF+4*k+1}")
            a(f"v_cvt_pk_bf16_f32 v{HP+2*k+1}, v{HF+4*k+2}, v{HF+4*k+3}")
            a(f"buffer_store_dwordx2 v[{HP+2*k}:{HP+2*k+1}], v5, {R(S_OUT)}, 0 offen offset:{32*m}")
    pstamp(a, 11)
    finish_stamps("H")
    a.label("PK_END")
    a("s_endpgm")
    return a

def build():
    ref = open(f"cdna_kernels/{NAME}.s.ref").read().splitlines()
    head = []
    for l in ref:
        if l.startswith("; Override"): break
        head.append(l)
    body = gen()
    out = "\n".join(head) + "\n"
    if os.environ.get("AMP"):
        out += f"; @launch kernel={NAME}_kernel grid=({GRID},1,1) block=({BLOCK},1,1) lds={LDS_BYTES}\n"
        out += f"; @launch kernel=amp_kernel grid=(1,1,1) block=(64,1,1) lds=0\n"
        b = Asm()
        kernel_begin(b, "amp_kernel")
        b("s_cmp_ge_u32 s2, 1")
        b("s_cbranch_scc1 AMP_END")
        b("s_load_dwordx2 s[4:5], s[0:1], 96")
        b("s_waitcnt lgkmcnt(0)")
        b("s_sub_u32 s8, s4, 512")
        b("s_subb_u32 s9, s5, 0")
        b("s_mov_b32 s10, 256")
        b("s_mov_b32 s11, 0x00020000")
        b("v_mov_b32 v1, 0")
        b("buffer_load_dword v2, v1, s[8:11], 0 offen sc1")
        b("buffer_load_dword v3, v1, s[8:11], 0 offen offset:128 sc1")
        b("s_waitcnt vmcnt(0)")
        b("v_readfirstlane_b32 s12, v2")
        b("v_readfirstlane_b32 s13, v3")
        b("s_nop 3")
        b("s_not_b32 s13, s13")
        b("s_sub_u32 s12, s12, s13")
        b("s_min_u32 s12, s12, 10000")
        b(f"s_mul_i32 s12, s12, {int(os.environ['AMP'])}")
        b("s_memrealtime s[14:15]")
        b("s_waitcnt lgkmcnt(0)")
        b.label("AMP_L")
        b("s_memrealtime s[16:17]")
        b("s_waitcnt lgkmcnt(0)")
        b("s_sub_u32 s18, s16, s14")
        b("s_cmp_lt_u32 s18, s12")
        b("s_cbranch_scc1 AMP_L")
        b.label("AMP_END")
        b("s_endpgm")
    else:
        out += f"; @launch grid=({GRID},1,1) block=({BLOCK},1,1) lds={LDS_BYTES}\n"
    out += '.amdgcn_target "amdgcn-amd-amdhsa--gfx950"\n.text\n'
    out += body.text()
    if os.environ.get("AMP"): out += b.text()
    out += '.section .rodata,"a"\n' + kernel_desc(NAME + "_kernel", 256, 102, 128)
    if os.environ.get("AMP"): out += kernel_desc("amp_kernel", 8, 32)
    return out
if __name__ == "__main__":
    import sys
    out = sys.argv[1] if len(sys.argv) > 1 else f"cdna_kernels/{NAME}.s"
    open(out, "w").write(build())
    print("wrote", out)
```

```python
import os, math
from asmlib import *
from layout import *

NAME = "parallel_sum__ssm_conv_h3__mixer_token_mlp__prompt"
GRID, BLOCK, LDS_BYTES = 256, 512, 163840
NT = os.environ.get("NT", "")
BIG = 0x40000000
SPIN_MAX = 20000
E = lambda k, d: int(os.environ.get(k, d))

S_X, S_K, S_V, S_SHK, S_SSMK, S_SSMD, S_W1, S_B1, S_W2, S_B2, S_OUT, S_WS = [32 + 4 * i for i in range(12)]
def R(b): return f"s[{b}:{b+3}]"
sEP, sDT, sFT, sDT2, sST, sRING, sPOS, sWOFF, sHOFF, sKB = range(80, 90)
sT0, sT1, sT2, sT3, sCH, sCVB, sG1BIG, sKVBIG, sC1, sSPIN, sROT, sT4 = range(90, 102)
sROT2, sKB2 = sCH, sCVB

FS = E("FS", 4)
NSLOT = 7
NR1 = E("NR1", 7)
NR2 = 5
RINGB = NSLOT * 4096
AUX = 4 * RINGB
LNX = AUX
HROW = 1344
KVX = LNX + 8 * HROW
CV_K0, CV_K1, CONV_SZ = 4608, 8768, 12928
PT_LDS = AUX + 3 * CONV_SZ
CNT = PT_LDS + 4 * 2560
assert KVX + 16384 <= PT_LDS and CNT + 128 <= LDS_BYTES and KVX % 128 == 0

class VM:
    def __init__(self, a): self.a = a; self.q = []
    def op(self, ins, tag): self.a(ins); self.q.append(tag)
    def count(self, tag):
        idx = [i for i, t in enumerate(self.q) if t == tag]
        return len(self.q) - 1 - idx[-1] if idx else None
    def wait(self, tag, extra=""):
        n = self.count(tag)
        if n is None:
            if extra: self.a(f"s_waitcnt {extra}")
            return
        self.a(f"s_waitcnt vmcnt({min(n, 63)}) {extra}")
        self.q = self.q[len(self.q) - n:] if n else []
    def reset(self): self.q = []

TIMER = "s_memtime" if os.environ.get("CYC") else "s_memrealtime"
MUTE = [False]
def pstamp(a, i, force=False):
    if STAMP and (force or not MUTE[0]): a(f"{TIMER} s[{4+2*i}:{5+2*i}]")
def pk(r): return f"v[{r}:{r+1}]"

def gen():
    a = Asm()
    vm = VM(a)
    def emit(items):
        for it in items:
            if isinstance(it, list): emit(it)
            elif isinstance(it, tuple): vm.op(it[0], it[1])
            else: a(it)
    def flag_store(soff, tmp=2):
        a(f"v_mov_b32 v{tmp}, s{sEP}")
        a(f"v_mov_b32 v{tmp+1}, s{soff}")
        a("s_mov_b64 exec, 1")
        vm.op(f"buffer_store_dword v{tmp}, v{tmp+1}, {R(S_WS)}, 0 offen sc1", "flag")
        a("s_mov_b64 exec, -1")
    def spin(label, pairs, first_tag=None, sleep=0):
        def check():
            a(f"v_cmp_ne_u32 vcc, s{sEP}, v{pairs[0][1]}")
            for _, d in pairs[1:]:
                a(f"v_cmp_ne_u32 s[28:29], s{sEP}, v{d}")
                a("s_or_b64 vcc, vcc, s[28:29]")
        if first_tag:
            vm.wait(first_tag)
            check()
            a(f"s_cbranch_vccz {label}_OK")
        a(f"s_mov_b32 s{sSPIN}, 0")
        a.label(label)
        if sleep: a(f"s_sleep {sleep}", "poll back-off")
        for ad, d in pairs:
            a(f"buffer_load_dword v{d}, v{ad}, {R(S_WS)}, 0 offen sc1")
        a(f"s_add_u32 s{sSPIN}, s{sSPIN}, 1")
        a("s_waitcnt vmcnt(0)")
        check()
        a(f"s_cmp_gt_u32 s{sSPIN}, {SPIN_MAX}")
        a(f"s_cbranch_scc1 {label}_OK")
        a(f"s_cbranch_vccnz {label}")
        a.label(label + "_OK")
        if not first_tag: vm.reset()
    def lds_arrive(idx, t=2):
        a(f"v_mov_b32 v{t}, {CNT + 4*idx}")
        a(f"v_mov_b32 v{t+1}, 1")
        a("s_waitcnt lgkmcnt(0)")
        a("s_mov_b64 exec, 1")
        a(f"ds_add_u32 v{t}, v{t+1}")
        a("s_mov_b64 exec, -1")
    def own_word_add(t=2):
        a(f"s_lshl_b32 s{sT0}, s3, 2")
        a(f"s_add_u32 s{sT0}, s{sT0}, {CNT + 64}")
        a(f"v_mov_b32 v{t}, s{sT0}")
        a(f"v_mov_b32 v{t+1}, 1")
        a("s_mov_b64 exec, 1")
        a(f"ds_add_u32 v{t}, v{t+1}")
        a("s_mov_b64 exec, -1")
    def lds_wait(label, idx, n=4, t=2, sleep=0):
        a(f"v_mov_b32 v{t}, {CNT + 4*idx}")
        a(f"s_mov_b32 s{sSPIN}, 0")
        a.label(label)
        if sleep: a(f"s_sleep {sleep}", "poll back-off")
        a(f"ds_read_b32 v{t+1}, v{t}")
        a(f"s_add_u32 s{sSPIN}, s{sSPIN}, 1")
        a(f"s_cmp_gt_u32 s{sSPIN}, {1 << 21}")
        a("s_waitcnt lgkmcnt(0)")
        a(f"v_cmp_gt_u32 vcc, {n}, v{t+1}")
        a(f"s_cbranch_scc1 {label}_OK")
        a(f"s_cbranch_vccnz {label}")
        a.label(label + "_OK")
    def sbar(label, idx, t=2):
        lds_arrive(idx, t); lds_wait(label, idx, 4, t)
    def w2_scalar_prefetch(tag):
        if not E("SPF", 0): return
        a(f"s_lshr_b32 s{sT0}, s2, 3")
        a(f"s_lshl_b32 s{sT0}, s{sT0}, 2")
        a(f"s_add_u32 s{sT0}, s{sT0}, s3")
        a(f"s_mul_i32 s{sT0}, s{sT0}, {12*4096}")
        if E("MAP2", 0):
            a(f"s_and_b32 s{sT1}, s2, 7")
            a(f"s_lshl_b32 s{sT1}, s{sT1}, 9")
        else:
            a(f"s_bfe_u32 s{sT1}, s2, 0x20001")
            a(f"s_lshl_b32 s{sT1}, s{sT1}, 10")
        a(f"s_add_u32 s{sT0}, s{sT0}, s{sT1}")
        a(f"s_add_u32 s30, s{S_W2}, s{sT0}")
        a(f"s_addc_u32 s31, s{S_W2+1}, 0")
        a(f"s_mov_b32 s{sT0}, 0")
        a.label(f"PK_SPF{tag}")
        for c in range(4 if E("MAP2", 0) else 8):
            a(f"s_load_dword s29, s[30:31], {128*c}")
        a("s_add_u32 s30, s30, 4096")
        a("s_addc_u32 s31, s31, 0")
        a(f"s_add_u32 s{sT0}, s{sT0}, 1")
        a(f"s_cmp_lt_u32 s{sT0}, 12")
        a(f"s_cbranch_scc1 PK_SPF{tag}")
        a("s_waitcnt lgkmcnt(0)")
    def read_epoch(vdata):
        vm.wait("ep")
        a(f"v_readfirstlane_b32 s{sEP}, v{vdata}")
        a("s_nop 3")
        a(f"s_mul_i32 s{sEP}, s{sEP}, 1664525")
        a(f"s_add_u32 s{sEP}, s{sEP}, 1013904223")
    def finish_stamps(role='X'):
        if not STAMP: return
        a("s_waitcnt vmcnt(0)")
        a(f"{TIMER} s[28:29]")
        a("s_waitcnt lgkmcnt(0)")
        if os.environ.get("AMP") and role == os.environ.get("AMPROLE", "G"):
            a("s_load_dwordx2 s[30:31], s[0:1], 96")
            a("s_waitcnt lgkmcnt(0)")
            srd(a, S_K, 30, 256)
            a("s_cmp_lg_u32 s3, 0")
            a(f"s_cbranch_scc1 AMPSKIP{role}")
            a("v_mov_b32 v1, 0")
            a("s_mov_b64 exec, 1")
            a(f"v_mov_b32 v2, s{4+2*int(os.environ['AMPIDX'])}")
            a(f"buffer_atomic_umax v2, v1, {R(S_K)}, 0 offen")
            a("s_not_b32 s4, s4")
            a("v_mov_b32 v2, s4")
            a(f"buffer_atomic_umax v2, v1, {R(S_K)}, 0 offen offset:128")
            a("s_not_b32 s4, s4")
            a("s_mov_b64 exec, -1")
            a.label(f"AMPSKIP{role}")
        a("s_load_dwordx2 s[30:31], s[0:1], 104")
        a("s_waitcnt lgkmcnt(0)")
        srd(a, S_X, 30, 1 << 20, 16 << 20)
        a(f"s_lshl_b32 s{sT0}, s2, 9")
        a("v_lshrrev_b32 v1, 6, v0")
        a(f"v_lshl_add_u32 v1, v1, 6, s{sT0}")
        a("s_mov_b64 exec, 1")
        for i in range(13):
            a(f"v_mov_b32 v2, s{4+2*i}")
            a(f"buffer_store_dword v2, v1, {R(S_X)}, 0 offen offset:{4*i}")

    kernel_begin(a, NAME + "_kernel")
    a(f"s_cmp_ge_u32 s2, {GRID}")
    a("s_cbranch_scc1 PK_END")
    a("s_load_dwordx8 s[4:11], s[0:1], 0", "x k v shift_k")
    a("s_load_dwordx2 s[26:27], s[0:1], 104", "ws")
    a("s_load_dwordx8 s[16:23], s[0:1], 56", "w1 b1 w2 b2")
    a("s_load_dwordx4 s[12:15], s[0:1], 32", "ssm_k ssm_D")
    a("s_load_dwordx2 s[24:25], s[0:1], 88", "out")
    if STAMP: a(f"{TIMER} s[30:31]")
    a("v_lshrrev_b32 v2, 6, v0")
    a("v_and_b32 v1, 63, v0", "lane")
    a(f"v_readfirstlane_b32 s{sT4}, v2", "wave 0..7")
    a("v_lshlrev_b32 v3, 2, v1", "lane*4")
    a(f"v_and_b32 v4, 124, v3")
    a(f"v_add_u32 v4, {CNT}, v4")
    a("v_mov_b32 v5, 0")
    a("ds_write_b32 v4, v5", "zero the 16 lds counters")
    a(f"s_and_b32 s3, s{sT4}, 3", "w within the role")
    a(f"s_and_b32 s{sT0}, s2, 7", "x")
    a(f"s_lshr_b32 s{sT1}, s2, 3", "j")
    a(f"s_and_b32 s{sT2}, s{sT0}, 1")
    a(f"s_lshl_b32 s{sDT2}, s{sT2}, 2")
    a(f"s_and_b32 s{sT3}, s{sT1}, 3")
    a(f"s_add_u32 s{sDT2}, s{sDT2}, s{sT3}", "dt2")
    a(f"s_lshr_b32 s{sT0}, s{sT0}, 1")
    a(f"s_lshl_b32 s{sST}, s{sT0}, 3")
    a(f"s_lshr_b32 s{sT3}, s{sT1}, 2")
    a(f"s_add_u32 s{sST}, s{sST}, s{sT3}", "st")
    if E("MAP2", 0):
        a(f"s_and_b32 s{sDT2}, s{sT1}, 7")
        a(f"s_and_b32 s{sST}, s2, 7")
        a(f"s_lshl_b32 s{sST}, s{sST}, 2")
        a(f"s_lshr_b32 s{sT3}, s{sT1}, 3")
        a(f"s_add_u32 s{sST}, s{sST}, s{sT3}")
    a(f"v_mov_b32 v8, {EPOCH_OFF}")
    a(f"s_cmp_lt_u32 s{sT4}, 4")
    a("s_cbranch_scc1 PK_G")
    a("s_setprio 3")
    a(f"s_lshl_b32 s{sT0}, s2, 2")
    a(f"s_add_u32 s{sT0}, s{sT0}, s3")
    a(f"s_mul_i32 s{sT4}, s{sT0}, 2560", "x soffset")
    a("s_waitcnt lgkmcnt(0)")
    srd(a, S_X, 4, SD_BYTES)
    for r in range(2):
        for i in range(5):
            a(f"buffer_load_dword v{16+5*r+i}, v3, {R(S_X)}, s{sT4} offen offset:{r*1280+i*256} {NT}")
    a("s_barrier", "lds counters zeroed")
    a("s_branch PK_H")
    a.label("PK_G")
    a("s_getpc_b64 s[28:29]")
    a.label("PK_PC")
    a(f"s_sub_u32 s28, s28, PK_PC-{NAME}_kernel")
    a("s_subb_u32 s29, s29, 0")
    a("v_and_b32 v9, 7, v0")
    a(f"s_andn2_b32 s{sT3}, s2, 7")
    a(f"v_add_lshl_u32 v9, v9, s{sT3}, 7")
    a(f"v_min_u32 v9, PK_END-{NAME}_kernel, v9")
    a("global_load_dword v127, v9, s[28:29]")

    a("s_setprio 1")
    a(f"s_mul_hi_u32 s{sFT}, s{sT1}, 0x33333334", "j/5")
    a(f"s_mul_i32 s{sT3}, s{sFT}, 5")
    a(f"s_sub_u32 s{sDT}, s{sT1}, s{sT3}", "j%5")
    a(f"s_mul_i32 s{sROT}, s{sDT}, 13")
    a(f"s_lshr_b32 s{sROT}, s{sROT}, 2", "rot = 3.25*dt_local")
    if not E("ROT", 1): a(f"s_mov_b32 s{sROT}, 0")
    if E("ROT", 1) == 2:
        a(f"s_add_u32 s{sROT}, s{sDT}, s{sFT}")
        a(f"s_sub_u32 s{sT3}, s{sROT}, 6")
        a(f"s_min_u32 s{sROT}, s{sROT}, s{sT3}")
        a(f"s_mul_i32 s{sROT}, s{sROT}, 11")
        a(f"s_lshr_b32 s{sROT}, s{sROT}, 2", "2.75 * index")
    a(f"s_mul_i32 s{sT3}, s{sT2}, 5")
    a(f"s_add_u32 s{sDT}, s{sDT}, s{sT3}", "dt")
    a(f"s_mul_i32 s{sT3}, s{sT0}, 6")
    a(f"s_add_u32 s{sFT}, s{sFT}, s{sT3}", "ft")
    if E("MAP1", 1):
        a(f"s_mul_hi_u32 s{sFT}, s{sT1}, 0x1999999a", "j/10")
        a(f"s_mul_i32 s{sT3}, s{sFT}, 10")
        a(f"s_sub_u32 s{sDT}, s{sT1}, s{sT3}")
        a(f"s_and_b32 s{sT3}, s2, 7")
        a(f"s_mul_i32 s{sT3}, s{sT3}, 3")
        a(f"s_add_u32 s{sFT}, s{sFT}, s{sT3}")
        a(f"s_mul_i32 s{sROT}, s{sDT}, 13")
        a(f"s_lshr_b32 s{sROT}, s{sROT}, 3", "1.625*dt")
    a(f"s_cmp_ge_u32 s{sT1}, 30")
    a(f"s_cselect_b32 s{sG1BIG}, {BIG}, 0")
    a(f"s_mul_i32 s{sRING}, s3, {RINGB}")
    a(f"s_lshl_b32 s{sKB}, s3, 4")
    a(f"s_mov_b32 s{sPOS}, s{sROT}")
    a("v_lshrrev_b32 v2, 3, v1")
    a("v_mul_u32_u24 v4, 3072, v2")
    a("v_bfe_u32 v2, v1, 4, 1")
    a("v_lshlrev_b32 v2, 2, v2")
    a("v_and_b32 v3, 7, v1")
    a("v_xor_b32 v2, v2, v3")
    a("v_lshl_add_u32 v4, v2, 4, v4")
    a(f"s_lshl_b32 s{sT1}, s{sFT}, 7")
    a(f"s_add_u32 s{sT1}, s{sT1}, s{sG1BIG}")
    a(f"v_add_u32 v4, s{sT1}, v4")
    for q in range(1, 4):
        a(f"v_add_u32 v{4+q}, {q*(24576-1024)}, v4")
    a("s_waitcnt lgkmcnt(0)")
    srd(a, S_W1, 16, S * F * 2)
    a("s_barrier", "lds counters zeroed")
    def w1_stage(i):
        items = [f"s_add_u32 s{sWOFF}, s{sKB}, s{sPOS}", f"s_mul_i32 s{sWOFF}, s{sWOFF}, 98304",
                 f"s_add_u32 m0, s{sRING}, {(i % NSLOT)*4096}", f"s_add_u32 s{sPOS}, s{sPOS}, 1", f"s_and_b32 s{sPOS}, s{sPOS}, 15"]
        for q in range(4):
            items.append((f"buffer_load_dwordx4 v{4+q}, {R(S_W1)}, s{sWOFF} offen offset:{q*1024} lds", f"w1_{i}"))
        return items
    def w1_tr(i):
        out = []
        for kh in range(2):
            for mt in range(2):
                for h in range(2):
                    r = 16 * (i % NR1) + 4 * (2 * kh + mt) + 2 * h
                    out.append(f"ds_read_b64_tr_b16 a[{r}:{r+1}], v{10+mt} offset:{(i % NSLOT)*4096 + kh*2048 + h*512}")
        return out
    WD = E("WD", 2)
    for i in range(WD): emit(w1_stage(i))
    srd(a, S_WS, 26, WS_USED, E("WSMB", 0) << 20)
    vm.op(f"buffer_load_dword v9, v8, {R(S_WS)}, 0 offen sc1", "ep")
    srd(a, S_W2, 20, S * F * 2)
    srd(a, S_B2, 22, S * 2)
    srd(a, S_OUT, 24, SD_BYTES)
    if STAMP:
        a("s_mov_b32 s4, s30"); a("s_mov_b32 s5, s31")
    pstamp(a, 1)
    a("v_lshrrev_b32 v2, 5, v1")
    a("v_lshlrev_b32 v10, 10, v2")
    a("v_mul_u32_u24 v12, 10240, v2")
    a("v_bfe_u32 v2, v1, 2, 2")
    a("v_lshl_add_u32 v10, v2, 7, v10")
    a("v_bfe_u32 v2, v1, 3, 1")
    a("v_lshl_add_u32 v10, v2, 6, v10")
    a("v_bfe_u32 v2, v1, 4, 1")
    a("v_lshl_add_u32 v10, v2, 5, v10")
    a("v_and_b32 v2, 3, v1")
    a("v_lshl_add_u32 v10, v2, 3, v10")
    a(f"v_add_u32 v10, s{sRING}, v10")
    a("v_xor_b32 v11, 64, v10")
    a("v_and_b32 v2, 31, v1")
    a("v_lshl_add_u32 v12, v2, 4, v12")
    a(f"s_lshl_b32 s{sT0}, s{sDT}, 10")
    a(f"s_add_u32 s{sT0}, s{sT0}, s{sG1BIG}")
    if HBLK_OFF: a(f"s_add_u32 s{sT0}, s{sT0}, {HBLK_OFF}")
    a(f"v_add_u32 v12, s{sT0}, v12")
    a("v_add_u32 v13, 20480, v12")
    a(f"s_and_b32 s{sT0}, s{sDT}, 3")
    a(f"s_lshl_b32 s{sT0}, s{sT0}, {8+FS}")
    a(f"s_add_u32 s{sT0}, s{sT0}, {FH_OFF}")
    a(f"v_lshl_add_u32 v14, v0, {FS}, s{sT0}")
    a(f"s_and_b32 s{sROT2}, s{sDT2}, 3")
    a(f"s_mul_i32 s{sROT2}, s{sROT2}, 3")
    if E("MAP2", 0):
        a(f"s_mul_i32 s{sROT2}, s{sDT2}, 3")
        a(f"s_lshr_b32 s{sROT2}, s{sROT2}, 1")
    if E("ROT2", 1) == 2:
        a(f"s_and_b32 s{sT0}, s{sST}, 7")
        a(f"s_mul_i32 s{sT0}, s{sT0}, 3")
        a(f"s_lshr_b32 s{sT0}, s{sT0}, 1")
        a(f"s_add_u32 s{sROT2}, s{sROT2}, s{sT0}")
        a(f"s_sub_u32 s{sT0}, s{sROT2}, 12")
        a(f"s_min_u32 s{sROT2}, s{sROT2}, s{sT0}")
    a(f"s_mul_i32 s{sKB2}, s3, 12")
    c0 = -2.0 * math.sqrt(2.0 / math.pi) * math.log2(math.e)
    a(f"s_mov_b32 s{sC1}, {f32(c0*0.044715)}")
    if E("W2PF", 0):
        a(f"s_cmp_lg_u32 s{sG1BIG}, 0")
        a("s_cbranch_scc1 PK_G_PF")
    NPRE = NR1 + NSLOT
    BURST = E("BURST", 1)
    last = NR1 if BURST else NPRE - WD + 1
    for i in range(last):
        vm.wait(f"w1_{i}")
        if i < NR1: emit(w1_tr(i))
        nx = i + WD
        if nx < NPRE:
            if nx >= NSLOT:
                later = sum(1 for k in range(nx - NSLOT + 1, i + 1) if k < NR1)
                a(f"s_waitcnt lgkmcnt({8 if later else 0})")
            emit(w1_stage(nx))
        if i == WD:
            read_epoch(9); lds_arrive(6)
    EARLY = E("EARLY", 0); NP0 = E("NP0", 10)
    sLATE = 31
    if BURST:
        a("s_waitcnt lgkmcnt(0)")
        if EARLY:
            assert NR1 == 7
            vm.op(f"buffer_load_dword v15, v14, {R(S_WS)}, 0 offen sc1", "hpoll0")
            for nx in range(NR1 - 1 + WD + 1, NP0): emit(w1_stage(nx))
            lds_wait("PK_B1W", 1)
            vm.wait("hpoll0")
            a(f"v_cmp_ne_u32 vcc, s{sEP}, v15")
            a(f"s_mov_b32 s{sLATE}, 1")
            pstamp(a, 2)
            a("s_cbranch_vccz PK_SPIN_H_OK")
            a(f"s_mov_b32 s{sLATE}, 0")
            keep = list(vm.q)
            for nx in range(NP0, NPRE): emit(w1_stage(nx))
            vm.q = keep
        else:
            for nx in range(NR1 - 1 + WD + 1, NPRE): emit(w1_stage(nx))
    if E("W1ONLY", 0):
        a("s_waitcnt vmcnt(0)")
        for i in range(2, 12): pstamp(a, i)
        finish_stamps()
        a("s_endpgm")
    if EARLY:
        keep = list(vm.q)
        spin("PK_SPIN_H", [(14, 15)])
        vm.q = keep
    else:
        vm.op(f"buffer_load_dword v15, v14, {R(S_WS)}, 0 offen sc1", "hpoll")
        lds_wait("PK_B1W", 1)
        pstamp(a, 2)
        spin("PK_SPIN_H", [(14, 15)], "hpoll", sleep=E("HPOLL_SLEEP", 4))
    if E("GBAR1", 0): sbar("PK_GB1", 13)
    pstamp(a, 3)
    a("s_setprio 2")
    ACC = 64
    HB = [("v", 16), ("v", 32), ("v", 48)] + [("a", 16 * k) for k in range(NR1, 8)]
    HD = len(HB)
    HB = HB[-((16 - 0) % HD or HD):] + HB[:-((16 - 0) % HD or HD)] if False else HB
    def hreg(i, kh, nt):
        f, b = HB[(i + HSH) % HD]
        r = b + 4 * (2 * kh + nt)
        return f"{f}[{r}:{r+3}]"
    HSH = (1 - 13) % HD
    sHP = sKVBIG
    a(f"s_mov_b32 s{sHP}, s{sROT}")
    def h_adv():
        return [f"s_add_u32 s{sHOFF}, s{sKB}, s{sHP}", f"s_mul_i32 s{sHOFF}, s{sHOFF}, 40960",
                f"s_add_u32 s{sHP}, s{sHP}, 1", f"s_and_b32 s{sHP}, s{sHP}, 15"]
    def hload(i, nt, kh):
        return (f"buffer_load_dwordx4 {hreg(i, kh, nt)}, v{12+kh}, {R(S_WS)}, s{sHOFF} offen offset:{nt*512} {os.environ.get('HFLAG', 'sc1')}", f"h{i}_{kh}{nt}")
    HPRE = E("HPRE", HD)
    for i in range(HPRE):
        emit(h_adv())
        for kh in range(2):
            for nt in range(2): emit([hload(i, nt, kh)])
    a("s_waitcnt lgkmcnt(0)")
    def pos2(i):
        return [f"s_add_u32 s{sT0}, s{sROT2}, {i}", f"s_sub_u32 s{sT1}, s{sT0}, 12", f"s_min_u32 s{sT0}, s{sT0}, s{sT1}",
                f"s_add_u32 s{sT0}, s{sT0}, s{sKB2}"]
    def w2_slot(i): return i % NSLOT
    def w2_dma(i):
        items = pos2(i) + [f"s_add_u32 m0, s{sRING}, {w2_slot(i)*4096}", f"s_lshl_b32 s{sWOFF}, s{sT0}, 17"]
        for q in range(4):
            items.append((f"buffer_load_dwordx4 v{4+q}, {R(S_W2)}, s{sWOFF} offen offset:{q*1024} lds", f"w2_{i}"))
        return items
    BB = 16
    for i in range(16):
        nx = i + HPRE
        if E("G1STEPS", 0):
            MUTE[0] = True
            if i in (1, 3, 5, 7, 9, 11, 13): pstamp(a, 4 + i // 2, True)
        if nx < 16: emit(h_adv())
        side = []
        if EARLY:
            if 4 <= i <= 12:
                if i + 3 < NP0: vm.wait(f"w1_{i+3}")
                side = w1_tr(i + 3)
            if i >= 6: a("s_waitcnt lgkmcnt(8)" if i <= 13 else "s_waitcnt lgkmcnt(0)")
            if NP0 + i <= 13:
                a(f"s_cmp_eq_u32 s{sLATE}, 0")
                a(f"s_cbranch_scc1 PK_NOLATE{i}")
                keep = list(vm.q); emit(w1_stage(NP0 + i)); vm.q = keep
                a.label(f"PK_NOLATE{i}")
            if i in (6, 7): emit(w1_stage(8 + i))
        else:
            st_tr = NR1 - 1 + i
            if i >= 1 and st_tr < 16:
                vm.wait(f"w1_{st_tr}")
                side = w1_tr(st_tr)
            st_ld = NPRE + i - 3
            if i >= 3 and st_ld < 16:
                a("s_waitcnt lgkmcnt(8)")
                emit(w1_stage(st_ld))
            elif i >= NR1:
                a("s_waitcnt lgkmcnt(8)" if NR1 - 1 + i - 1 < 16 else "s_waitcnt lgkmcnt(0)")
        if E("KV_LATE", 0) and i == E("KV_LATE", 0):
            a(f"v_mov_b32 v2, {CNT + 48}")
            a("s_mov_b64 exec, 1")
            a("ds_add_u32 v2, v2")
            a("s_mov_b64 exec, -1")
        if i == 12:
            side = side + ["v_lshrrev_b32 v2, 3, v1", "v_lshlrev_b32 v4, 12, v2", "v_bfe_u32 v2, v1, 4, 1", "v_lshlrev_b32 v2, 1, v2",
                    "v_and_b32 v3, 7, v1", "v_xor_b32 v2, v2, v3", "v_lshl_add_u32 v4, v2, 4, v4", f"s_lshl_b32 s{sT0}, s{sST}, 7",
                    f"v_add_u32 v4, s{sT0}, v4", "v_xor_b32 v2, 64, v4", f"v_add_u32 v5, {1*(32768-1024)}, v2",
                    f"v_add_u32 v6, {2*(32768-1024)}, v4", f"v_add_u32 v7, {3*(32768-1024)}, v2",
                    ]
        if i == E("KGO", 11): lds_arrive(10)
        if E("CEARLY", 0) and i == E("PAUSE_AT", 14): own_word_add()
        if i == 13:
            side = [f"s_add_u32 s{sT2}, s{sRING}, {3*4096}", f"v_lshl_add_u32 v9, v1, 4, s{sT2}",
                    f"s_lshl_b32 s{sT2}, s3, 12", f"s_add_u32 s{sT2}, s{sT2}, {3*4096}", f"v_lshl_add_u32 v10, v1, 4, s{sT2}",
                    f"v_add_u32 v11, {2*RINGB}, v10",
                    f"s_lshr_b32 s{sT0}, s3, 1", f"s_lshl_b32 s{sT0}, s{sT0}, 6", f"s_add_u32 s{sT0}, s{sT0}, {PT_LDS}",
                    "v_lshrrev_b32 v8, 5, v1", f"v_lshl_add_u32 v8, v8, 3, s{sT0}",
                    f"s_lshr_b32 s{sT0}, s3, 1", f"s_lshl_b32 s{sT0}, s{sT0}, 2", f"s_lshl_b32 s{sT1}, s{sFT}, 3",
                    f"s_add_u32 s{sT0}, s{sT0}, s{sT1}", f"s_mul_i32 s{sT0}, s{sT0}, 10240", f"s_and_b32 s{sT1}, s3, 1",
                    f"s_lshl_b32 s{sT1}, s{sT1}, 9", f"s_add_u32 s{sT0}, s{sT0}, s{sT1}",
                    f"s_add_u32 s{sT0}, s{sT0}, {UBLK_OFF - HBLK_OFF - 20480}", f"v_add_u32 v14, s{sT0}, v13", "v_add_u32 v15, 20480, v14",
                    f"v_mov_b32 v13, {f32(c0)}", "s_mov_b32 s28, 1.0", "s_mov_b32 s29, 1.0"]
        if i == 14:
            side = [f"ds_read_b64 v[{32+2*q}:{33+2*q}], v8 offset:{16*q}" for q in range(4)]
        if i == 15:
            for kh in range(2):
                for nt in range(2): vm.wait(f"h{i}_{kh}{nt}")
            def mf(t_):
                mt, nt = t_ >> 1, t_ & 1
                t = ACC + 16 * t_
                for kh in range(2):
                    wr = 16 * (i % NR1) + 4 * (2 * kh + mt)
                    a(f"v_mfma_f32_32x32x16_bf16 v[{t}:{t+15}], a[{wr}:{wr+3}], {hreg(i, kh, nt)}, v[{t}:{t+15}]")
            def wr_(t_):
                for q in range(4):
                    r = ACC + 16 * t_ + 4 * q
                    a(f"ds_write_b128 v9, v[{r}:{r+3}] offset:{t_*4096 + q*1024}")
            FIN = 48
            mf(0); mf(1)
            a("s_waitcnt lgkmcnt(0)")
            for q in range(0, 10, 2):
                a(f"v_lshlrev_b32 v{FIN+q}, 16, v{32+q//2}")
                a(f"v_and_b32 v{FIN+q+1}, 0xffff0000, v{32+q//2}")
            wr_(0); mf(2); wr_(1); mf(3)
            for q in range(10, 16, 2):
                a(f"v_lshlrev_b32 v{FIN+q}, 16, v{32+q//2}")
                a(f"v_and_b32 v{FIN+q+1}, 0xffff0000, v{32+q//2}")
            wr_(2)
            a("s_nop 1")
            wr_(3)
            continue
        k = 0; si = 0
        for kh in range(2):
            for nt in range(2):
                vm.wait(f"h{i}_{kh}{nt}")
                for mt in range(2):
                    t = ACC + 16 * (2 * mt + nt)
                    wr = 16 * (i % NR1) + 4 * (2 * kh + mt)
                    c = "0" if (i == 0 and kh == 0) else f"v[{t}:{t+15}]"
                    if not E("NOMF1", 0): a(f"v_mfma_f32_32x32x16_bf16 v[{t}:{t+15}], a[{wr}:{wr+3}], {hreg(i, kh, nt)}, {c}")
                    k += 1
                    while si < (len(side) * k + 7) // 8:
                        emit([side[si]]); si += 1
                if nx < 16: emit([hload(nx, nt, kh)])
    pstamp(a, 4)
    if E("G1STEPS", 0): pstamp(a, 11, True)
    lds_arrive(4)
    H3L = E("H3L", 0)
    W2AF = E("W2AF", 0)
    if not H3L and not W2AF: emit(w2_dma(0)); emit(w2_dma(1))
    lds_wait("PK_XW1", 4)
    PT = 64
    for o in range(4):
        for q in range(4):
            r = PT + 16 * o + 4 * q
            a(f"ds_read_b128 v[{r}:{r+3}], v{10+o//2} offset:{(o&1)*RINGB + q*1024}")
    for o in range(4):
        a(f"s_waitcnt lgkmcnt({12-4*o})")
        for i in range(0, 16, 2):
            a(f"v_pk_add_f32 {pk(FIN+i)}, {pk(FIN+i)}, {pk(PT+16*o+i)}")
    lds_arrive(5)
    T = 64
    for i in range(0, 16, 2): a(f"v_pk_mul_f32 {pk(T+i)}, {pk(FIN+i)}, {pk(FIN+i)}")
    for i in range(16): a(f"v_fma_f32 v{T+i}, v{T+i}, s{sC1}, v13")
    for i in range(0, 16, 2): a(f"v_pk_mul_f32 {pk(T+i)}, {pk(T+i)}, {pk(FIN+i)}")
    for i in range(16): a(f"v_exp_f32 v{T+i}, v{T+i}")
    if E("W2MID", 0): emit(w2_dma(2))
    for i in range(0, 16, 2): a(f"v_pk_add_f32 {pk(T+i)}, {pk(T+i)}, s[28:29]")
    for i in range(16): a(f"v_rcp_f32 v{T+i}, v{T+i}")
    for i in range(0, 16, 2): a(f"v_pk_mul_f32 {pk(FIN+i)}, {pk(FIN+i)}, {pk(T+i)}")
    P = T + 16
    for i in range(0, 16, 2): a(f"v_cvt_pk_bf16_f32 v{P+i//2}, v{FIN+i}, v{FIN+i+1}")
    a("s_nop 1")
    for qp in range(2):
        r = P + 4 * qp
        a(f"v_permlane32_swap_b32 v{r}, v{r+2}")
        a(f"v_permlane32_swap_b32 v{r+1}, v{r+3}")
        vm.op(f"buffer_store_dwordx4 v[{r}:{r+3}], v{14+qp}, {R(S_WS)}, 0 offen sc1", "ust")
    a.label("PK_G_W2")
    pstamp(a, 5)
    if E("CEARLY", 0): own_word_add()
    lds_arrive(8)
    a(f"s_lshl_b32 s{sT0}, s{sDT}, 1")
    a(f"s_and_b32 s{sT1}, s3, 1")
    a(f"s_add_u32 s{sT0}, s{sT0}, s{sT1}")
    a(f"s_mul_i32 s{sT0}, s{sT0}, 48")
    a(f"s_lshl_b32 s{sT1}, s{sFT}, 1")
    a(f"s_add_u32 s{sT0}, s{sT0}, s{sT1}")
    a(f"s_lshr_b32 s{sT1}, s3, 1")
    a(f"s_add_u32 s{sT0}, s{sT0}, s{sT1}")
    a(f"s_lshl_b32 s{sT0}, s{sT0}, {FS}")
    a(f"s_add_u32 s{sT0}, s{sT0}, {FU_OFF}")
    a(f"s_add_u32 s{sT4}, s{sT0}, s{sG1BIG}")
    TR2 = 100
    a("v_lshrrev_b32 v106, 4, v1", "g")
    a("v_and_b32 v107, 15, v1", "n")
    a(f"v_lshlrev_b32 v{TR2}, 10, v106")
    a("v_bfe_u32 v2, v1, 2, 2")
    a(f"v_lshl_add_u32 v{TR2}, v2, 7, v{TR2}")
    a("v_bfe_u32 v2, v1, 3, 2")
    a(f"v_lshl_add_u32 v{TR2}, v2, 5, v{TR2}")
    a("v_and_b32 v2, 3, v1")
    a(f"v_lshl_add_u32 v{TR2}, v2, 3, v{TR2}")
    a(f"v_add_u32 v{TR2}, s{sRING}, v{TR2}")
    for j in range(1, 4): a(f"v_xor_b32 v{TR2+j}, {32*j}, v{TR2}")
    a("v_min_u32 v2, 35, v1")
    a("v_mul_u32_u24 v3, 43, v2")
    a("v_lshrrev_b32 v3, 9, v3")
    a("v_mul_u32_u24 v104, 36, v3")
    a("v_add_u32 v104, v104, v2")
    a(f"s_mul_i32 s{sT3}, s{sDT2}, 80", "d0")
    a(f"s_lshr_b32 s{sT0}, s{sT3}, 5")
    a(f"s_mul_i32 s{sT0}, s{sT0}, 48")
    a(f"s_add_u32 s{sT0}, s{sT0}, s{sKB2}")
    a(f"s_lshl_b32 s{sT0}, s{sT0}, {FS}")
    a(f"s_add_u32 s{sT0}, s{sT0}, {FU_OFF}")
    a(f"v_lshl_add_u32 v104, v104, {FS}, s{sT0}")
    a("v_mul_u32_u24 v105, 10240, v106")
    a("v_lshl_add_u32 v105, v107, 4, v105")
    a(f"s_lshl_b32 s{sT0}, s{sT3}, 4")
    a(f"s_add_u32 s{sT0}, s{sT0}, {UBLK_OFF}")
    a(f"v_add_u32 v105, s{sT0}, v105")
    def w2_tr(i, tr):
        out = []
        for j in range(4):
            for h in range(2):
                r = 16 * (i % NR2) + 4 * j + 2 * h
                out.append(f"ds_read_b64_tr_b16 a[{r}:{r+1}], v{tr+j} offset:{w2_slot(i)*4096 + h*512}")
        return out
    if H3L:
        lds_wait("PK_XW2", 5, n=5)
        for k in range(3): emit(w2_tr(k, TR2))
        vm.wait("ust")
        flag_store(sT4)
        pstamp(a, 6)
        emit(w2_dma(3)); emit(w2_dma(4))
        a("s_waitcnt lgkmcnt(0)")
    else:
        if not W2AF:
            vm.wait("w2_1")
            for k in range(2): emit(w2_tr(k, TR2))
        lds_wait("PK_XW2", 5)
        vm.wait("ust")
        flag_store(sT4)
        pstamp(a, 6)
        if W2AF: emit(w2_dma(0)); emit(w2_dma(1))
        if not E("W2MID", 0): emit(w2_dma(2))
        emit(w2_dma(3)); emit(w2_dma(4))
        vm.wait("w2_2")
        if W2AF:
            for k in range(2): emit(w2_tr(k, TR2))
        emit(w2_tr(2, TR2))
        a("s_waitcnt lgkmcnt(0)")
    if E("BURST2", 1):
        for nx in range(5, 10): emit(w2_dma(nx))
        for i in (3, 4):
            vm.wait(f"w2_{i}"); emit(w2_tr(i, TR2))
        a("s_waitcnt lgkmcnt(0)")
        emit(w2_dma(10)); emit(w2_dma(11))
        vm.op(f"buffer_load_dword v108, v104, {R(S_WS)}, 0 offen sc1", "upoll")
    else:
      for i in range(3, 12):
        nx = i + 2
        if nx < 12:
            if nx >= 9: a("s_waitcnt lgkmcnt(0)")
            emit(w2_dma(nx))
        vm.wait(f"w2_{i}")
        if i < NR2: emit(w2_tr(i, TR2))
        if i == E("UPOLL_AT", 10):
            vm.op(f"buffer_load_dword v108, v104, {R(S_WS)}, 0 offen sc1", "upoll")
    for j in range(4): a(f"v_mov_b32 v{4+j}, v{TR2+j}")
    a("v_mul_u32_u24 v109, 26, v1")
    a("v_lshrrev_b32 v109, 8, v109", "L/10")
    a("v_mul_u32_u24 v110, 10, v109")
    a("v_sub_u32 v110, v1, v110", "L%10")
    a("v_min_u32 v109, 5, v109")
    a("v_mul_u32_u24 v109, 10240, v109")
    a("v_lshl_add_u32 v109, v110, 7, v109")
    a(f"s_and_b32 s{sT0}, s{sST}, 7")
    a(f"s_mul_i32 s{sT0}, s{sT0}, 6")
    a(f"s_mul_i32 s{sT1}, s3, 48")
    a(f"s_add_u32 s{sT0}, s{sT0}, s{sT1}")
    a(f"s_mul_i32 s{sT0}, s{sT0}, 10240")
    a(f"s_mul_i32 s{sT1}, s{sDT2}, 1280")
    a(f"s_add_u32 s{sT0}, s{sT0}, s{sT1}")
    a(f"s_add_u32 s{sT0}, s{sT0}, {UBLK_OFF}")
    a(f"v_add_u32 v109, s{sT0}, v109")
    a("v_mov_b32 v3, v105")
    pstamp(a, 7)
    spin("PK_SPIN_U", [(104, 108)], "upoll" if vm.count("upoll") is not None else "x", sleep=E("UPOLL_SLEEP", 4))
    if E("GBAR2", 0): sbar("PK_GB2", 14, t=110)
    pstamp(a, 8)
    if E("G2STEPS", 0): pstamp(a, 1, True)
    ACC2 = 48
    UB = [("a", 100), ("v", 8), ("v", 28), ("a", 80)]; UD = 4
    def ureg(i, m):
        f, b = UB[i % UD]
        return f"{f}[{b+4*m}:{b+4*m+3}]"
    def u_adv(i): return pos2(i) + [f"s_mul_i32 s{sHOFF}, s{sT0}, 40960"]
    def uload(i, m):
        return (f"buffer_load_dwordx4 {ureg(i, m)}, v3, {R(S_WS)}, s{sHOFF} offen offset:{m*256} sc1", f"u{i}_{m}")
    UPRE = E("UPRE", UD)
    for i in range(UPRE):
        emit(u_adv(i))
        for m in range(5): emit([uload(i, m)])
        if i == 0 and E("TOUCH", 0):
            vm.op(f"buffer_load_dword a127, v109, {R(S_WS)}, 0 offen sc1", "touch")
    a("s_waitcnt lgkmcnt(0)")
    for i in range(12):
        nx = i + UPRE
        if E("G2STEPS", 0):
            MUTE[0] = True
            if i in (0, 1, 3, 5, 7, 9, 11): pstamp(a, 2 + (i + 1) // 2, True)
        if nx < 12: emit(u_adv(nx))
        side = w2_tr(NR2 - 1 + i, 4) if (i >= 1 and NR2 - 1 + i < 12) else []
        if NR2 <= i <= 8: a("s_waitcnt lgkmcnt(8)")
        if i == 9: a("s_waitcnt lgkmcnt(0)")
        if i == E("YGO", 7):
            a(f"v_mov_b32 v2, {CNT + 36}")
            a("s_mov_b64 exec, 1")
            a("ds_add_u32 v2, v2", "counter 9 += its own address")
            a("s_mov_b64 exec, -1")
        if i == 10:
            side = ["v_lshrrev_b32 v8, 4, v1", "v_and_b32 v9, 15, v1",
                    f"s_lshl_b32 s{sT0}, s{sST}, 6", f"s_lshl_b32 s{sT1}, s3, 4", f"s_add_u32 s{sT0}, s{sT0}, s{sT1}",
                    f"v_add_u32 v9, s{sT0}, v9", "v_mul_u32_u24 v10, 1280, v9", "v_lshl_add_u32 v10, v8, 3, v10",
                    f"s_mul_i32 s{sT0}, s{sDT2}, 160", f"v_add_u32 v10, s{sT0}, v10", "v_lshlrev_b32 v9, 1, v9",
                    (f"buffer_load_ushort v16, v9, {R(S_B2)}, 0 offen", "b2"),
                    f"v_lshl_add_u32 v11, v1, 4, s{sRING}",
                    f"s_mul_i32 s{sT0}, s3, 2560", f"s_add_u32 s{sT0}, s{sT0}, {PT_LDS}", f"v_lshl_add_u32 v15, v1, 3, s{sT0}",
                    f"s_mul_i32 s{sT0}, s3, 5120", f"v_lshl_add_u32 v12, v1, 4, s{sT0}", f"v_add_u32 v13, {2*RINGB}, v12"]
        TL2 = E("TL2", 2)
        if i > 12 - TL2: continue
        if i == 12 - TL2:
            assert nx >= 12
            emit(side)
            vm.wait("u11_4")
            pend = []
            for j in range(4):
                for ii in range(i, 12):
                    for m in range(5):
                        t = ACC2 + 4 * (5 * j + m); wr = 16 * (ii % NR2) + 4 * j
                        a(f"v_mfma_f32_16x16x32_bf16 v[{t}:{t+3}], {ureg(ii, m)}, a[{wr}:{wr+3}], v[{t}:{t+3}]")
                        for p in pend: p[0] += 1
                        if pend and pend[0][0] >= 9:
                            a(pend.pop(0)[1])
                            for p in pend: p[0] += 1
                        if ii == 11:
                            pend.append([0, f"ds_write_b128 v11, v[{t}:{t+3}] offset:{j*5120 + m*1024}"])
            while pend:
                if pend[0][0] < 9:
                    n = 9 - pend[0][0]
                    a(f"s_nop {n-1}")
                    for p in pend: p[0] += n
                a(pend.pop(0)[1])
                for p in pend: p[0] += 1
            continue
        k = 0; si = 0
        for m in range(5):
            vm.wait(f"u{i}_{m}")
            for j in range(4):
                t = ACC2 + 4 * (5 * j + m)
                wr = 16 * (i % NR2) + 4 * j
                c = "0" if i == 0 else f"v[{t}:{t+3}]"
                a(f"v_mfma_f32_16x16x32_bf16 v[{t}:{t+3}], {ureg(i, m)}, a[{wr}:{wr+3}], {c}")
                k += 1
                while si < (len(side) * k + 19) // 20:
                    emit([side[si]]); si += 1
            if nx < 12: emit([uload(nx, m)])
    pstamp(a, 9, True)
    MUTE[0] = False
    FIN2 = 28
    lds_arrive(11)
    vm.wait("b2")
    a("v_lshlrev_b32 v17, 16, v16")
    a("v_lshlrev_b32 v16, 16, v16")
    lds_wait("PK_GB3", 11)
    PT2 = 48; PR = 18; PF = 108
    GM = E("GM", 3)
    NG = 4 * GM
    for o in range(4):
        for m in range(GM):
            r = PT2 + 20 * o + 4 * m
            a(f"ds_read_b128 v[{r}:{r+3}], v{12+o//2} offset:{(o&1)*RINGB + m*1024}")
    for o in range(4):
        a(f"s_waitcnt lgkmcnt({min(10, GM*(3-o))})")
        for i in range(0, NG, 2):
            src = "v[16:17]" if o == 0 else pk(FIN2 + i)
            a(f"v_pk_add_f32 {pk(FIN2+i)}, {src}, {pk(PT2+20*o+i)}")
    T2 = 48
    for i in range(0, NG, 2): a(f"v_cvt_pk_bf16_f32 v{T2+i//2}, v{FIN2+i}, v{FIN2+i+1}")
    for i in range(0, NG, 2):
        a(f"v_lshlrev_b32 v{FIN2+i}, 16, v{T2+i//2}")
        a(f"v_and_b32 v{FIN2+i+1}, 0xffff0000, v{T2+i//2}")
    lds_wait("PK_PW", 15)
    pstamp(a, 10)
    for m in range(GM):
        a(f"ds_read_b64 v[{PR+2*m}:{PR+2*m+1}], v15 offset:{m*512}")
    a("s_waitcnt lgkmcnt(0)")
    for m in range(GM):
        for h in range(2):
            i = 4 * m + 2 * h
            a(f"v_lshlrev_b32 v{PF+i}, 16, v{PR+i//2}")
            a(f"v_and_b32 v{PF+i+1}, 0xffff0000, v{PR+i//2}")
            a(f"v_pk_add_f32 {pk(FIN2+i)}, {pk(FIN2+i)}, {pk(PF+i)}")
            a(f"v_cvt_pk_bf16_f32 v{60+i//2}, v{FIN2+i}, v{FIN2+i+1}")
        a(f"buffer_store_dwordx2 v[{60+2*m}:{61+2*m}], v10, {R(S_OUT)}, 0 offen offset:{32*m}")
    a(f"s_or_b32 s{sT0}, s2, s3")
    a(f"s_cmp_lg_u32 s{sT0}, 0")
    a("s_cbranch_scc1 PK_NOEP")
    a(f"s_mov_b32 s{sT0}, {EPOCH_OFF}")
    flag_store(sT0)
    a.label("PK_NOEP")
    pstamp(a, 11)
    finish_stamps("G")
    a("s_endpgm")

    if E("W2PF", 0):
        a.label("PK_G_PF")
        vm.reset(); vm.q.append("ep")
        read_epoch(9); lds_arrive(6)
        a(f"s_lshr_b32 s{sT2}, s2, 3")
        a(f"s_sub_u32 s{sT2}, s{sT2}, 30")
        a(f"s_lshl_b32 s{sT2}, s{sT2}, 2")
        a(f"s_add_u32 s{sT2}, s{sT2}, s3")
        a(f"s_and_b32 s{sT1}, s2, 1")
        a(f"s_lshl_b32 s{sT1}, s{sT1}, 3")
        a(f"s_add_u32 s{sT2}, s{sT2}, s{sT1}")
        a(f"s_mul_i32 s{sT2}, s{sT2}, {96*4096}")
        a(f"s_bfe_u32 s{sT1}, s2, 0x20001")
        a(f"s_lshl_b32 s{sT1}, s{sT1}, 10")
        a(f"s_add_u32 s{sT2}, s{sT2}, s{sT1}")
        a("v_lshrrev_b32 v8, 3, v1")
        a("v_lshlrev_b32 v8, 12, v8")
        a("v_and_b32 v3, 7, v1")
        a("v_lshl_add_u32 v8, v3, 7, v8")
        emit(["v_lshrrev_b32 v2, 3, v1", "v_lshlrev_b32 v4, 12, v2", "v_bfe_u32 v2, v1, 4, 1", "v_lshlrev_b32 v2, 1, v2",
              "v_and_b32 v3, 7, v1", "v_xor_b32 v2, v2, v3", "v_lshl_add_u32 v4, v2, 4, v4", f"s_lshl_b32 s{sT0}, s{sST}, 7",
              f"v_add_u32 v4, s{sT0}, v4", "v_xor_b32 v2, 64, v4", f"v_add_u32 v5, {1*(32768-1024)}, v2",
              f"v_add_u32 v6, {2*(32768-1024)}, v4", f"v_add_u32 v7, {3*(32768-1024)}, v2"])
        lds_wait("PK_PFW", E("PFGO", 3), sleep=4)
        for i in range(2, 5): pstamp(a, i)
        for t in range(E("PFN", 12)):
            a(f"buffer_load_dword v{16+t}, v8, {R(S_W2)}, s{sT2} offen")
            a(f"s_add_u32 s{sT2}, s{sT2}, 32768")
        a("s_waitcnt vmcnt(0)")
        lds_arrive(10); lds_arrive(4); lds_arrive(5)
        emit(w2_dma(0)); emit(w2_dma(1))
        a("s_waitcnt vmcnt(0)")
        a("s_setprio 2")
        a("s_branch PK_G_W2")

    a.label("PK_H")
    MUTE[0] = False
    vm.reset()
    for r in range(2):
        for i in range(5): vm.q.append(f"x{r}{i}")
    sTT, sCW = sDT, sFT
    KVMAP = E("KVMAP", 0)
    if KVMAP:
        a(f"s_and_b32 s{sT0}, s2, 7")
        a(f"s_lshl_b32 s{sT0}, s{sT0}, 2")
        a(f"s_lshr_b32 s{sCW}, {hex(KVMAP)}, s{sT0}")
        a(f"s_and_b32 s{sCW}, s{sCW}, 15")
        a(f"s_lshr_b32 s{sTT}, s2, 3")
        a(f"s_cmp_ge_u32 s{sCW}, 5")
        a(f"s_cselect_b32 s{sKVBIG}, {BIG}, 0")
    else:
        a("s_cmp_ge_u32 s2, 160")
        a(f"s_cselect_b32 s{sKVBIG}, {BIG}, 0")
        a(f"s_mul_hi_u32 s{sTT}, s2, 0x33333334", "T")
        a(f"s_mul_i32 s{sCW}, s{sTT}, 5")
        a(f"s_sub_u32 s{sCW}, s2, s{sCW}", "cw")
    a(f"s_lshl_b32 s{sT0}, s{sTT}, 2")
    a(f"s_add_u32 s{sT0}, s{sT0}, s3")
    a(f"s_mul_i32 s{sT0}, s{sT0}, 20480")
    a(f"s_lshl_b32 s{sT1}, s{sCW}, 8")
    a(f"s_add_u32 s{sT0}, s{sT0}, s{sT1}")
    a(f"s_add_u32 s{sT0}, s{sT0}, s{sKVBIG}")
    VKV = 10
    a(f"v_add_u32 v{VKV+1}, s{sT0}, v3")
    a(f"v_subrev_u32 v{VKV}, 3840, v{VKV+1}")
    for i in range(1, 4): a(f"v_add_u32 v{VKV+1+i}, {5120*i}, v{VKV+1}")
    a(f"s_lshl_b32 s{sT1}, s{sCW}, 10")
    a(f"v_lshl_add_u32 v15, v1, 4, s{sT1}")
    XRAW = 16
    if E("W1ONLY", 0):
        if STAMP:
            a("s_mov_b32 s4, s30"); a("s_mov_b32 s5, s31")
        for i in range(1, 12): pstamp(a, i)
        finish_stamps()
        a("s_endpgm")
    srd(a, S_WS, 26, WS_USED, E("WSMB", 0) << 20)
    vm.op(f"buffer_load_dword v9, v8, {R(S_WS)}, 0 offen sc1", "ep")
    srd(a, S_K, 6, SD_BYTES)
    srd(a, S_V, 8, SD_BYTES)
    srd(a, S_SHK, 10, D * 8)
    srd(a, S_SSMK, 12, SD_BYTES)
    srd(a, S_SSMD, 14, D * 2)
    srd(a, S_W2, 20, S * F * 2)
    srd(a, S_B2, 22, S * 2)
    srd(a, S_OUT, 24, SD_BYTES)
    if STAMP:
        a("s_mov_b32 s4, s30"); a("s_mov_b32 s5, s31")
    def kv_loads():
        vm.op(f"buffer_load_dwordx4 a[36:39], v15, {R(S_SHK)}, 0 offen", "shk")
        for r in range(3):
            vm.op(f"buffer_load_dword a{r}, v{VKV}, {R(S_K)}, 0 offen offset:{r*1280} {NT}", "k")
        for r in range(16):
            vm.op(f"buffer_load_dword a{3+r}, v{VKV+1+r//4}, {R(S_K)}, 0 offen offset:{(r%4)*1280} {NT}", "k")
        for r in range(16):
            vm.op(f"buffer_load_dword a{19+r}, v{VKV+1+r//4}, {R(S_V)}, 0 offen offset:{(r%4)*1280} {NT}", "v")
    KV_EARLY = E("KV_EARLY", 0)
    if KV_EARLY == 1: kv_loads()
    srd(a, S_B1, 18, F * 2)
    a(f"s_lshr_b32 s{sT0}, s2, 3")
    a(f"s_mul_hi_u32 s{sT0}, s{sT0}, 0x33333334")
    a(f"s_bfe_u32 s{sT1}, s2, 0x20001")
    a(f"s_mul_i32 s{sT1}, s{sT1}, 6")
    a(f"s_add_u32 s{sT0}, s{sT0}, s{sT1}")
    if E("MAP1", 1):
        a(f"s_lshr_b32 s{sT0}, s2, 3")
        a(f"s_mul_hi_u32 s{sT0}, s{sT0}, 0x1999999a")
        a(f"s_and_b32 s{sT1}, s2, 7")
        a(f"s_mul_i32 s{sT1}, s{sT1}, 3")
        a(f"s_add_u32 s{sT0}, s{sT0}, s{sT1}")
    a(f"s_lshl_b32 s{sT0}, s{sT0}, 7")
    a("v_and_b32 v125, 124, v3")
    vm.op(f"buffer_load_dword v126, v125, {R(S_B1)}, s{sT0} offen", "b1")
    a(f"v_add_u32 v125, {PT_LDS}, v125")
    pstamp(a, 1)
    a(f"s_mul_i32 s{sT0}, s3, {2*HROW}")
    a(f"s_add_u32 s{sT0}, s{sT0}, {LNX}")
    a(f"v_add_u32 v4, s{sT0}, v3")
    a("v_lshrrev_b32 v5, 4, v1")
    a("v_lshlrev_b32 v5, 5, v5")
    a("v_and_b32 v2, 3, v1")
    a("v_lshl_add_u32 v5, v2, 3, v5")
    a("v_bfe_u32 v2, v1, 2, 2")
    a(f"v_mul_u32_u24 v2, {HROW}, v2")
    a("v_add_u32 v5, v5, v2")
    a(f"s_lshl_b32 s{sT0}, s3, 7")
    a(f"s_add_u32 s{sT0}, s{sT0}, {LNX}")
    a(f"v_add_u32 v5, s{sT0}, v5")
    a(f"s_mul_i32 s{sT0}, s2, 10240")
    a(f"s_lshl_b32 s{sT1}, s3, 10")
    a(f"s_add_u32 s{sT0}, s{sT0}, s{sT1}")
    if HBLK_OFF: a(f"s_add_u32 s{sT0}, s{sT0}, {HBLK_OFF}")
    a(f"v_lshl_add_u32 v6, v1, 4, s{sT0}")
    a("v_add_u32 v7, 4096, v6")
    a("s_cmp_ge_u32 s3, 2")
    a(f"s_cselect_b32 s{sT1}, {BIG}, 8192")
    a(f"v_add_u32 v8, s{sT1}, v6")
    a(f"s_lshl_b32 s{sT0}, s2, 2")
    a(f"s_add_u32 s{sT0}, s{sT0}, s3")
    a(f"s_lshl_b32 s{sT0}, s{sT0}, 4")
    a(f"s_add_u32 s{sT0}, s{sT0}, {STAT_OFF}")
    a(f"v_mov_b32 v90, s{sT0}")
    a(f"s_lshl_b32 s{sT0}, s3, 8")
    a(f"s_add_u32 s{sT0}, s{sT0}, s2")
    a(f"s_lshl_b32 s{sT0}, s{sT0}, {FS}")
    a(f"s_add_u32 s{sRING}, s{sT0}, {FH_OFF}", "h flag offset")
    X = [26, 36]; A = [46, 56]; SUM = [66, 70]; TMP = [74, 82]
    PIV = [28, 30]; SS = [(sT0, sT1), (sT2, sT3)]
    for r in range(2):
        for i in range(5):
            vm.wait(f"x{r}{i}")
            a(f"v_lshlrev_b32 v{X[r]+2*i}, 16, v{XRAW+5*r+i}")
            a(f"v_and_b32 v{X[r]+2*i+1}, 0xffff0000, v{XRAW+5*r+i}")
            if i == 0: a(f"v_readfirstlane_b32 s{PIV[r]}, v{X[r]}")
            if i == 2: a(f"s_mov_b32 s{PIV[r]+1}, s{PIV[r]}")
    pstamp(a, 2)
    if KV_EARLY == 2: kv_loads()
    def zip2(f):
        out = []
        for p, q in zip(f(0), f(1)): out += [p, q]
        return out
    def sums(src):
        def f(r):
            Sr = SUM[r]; B = src[r]
            l = [f"v_pk_mul_f32 {pk(Sr+2)}, {pk(B)}, {pk(B)}", f"v_pk_add_f32 {pk(Sr)}, {pk(B)}, {pk(B+2)}"]
            for i in range(1, 5):
                l.append(f"v_pk_fma_f32 {pk(Sr+2)}, {pk(B+2*i)}, {pk(B+2*i)}, {pk(Sr+2)}")
                if i >= 2: l.append(f"v_pk_add_f32 {pk(Sr)}, {pk(Sr)}, {pk(B+2*i)}")
            l += [f"v_add_f32 v{Sr}, v{Sr}, v{Sr+1}", f"v_add_f32 v{Sr+1}, v{Sr+2}, v{Sr+3}"]
            return l
        l = zip2(f)
        steps = ["row_shr:1 row_mask:0xf bank_mask:0xf bound_ctrl:0", "row_shr:2 row_mask:0xf bank_mask:0xf bound_ctrl:0",
                 "row_shr:4 row_mask:0xf bank_mask:0xf bound_ctrl:0", "row_shr:8 row_mask:0xf bank_mask:0xf bound_ctrl:0",
                 "row_bcast:15 row_mask:0xa bank_mask:0xf", "row_bcast:31 row_mask:0xc bank_mask:0xf"]
        regs = [SUM[0], SUM[1], SUM[0] + 1, SUM[1] + 1]
        for st in steps:
            for v in regs: l.append(f"v_add_f32_dpp v{v}, v{v}, v{v} {st}")
        l += [f"v_readlane_b32 s{SS[0][0]}, v{SUM[0]}, 63", f"v_readlane_b32 s{SS[1][0]}, v{SUM[1]}, 63",
              f"v_readlane_b32 s{SS[0][1]}, v{SUM[0]+1}, 63", f"v_readlane_b32 s{SS[1][1]}, v{SUM[1]+1}, 63"]
        return l
    def statsl(piv):
        inv = f32(1.0 / D)
        def f(r):
            t0, t1 = TMP[r] + 6, TMP[r] + 7; m = TMP[r]; rr = TMP[r] + 1
            l = [f"v_mul_f32 v{t0}, s{SS[r][0]}, v91", f"v_mul_f32 v{t1}, s{SS[r][1]}, v91",
                 f"v_fma_f32 v{t1}, -v{t0}, v{t0}, v{t1}", f"v_max_f32 v{t1}, 0, v{t1}"]
            if piv: l.append(f"v_add_f32 v{t0}, s{PIV[r]}, v{t0}")
            l += [f"v_cvt_pk_bf16_f32 v{t0}, v{t0}, v{t1}", f"v_lshlrev_b32 v{m}, 16, v{t0}",
                  f"v_and_b32 v{t1}, 0xffff0000, v{t0}", f"v_add_f32 v{t1}, {f32(1e-5)}, v{t1}",
                  f"v_cvt_pk_bf16_f32 v{t1}, v{t1}, v{t1}", f"v_lshlrev_b32 v{t1}, 16, v{t1}",
                  f"v_sqrt_f32 v{t1}, v{t1}", f"v_cvt_pk_bf16_f32 v{t1}, v{t1}, v{t1}",
                  f"v_lshlrev_b32 v{t1}, 16, v{t1}", f"v_rcp_f32 v{rr}, v{t1}",
                  f"v_mul_f32 v{TMP[r]+4}, v{m}, v{rr}", f"v_mov_b32 v{TMP[r]+2}, v{rr}",
                  f"v_mul_f32 v{TMP[r]+5}, v{m}, v{rr}", f"v_mov_b32 v{TMP[r]+3}, v{rr}"]
            return l
        return zip2(f)
    def norm(dst, src):
        return zip2(lambda r: [f"v_pk_fma_f32 {pk(dst[r]+2*i)}, {pk(src[r]+2*i)}, {pk(TMP[r]+2)}, {pk(TMP[r]+4)} neg_lo:[0,0,1] neg_hi:[0,0,1]" for i in range(5)])
    a(f"v_mov_b32 v91, {f32(1.0/D)}")
    emit(zip2(lambda r: [f"v_pk_add_f32 {pk(A[r]+2*i)}, {pk(X[r]+2*i)}, s[{PIV[r]}:{PIV[r]+1}] neg_lo:[0,1] neg_hi:[0,1]" for i in range(5)]))
    emit(sums(A)); emit(statsl(True))
    emit(["s_mov_b64 exec, 1",
          (f"buffer_store_dwordx2 {pk(TMP[0])}, v90, {R(S_WS)}, 0 offen sc1", "hst"),
          (f"buffer_store_dwordx2 {pk(TMP[1])}, v90, {R(S_WS)}, 0 offen offset:8 sc1", "hst"),
          "s_mov_b64 exec, -1"])
    emit(norm(A, X))
    emit(zip2(lambda r: [f"v_cvt_pk_bf16_f32 v{XRAW+5*r+i}, v{A[r]+2*i}, v{A[r]+2*i+1}" for i in range(5)]))
    emit(zip2(lambda r: sum([[f"v_lshlrev_b32 v{X[r]+2*i}, 16, v{XRAW+5*r+i}", f"v_and_b32 v{X[r]+2*i+1}, 0xffff0000, v{XRAW+5*r+i}"] for i in range(5)], [])))
    emit(sums(X)); emit(statsl(False)); emit(norm(A, X))
    emit(zip2(lambda r: sum([[f"v_cvt_pk_bf16_f32 v{XRAW+5*r+i}, v{A[r]+2*i}, v{A[r]+2*i+1}", f"ds_write_b32 v4, v{XRAW+5*r+i} offset:{r*HROW+i*256}"] for i in range(5)], [])))
    vm.wait("b1")
    a("ds_write_b32 v125, v126")
    read_epoch(9)
    sbar("PK_HB1", 1)
    HT = 26
    for t in range(3):
        a(f"ds_read_b64_tr_b16 v[{HT+4*t}:{HT+4*t+1}], v5 offset:{512*t}")
        a(f"ds_read_b64_tr_b16 v[{HT+4*t+2}:{HT+4*t+3}], v5 offset:{512*t+4*HROW}")
    for t in range(3):
        a(f"s_waitcnt lgkmcnt({4-2*t})")
        vm.op(f"buffer_store_dwordx4 v[{HT+4*t}:{HT+4*t+3}], v{6+t}, {R(S_WS)}, 0 offen sc1", "hst")
    pstamp(a, 3)
    if KV_EARLY == 3: kv_loads()
    a("v_and_b32 v2, 7, v1")
    a(f"s_lshl_b32 s{sT0}, s3, 1")
    a(f"v_xor_b32 v4, s{sT0}, v2")
    a("v_lshlrev_b32 v4, 4, v4")
    a("v_lshl_add_u32 v4, v1, 8, v4")
    a(f"v_add_u32 v4, {KVX}, v4")
    a("v_xor_b32 v5, 16, v4")
    a("v_lshrrev_b32 v8, 3, v1")
    a("v_lshrrev_b32 v6, 4, v1")
    a("v_xor_b32 v6, v6, v2")
    a("v_lshlrev_b32 v6, 4, v6")
    a("v_lshl_add_u32 v6, v8, 7, v6")
    a(f"s_lshl_b32 s{sT0}, s3, 12")
    a(f"s_add_u32 s{sT0}, s{sT0}, {KVX}")
    a(f"v_add_u32 v6, s{sT0}, v6")
    a("v_xor_b32 v7, 64, v6")
    a("v_lshlrev_b32 v8, 12, v8")
    a("v_lshl_add_u32 v8, v2, 4, v8")
    a(f"s_lshl_b32 s{sT0}, s{sCW}, 19")
    a(f"s_lshl_b32 s{sT1}, s3, 17")
    a(f"s_add_u32 s{sT0}, s{sT0}, s{sT1}")
    a(f"s_lshl_b32 s{sT1}, s{sTT}, 7")
    a(f"s_add_u32 s{sT0}, s{sT0}, s{sT1}")
    a(f"s_add_u32 s{sT0}, s{sT0}, {KVB_OFF}")
    a(f"s_add_u32 s{sT0}, s{sT0}, s{sKVBIG}")
    a(f"v_add_u32 v8, s{sT0}, v8")
    lds_wait("PK_EPW", 6)
    vm.wait("hst")
    flag_store(sRING)
    pstamp(a, 4)
    if E("KV_LATE", 0):
        a("s_setprio 0")
        lds_wait("PK_KVL", 12, n=4 * (CNT + 48), sleep=4)
        a("s_setprio 3")
    if E("KVSKIP", 1):
        a(f"s_cmp_lg_u32 s{sKVBIG}, 0")
        a("s_cbranch_scc1 PK_KVL_SKIP")
    if not KV_EARLY: kv_loads()
    a.label("PK_KVL_SKIP")
    a("s_setprio 0")
    a(f"s_lshl_b32 s{sT0}, s{sCW}, 2")
    a(f"s_add_u32 s{sT0}, s{sT0}, s3")
    a(f"s_lshl_b32 s{sT0}, s{sT0}, 5")
    a(f"s_add_u32 s{sT0}, s{sT0}, s{sTT}")
    a(f"s_lshl_b32 s{sT0}, s{sT0}, {FS}")
    a(f"s_add_u32 s{sT0}, s{sT0}, {FKV_OFF}")
    a(f"s_add_u32 s{sRING}, s{sT0}, s{sKVBIG}", "kv flag offset")
    a(f"s_lshl_b32 s{sCH}, s2, 1")
    a(f"s_mul_i32 s{sT0}, s2, 3")
    a(f"s_sub_u32 s{sT0}, s{sT0}, 128")
    a("s_cmp_ge_u32 s2, 128")
    a(f"s_cselect_b32 s{sCH}, s{sT0}, s{sCH}")
    a(f"s_cselect_b32 s{sT0}, 3, 2")
    a(f"s_add_u32 s{sCH}, s{sCH}, s3")
    a(f"s_cmp_lt_u32 s3, s{sT0}")
    a(f"s_cselect_b32 s{sCH}, s{sCH}, {1 << 16}", "ch (65536 = none)")
    if E("KPF", 1):
        a(f"s_min_u32 s{sT0}, s{sCH}, 639")
        a(f"s_lshl_b32 s{sT0}, s{sT0}, 12")
        a(f"s_add_u32 s30, s{S_SSMK}, s{sT0}")
        a(f"s_addc_u32 s31, s{S_SSMK+1}, 0")
        for c in range(32): a(f"s_load_dword s29, s[30:31], {128*c}")
    WP, KP, KS, KO = 16, 24, 62, 94
    if E("KVSKIP", 1):
        a(f"s_cmp_lg_u32 s{sKVBIG}, 0")
        a("s_cbranch_scc1 PK_KV_SKIP")
    vm.wait("k")
    for i in range(4): a(f"v_accvgpr_read_b32 v{110+i}, a{36+i}")
    for r in range(19): a(f"v_accvgpr_read_b32 v{KP+2*r+1}, a{r}")
    for t in range(4):
        for ch in range(2):
            src = 110 + 2 * ch + t // 2
            a(f"v_lshlrev_b32 v{WP+2*t+ch}, 16, v{src}" if t % 2 == 0 else f"v_and_b32 v{WP+2*t+ch}, 0xffff0000, v{src}")
    for r in range(19):
        a(f"v_lshlrev_b32 v{KP+2*r}, 16, v{KP+2*r+1}")
        a(f"v_and_b32 v{KP+2*r+1}, 0xffff0000, v{KP+2*r+1}")
    for r in range(16): a(f"v_pk_mul_f32 {pk(KS+2*r)}, {pk(KP+2*r)}, {pk(WP+6)}")
    for t in (2, 1, 0):
        for r in range(16):
            a(f"v_pk_fma_f32 {pk(KS+2*r)}, {pk(KP+2*(r+3-t))}, {pk(WP+2*t)}, {pk(KS+2*r)}")
    vm.wait("v")
    for r in range(16): a(f"v_accvgpr_read_b32 v{KP+2*r+1}, a{19+r}")
    for r in range(16):
        a(f"v_lshlrev_b32 v{KP+2*r}, 16, v{KP+2*r+1}")
        a(f"v_and_b32 v{KP+2*r+1}, 0xffff0000, v{KP+2*r+1}")
    for r in range(16): a(f"v_pk_mul_f32 {pk(KS+2*r)}, {pk(KS+2*r)}, {pk(KP+2*r)}")
    for c2 in range(2):
        for ch in range(2):
            for q in range(4):
                a(f"v_cvt_pk_bf16_f32 v{KO+8*c2+4*ch+q}, v{KS+2*(8*c2+7-2*q)+ch}, v{KS+2*(8*c2+6-2*q)+ch}")
            a(f"ds_write_b128 v{4+c2}, v[{KO+8*c2+4*ch}:{KO+8*c2+4*ch+3}] offset:{128*ch}")
    sbar("PK_HB2", 2)
    for i in range(4):
        a(f"ds_read_b128 v[{KO+4*i}:{KO+4*i+3}], v{6+(i&1)} offset:{1024*i}")
    a("s_setprio 3")
    for i in range(4):
        a(f"s_mov_b32 s{sT0}, {32768*i}")
        a(f"s_waitcnt lgkmcnt({3-i})")
        vm.op(f"buffer_store_dwordx4 v[{KO+4*i}:{KO+4*i+3}], v8, {R(S_WS)}, s{sT0} offen sc1", "kvst")
    a.label("PK_KV_SKIP")
    a("s_setprio 3")
    lds_arrive(3)
    pstamp(a, 5)
    a("v_lshrrev_b32 v14, 4, v1", "g")
    a("v_and_b32 v15, 15, v1", "n")
    a(f"s_mul_i32 s{sCVB}, s3, {CONV_SZ}")
    a(f"s_add_u32 s{sCVB}, s{sCVB}, {AUX}")
    a(f"s_lshr_b32 s{sT0}, s{sCH}, 5")
    a(f"s_lshl_b32 s{sT0}, s{sT0}, {5+FS}")
    a(f"s_add_u32 s{sT0}, s{sT0}, {FKV_OFF}")
    a("v_and_b32 v29, 31, v1")
    a(f"v_lshl_add_u32 v29, v29, {FS}, s{sT0}", "kv poll address")
    a(f"s_lshl_b32 s{sT0}, s{sCH}, 12")
    a(f"v_lshl_add_u32 v31, v1, 4, s{sT0}")
    a("v_add_u32 v32, 2, v31")
    a(f"v_add_u32 v33, {KVB_OFF}, v31")
    a(f"v_mov_b32 v34, s{sT0}")
    a(f"s_lshl_b32 s{sT1}, s{sCH}, 1")
    a(f"v_mov_b32 v36, s{sT1}")
    VA, VB, VE, VS = 38, 42, 43, 44
    a("v_lshlrev_b32 v2, 5, v15")
    a(f"v_lshl_add_u32 v{VS}, v14, 3, v2")
    a(f"s_add_u32 s{sT0}, s{sT0}, {YA_OFF}")
    a(f"v_add_u32 v{VS}, s{sT0}, v{VS}")
    a("v_lshlrev_b32 v45, 4, v1")
    a(f"v_add_u32 v46, s{sCVB}, v45")
    a(f"v_add_u32 v2, {CV_K0-512}, v45")
    a(f"v_add_u32 v3, {CV_K1-544}, v45")
    a("v_cmp_lt_u32 vcc, 31, v1")
    a(f"v_lshl_add_u32 v{VA}, v14, 3, v15")
    a(f"v_lshlrev_b32 v{VA}, 1, v{VA}")
    a("v_cndmask_b32 v45, v45, v2, vcc")
    a("v_cmp_lt_u32 vcc, 33, v1")
    a("v_and_b32 v2, 1, v1")
    a(f"v_mul_u32_u24 v2, {CV_K1 - CV_K0 - 2}, v2")
    a("v_cndmask_b32 v45, v45, v3, vcc")
    a("v_cmp_lt_u32 vcc, 35, v1")
    a(f"v_sub_u32 v{VA}, v{VA}, v2")
    a(f"v_add_u32 v{VA}, {CV_K1}, v{VA}")
    a("v_cndmask_b32 v45, v45, 0, vcc")
    a(f"v_add_u32 v45, s{sCVB}, v45")
    a(f"v_add_u32 v{VA}, s{sCVB}, v{VA}")
    for p in range(1, 4): a(f"v_add_u32 v{VA+p}, {1024*p}, v{VA}")
    a("v_lshlrev_b32 v2, 1, v15")
    a("v_sub_u32 v2, v2, v14")
    a("v_lshlrev_b32 v2, 4, v2")
    a(f"v_add_u32 v2, {528-448}, v2")
    a(f"v_add_u32 v{VB}, s{sCVB}, v2")
    a("v_lshrrev_b32 v2, 1, v14")
    a("v_lshl_add_u32 v2, v15, 1, v2")
    a("v_lshlrev_b32 v2, 4, v2")
    a("v_and_b32 v3, 1, v14")
    a("v_lshlrev_b32 v3, 3, v3")
    a("v_sub_u32 v2, v2, v3")
    a("v_add_u32 v2, 520, v2")
    a(f"v_add_u32 v{VE}, s{sCVB}, v2")
    PEARLY = E("PEARLY", 1)
    XR = 16
    def p_addr():
        a(f"s_mul_i32 s{sT3}, s{sDT2}, 80", "d0")
        a(f"s_lshl_b32 s{sT0}, s{sST}, 6")
        a(f"s_lshl_b32 s{sT1}, s3, 4")
        a(f"s_add_u32 s{sT0}, s{sT0}, s{sT1}")
        a(f"v_add_u32 v4, s{sT0}, v15", "s")
        a("v_mul_u32_u24 v5, 1280, v4")
        a("v_lshl_add_u32 v5, v14, 3, v5")
        a(f"s_lshl_b32 s{sT0}, s{sT3}, 1")
        a(f"v_add_u32 v5, s{sT0}, v5", "x offset")
        a("v_lshlrev_b32 v126, 1, v4")
        a("v_lshlrev_b32 v6, 3, v4")
        a(f"v_add_u32 v6, {STAT_OFF}, v6")
        a(f"s_lshl_b32 s{sT0}, s{sT3}, {FS}")
        a(f"s_add_u32 s{sT0}, s{sT0}, {FY_OFF}")
        a(f"v_lshl_add_u32 v7, v1, {FS}, s{sT0}")
        a(f"v_add_u32 v8, {64 << FS}, v7")
        a("v_bfe_u32 v2, v4, 1, 2")
        a("v_lshlrev_b32 v2, 8, v2")
        a("v_lshrrev_b32 v3, 3, v4")
        a("v_add_u32 v2, v2, v3")
        a("v_cmp_lt_u32 vcc, 15, v1")
        a(f"v_lshlrev_b32 v2, {FS}, v2")
        a(f"v_add_u32 v2, {FH_OFF}, v2")
        a("v_cndmask_b32 v8, v8, v2, vcc")
        a("v_lshrrev_b32 v9, 1, v1")
        a("v_lshlrev_b32 v9, 12, v9")
        a("v_and_b32 v2, 1, v1")
        a("v_lshl_add_u32 v9, v2, 4, v9")
        a(f"s_lshl_b32 s{sT0}, s{sT3}, 12")
        a(f"s_lshl_b32 s{sT1}, s{sST}, 7")
        a(f"s_add_u32 s{sT0}, s{sT0}, s{sT1}")
        a(f"s_lshl_b32 s{sT1}, s3, 5")
        a(f"s_add_u32 s{sT0}, s{sT0}, s{sT1}")
        a(f"s_add_u32 s{sT0}, s{sT0}, {YA_OFF}")
        a(f"v_add_u32 v9, s{sT0}, v9")
        a("v_cmp_lt_u32 vcc, 31, v1")
        a("v_add_u32 v10, 0x20000, v9")
        a("v_add_u32 v11, 0x40000, v9")
        a(f"v_mov_b32 v2, {BIG}")
        a("v_cndmask_b32 v11, v11, v2, vcc")
        a(f"s_mul_i32 s{sT0}, s3, 2560")
        a(f"s_add_u32 s{sT0}, s{sT0}, {PT_LDS}")
        a(f"v_lshl_add_u32 v12, v1, 4, s{sT0}")
        a(f"v_lshl_add_u32 v13, v1, 3, s{sT0}")
    def p_loads():
        for m in range(5):
            a(f"buffer_load_dwordx2 v[{XR+2*m}:{XR+2*m+1}], v5, {R(S_X)}, 0 offen offset:{32*m}")
        a(f"buffer_load_ushort v124, v126, {R(S_B2)}, 0 offen")
    if PEARLY: p_addr()
    vm.wait("kvst")
    flag_store(sRING)
    a(f"s_cmp_ge_u32 s{sCH}, 640")
    a("s_cbranch_scc1 PK_NOCONV")
    lds_wait("PK_HB3", 3)
    if E("KERN_LATE", 0):
        a("s_setprio 0")
        lds_wait("PK_KW0", 10, n=4, sleep=4)
        a("s_setprio 3")
    vm.reset()
    a(f"s_add_u32 m0, s{sCVB}, {CV_K0+32}")
    a(f"buffer_load_ushort v35, v34, {R(S_SSMK)}, 0 offen")
    for q in range(4): a(f"buffer_load_dwordx4 v31, {R(S_SSMK)}, 0 offen offset:{q*1024} lds")
    if E("K1LDS", 1):
        a(f"buffer_load_ushort v37, v36, {R(S_SSMD)}, 0 offen")
        a("s_setprio 0")
        a("s_waitcnt vmcnt(1)")
        for q in range(4):
            a(f"ds_read_b128 v[{64+8*q}:{67+8*q}], v46 offset:{CV_K0+32+1024*q}")
            a(f"ds_read_b32 v{68+8*q}, v46 offset:{CV_K0+48+1024*q}")
        for q in range(4):
            a(f"s_waitcnt lgkmcnt({6-2*q+q})")
            for i in range(4):
                a(f"v_alignbit_b32 v{64+8*q+i}, v{65+8*q+i}, v{64+8*q+i}, 16")
            a(f"ds_write_b128 v46, v[{64+8*q}:{67+8*q}] offset:{CV_K1+32+1024*q}")
    else:
        a(f"s_add_u32 m0, s{sCVB}, {CV_K1+32}")
        a(f"buffer_load_ushort v37, v36, {R(S_SSMD)}, 0 offen")
        for q in range(4): a(f"buffer_load_dwordx4 v32, {R(S_SSMK)}, 0 offen offset:{q*1024} lds")
    a("s_setprio 0")
    w2_scalar_prefetch("A")
    lds_wait("PK_KW", 10, n=4, sleep=4)
    a("s_setprio 3")
    if not E("NOKV", 0): spin("PK_SPIN_KV", [(29, 30)], sleep=E("KVPOLL_SLEEP", 0))
    KVR = 48
    for q in range(4):
        vm.op(f"buffer_load_dwordx4 v[{KVR+4*q}:{KVR+4*q+3}], v33, {R(S_WS)}, 0 offen offset:{q*1024} sc1", "cfill")
    if PEARLY:
        p_loads(); vm.q += ["pl"] * 6
    a("s_setprio 0")
    a("v_mov_b32 v96, 0"); a("v_mov_b32 v97, 0"); a("v_mov_b32 v98, 0")
    a("v_cmp_eq_u32 vcc, 35, v1")
    a("v_lshlrev_b32 v35, 16, v35")
    a("v_lshlrev_b32 v37, 16, v37", "D")
    a("v_cndmask_b32 v99, 0, v35, vcc")
    a("ds_write_b128 v45, v[96:99]")
    vm.wait("cfill")
    for q in range(4):
        a(f"ds_write_b128 v46, v[{KVR+4*q}:{KVR+4*q+3}] offset:{512+1024*q}")
    a("s_waitcnt lgkmcnt(0)")
    CACC = 64; BUF = [(0, 32), (64, 96)]
    def frag_loads(buf, rr):
        A_, B_ = BUF[buf]
        out = []
        for t in range(8):
            o = (t & 1) * 128 + rr * 16
            out.append(f"ds_read_b128 a[{B_+4*t}:{B_+4*t+3}], v{VB} offset:{512*t + 64*(1-rr)}")
            out.append(f"ds_read2_b32 a[{A_+4*t}:{A_+4*t+1}], v{VA + t//2} offset0:{o} offset1:{o+1}")
            out.append(f"ds_read2_b32 a[{A_+4*t+2}:{A_+4*t+3}], v{VA + t//2} offset0:{o+2} offset1:{o+3}")
        return out
    for i in range(32): a(f"v_mov_b32 v{CACC+i}, 0")
    a(f"v_add_u32 v{VB}, {448-64}, v{VB}", "64 below the r-even address")
    emit(frag_loads(0, 0))
    pstamp(a, 6)
    if not E("CEARLY", 0):
        lds_wait("PK_CW", E("CONV_IDX", 8), n=E("CONV_WAIT_N", 4), sleep=2)
        a(f"s_setprio {E('CONV_PRIO', 3)}")
    pstamp(a, 7)
    assert not E("CEARLY", 0)
    a(f"s_mov_b32 s{sT0}, 0")
    a(f"s_mov_b32 s{sT2}, 0")
    a.label("PK_CV_LOOP")
    for half in range(2):
        if E("CEARLY", 0):
            a(f"s_cmp_lg_u32 s{sT2}, 0")
            a(f"s_cbranch_scc1 PK_CVP{half}_GO")
            a(f"s_mov_b32 s{sSPIN}, 0")
            a.label(f"PK_CVP{half}")
            a("ds_read_b32 v5, v4")
            a(f"s_add_u32 s{sSPIN}, s{sSPIN}, 1")
            a("s_waitcnt lgkmcnt(0)")
            a(f"v_readfirstlane_b32 s{sT3}, v5")
            a(f"s_cmp_gt_u32 s{sSPIN}, {1 << 20}")
            a(f"s_cbranch_scc1 PK_CVP{half}_GO")
            a(f"s_cmp_eq_u32 s{sT3}, 0")
            a(f"s_cbranch_scc1 PK_CVP{half}_GO")
            a(f"s_cmp_eq_u32 s{sT3}, 1")
            a(f"s_cbranch_scc0 PK_CVP{half}_FREE")
            a("s_sleep 2", "poll back-off")
            a(f"s_branch PK_CVP{half}")
            a.label(f"PK_CVP{half}_FREE")
            a(f"s_mov_b32 s{sT2}, 1")
            a(f"s_setprio {E('CONV_PRIO', 3)}")
            a.label(f"PK_CVP{half}_GO")
        if half == 1 and E("CPEEL", 1):
            a(f"s_add_u32 s{sT0}, s{sT0}, 1")
            a(f"s_cmp_eq_u32 s{sT0}, 4")
            a("s_cbranch_scc1 PK_CV_LAST")
        a("s_waitcnt lgkmcnt(0)")
        if half == 0: side = frag_loads(1, 1)
        else:
            for p in range(4): a(f"v_add_u32 v{VA+p}, 128, v{VA+p}")
            a(f"v_subrev_u32 v{VB}, 128, v{VB}")
            side = frag_loads(0, 0)
        A_, B_ = BUF[half]
        i = 0
        for c in range(8):
            for t in range(c + 1):
                u = c - t
                a(f"v_mfma_f32_16x16x32_bf16 v[{CACC+4*c}:{CACC+4*c+3}], a[{A_+4*t}:{A_+4*t+3}], a[{B_+4*u}:{B_+4*u+3}], v[{CACC+4*c}:{CACC+4*c+3}]")
                if i < len(side): a(side[i])
                i += 1
    if E("CPEEL", 1):
        a("s_branch PK_CV_LOOP")
        a.label("PK_CV_LAST")
        TT = 116
        def cfin(c):
            d0, d1 = 100 + 2 * c, 101 + 2 * c
            l = [f"v_and_b32 v{TT}, 0xffff0000, v{d1}", f"v_lshlrev_b32 v{TT+1}, 16, v{d1}",
                 f"v_and_b32 v{TT+2}, 0xffff0000, v{d0}", f"v_lshlrev_b32 v{TT+3}, 16, v{d0}"]
            l += [f"v_fmac_f32 v{CACC+4*c+i}, v{TT+i}, v37" for i in range(4)]
            l += [f"v_cvt_pk_bf16_f32 v{d0}, v{CACC+4*c}, v{CACC+4*c+1}", f"v_cvt_pk_bf16_f32 v{d1}, v{CACC+4*c+2}, v{CACC+4*c+3}",
                  f"buffer_store_dwordx2 v[{d0}:{d1}], v{VS}, {R(S_WS)}, 0 offen offset:{512*c} sc1"]
            return l
        a("s_waitcnt lgkmcnt(0)")
        A_, B_ = BUF[1]
        i = 0
        fin = sum([cfin(c) for c in range(5)], [])
        fi = 0
        for c in range(8):
            for t in range(c + 1):
                u = c - t
                a(f"v_mfma_f32_16x16x32_bf16 v[{CACC+4*c}:{CACC+4*c+3}], a[{A_+4*t}:{A_+4*t+3}], a[{B_+4*u}:{B_+4*u+3}], v[{CACC+4*c}:{CACC+4*c+3}]")
                if i < 8: a(f"ds_read_b64 v[{100+2*i}:{101+2*i}], v{VE} offset:{512*i}")
                if i == 13: a("s_waitcnt lgkmcnt(0)")
                if i >= 14:
                    for _ in range(3 if i >= 25 else 2):
                        if fi < len(fin): a(fin[fi]); fi += 1
                i += 1
        while fi < len(fin): a(fin[fi]); fi += 1
        emit(cfin(5)); emit(cfin(6)); emit(cfin(7))
    else:
        a(f"s_add_u32 s{sT0}, s{sT0}, 1")
        a(f"s_cmp_lt_u32 s{sT0}, 4")
        a("s_cbranch_scc1 PK_CV_LOOP")
        a(f"s_setprio {E('CEPI_PRIO', 3)}")
        for c in range(8): a(f"ds_read_b64 v[{100+2*c}:{101+2*c}], v{VE} offset:{512*c}")
        a("s_waitcnt lgkmcnt(0)")
        TT = 116
        for c in range(8):
            d0, d1 = 100 + 2 * c, 101 + 2 * c
            emit([f"v_and_b32 v{TT}, 0xffff0000, v{d1}", f"v_lshlrev_b32 v{TT+1}, 16, v{d1}",
                  f"v_and_b32 v{TT+2}, 0xffff0000, v{d0}", f"v_lshlrev_b32 v{TT+3}, 16, v{d0}"])
            for i in range(4): a(f"v_fmac_f32 v{CACC+4*c+i}, v{TT+i}, v37")
            a(f"v_cvt_pk_bf16_f32 v{d0}, v{CACC+4*c}, v{CACC+4*c+1}")
            a(f"v_cvt_pk_bf16_f32 v{d1}, v{CACC+4*c+2}, v{CACC+4*c+3}")
            a(f"buffer_store_dwordx2 v[{d0}:{d1}], v{VS}, {R(S_WS)}, 0 offen offset:{512*c} sc1")
    pstamp(a, 8)
    a(f"s_lshl_b32 s{sT0}, s{sCH}, {FS}")
    a(f"s_add_u32 s{sT0}, s{sT0}, {FY_OFF}")
    a("s_waitcnt vmcnt(0)")
    flag_store(sT0)
    a("s_branch PK_PCOMP")
    a.label("PK_NOCONV")
    if E("H3L", 0):
        a("s_cmp_lg_u32 s3, 3")
        a("s_cbranch_scc1 PK_NOLOAD")
        emit(["v_lshrrev_b32 v2, 3, v1", "v_lshlrev_b32 v4, 12, v2", "v_bfe_u32 v2, v1, 4, 1", "v_lshlrev_b32 v2, 1, v2",
              "v_and_b32 v3, 7, v1", "v_xor_b32 v2, v2, v3", "v_lshl_add_u32 v4, v2, 4, v4", f"s_lshl_b32 s{sT0}, s{sST}, 7",
              f"v_add_u32 v4, s{sT0}, v4", "v_xor_b32 v2, 64, v4", f"v_add_u32 v5, {1*(32768-1024)}, v2",
              f"v_add_u32 v6, {2*(32768-1024)}, v4", f"v_add_u32 v7, {3*(32768-1024)}, v2",
              f"s_and_b32 s{sT2}, s{sDT2}, 3", f"s_mul_i32 s{sT2}, s{sT2}, {3 << 17}"])
        a("s_setprio 0")
        lds_wait("PK_LW", 10, n=4, sleep=4)
        a(f"s_setprio {E('H3PRIO', 1)}")
        for k in range(3):
            for w in range(4):
                a(f"s_mov_b32 m0, {w*RINGB + k*4096}")
                a(f"s_add_u32 s{sT3}, s{sT2}, {(12*w + k) << 17}")
                for q in range(4):
                    a(f"buffer_load_dwordx4 v{4+q}, {R(S_W2)}, s{sT3} offen offset:{q*1024} lds")
        a("s_waitcnt vmcnt(0)")
        lds_arrive(5)
        a.label("PK_NOLOAD")
    a("s_setprio 0")
    w2_scalar_prefetch("B")
    lds_wait("PK_NCW", 10, n=4, sleep=16)
    a("s_setprio 3")
    if PEARLY: p_loads()
    a.label("PK_PCOMP")
    vm.reset()
    if not PEARLY: p_addr(); p_loads()
    a("s_setprio 0")
    lds_wait("PK_YW", 9, n=4 * (CNT + 36), sleep=4)
    a("s_setprio 3")
    spin("PK_SPIN_Y", [(7, 26), (8, 27)], sleep=E("YPOLL_SLEEP", 0))
    pstamp(a, 9)
    YL, ST_, XF, XN, T2, YR, YF = 28, 40, 44, 64, 84, 94, 104
    for t in range(3):
        vm.op(f"buffer_load_dwordx4 v[{YL+4*t}:{YL+4*t+3}], v{9+t}, {R(S_WS)}, 0 offen sc1", "ya")
    vm.op(f"buffer_load_dwordx2 v[{ST_}:{ST_+1}], v6, {R(S_WS)}, 0 offen sc1", "st")
    for i in range(10):
        a(f"v_lshlrev_b32 v{XF+2*i}, 16, v{XR+i}")
        a(f"v_and_b32 v{XF+2*i+1}, 0xffff0000, v{XR+i}")
    vm.wait("ya")
    a(f"ds_write_b128 v12, v[{YL}:{YL+3}]")
    a(f"ds_write_b128 v12, v[{YL+4}:{YL+7}] offset:1024")
    a("s_mov_b32 exec_hi, 0")
    a(f"ds_write_b128 v12, v[{YL+8}:{YL+11}] offset:2048")
    a("s_mov_b64 exec, -1")
    vm.wait("st", "lgkmcnt(0)")
    for m in range(5):
        a(f"ds_read_b64_tr_b16 v[{YR+2*m}:{YR+2*m+1}], v13 offset:{m*512}")
    a(f"v_mul_f32 v42, v{ST_}, v{ST_+1}")
    a(f"v_mul_f32 v43, v{ST_}, v{ST_+1}")
    a(f"v_mov_b32 v{ST_}, v{ST_+1}")
    for i in range(0, 20, 2):
        a(f"v_pk_fma_f32 {pk(XN+i)}, {pk(XF+i)}, {pk(ST_)}, v[42:43] neg_lo:[0,0,1] neg_hi:[0,0,1]")
    for i in range(0, 20, 2): a(f"v_cvt_pk_bf16_f32 v{T2+i//2}, v{XN+i}, v{XN+i+1}")
    for i in range(0, 20, 2):
        a(f"v_lshlrev_b32 v{XN+i}, 16, v{T2+i//2}")
        a(f"v_and_b32 v{XN+i+1}, 0xffff0000, v{T2+i//2}")
    a("s_waitcnt lgkmcnt(0)")
    for i in range(10):
        a(f"v_lshlrev_b32 v{YF+2*i}, 16, v{YR+i}")
        a(f"v_and_b32 v{YF+2*i+1}, 0xffff0000, v{YR+i}")
    for i in range(0, 20, 2): a(f"v_pk_fma_f32 {pk(XN+i)}, {pk(XN+i)}, {pk(YF+i)}, {pk(XF+i)}")
    for m in range(5):
        a(f"v_cvt_pk_bf16_f32 v{T2+2*m}, v{XN+4*m}, v{XN+4*m+1}")
        a(f"v_cvt_pk_bf16_f32 v{T2+2*m+1}, v{XN+4*m+2}, v{XN+4*m+3}")
        if m < GM: a(f"ds_write_b64 v13, v[{T2+2*m}:{T2+2*m+1}] offset:{m*512}")
    lds_arrive(15)
    pstamp(a, 10)
    if GM < 5:
        HM = list(range(GM, 5)); NH = 4 * len(HM)
        for k, m in enumerate(HM):
            for h in range(2):
                a(f"v_lshlrev_b32 v{XN+4*k+2*h}, 16, v{T2+2*m+h}")
                a(f"v_and_b32 v{XN+4*k+2*h+1}, 0xffff0000, v{T2+2*m+h}")
        a("v_lshlrev_b32 v125, 16, v124")
        a("v_lshlrev_b32 v124, 16, v124")
        a(f"s_mul_i32 s{sT0}, s3, 5120")
        a(f"v_lshl_add_u32 v12, v1, 4, s{sT0}")
        a(f"v_add_u32 v13, {2*RINGB}, v12")
        lds_wait("PK_HFW", 11)
        HP = 16; HF = 100
        for o in range(4):
            for k, m in enumerate(HM):
                r = HP + NH * o + 4 * k
                a(f"ds_read_b128 v[{r}:{r+3}], v{12+o//2} offset:{(o&1)*RINGB + m*1024}")
        for o in range(4):
            a(f"s_waitcnt lgkmcnt({len(HM)*(3-o)})")
            for i in range(0, NH, 2):
                src = "v[124:125]" if o == 0 else pk(HF + i)
                a(f"v_pk_add_f32 {pk(HF+i)}, {src}, {pk(HP+NH*o+i)}")
        for i in range(0, NH, 2): a(f"v_cvt_pk_bf16_f32 v{HP+i//2}, v{HF+i}, v{HF+i+1}")
        for i in range(0, NH, 2):
            a(f"v_lshlrev_b32 v{HF+i}, 16, v{HP+i//2}")
            a(f"v_and_b32 v{HF+i+1}, 0xffff0000, v{HP+i//2}")
        for i in range(0, NH, 2): a(f"v_pk_add_f32 {pk(HF+i)}, {pk(HF+i)}, {pk(XN+i)}")
        for k, m in enumerate(HM):
            a(f"v_cvt_pk_bf16_f32 v{HP+2*k}, v{HF+4*k}, v{HF+4*k+1}")
            a(f"v_cvt_pk_bf16_f32 v{HP+2*k+1}, v{HF+4*k+2}, v{HF+4*k+3}")
            a(f"buffer_store_dwordx2 v[{HP+2*k}:{HP+2*k+1}], v5, {R(S_OUT)}, 0 offen offset:{32*m}")
    pstamp(a, 11)
    finish_stamps("H")
    a.label("PK_END")
    a("s_endpgm")
    return a

NOTES = """;
"""
def build():
    ref = open(f"cdna_kernels/{NAME}.s.ref").read().splitlines()
    head = []
    for l in ref:
        if l.startswith("; Override"): break
        head.append(l)
    body = gen()
    out = "\n".join(head) + "\n"
    if os.environ.get("AMP"):
        out += f"; @launch kernel={NAME}_kernel grid=({GRID},1,1) block=({BLOCK},1,1) lds={LDS_BYTES}\n"
        out += f"; @launch kernel=amp_kernel grid=(1,1,1) block=(64,1,1) lds=0\n"
        b = Asm()
        kernel_begin(b, "amp_kernel")
        b("s_cmp_ge_u32 s2, 1")
        b("s_cbranch_scc1 AMP_END")
        b("s_load_dwordx2 s[4:5], s[0:1], 96")
        b("s_waitcnt lgkmcnt(0)")
        b("s_sub_u32 s8, s4, 512")
        b("s_subb_u32 s9, s5, 0")
        b("s_mov_b32 s10, 256")
        b("s_mov_b32 s11, 0x00020000")
        b("v_mov_b32 v1, 0")
        b("buffer_load_dword v2, v1, s[8:11], 0 offen sc1")
        b("buffer_load_dword v3, v1, s[8:11], 0 offen offset:128 sc1")
        b("s_waitcnt vmcnt(0)")
        b("v_readfirstlane_b32 s12, v2")
        b("v_readfirstlane_b32 s13, v3")
        b("s_nop 3")
        b("s_not_b32 s13, s13")
        b("s_sub_u32 s12, s12, s13")
        b("s_min_u32 s12, s12, 10000")
        b(f"s_mul_i32 s12, s12, {int(os.environ['AMP'])}")
        b("s_memrealtime s[14:15]")
        b("s_waitcnt lgkmcnt(0)")
        b.label("AMP_L")
        b("s_memrealtime s[16:17]")
        b("s_waitcnt lgkmcnt(0)")
        b("s_sub_u32 s18, s16, s14")
        b("s_cmp_lt_u32 s18, s12")
        b("s_cbranch_scc1 AMP_L")
        b.label("AMP_END")
        b("s_endpgm")
    else:
        out += f"; @launch grid=({GRID},1,1) block=({BLOCK},1,1) lds={LDS_BYTES}\n"
    out += NOTES
    out += '.amdgcn_target "amdgcn-amd-amdhsa--gfx950"\n.text\n'
    out += body.text()
    if os.environ.get("AMP"): out += b.text()
    out += '.section .rodata,"a"\n' + kernel_desc(NAME + "_kernel", 256, 102, 128)
    if os.environ.get("AMP"): out += kernel_desc("amp_kernel", 8, 32)
    return out
if __name__ == "__main__":
    import sys
    out = sys.argv[1] if len(sys.argv) > 1 else f"cdna_kernels/{NAME}.s"
    open(out, "w").write(build())
    print("wrote", out)
```
